```python
import torch

def _softmax(x, axis=-1):
    return torch.softmax(x, dim=axis)

def _gelu(x):
    return torch.nn.functional.gelu(x, approximate='tanh')

def _silu(x):
    return torch.nn.functional.silu(x)

def _sigmoid(x):
    return torch.sigmoid(x)

def _layernorm(x, axis=-1, eps=1e-05):
    m = x.mean(dim=axis, keepdim=True)
    v = x.var(dim=axis, keepdim=True, unbiased=False)
    return (x - m) / torch.sqrt(v + eps)

def _scatter_add(tgt, idx, src, axis=0):
    return tgt.clone().index_add_(axis, idx, src)

def _segment_sum(src, seg, n):
    out = torch.zeros((n,) + src.shape[1:], dtype=src.dtype)
    return out.index_add_(0, seg, src)

def _pad(x, pw):
    flat = tuple((v for pair in reversed(pw) for v in pair))
    return torch.nn.functional.pad(x, flat)
kernel_name = 'adaLN_cond__memory_aug_recurrent_mem_tr__glu_gated_bilinear__prompt'

def setup_inputs():

    _w = lambda a: (lambda t: t.to(torch.bfloat16) if t.is_floating_point() else t)(torch.as_tensor(a))

    def _A_setup():
        B, S, Dm = (1, 2048, 640)
        H, Dh = (32, 192)
        M, seg = (8, 32)
        seg = min(seg, S)
        S = S // seg * seg
        return {'x': _w((lambda *s: torch.randn(*s, dtype=torch.bfloat16) * 0.05)(B, S, Dm)), 'mem0': _w((lambda *s: torch.randn(*s, dtype=torch.bfloat16) * 0.8)(B, M, Dm)), 'Wq': _w((lambda *s: torch.randn(*s, dtype=torch.bfloat16) * 0.8)(Dm, H, Dh) * Dm ** (-0.5)), 'Wk': _w((lambda *s: torch.randn(*s, dtype=torch.bfloat16) * 0.8)(Dm, H, Dh) * Dm ** (-0.5)), 'Wv': _w((lambda *s: torch.randn(*s, dtype=torch.bfloat16) * 0.8)(Dm, H, Dh) * Dm ** (-0.5)), 'Wo': _w((lambda *s: torch.randn(*s, dtype=torch.bfloat16) * 0.8)(H, Dh, Dm) * (H * Dh) ** (-0.5)), 'seg_len': seg}
    _A_in = _A_setup()

    def _B_setup():
        B, S, D, F = (1, 2048, 640, 1536)
        return {'x': _w((lambda *s: torch.randn(*s, dtype=torch.bfloat16) * 0.05)(B, S, D)), 'w_gate': _w((lambda *s: torch.randn(*s, dtype=torch.bfloat16) * 0.4)(D, F) * D ** (-0.5)), 'w_up': _w((lambda *s: torch.randn(*s, dtype=torch.bfloat16) * 0.4)(D, F) * D ** (-0.5)), 'w_down': _w((lambda *s: torch.randn(*s, dtype=torch.bfloat16) * 0.4)(F, D) * F ** (-0.5))}
    _B_in = _B_setup()
    return {'A_x': _A_in['x'], 'A_mem0': _A_in['mem0'], 'A_Wq': _A_in['Wq'], 'A_Wk': _A_in['Wk'], 'A_Wv': _A_in['Wv'], 'A_Wo': _A_in['Wo'], 'A_seg_len': _A_in['seg_len'], 'B_x': _B_in['x'], 'B_w_gate': _B_in['w_gate'], 'B_w_up': _B_in['w_up'], 'B_w_down': _B_in['w_down'], 'c': _w((lambda *s: torch.randn(*s, dtype=torch.bfloat16) * 0.1)(1, 640) * 8.0), 'w_mod': _w((lambda *s: torch.randn(*s, dtype=torch.bfloat16) * 0.1)(640, 6 * 640) * 640 ** (-0.5) * 8.0)}

def reference(A_x, A_mem0, A_Wq, A_Wk, A_Wv, A_Wo, A_seg_len, B_x, B_w_gate, B_w_up, B_w_down, c, w_mod):

    def _A_ref(x, mem0, Wq, Wk, Wv, Wo, seg_len):
        B, S, Dm = x.shape
        H, Dh = (Wq.shape[1], Wq.shape[2])
        M = mem0.shape[1]
        scale = Dh ** (-0.5)
        n_seg = S // seg_len
        L = M + seg_len
        idx = torch.arange(L)
        mask = (idx[:, None] < M) | (idx[:, None] >= idx[None, :])
        mem = mem0
        outs = []
        for s in range(n_seg):
            xs = x[:, s * seg_len:(s + 1) * seg_len, :].clone()
            h = torch.concatenate([mem, xs], axis=1)
            q = torch.einsum('btd,dhe->bhte', h, Wq)
            k = torch.einsum('btd,dhe->bhte', h, Wk)
            v = torch.einsum('btd,dhe->bhte', h, Wv)
            scores = torch.einsum('bhqe,bhke->bhqk', q, k) * scale
            scores = torch.where(mask[None, None], scores, -1000000000.0)
            p = _softmax(scores, axis=-1)
            o = torch.einsum('bhqk,bhke->bhqe', p, v)
            o = torch.einsum('bhte,hed->btd', o, Wo)
            mem = o[:, :M, :].clone()
            outs.append(o[:, M:, :])
        return torch.concatenate(outs, axis=1)

    def _B_ref(x, w_gate, w_up, w_down):
        g = torch.einsum('bsd,df->bsf', x, w_gate)
        u = torch.einsum('bsd,df->bsf', x, w_up)
        h = g * u
        return torch.einsum('bsf,fd->bsd', h, w_down)
    x = A_x
    mod = (_silu(c) @ w_mod).reshape(c.shape[0], 6, 1, -1)
    sa, ca, ga, sb, cb, gb = (mod[:, 0].clone(), mod[:, 1].clone(), mod[:, 2].clone(), mod[:, 3].clone(), mod[:, 4].clone(), mod[:, 5].clone())
    h = _layernorm(x, axis=-1) * (1 + ca) + sa
    x = x + ga * _A_ref(h, A_mem0, A_Wq, A_Wk, A_Wv, A_Wo, A_seg_len)
    h = _layernorm(x, axis=-1) * (1 + cb) + sb
    x = x + gb * _B_ref(h, B_w_gate, B_w_up, B_w_down)
    return x
```

```python
S_TOK, DM, NH, DH, NSEG, SEG, MM, FF = 2048, 640, 32, 192, 64, 32, 8, 1536

KA = dict(x=0, mem0=8, wq=16, wk=24, wv=32, wo=40, seglen=48, bx=56, wg=64, wu=72, wd=80, c=88, wmod=96, out=104, dbg=112, ws=120)

WS_TAB   = 0x0000000
WS_MOD   = 0x0001000
WS_FLAGS = 0x0008000
WS_HAND  = 0x0200000
WS_HAND_SIZE = 0x600000
MEM_STRIDE = 32768
P_STRIDE   = 49152
WS_MEMB  = WS_HAND
WS_PB    = WS_HAND + 0x210000
WS_H     = 0x0800000
WS_X1    = 0x0B00000
WS_H2    = 0x0E00000
WS_HM    = 0x1100000
WS_PTOK  = 0x1700000
WS_WQK   = 0x1C00000
WS_BW    = 0x2B00000
WS_KT    = 0x4400000
WS_QT    = 0x5C00000
WS_VOM   = 0x7400000
WS_VOT   = 0x8800000
WS_SIZE  = 0x10000000
assert WS_PB + 64*P_STRIDE <= WS_HAND + WS_HAND_SIZE
assert WS_MEMB + 65*MEM_STRIDE <= WS_PB

class Asm:
    def __init__(self):
        self.L = []
        self.uid = 0
    def __call__(self, s):
        for line in s.split('\n'):
            line = line.rstrip()
            if line.strip():
                self.L.append(line if line.endswith(':') and not line.startswith(' ') else '  ' + line.strip())
    def label(self, n):
        self.L.append(f'{n}:')
    def c(self, s):
        self.L.append(f'  ; {s}')
    def new(self, p='L'):
        self.uid += 1
        return f'{p}_{self.uid}'
    def text(self):
        return '\n'.join(self.L) + '\n'

def vr(b, n=4):
    return f'v[{b}:{b+n-1}]' if n > 1 else f'v{b}'
def ar(b, n=4):
    return f'a[{b}:{b+n-1}]' if n > 1 else f'a{b}'
def sr(b, n=2):
    return f's[{b}:{b+n-1}]' if n > 1 else f's{b}'

class Lgkm:
    def __init__(self, asm):
        self.asm = asm; self.q = []
    def issue(self, text, tag):
        self.asm(text); self.q.append(tag)
        assert len(self.q) <= 15, f'too many LDS ops in flight: {self.q}'
    def wait(self, tag):
        if tag not in self.q: return
        i = max(j for j, t in enumerate(self.q) if t == tag)
        n = len(self.q) - 1 - i
        self.asm(f's_waitcnt lgkmcnt({n})')
        self.q = self.q[i+1:]
    def wait_all(self):
        self.asm('s_waitcnt lgkmcnt(0)'); self.q = []

def kernel_header(A, name):
    A.L.append('.text')
    A.L.append(f'.globl {name}')
    A.L.append('.p2align 8')
    A.L.append(f'.type {name},@function')
    A.L.append(f'{name}:')

def kernel_desc(name, vgpr, accum, sgpr=100):
    return f'''.section .rodata,"a"
.p2align 6
.amdhsa_kernel {name}
  .amdhsa_next_free_vgpr {vgpr}
  .amdhsa_next_free_sgpr {sgpr}
  .amdhsa_accum_offset {accum}
  .amdhsa_group_segment_fixed_size 0
  .amdhsa_kernarg_size 128
  .amdhsa_user_sgpr_count 2
  .amdhsa_user_sgpr_kernarg_segment_ptr 1
  .amdhsa_system_sgpr_workgroup_id_x 1
  .amdhsa_float_denorm_mode_32 3
  .amdhsa_float_denorm_mode_16_64 3
.end_amdhsa_kernel
'''

def srd(A, dst, ptr, nbytes):
    A(f's_mov_b32 s{dst}, s{ptr}')
    A(f's_and_b32 s{dst+1}, s{ptr+1}, 0xffff')
    A(f's_mov_b32 s{dst+2}, {nbytes:#x}')
    A(f's_mov_b32 s{dst+3}, 0x20000')
```

```python
from common import *
from rec import Em, LG

NSLOT, DEPTH, SLOT = 4, 3, 24576

class VM:
    def __init__(self, A): self.A = A; self.q = []
    def issue(self, text, tag=None):
        self.A.i(text); self.q.append(tag)
    def wait(self, tag):
        if tag not in self.q: return
        k = max(j for j, t in enumerate(self.q) if t == tag)
        n = len(self.q) - 1 - k
        self.A.i(f's_waitcnt vmcnt({min(n, 63)})')
        self.q = self.q[k+1:] if n <= 63 else self.q[-63:]
    def wait_all(self):
        self.A.i('s_waitcnt vmcnt(0)'); self.q = []

vL16, vRdE, vRdO, vRd5 = 1, 2, 3, 4
vCur = 6
vD192, vD160 = 10, 16
vT = 22

def setup_lane(A):
    A.i('v_and_b32 v22, 63, v0')
    A.i(f'v_lshlrev_b32 v{vL16}, 4, v22')
    A.i('v_lshrrev_b32 v23, 5, v22'); A.i('v_lshlrev_b32 v23, 2, v23')
    A.i('v_and_b32 v24, 15, v22'); A.i('v_lshrrev_b32 v25, 2, v24'); A.i('v_add_u32 v23, v23, v25')
    A.i('v_lshrrev_b32 v25, 4, v22'); A.i('v_and_b32 v25, 1, v25'); A.i('v_lshlrev_b32 v25, 5, v25')
    A.i('v_and_b32 v26, 3, v24'); A.i('v_lshlrev_b32 v26, 3, v26'); A.i('v_add_u32 v25, v25, v26')
    A.i('v_mul_u32_u24 v26, 384, v23'); A.i('v_add_u32 v26, v26, v25')
    A.i('v_lshrrev_b32 v27, 1, v23'); A.i('v_and_b32 v27, 1, v27'); A.i('v_lshlrev_b32 v27, 6, v27')
    A.i(f'v_add_u32 v{vRdE}, v26, v27'); A.i(f'v_sub_u32 v{vRdO}, v26, v27')
    A.i('v_mul_u32_u24 v26, 320, v23'); A.i(f'v_add_u32 v{vRd5}, v26, v25')

def setup_dma192(A, pitch):
    A.i('v_and_b32 v22, 63, v0')
    for j in range(6):
        A.i(f's_mul_i32 s23, s16, 384'); A.i(f's_add_u32 s23, s23, {64*j}')
        A.i('v_add_u32 v23, s23, v22')
        A.i('v_mul_u32_u24 v24, 2731, v23'); A.i('v_lshrrev_b32 v24, 16, v24')
        A.i('v_mul_u32_u24 v25, 24, v24'); A.i('v_sub_u32 v25, v23, v25')
        A.i('v_lshrrev_b32 v26, 1, v24'); A.i('v_and_b32 v26, 1, v26'); A.i('v_lshlrev_b32 v26, 2, v26')
        A.i('v_xor_b32 v25, v25, v26'); A.i('v_lshlrev_b32 v25, 4, v25')
        A.i(f'v_mul_u32_u24 v24, {pitch}, v24'); A.i(f'v_add_u32 v{vD192+j}, v24, v25')

def setup_dma160(A, pitch):
    A.i('v_and_b32 v22, 63, v0')
    for j in range(5):
        A.i(f's_mul_i32 s23, s16, 320'); A.i(f's_add_u32 s23, s23, {64*j}')
        A.i('v_add_u32 v23, s23, v22')
        A.i('v_mul_u32_u24 v24, 3277, v23'); A.i('v_lshrrev_b32 v24, 16, v24')
        A.i('v_mul_u32_u24 v25, 20, v24'); A.i('v_sub_u32 v25, v23, v25'); A.i('v_lshlrev_b32 v25, 4, v25')
        A.i(f'v_mul_u32_u24 v24, {pitch}, v24'); A.i(f'v_add_u32 v{vD160+j}, v24, v25')

class Stage:
    def __init__(self, kind, srd, soff, add):
        self.kind, self.srd, self.soff, self.add = kind, srd, soff, add

class Engine:
    def __init__(self, A, vm, stages, fragbase, ldsbase=0):
        self.A, self.vm, self.stages, self.fb, self.lb = A, vm, stages, fragbase, ldsbase
        self.lg = LG(A)
        self.side = []
        self.side_rate = 2
    def dma(self, i):
        if i >= len(self.stages): return
        A, st = self.A, self.stages[i]
        n = 6 if st.kind == 192 else 5
        vb = vD192 if st.kind == 192 else vD160
        slot = self.lb + (i % NSLOT)*SLOT
        A.i(f's_mul_i32 s23, s16, {n*1024}')
        for j in range(n):
            A.i(f's_add_u32 m0, s23, {slot + j*1024}')
            if j == 0: A.i('s_nop 0')
            else: A.i(f's_nop 0')
            self.vm.issue(f'buffer_load_dwordx4 v{vb+j}, s[{st.srd}:{st.srd+3}], s{st.soff} offen lds', f'st{i}')
        if st.add: A.i(f's_add_u32 s{st.soff}, s{st.soff}, {st.add}')
    def set_bases(self, i):
        if i >= len(self.stages): return
        A, st = self.A, self.stages[i]
        slot = self.lb + (i % NSLOT)*SLOT
        p = vCur + 2*(i & 1)
        if st.kind == 192:
            A.i(f'v_add_u32 v{p}, {slot}, v{vRdE}'); A.i(f'v_add_u32 v{p+1}, {slot}, v{vRdO}')
        else:
            A.i(f'v_add_u32 v{p}, {slot}, v{vRd5}')
    def frag(self, j, t): return self.fb + (j & 1)*24 + 4*t
    def read(self, j, step, t):
        i, ksl = step['stage'], step['ksl']
        st = self.stages[i]; p = vCur + 2*(i & 1); f = self.frag(j, t)
        if st.kind == 192:
            base = p + (t & 1); pitch = 384
        else:
            base = p; pitch = 320
        o = 16*ksl*pitch + t*64
        self.lg.issue(f'ds_read_b64_tr_b16 a[{f}:{f+1}], v{base} offset:{o}', f'f{j}_{t}a')
        self.lg.issue(f'ds_read_b64_tr_b16 a[{f+2}:{f+3}], v{base} offset:{o + 8*pitch}', f'f{j}_{t}')
    def pop_side(self, n):
        while n > 0 and self.side:
            s = self.side.pop(0)
            if callable(s): s()
            else: self.A.i(s)
            n -= 1
    def flush_side(self): self.pop_side(10**9)
    def run(self, steps):
        A = self.A
        for i in range(DEPTH): self.dma(i)
        self.prologue_hook() if hasattr(self, 'prologue_hook') else None
        self.vm.wait('st0'); A.i('s_barrier')
        self.set_bases(0)
        for t in range(steps[0]['nt']): self.read(0, steps[0], t)
        for j, s in enumerate(steps):
            nxt = steps[j+1] if j+1 < len(steps) else None
            if s.get('pre'): s['pre']()
            if s['ksl'] == 2:
                i = s['stage']
                if i+1 < len(self.stages):
                    self.vm.wait(f'st{i+1}'); A.i('s_barrier')
                    self.dma(i + DEPTH)
                    self.set_bases(i+1)
            for t in range(max(s['nt'], nxt['nt'] if nxt else 0)):
                if t < s['nt']:
                    self.lg.wait(f'f{j}_{t}')
                    A.i(s['mfma'](t, f'a[{self.frag(j,t)}:{self.frag(j,t)+3}]'))
                if nxt and t < nxt['nt']: self.read(j+1, nxt, t)
                self.pop_side(self.side_rate)
            if s.get('post'): s['post']()

MF = 'v_mfma_f32_32x32x16_bf16'

def load_act(A, vm, areg, nks, soff):
    for ks in range(nks):
        if ks and ks % 4 == 0: A.i(f's_add_u32 s{soff}, s{soff}, 4096')
        vm.issue(f'buffer_load_dwordx4 a[{areg+4*ks}:{areg+4*ks+3}], v{vL16}, s[8:11], s{soff} offen offset:{(ks%4)*1024}', f'act{ks}')

def pass192_steps(stage0, acc, act, vm, first_pass):
    steps = []
    for ks in range(40):
        def mf(t, fr, ks=ks):
            c = '0' if ks == 0 else vr(acc+16*t, 16)
            return f'{MF} {vr(acc+16*t,16)}, {fr}, a[{act+4*ks}:{act+4*ks+3}], {c}'
        st = dict(stage=stage0 + ks//4, ksl=ks % 4, nt=6, mfma=mf)
        if first_pass: st['pre'] = (lambda ks=ks: vm.wait(f'act{ks}'))
        steps.append(st)
    return steps

def task_kq(A, w_ka, out_ws):
    ACT, FR, ACC = 0, 160, 32
    A.i(f's_load_dwordx2 s[6:7], s[0:1], {w_ka}')
    setup_dma192(A, 12288)
    A.i('s_waitcnt lgkmcnt(0)')
    srd(A, 12, 6, 640*12288)
    A.i('s_mul_i32 s42, s41, 384')
    A.i('s_lshl_b32 s43, s40, 2'); A.i('s_add_u32 s43, s43, s16')
    A.i(f's_mul_i32 s44, s43, {40*1024}'); A.i(f's_add_u32 s44, s44, {WS_H}')
    vm = VM(A)
    stages = [Stage(192, 12, 42, 64*12288) for _ in range(10)]
    e = Engine(A, vm, stages, FR)
    e.prologue_hook = lambda: load_act(A, vm, ACT, 40, 44)
    e.run(pass192_steps(0, ACC, ACT, vm, True))
    A.i('v_and_b32 v22, 63, v0'); A.i('v_lshrrev_b32 v23, 4, v22'); A.i('v_and_b32 v23, 1, v23'); A.i('v_mul_u32_u24 v23, 6144, v23')
    A.i('v_lshrrev_b32 v24, 5, v22'); A.i('v_lshlrev_b32 v24, 4, v24'); A.i('v_and_b32 v25, 15, v22'); A.i('v_add_u32 v24, v24, v25')
    A.i('v_lshlrev_b32 v24, 4, v24'); A.i('v_add_u32 v23, v23, v24')
    A.i('s_lshl_b32 s45, s43, 5'); A.i('s_add_u32 s45, s45, s41'); A.i('s_mul_i32 s45, s45, 12288'); A.i(f's_add_u32 s45, s45, {out_ws}')
    A.i('s_nop 7')
    for t in range(6):
        D = ACC + 16*t
        o = 24 + (t & 1)*0
        ga, gb = 24, 28
        A.i(f'v_cvt_pk_bf16_f32 v{ga}, v{D}, v{D+1}'); A.i(f'v_cvt_pk_bf16_f32 v{ga+1}, v{D+2}, v{D+3}')
        A.i(f'v_cvt_pk_bf16_f32 v{ga+2}, v{D+8}, v{D+9}'); A.i(f'v_cvt_pk_bf16_f32 v{ga+3}, v{D+10}, v{D+11}')
        A.i(f'v_cvt_pk_bf16_f32 v{gb}, v{D+4}, v{D+5}'); A.i(f'v_cvt_pk_bf16_f32 v{gb+1}, v{D+6}, v{D+7}')
        A.i(f'v_cvt_pk_bf16_f32 v{gb+2}, v{D+12}, v{D+13}'); A.i(f'v_cvt_pk_bf16_f32 v{gb+3}, v{D+14}, v{D+15}')
        if t == 4: A.i('s_add_u32 s45, s45, 4096')
        vm.issue(f'buffer_store_dwordx4 {vr(ga)}, v23, s[8:11], s45 offen offset:{(t%4)*1024}')
        vm.issue(f'buffer_store_dwordx4 {vr(gb)}, v23, s[8:11], s45 offen offset:{(t%4)*1024+512}')
        A.i('s_nop 1')
    vm.wait_all()

def vo_pass(A, e, vm, stage0, VOP, ACCS, store_tile):
    steps = []
    for cc in range(4):
        acc = ACCS[cc & 1]
        for ks in range(12):
            def mf(t, fr, ks=ks, acc=acc):
                c = '0' if ks == 0 else vr(acc+16*t, 16)
                return f'{MF} {vr(acc+16*t,16)}, {vr(VOP+4*ks)}, {fr}, {c}'
            st = dict(stage=stage0 + cc*3 + ks//4, ksl=ks % 4, nt=5, mfma=mf)
            if ks == 1 and cc > 0:
                def pre(cc=cc):
                    for t in range(5): e.side.extend(store_tile(cc-1, t, ACCS[(cc-1) & 1] + 16*t))
                st['pre'] = pre
            if ks == 11:
                st['post'] = (lambda: e.flush_side())
            steps.append(st)
    return steps

def wo_stages(srd_, soff):
    st = []
    for cc in range(4):
        for i in range(3):
            add = 64*1280 if i < 2 else (320 - 128*1280)
            st.append(Stage(160, srd_, soff, add))
    return st

def task_vvo(A):
    ACT, FR = 0, 160
    VACC, VOP, ACC0, ACC1, TMP = 32, 128, 32, 176, 112
    A.i(f's_load_dwordx2 s[6:7], s[0:1], {KA["wv"]}')
    A.i(f's_load_dwordx2 s[18:19], s[0:1], {KA["wo"]}')
    setup_dma192(A, 12288); setup_dma160(A, 1280)
    A.i('s_waitcnt lgkmcnt(0)')
    srd(A, 12, 6, 640*12288); srd(A, 28, 18, 6144*1280)
    A.i('s_mul_i32 s42, s41, 384')
    A.i(f's_mul_i32 s46, s41, {192*1280}')
    A.i('s_lshl_b32 s43, s40, 2'); A.i('s_add_u32 s43, s43, s16')
    A.i(f's_mul_i32 s44, s43, {40*1024}'); A.i(f's_add_u32 s44, s44, {WS_H}')
    vm = VM(A)
    stages = [Stage(192, 12, 42, 64*12288) for _ in range(10)] + wo_stages(28, 46)
    e = Engine(A, vm, stages, FR)
    e.prologue_hook = lambda: load_act(A, vm, ACT, 40, 44)
    steps = pass192_steps(0, VACC, ACT, vm, True)
    def conv():
        A.i('s_nop 7'); A.i('s_nop 7')
        for t in range(6):
            for a in range(2):
                for r in range(4):
                    s = VACC + 16*t + 8*a + 2*r
                    A.i(f'v_cvt_pk_bf16_f32 v{VOP + 4*(2*t+a) + r}, v{s}, v{s+1}')
        A.i('s_nop 1')
    steps[-1]['post'] = conv
    A.i('v_and_b32 v22, 63, v0'); A.i('v_and_b32 v23, 31, v22'); A.i('v_lshrrev_b32 v24, 3, v23'); A.i('v_lshlrev_b32 v24, 14, v24')
    A.i('v_lshrrev_b32 v25, 5, v22'); A.i('v_lshlrev_b32 v25, 8, v25'); A.i('v_and_b32 v23, 7, v23'); A.i('v_lshlrev_b32 v23, 4, v23')
    A.i('v_add3_u32 v21, v23, v24, v25')
    A.i(f's_mul_i32 s47, s43, {80*16384}'); A.i('s_lshr_b32 s23, s41, 1'); A.i('s_lshl_b32 s23, s23, 10'); A.i('s_add_u32 s47, s47, s23')
    A.i('s_and_b32 s23, s41, 1'); A.i('s_lshl_b32 s23, s23, 7'); A.i('s_add_u32 s47, s47, s23'); A.i(f's_add_u32 s47, s47, {WS_VOT}')
    def store_tile(cc, t, D):
        o = TMP + 8*(t & 1)
        L = []
        for q in range(4):
            L.append(f'v_cvt_pk_bf16_f32 v{o+2*q}, v{D+4*q}, v{D+4*q+1}')
            L.append(f'v_cvt_pk_bf16_f32 v{o+2*q+1}, v{D+4*q+2}, v{D+4*q+3}')
        L.append(f's_add_u32 s48, s47, {(cc*20 + t*4)*16384}')
        L.append('s_nop 0')
        for b in (0, 4):
            L.append(f'v_permlane32_swap_b32 v{o+b}, v{o+b+2}')
            L.append(f'v_permlane32_swap_b32 v{o+b+1}, v{o+b+3}')
        L.append(lambda: vm.issue(f'buffer_store_dwordx4 {vr(o)}, v21, s[8:11], s48 offen'))
        L.append(lambda: vm.issue(f'buffer_store_dwordx4 {vr(o+4)}, v21, s[8:11], s48 offen offset:512'))
        return L
    steps += vo_pass(A, e, vm, 10, VOP, (ACC0, ACC1), store_tile)
    e.run(steps)
    A.i('s_nop 7'); A.i('s_nop 7')
    for t in range(5):
        e.side.extend(store_tile(3, t, ACC1 + 16*t))
    e.flush_side()
    vm.wait_all()

def task_b(A):
    FR = 160
    VOP, ACC0, ACC1, TMP = 128, 32, 176, 112
    A.i(f's_load_dwordx2 s[6:7], s[0:1], {KA["wv"]}')
    A.i(f's_load_dwordx2 s[18:19], s[0:1], {KA["wo"]}')
    setup_dma160(A, 1280)
    A.i('s_waitcnt lgkmcnt(0)')
    srd(A, 12, 6, 640*12288); srd(A, 28, 18, 6144*1280)
    A.i(f's_mul_i32 s46, s41, {192*1280}')
    vm = VM(A)
    A.i('v_and_b32 v22, 63, v0'); A.i('v_and_b32 v23, 31, v22'); A.i('v_mul_u32_u24 v23, 12288, v23')
    A.i('v_lshrrev_b32 v24, 5, v22'); A.i('v_lshlrev_b32 v24, 4, v24'); A.i('v_add_u32 v23, v23, v24')
    A.i('s_lshl_b32 s43, s40, 2'); A.i('s_add_u32 s43, s43, s16')
    A.i(f's_mul_i32 s44, s43, {32*12288}'); A.i('s_mul_i32 s23, s41, 384'); A.i('s_add_u32 s44, s44, s23')
    e = Engine(A, vm, wo_stages(28, 46), FR)
    def hook():
        for ks in range(12):
            vm.issue(f'buffer_load_dwordx4 {vr(VOP+4*ks)}, v23, s[12:15], s44 offen offset:{32*ks}', f'act{ks}')
        vm.wait('act11')
        for ks in range(12):
            r = VOP + 4*ks
            A.i(f'v_permlane32_swap_b32 v{r}, v{r+2}'); A.i(f'v_permlane32_swap_b32 v{r+1}, v{r+3}')
        A.i('s_nop 1')
    e.prologue_hook = hook
    A.i('v_and_b32 v25, 31, v22'); A.i('v_lshrrev_b32 v26, 3, v25'); A.i('s_mov_b32 s23, 327680'); A.i('v_mul_lo_u32 v26, v26, s23')
    A.i('v_lshrrev_b32 v27, 5, v22'); A.i('v_lshlrev_b32 v27, 4, v27'); A.i('v_and_b32 v25, 7, v25'); A.i('v_add_u32 v25, v25, v27')
    A.i('s_lshr_b32 s23, s41, 2'); A.i('s_and_b32 s23, s23, 1'); A.i('s_lshl_b32 s23, s23, 3')
    A.i('v_add_u32 v25, s23, v25'); A.i('v_lshlrev_b32 v25, 4, v25'); A.i('v_add_u32 v21, v25, v26')
    A.i('s_lshr_b32 s47, s41, 3'); A.i('s_mul_i32 s47, s47, 81920'); A.i('s_and_b32 s23, s41, 3'); A.i('s_mul_i32 s23, s23, 20480'); A.i('s_add_u32 s47, s47, s23')
    A.i('s_lshl_b32 s23, s43, 10'); A.i('s_add_u32 s47, s47, s23'); A.i(f's_add_u32 s47, s47, {WS_BW}')
    def store_tile(cc, t, D):
        o = TMP + 8*(t & 1)
        L = []
        for g in range(2):
            b = D + 8*g
            L.append(f'v_cvt_pk_bf16_f32 v{o+4*g}, v{b}, v{b+1}')
            L.append(f'v_cvt_pk_bf16_f32 v{o+4*g+1}, v{b+4}, v{b+5}')
            L.append(f'v_cvt_pk_bf16_f32 v{o+4*g+2}, v{b+2}, v{b+3}')
            L.append(f'v_cvt_pk_bf16_f32 v{o+4*g+3}, v{b+6}, v{b+7}')
        L.append(f's_add_u32 s48, s47, {(cc*20 + t*4)*327680}')
        L.append(lambda: vm.issue(f'buffer_store_dwordx4 {vr(o)}, v21, s[8:11], s48 offen'))
        L.append(lambda: vm.issue(f'buffer_store_dwordx4 {vr(o+4)}, v21, s[8:11], s48 offen offset:512'))
        return L
    steps = vo_pass(A, e, vm, 0, VOP, (ACC0, ACC1), store_tile)
    e.run(steps)
    A.i('s_nop 7'); A.i('s_nop 7')
    for t in range(5):
        e.side.extend(store_tile(3, t, ACC1 + 16*t))
    e.flush_side()
    vm.wait_all()

def kernel_prolog(A, name, ngrid):
    kernel_header(A, name)
    A.i(f's_load_dwordx2 s[4:5], s[0:1], {KA["ws"]}')
    A.i(f's_cmp_ge_u32 s2, {ngrid}')
    A.i(f's_cbranch_scc1 {name}_exit')
    A.i('v_lshrrev_b32 v1, 6, v0')
    A.i('s_waitcnt lgkmcnt(0)')
    srd(A, 8, 4, WS_SIZE)
    A.i('v_readfirstlane_b32 s16, v1')

def gen_pre(name='pre_kernel'):
    A = Em()
    kernel_prolog(A, name, 1536)
    setup_lane(A)
    A.i('s_and_b32 s41, s2, 31'); A.i('s_lshr_b32 s40, s2, 5'); A.i('s_and_b32 s40, s40, 15')
    A.i('s_cmp_lt_u32 s2, 512'); A.i(f's_cbranch_scc0 {name}_kq')
    task_vvo(A)
    A.i('s_endpgm')
    A.label(f'{name}_kq')
    A.i('s_cmp_lt_u32 s2, 1024'); A.i(f's_cbranch_scc0 {name}_q')
    task_kq(A, KA['wk'], WS_KT)
    A.i('s_endpgm')
    A.label(f'{name}_q')
    task_kq(A, KA['wq'], WS_QT)
    A.label(f'{name}_exit')
    A.i('s_endpgm')
    return A.text(), kernel_desc(name, 512, 256)

def gen_bw(name='bw_kernel'):
    A = Em()
    kernel_prolog(A, name, 160)
    setup_lane(A)
    A.i('s_and_b32 s41, s2, 31'); A.i('s_lshr_b32 s40, s2, 5')
    task_b(A)
    A.label(f'{name}_exit')
    A.i('s_endpgm')
    return A.text(), kernel_desc(name, 512, 256)

if __name__ == '__main__':
    t, d = gen_pre(); t2, d2 = gen_bw()
    print('; @launch kernel=pre_kernel grid=(1536,1,1) block=(256,1,1) lds=98304')
    print('; @launch kernel=bw_kernel grid=(160,1,1) block=(256,1,1) lds=98304')
    print('.amdgcn_target "amdgcn-amd-amdhsa--gfx950"')
    print(t); print(t2); print(d); print(d2)
```

```python
from common import *
from rec import Em, LG
from gemm import *

def unpack(A, lo, hi, src):
    A.i(f'v_lshlrev_b32 v{lo}, 16, v{src}'); A.i(f'v_and_b32 v{hi}, 0xffff0000, v{src}')

def residual_epilogue(A, vm, tiles, col0_sgpr, mod_idx, res_srd, res_soff, dst_srd, dst_soff, row_sgpr, T=0):
    A.i('v_and_b32 v22, 63, v0'); A.i('v_and_b32 v23, 31, v22'); A.i(f'v_add_u32 v23, s{row_sgpr}, v23'); A.i('v_mul_u32_u24 v23, 1280, v23')
    A.i('v_lshrrev_b32 v24, 5, v22'); A.i('v_lshlrev_b32 v25, 3, v24'); A.i('v_add_u32 v23, v23, v25')
    A.i(f's_lshl_b32 s23, s{col0_sgpr}, 1'); A.i('v_add_u32 v23, s23, v23')
    A.i('v_lshlrev_b32 v24, 4, v24'); A.i(f's_lshl_b32 s23, s{col0_sgpr}, 2'); A.i('v_add_u32 v24, s23, v24')
    A.i(f's_mov_b32 s24, {WS_MOD + mod_idx*2560}')
    G, R = T, T+16
    for ti, D in enumerate(tiles):
        for q in range(4):
            vm.issue(f'buffer_load_dwordx4 {vr(G+4*q)}, v24, s[8:11], s24 offen offset:{ti*128 + q*32}', 'g')
            vm.issue(f'buffer_load_dwordx2 v[{R+2*q}:{R+2*q+1}], v23, s[{res_srd}:{res_srd+3}], {res_soff} offen offset:{ti*64 + q*16}', 'g')
        vm.wait('g')
        for q in range(4):
            d = D + 4*q
            for h2 in range(2):
                a, b = d + 2*h2, d + 2*h2 + 1
                A.i(f'v_cvt_pk_bf16_f32 v26, v{a}, v{b}'); unpack(A, a, b, 26)
                A.i(f'v_mul_f32 v{a}, v{a}, v{G+4*q+2*h2}'); A.i(f'v_mul_f32 v{b}, v{b}, v{G+4*q+2*h2+1}')
                A.i(f'v_cvt_pk_bf16_f32 v26, v{a}, v{b}'); unpack(A, a, b, 26)
                unpack(A, 27, 28, R+2*q+h2)
                A.i(f'v_add_f32 v{a}, v{a}, v27'); A.i(f'v_add_f32 v{b}, v{b}, v28')
                A.i(f'v_cvt_pk_bf16_f32 v{R+2*q+h2}, v{a}, v{b}')
            vm.issue(f'buffer_store_dwordx2 v[{R+2*q}:{R+2*q+1}], v23, s[{dst_srd}:{dst_srd+3}], {dst_soff} offen offset:{ti*64 + q*16}')
        A.i('s_nop 1')

def task_t2(A):
    ACC, AF, BF, NPF = 32, 64, 48, 12
    vm = VM(A)
    A.i('v_and_b32 v22, 63, v0'); A.i('v_lshlrev_b32 v1, 4, v22')
    A.i(f's_mul_i32 s42, s40, {32*2560}'); A.i('s_mul_i32 s23, s16, 20480'); A.i('s_add_u32 s42, s42, s23'); A.i(f's_add_u32 s42, s42, {WS_PTOK}')
    for j in range(5):
        A.i(f's_add_u32 m0, s23, {j*4096}'); A.i('s_nop 0')
        for q in range(4): vm.issue(f'buffer_load_dwordx4 v1, s[8:11], s42 offen offset:{q*1024} lds', 'p')
        A.i('s_add_u32 s42, s42, 4096')
    A.i('v_and_b32 v23, 31, v22'); A.i('v_lshrrev_b32 v24, 3, v23'); A.i('v_and_b32 v23, 7, v23'); A.i('v_lshlrev_b32 v23, 4, v23')
    A.i('v_lshrrev_b32 v25, 5, v22'); A.i('v_lshlrev_b32 v26, 8, v25'); A.i('v_add_u32 v23, v23, v26')
    A.i('v_lshlrev_b32 v26, 14, v24'); A.i('v_add_u32 v2, v23, v26')
    A.i('v_lshlrev_b32 v26, 12, v24'); A.i('v_add_u32 v3, v23, v26')
    A.i('s_lshl_b32 s43, s41, 4'); A.i('s_lshl_b32 s23, s16, 2'); A.i('s_add_u32 s43, s43, s23')
    A.i('s_mul_i32 s44, s40, 80'); A.i('s_add_u32 s44, s44, s43')
    A.i('s_lshl_b32 s45, s44, 12'); A.i(f's_add_u32 s45, s45, {WS_VOM}')
    A.i('s_lshl_b32 s44, s44, 14'); A.i(f's_add_u32 s44, s44, {WS_VOT}')
    A.i('v_mul_u32_u24 v26, 2560, v25'); A.i('v_and_b32 v27, 31, v22'); A.i('v_lshlrev_b32 v27, 4, v27'); A.i('v_add3_u32 v4, v26, v27, 0')
    A.i('v_add_u32 v4, 2048, v4')
    ks = []
    for h in range(32):
        for k in range(2): ks.append(('t', h, k))
    for v in range(16): ks.append(('m', v, 0))
    cur = {'p': 0}
    def a_issue(j):
        kind, x, k = ks[j]; r = AF + 4*(j % NPF)
        if kind == 't':
            p = x >> 1
            if p != cur['p'] and p % 4 == 0: A.i('s_add_u32 s44, s44, 4096')
            cur['p'] = p
            vm.issue(f'buffer_load_dwordx4 {vr(r)}, v2, s[8:11], s44 offen offset:{(p%4)*1024 + k*512 + (x&1)*128}', f'a{j}')
        else:
            vm.issue(f'buffer_load_dwordx4 {vr(r)}, v3, s[8:11], s45 offen offset:{(x>>2)*1024 + (x&1)*512 + ((x>>1)&1)*128}', f'a{j}')
    lg = LG(A)
    def b_issue(j):
        kind, x, k = ks[j]; r = BF + 4*(j % 4)
        if kind == 't': lg.issue(f'ds_read_b128 {vr(r)}, v1 offset:{x*2560 + k*1024}' if x*2560 + k*1024 < 65536 else f'ds_read_b128 {vr(r)}, v5 offset:{x*2560 + k*1024 - 40960}', f'b{j}')
        else: lg.issue(f'ds_read_b128 {vr(r)}, v4 offset:{2*x*2560}' if 2*x*2560 < 60000 else f'ds_read_b128 {vr(r)}, v6 offset:{2*x*2560 - 40960}', f'b{j}')
    A.i('v_add_u32 v5, 40960, v1'); A.i('v_add_u32 v6, 40960, v4')
    for j in range(NPF): a_issue(j)
    vm.wait('p'); A.i('s_barrier')
    for j in range(3): b_issue(j)
    for j in range(80):
        vm.wait(f'a{j}'); lg.wait(f'b{j}')
        c = '0' if j == 0 else vr(ACC, 16)
        A.i(f'{MF} {vr(ACC,16)}, {vr(AF+4*(j%NPF))}, {vr(BF+4*(j%4))}, {c}')
        if j + NPF < 80: a_issue(j + NPF)
        if j + 3 < 80: b_issue(j + 3)
    A.i('s_nop 7'); A.i('s_nop 7')
    A.i(f's_load_dwordx2 s[6:7], s[0:1], {KA["x"]}'); A.i('s_waitcnt lgkmcnt(0)'); srd(A, 12, 6, 2048*1280)
    A.i('s_lshl_b32 s46, s43, 3')
    A.i('s_lshl_b32 s47, s40, 5')
    A.i(f's_mov_b32 s49, {WS_X1}')
    residual_epilogue(A, vm, [ACC], 46, 2, 12, '0', 8, 's49', 47, T=64)
    vm.wait_all()

def gen_t2(name='t2_kernel'):
    A = Em()
    kernel_prolog(A, name, 320)
    A.i('s_nop 3')
    A.i('s_mul_i32 s40, s2, 0x3334'); A.i('s_lshr_b32 s40, s40, 16'); A.i('s_mul_i32 s23, s40, 5'); A.i('s_sub_u32 s41, s2, s23')
    task_t2(A)
    A.label(f'{name}_exit')
    A.i('s_endpgm')
    return A.text(), kernel_desc(name, 128, 128)

def task_ffn1(A):
    ACT, FR, ACCG, ACCU = 0, 160, 32, 128
    A.i(f's_load_dwordx2 s[6:7], s[0:1], {KA["wg"]}'); A.i(f's_load_dwordx2 s[18:19], s[0:1], {KA["wu"]}')
    setup_dma192(A, 3072)
    A.i('s_waitcnt lgkmcnt(0)')
    srd(A, 12, 6, 640*3072); srd(A, 28, 18, 640*3072)
    A.i('s_mul_i32 s42, s41, 384'); A.i('s_mov_b32 s46, s42')
    A.i('s_lshl_b32 s43, s40, 2'); A.i('s_add_u32 s43, s43, s16')
    A.i(f's_mul_i32 s44, s43, {40*1024}'); A.i(f's_add_u32 s44, s44, {WS_H2}')
    vm = VM(A)
    stages = [Stage(192, 12, 42, 64*3072) for _ in range(10)] + [Stage(192, 28, 46, 64*3072) for _ in range(10)]
    e = Engine(A, vm, stages, FR)
    e.prologue_hook = lambda: load_act(A, vm, ACT, 40, 44)
    steps = pass192_steps(0, ACCG, ACT, vm, True) + pass192_steps(10, ACCU, ACT, vm, False)
    e.run(steps)
    A.i('s_nop 7'); A.i('s_nop 7')
    A.i(f's_mul_i32 s45, s43, {96*1024}'); A.i(f's_mul_i32 s23, s41, {12*1024}'); A.i('s_add_u32 s45, s45, s23'); A.i(f's_add_u32 s45, s45, {WS_HM}')
    for t in range(6):
        for a in range(2):
            o = 24 if a == 0 else 28
            for r in range(4):
                g = ACCG + 16*t + 8*a + 2*r; u = ACCU + 16*t + 8*a + 2*r
                A.i(f'v_cvt_pk_bf16_f32 v22, v{g}, v{g+1}'); unpack(A, g, g+1, 22)
                A.i(f'v_cvt_pk_bf16_f32 v22, v{u}, v{u+1}'); unpack(A, u, u+1, 22)
                A.i(f'v_mul_f32 v{g}, v{g}, v{u}'); A.i(f'v_mul_f32 v{g+1}, v{g+1}, v{u+1}')
                A.i(f'v_cvt_pk_bf16_f32 v{o+r}, v{g}, v{g+1}')
            ks = 2*t + a
            if ks and ks % 4 == 0: A.i('s_add_u32 s45, s45, 4096')
            vm.issue(f'buffer_store_dwordx4 {vr(o)}, v{vL16}, s[8:11], s45 offen offset:{(ks%4)*1024}')
    vm.wait_all()

def task_ffn2(A):
    FR, ACC, AF, NPF = 160, 32, 0, 16
    A.i(f's_load_dwordx2 s[18:19], s[0:1], {KA["wd"]}'); A.i(f's_load_dwordx2 s[6:7], s[0:1], {KA["out"]}')
    setup_dma160(A, 1280)
    A.i('s_waitcnt lgkmcnt(0)')
    srd(A, 28, 18, 1536*1280); srd(A, 12, 6, 2048*1280)
    A.i('s_mul_i32 s46, s41, 320')
    A.i('s_lshl_b32 s43, s40, 2'); A.i('s_add_u32 s43, s43, s16')
    A.i(f's_mul_i32 s44, s43, {96*1024}'); A.i(f's_add_u32 s44, s44, {WS_HM}')
    vm = VM(A)
    stages = [Stage(160, 28, 46, 64*1280) for _ in range(24)]
    e = Engine(A, vm, stages, FR)
    def act_issue(ks):
        if ks >= 96: return
        if ks and ks % 4 == 0: A.i('s_add_u32 s44, s44, 4096')
        r = AF + 4*(ks % NPF)
        vm.issue(f'buffer_load_dwordx4 a[{r}:{r+3}], v{vL16}, s[8:11], s44 offen offset:{(ks%4)*1024}', f'act{ks}')
    e.prologue_hook = lambda: [act_issue(k) for k in range(NPF)]
    steps = []
    for ks in range(96):
        def mf(t, fr, ks=ks):
            c = '0' if ks == 0 else vr(ACC+16*t, 16)
            r = AF + 4*(ks % NPF)
            return f'{MF} {vr(ACC+16*t,16)}, {fr}, a[{r}:{r+3}], {c}'
        steps.append(dict(stage=ks//4, ksl=ks % 4, nt=5, mfma=mf, pre=(lambda ks=ks: vm.wait(f'act{ks}')), post=(lambda ks=ks: act_issue(ks+NPF))))
    e.run(steps)
    A.i('s_nop 7'); A.i('s_nop 7')
    A.i('s_mul_i32 s46, s41, 160'); A.i('s_lshl_b32 s47, s43, 5'); A.i(f's_mov_b32 s49, {WS_X1}')
    residual_epilogue(A, vm, [ACC+16*t for t in range(5)], 46, 5, 8, 's49', 12, '0', 47, T=128)
    vm.wait_all()

def gen_ffn1(name='ffn1_kernel'):
    A = Em()
    kernel_prolog(A, name, 128)
    setup_lane(A)
    A.i('s_and_b32 s41, s2, 7'); A.i('s_lshr_b32 s40, s2, 3')
    task_ffn1(A)
    A.label(f'{name}_exit')
    A.i('s_endpgm')
    return A.text(), kernel_desc(name, 512, 256)

def gen_ffn2(name='ffn2_kernel'):
    A = Em()
    kernel_prolog(A, name, 64)
    setup_lane(A)
    A.i('s_and_b32 s41, s2, 3'); A.i('s_lshr_b32 s40, s2, 2')
    task_ffn2(A)
    A.label(f'{name}_exit')
    A.i('s_endpgm')
    return A.text(), kernel_desc(name, 512, 256)
```

```python
from common import *

NS, NC = 32, 80
SPIN_MAX = 0x400000
LOG2E = 1.4426950408889634
import struct
def fbits(x): return struct.unpack('<I', struct.pack('<f', x))[0]

class Em(Asm):
    def __init__(self):
        super().__init__(); self.n = 0; self.marks = {}
    def i(self, s):
        for line in s.split('\n'):
            if line.strip():
                self(line)
                t = line.strip()
                if t.startswith('s_nop'): self.n += int(t.split()[1]) + 1
                elif not t.endswith(':') and not t.startswith(';'): self.n += 1
    def mark(self, k): self.marks[k] = self.n
    def need(self, k, d):
        if k not in self.marks: return
        have = self.n - self.marks[k]
        if have < d:
            r = d - have
            while r > 0:
                q = min(r, 16); self.i(f's_nop {q-1}'); r -= q

class LG(Lgkm):
    def issue(self, text, tag):
        self.asm.i(text); self.q.append(tag)
        assert len(self.q) <= 15, f'too many LDS ops in flight: {self.q}'
    def wait(self, tag):
        if tag not in self.q: return
        k = max(j for j, t in enumerate(self.q) if t == tag)
        self.asm.i(f's_waitcnt lgkmcnt({len(self.q)-1-k})'); self.q = self.q[k+1:]
    def wait_all(self):
        self.asm.i('s_waitcnt lgkmcnt(0)'); self.q = []

def remap(A, v, tmp):
    A.i(f'v_lshrrev_b32 v{tmp}, 13, v{v}')
    A.i(f'v_lshlrev_b32 v{tmp}, 14, v{tmp}')
    A.i(f'v_and_b32 v{v}, 0x1fff, v{v}')
    A.i(f'v_add_u32 v{v}, v{v}, v{tmp}')

S_WRES, S_KQ, S_MEM, S_X = 0, 98304, 147456, 157696
C_MEM, C_RED = 0, 16384

def gather_mem(A, lbl, fail, gv, lv0, lv2, t0):
    A.i('s_mov_b32 s22, 0')
    A.label(lbl)
    for j in range(3):
        A.i(f'buffer_load_dwordx4 {vr(t0+4*j)}, v{gv+j}, s[8:11], s18 offen sc1')
    A.i('s_add_u32 s22, s22, 1')
    A.i(f's_cmp_gt_u32 s22, {SPIN_MAX}')
    A.i(f's_cbranch_scc1 {fail}')
    x, y = t0+12, t0+13
    A.i('s_waitcnt vmcnt(1)')
    A.i(f'v_max3_u32 v{x}, v{t0}, v{t0+1}, v{t0+2}')
    A.i(f'v_max3_u32 v{y}, v{t0+3}, v{t0+4}, v{t0+5}')
    A.i(f'v_max3_u32 v{x}, v{t0+6}, v{t0+7}, v{x}')
    A.i('s_waitcnt vmcnt(0)')
    A.i(f'v_max3_u32 v{y}, v{t0+8}, v{t0+9}, v{y}')
    A.i(f'v_max3_u32 v{x}, v{t0+10}, v{t0+11}, v{x}')
    A.i(f'v_max_u32 v{x}, v{x}, v{y}')
    A.i(f'v_cmp_eq_u32 vcc, -1, v{x}')
    A.i(f's_cbranch_vccnz {lbl}')
    A.i(f'ds_write_b128 v{lv0}, {vr(t0)}')
    A.i(f'ds_write_b128 v{lv0}, {vr(t0+4)} offset:4096')
    A.i(f'ds_write_b128 v{lv2}, {vr(t0+8)}')
    A.i('s_waitcnt lgkmcnt(0)')
    A.i('s_barrier')

def setup_gather_addrs(A, gv, lv0, lv2, ldsbase, tmp):
    A.i(f'v_lshlrev_b32 v{gv}, 4, v0')
    A.i(f'v_add_u32 v{gv+1}, 4096, v{gv}')
    A.i(f'v_add_u32 v{gv+2}, 16384, v{gv}')
    A.i(f'v_add_u32 v{lv0}, {ldsbase}, v{gv}')
    A.i(f'v_add_u32 v{lv2}, {ldsbase+8192}, v{gv}')
    A.i('v_cmp_gt_u32 vcc, 128, v0')
    A.i('s_nop 1')
    A.i(f'v_cndmask_b32 v{gv+2}, v{gv}, v{gv+2}, vcc')
    A.i(f'v_cndmask_b32 v{lv2}, v{lv0}, v{lv2}, vcc')

def xlane_reduce(A, op, x, t):
    A.i(f'v_mov_b32 v{t}, v{x}')
    A.i('s_nop 1')
    A.i(f'v_permlane16_swap_b32 v{x}, v{t}')
    A.i(f'{op} v{x}, v{x}, v{t}')
    A.i(f'v_mov_b32 v{t}, v{x}')
    A.i('s_nop 1')
    A.i(f'v_permlane32_swap_b32 v{x}, v{t}')
    A.i(f'{op} v{x}, v{x}, v{t}')

def s_wloc(tt, kk):
    lds = {(0,2):0,(1,4):1,(0,6):2,(1,8):3}
    key = (tt & 1, kk)
    if key in lds: return ('l', (tt >> 1)*4 + lds[key])
    idx = 0
    for t in range(6):
        for k in range(10):
            if (t & 1, k) in lds: continue
            if (t, k) == (tt, kk):
                return ('a', idx*8) if idx < 32 else ('v', 128 + (idx-32)*8)
            idx += 1

def gen_S(A, nsteps):
    vL16, vG, vLm0, vLm2, vAr, vWr, vXw, vB, vXk, vKt, vPu, vP0, vIdx = 1, 2, 5, 6, 7, 8, 9, 10, 11, 12, 13, 14, 15
    RA, RST, RACC, RAIN, RD3, RSC, RSEL, RCI = 16, 56, 72, 96, 100, 104, 116, 120
    T0, T1, T2, VNINF = 124, 125, 126, 127
    A.label('S_role')
    A.c('---- score role setup; s3 = head')
    A.i('v_and_b32 v16, 63, v0')
    A.i(f'v_lshlrev_b32 v{vL16}, 4, v16')
    setup_gather_addrs(A, vG, vLm0, vLm2, S_MEM, 17)
    A.i(f'v_add_u32 v{vAr}, {S_MEM}, v{vL16}')
    A.i(f's_mul_i32 s23, s16, 24576')
    A.i(f'v_add_u32 v{vWr}, s23, v{vL16}')
    A.i('v_and_b32 v17, 15, v16'); A.i('v_lshrrev_b32 v18, 4, v16'); A.i('v_and_b32 v19, 7, v16')
    A.i('s_mul_i32 s23, s16, 3')
    A.i('s_lshr_b32 s24, s23, 1'); A.i('s_lshl_b32 s24, s24, 10'); A.i('s_and_b32 s25, s23, 1'); A.i('s_lshl_b32 s25, s25, 3')
    A.i('s_add_u32 s24, s24, s25'); A.i(f's_add_u32 s24, s24, {S_X}')
    A.i(f'v_add_u32 v{vXw}, s24, v{vL16}')
    A.i('s_and_b32 s25, s16, 1')
    A.i('s_cmp_eq_u32 s25, 0')
    A.i('s_cselect_b32 s40, 8, 1016')
    A.i('s_mov_b32 s41, 1024')
    A.i(f'v_lshlrev_b32 v20, 4, v18'); A.i('v_add_u32 v20, v20, v19')
    A.i(f'v_lshlrev_b32 v20, 4, v20')
    A.i(f'v_add_u32 v{vXk}, {S_X+128}, v20')
    A.i(f'v_add_u32 v{vB}, {S_X}, v20')
    A.i('s_cmp_eq_u32 s16, 0')
    lab = A.new('S_notq')
    A.i(f's_cbranch_scc1 {lab}')
    A.i('s_sub_u32 s23, s16, 2'); A.i('s_mul_i32 s23, s23, 6144'); A.i(f's_add_u32 s23, s23, {S_KQ+12288}')
    A.i(f'v_add_u32 v{vB}, s23, v{vL16}')
    A.label(lab)
    A.i(f'v_add_u32 v{vKt}, {S_KQ}, v{vL16}')
    A.i('s_mov_b32 s36, 24576')
    A.i('v_and_b32 v20, 8, v16'); A.i('v_cmp_eq_u32 vcc, 0, v20')
    A.i(f'v_mov_b32 v{vIdx}, 0xeeee'); A.i('v_mov_b32 v21, 0x4444'); A.i('s_nop 0')
    A.i(f'v_cndmask_b32 v{vIdx}, v{vIdx}, v21, vcc')
    A.i('v_lshlrev_b32 v20, 2, v18'); A.i('v_and_b32 v20, 7, v20')
    A.i('v_sub_u32 v21, v17, v20')
    A.i('v_subrev_u32 v22, 8, v21')
    ONE = 0x3f80
    for r in range(4):
        src = 21 if r < 2 else 22
        e0 = (r & 1)*2
        A.i(f'v_cmp_eq_u32 vcc, {e0}, v{src}'); A.i('v_mov_b32 v23, 0'); A.i(f'v_mov_b32 v24, {ONE:#x}')
        A.i('v_cndmask_b32 v25, v23, v24, vcc')
        A.i(f'v_cmp_eq_u32 vcc, {e0+1}, v{src}'); A.i(f'v_mov_b32 v24, {ONE<<16:#x}'); A.i('s_nop 0')
        A.i('v_cndmask_b32 v26, v23, v24, vcc')
        A.i(f'v_or_b32 v{RSEL+r}, v25, v26')
    A.i(f'v_mov_b32 v{VNINF}, 0xff800000')
    A.i('v_cmp_gt_u32 vcc, 32, v16'); A.i('s_nop 3'); A.i('s_mov_b64 s[42:43], vcc')
    A.i('v_and_b32 v20, 8, v16'); A.i('v_cmp_eq_u32 vcc, 0, v20'); A.i('s_nop 3'); A.i('s_and_b64 s[44:45], vcc, s[42:43]')
    A.i('s_cmp_eq_u32 s16, 0'); A.i('s_cselect_b64 s[42:43], s[44:45], s[42:43]')
    A.i('v_mov_b32 v23, 0'); A.i('s_nop 1')
    for r in range(4): A.i(f'v_cndmask_b32 v{RCI+r}, v{VNINF}, v23, s[42:43]')
    A.i('s_mov_b32 s26, 0xff00ff00'); A.i('s_mov_b32 s27, 0xff00ff00')
    A.i('v_lshlrev_b32 v20, 2, v18')
    for r in range(4):
        A.i(f'v_add_u32 v21, {r}, v20'); A.i('v_cmp_le_u32 vcc, v21, v17'); A.i('s_nop 3'); A.i('s_mov_b64 s[44:45], vcc')
        A.i('s_cmp_eq_u32 s16, 2')
        A.i(f's_cselect_b64 s[{48+2*r}:{49+2*r}], s[44:45], -1')
        A.i(f's_cselect_b64 s[{56+2*r}:{57+2*r}], 0, s[44:45]')
    A.i('s_mul_i32 s23, s3, 640')
    A.i('v_lshrrev_b32 v20, 3, v16'); A.i('v_and_b32 v20, 1, v20'); A.i('v_lshlrev_b32 v20, 1, v20')
    A.i('v_lshrrev_b32 v21, 1, v18'); A.i('v_add3_u32 v20, v20, v21, 1')
    A.i('v_lshlrev_b32 v20, 7, v20'); A.i('v_lshlrev_b32 v21, 4, v19'); A.i('v_add_u32 v20, v20, v21')
    A.i('v_and_b32 v21, 1, v18'); A.i('v_lshlrev_b32 v21, 3, v21')
    A.i(f'v_add3_u32 v{vPu}, v20, v21, s23')
    remap(A, vPu, 22)
    A.i('v_lshlrev_b32 v20, 4, v19'); A.i('v_lshlrev_b32 v21, 3, v18'); A.i(f'v_add3_u32 v{vP0}, v20, v21, s23')
    remap(A, vP0, 22)
    A.i('v_cmp_gt_u32 vcc, 32, v16'); A.i('s_nop 3'); A.i('s_mov_b64 s[44:45], vcc')
    A.i('v_and_b32 v20, 8, v16'); A.i('v_cmp_eq_u32 vcc, 0, v20'); A.i('s_nop 3'); A.i('s_and_b64 s[44:45], vcc, s[44:45]')
    A.i('v_mov_b32 v22, 0x80000000'); A.i('s_nop 0')
    A.i(f'v_cndmask_b32 v{vP0}, v22, v{vP0}, s[44:45]')
    lab = A.new('S_tokoff')
    A.i('s_cmp_lt_u32 s16, 2'); A.i(f's_cbranch_scc1 {lab}')
    A.i('s_sub_u32 s23, s16, 2'); A.i('s_lshl_b32 s23, s23, 4')
    A.i('v_add_u32 v20, s23, v17')
    A.i('v_lshrrev_b32 v21, 1, v18'); A.i('v_lshlrev_b32 v21, 5, v21'); A.i('v_add_u32 v21, v21, v20'); A.i('v_lshlrev_b32 v21, 4, v21')
    A.i('v_and_b32 v22, 1, v18'); A.i('v_lshlrev_b32 v22, 3, v22')
    A.i(f'v_add_u32 v{vPu}, v21, v22')
    A.i('v_lshlrev_b32 v21, 4, v20'); A.i('v_lshlrev_b32 v22, 3, v18'); A.i('v_add_u32 v21, v21, v22')
    A.i(f'v_add_u32 v{vP0}, 2048, v21')
    A.i('v_cmp_gt_u32 vcc, 32, v16'); A.i('v_mov_b32 v22, 0x80000000'); A.i('s_nop 0')
    A.i(f'v_cndmask_b32 v{vP0}, v22, v{vP0}, vcc')
    A.label(lab)
    A.c('weights: fragments prepared by the prep launch')
    A.i(f's_mul_i32 s23, s3, 491520'); A.i('s_mul_i32 s24, s16, 122880'); A.i('s_add_u32 s23, s23, s24'); A.i(f's_add_u32 s23, s23, {WS_WQK}')
    cnt = 0
    for tt in range(6):
        for kk in range(10):
            kind, r = s_wloc(tt, kk)
            if kind == 'l':
                A.i(f's_mul_i32 s24, s16, 24576'); A.i(f's_add_u32 m0, s24, {S_WRES + r*2048}'); A.i('s_nop 0')
                A.i(f'buffer_load_dwordx4 v{vL16}, s[8:11], s23 offen lds')
                A.i(f'buffer_load_dwordx4 v{vL16}, s[8:11], s23 offen offset:1024 lds')
            else:
                f = ar if kind == 'a' else vr
                A.i(f'buffer_load_dwordx4 {f(r)}, v{vL16}, s[8:11], s23 offen')
                A.i(f'buffer_load_dwordx4 {f(r+4)}, v{vL16}, s[8:11], s23 offen offset:1024')
            A.i('s_add_u32 s23, s23, 2048')
            cnt += 2
            if cnt % 16 == 0: A.i('s_waitcnt vmcnt(32)')
    A.i(f's_mul_i32 s20, s3, 12288'); A.i(f's_add_u32 s21, s20, {WS_QT}'); A.i(f's_add_u32 s20, s20, {WS_KT}')
    A.i(f's_mul_i32 s37, s3, 2560'); A.i(f's_add_u32 s37, s37, {WS_PTOK}')
    A.i(f's_mov_b32 s38, {S_KQ}')
    def kq_dma():
        for which, so in ((0, 's20'), (1, 's21')):
            for blk in range(3):
                A.i(f's_add_u32 m0, s38, {which*12288 + blk*4096}')
                A.i(f's_add_u32 s23, {so}, {blk*4096}')
                for q in range(4):
                    A.i(f'buffer_load_dwordx4 v{vL16}, s[8:11], s23 offen offset:{q*1024} lds')
    lab = A.new('S_nodma0')
    A.i('s_cmp_eq_u32 s16, 1'); A.i(f's_cbranch_scc0 {lab}')
    kq_dma()
    A.label(lab)
    A.i(f's_add_u32 s20, s20, {32*12288}'); A.i(f's_add_u32 s21, s21, {32*12288}')
    A.i(f's_add_u32 s38, s38, s36')
    for r in range(24): A.i(f'v_mov_b32 v{RACC+r}, 0')
    A.i(f's_mov_b32 s24, {fbits(DH**-0.5*LOG2E):#x}')
    A.i('s_waitcnt vmcnt(0)')
    A.i('s_barrier')

    A.label('S_loop')
    gather_mem(A, 'S_poll', 'R_fail', vG, vLm0, vLm2, RA)
    lg = LG(A)
    Areg = lambda kk: RA + 4*kk
    for kk in range(10):
        lg.issue(f'ds_read_b128 {vr(Areg(kk))}, v{vAr} offset:{kk*1024}', f'A{kk}')
    def wstage_issue(p, which):
        slot = p*4 + which; st = RST + 8*(which & 1)
        lg.issue(f'ds_read_b128 {vr(st)}, v{vWr} offset:{slot*2048}', f'W{slot}a')
        lg.issue(f'ds_read_b128 {vr(st+4)}, v{vWr} offset:{slot*2048+1024}', f'W{slot}')
    wstage_issue(0, 0)
    ktreg = lambda j: Areg(j) if j < 10 else RST + 4*(j-10)
    def kt_issue(j):
        T, kq = j & 1, j >> 1
        lg.issue(f'ds_read_b128 {vr(ktreg(j))}, v{vKt} offset:{(T*6+kq)*1024}', f'K{j}')
    def T_cvt1(p, r):
        src = RACC + 8*p + (0 if r < 2 else 4) + 2*(r & 1)
        A.need(f'acc{p}', 8)
        A.i(f'v_cvt_pk_bf16_f32 v{RAIN+r}, v{src}, v{src+1}'); A.mark('ain')
    def T_mfma(p):
        A.need('ain', 2)
        A.i(f'v_mfma_f32_16x16x32_bf16 {vr(RD3)}, {vr(RAIN)}, {vr(RSEL)}, 0'); A.mark('d3')
    def T_cvt2(p):
        A.need('d3', 8)
        A.i(f'v_cvt_pk_bf16_f32 v{T0}, v{RD3}, v{RD3+1}')
        A.i(f'v_cvt_pk_bf16_f32 v{T0+1}, v{RD3+2}, v{RD3+3}')
    def T_write(p):
        if p == 0:
            lg.issue(f'ds_write_b64 v{vXw}, v[{T0}:{T0+1}]', f'X{p}')
        else:
            A.i(f'v_add_u32 v{T2}, s{39+p}, v{vXw}')
            lg.issue(f'ds_write_b64 v{T2}, v[{T0}:{T0+1}]', f'X{p}')
    for p in range(3):
        for pos in range(20):
            kk, isk = pos >> 1, pos & 1
            tt = 2*p + isk
            kind, r = s_wloc(tt, kk)
            if p == 0 and isk == 0: lg.wait(f'A{kk}')
            if kind == 'l':
                which = r - p*4
                lg.wait(f'W{r}')
                breg = vr(RST + 8*(which & 1), 8)
            else:
                breg = (ar if kind == 'a' else vr)(r, 8)
            A.i(f'v_smfmac_f32_16x16x64_bf16 {vr(RACC+4*tt)}, {vr(Areg(kk))}, {breg}, v{vIdx}')
            if pos == 19: A.mark(f'acc{p}')
            if pos == 0: wstage_issue(p, 1)
            if pos == 6: wstage_issue(p, 2)
            if pos == 11: wstage_issue(p, 3)
            if pos == 14 and p < 2: wstage_issue(p+1, 0)
            if p > 0:
                q = p-1
                if 4 <= pos <= 7: T_cvt1(q, pos-4)
                if pos == 9: T_mfma(q)
                if pos == 15: T_cvt2(q)
                if pos == 16: T_write(q)
            if p == 2:
                if pos >= 2 and pos % 2 == 0: kt_issue(pos//2 - 1)
                if pos == 13: kt_issue(10)
                if pos == 15: kt_issue(11)
    kt_issue(9)
    for r in range(4): T_cvt1(2, r)
    T_mfma(2)
    T_cvt2(2)
    T_write(2)
    lg.wait_all()
    A.i('s_barrier')
    A.i('s_cmp_eq_u32 s16, 1')
    A.i('s_cbranch_scc1 S_wave1')
    lg = LG(A)
    xb = lambda b: RACC + 8*b
    def x_issue(kq):
        b = kq % 3
        lg.issue(f'ds_read_b128 {vr(xb(b))}, v{vB} offset:{kq*1024}', f'B{kq}')
        lg.issue(f'ds_read_b128 {vr(xb(b)+4)}, v{vXk} offset:{kq*1024}', f'Xk{kq}')
    for kq in range(3): x_issue(kq)
    D0, D1, D2 = RSC, RSC+4, RSC+8
    for kq in range(6):
        b = kq % 3
        lg.wait(f'Xk{kq}')
        c0 = vr(RCI) if kq == 0 else vr(D0)
        c1 = '0' if kq == 0 else vr(D1)
        c2 = '0' if kq == 0 else vr(D2)
        A.i(f'v_mfma_f32_16x16x32_bf16 {vr(D1)}, {vr(ktreg(2*kq))}, {vr(xb(b))}, {c1}')
        A.i(f'v_mfma_f32_16x16x32_bf16 {vr(D2)}, {vr(ktreg(2*kq+1))}, {vr(xb(b))}, {c2}')
        A.i(f'v_mfma_f32_16x16x32_bf16 {vr(D0)}, {vr(xb(b)+4)}, {vr(xb(b))}, {c0}')
        if kq < 3: x_issue(kq+3)
    A.mark('sc')
    A.i('s_cmp_eq_u32 s16, 0')
    A.i('s_cbranch_scc0 S_tok')
    A.c('memory queries')
    U = RACC
    MX, TT, E = RAIN, RAIN+1, RACC+8
    A.need('sc', 8)
    for r in range(4): A.i(f'v_cndmask_b32 v{U+r}, v{D1+r}, v{D2+r}, s[26:27]')
    A.i(f'v_max3_f32 v{MX}, v{D0}, v{D0+1}, v{D0+2}')
    A.i(f'v_max3_f32 v{TT}, v{U}, v{U+1}, v{U+2}')
    A.i(f'v_max3_f32 v{MX}, v{MX}, v{D0+3}, v{U+3}')
    A.i(f'v_max_f32 v{MX}, v{MX}, v{TT}')
    A.i('s_nop 1')
    A.i(f'v_max_f32_dpp v{MX}, v{MX}, v{MX} row_ror:8 row_mask:0xf bank_mask:0xf')
    xlane_reduce(A, 'v_max_f32', MX, TT)
    A.i(f'v_mul_f32 v{MX}, s24, v{MX}')
    vals = [U, U+1, U+2, U+3, D0, D0+1, D0+2, D0+3]
    for j, s in enumerate(vals): A.i(f'v_fma_f32 v{E+j}, v{s}, s24, -v{MX}')
    for j in range(8): A.i(f'v_exp_f32 v{E+j}, v{E+j}')
    SM = RAIN+2
    A.i(f'v_add_f32 v{SM}, v{E}, v{E+1}'); A.i(f'v_add_f32 v{TT}, v{E+2}, v{E+3}')
    A.i(f'v_add_f32 v{MX}, v{E+4}, v{E+5}'); A.i(f'v_add_f32 v{SM+1}, v{E+6}, v{E+7}')
    A.i(f'v_add_f32 v{SM}, v{SM}, v{TT}'); A.i(f'v_add_f32 v{MX}, v{MX}, v{SM+1}')
    A.i(f'v_add_f32 v{SM}, v{SM}, v{MX}')
    A.i('s_nop 1')
    A.i(f'v_add_f32_dpp v{SM}, v{SM}, v{SM} row_ror:8 row_mask:0xf bank_mask:0xf')
    xlane_reduce(A, 'v_add_f32', SM, TT)
    A.i(f'v_rcp_f32 v{SM}, v{SM}')
    A.i('s_nop 0')
    for j in range(8): A.i(f'v_mul_f32 v{E+j}, v{E+j}, v{SM}')
    A.i(f'v_cvt_pk_bf16_f32 v{U}, v{E}, v{E+1}'); A.i(f'v_cvt_pk_bf16_f32 v{U+1}, v{E+2}, v{E+3}')
    A.i(f'buffer_store_dwordx2 v[{U}:{U+1}], v{vPu}, s[8:11], s19 offen sc1')
    A.i(f'v_cvt_pk_bf16_f32 v{U+2}, v{E+4}, v{E+5}'); A.i(f'v_cvt_pk_bf16_f32 v{U+3}, v{E+6}, v{E+7}')
    A.i(f'buffer_store_dwordx2 v[{U+2}:{U+3}], v{vP0}, s[8:11], s19 offen sc1')
    A.i('s_branch S_end')
    A.label('S_tok')
    A.i('s_nop 7')
    for r in range(4):
        A.i(f'v_cndmask_b32 v{D1+r}, v{VNINF}, v{D1+r}, s[{48+2*r}:{49+2*r}]')
        A.i(f'v_cndmask_b32 v{D2+r}, v{VNINF}, v{D2+r}, s[{56+2*r}:{57+2*r}]')
    A.i(f'v_max3_f32 v{MX}, v{D0}, v{D0+1}, v{D0+2}')
    A.i(f'v_max3_f32 v{TT}, v{D1}, v{D1+1}, v{D1+2}')
    A.i(f'v_max3_f32 v{MX}, v{MX}, v{D0+3}, v{D1+3}')
    A.i(f'v_max3_f32 v{TT}, v{TT}, v{D2}, v{D2+1}')
    A.i(f'v_max3_f32 v{MX}, v{MX}, v{D2+2}, v{D2+3}')
    A.i(f'v_max_f32 v{MX}, v{MX}, v{TT}')
    xlane_reduce(A, 'v_max_f32', MX, TT)
    A.i(f'v_mul_f32 v{MX}, s24, v{MX}')
    E = RACC
    for j in range(12): A.i(f'v_fma_f32 v{E+j}, v{D0+j}, s24, -v{MX}')
    for j in range(12): A.i(f'v_exp_f32 v{E+j}, v{E+j}')
    A.i(f'v_add_f32 v{SM}, v{E}, v{E+1}')
    for j in range(2, 12): A.i(f'v_add_f32 v{SM}, v{SM}, v{E+j}')
    xlane_reduce(A, 'v_add_f32', SM, TT)
    A.i(f'v_rcp_f32 v{SM}, v{SM}')
    A.i('s_nop 0')
    for j in range(12): A.i(f'v_mul_f32 v{E+j}, v{E+j}, v{SM}')
    O = RACC+12
    for j in range(6): A.i(f'v_cvt_pk_bf16_f32 v{O+j}, v{E+2*j}, v{E+2*j+1}')
    A.i(f'buffer_store_dwordx2 v[{O}:{O+1}], v{vP0}, s[8:11], s37 offen')
    A.i(f'buffer_store_dwordx2 v[{O+2}:{O+3}], v{vPu}, s[8:11], s37 offen')
    A.i(f'buffer_store_dwordx2 v[{O+4}:{O+5}], v{vPu}, s[8:11], s37 offen offset:1024')
    A.i('s_branch S_end')
    A.label('S_wave1')
    A.i(f's_cmp_ge_u32 s17, {nsteps-1}')
    A.i('s_cbranch_scc1 S_end')
    kq_dma()
    A.label('S_end')
    A.i('s_nop 1')
    for r in range(24): A.i(f'v_mov_b32 v{RACC+r}, 0')
    A.i(f'v_add_u32 v{vKt}, s36, v{vKt}')
    A.i('s_cmp_eq_u32 s16, 0'); A.i('s_cselect_b32 s23, 0, s36')
    A.i(f'v_add_u32 v{vB}, s23, v{vB}')
    A.i('s_sub_u32 s38, s38, s36')
    A.i('s_sub_u32 s36, 0, s36')
    A.i(f's_add_u32 s20, s20, {32*12288}'); A.i(f's_add_u32 s21, s21, {32*12288}')
    A.i(f's_add_u32 s37, s37, {32*2560}')
    A.i(f's_add_u32 s18, s18, {MEM_STRIDE}'); A.i(f's_add_u32 s19, s19, {P_STRIDE}')
    A.i('s_add_u32 s17, s17, 1')
    A.i(f's_cmp_lt_u32 s17, {nsteps}')
    A.i('s_cbranch_scc1 S_loop')
    A.i('s_branch R_done')

def gen_C(A, nsteps):
    vL16, vG, vLm0, vLm2, vAr, vIdx, vPg, vRw, vRr1, vRr2, vPub = 1, 2, 5, 6, 7, 8, 9, 14, 15, 16, 17
    RA, RD, RVM, RVT, RP, RO, RT = 20, 60, 76, 80, 112, 132, 136
    wreg = lambda j: (ar, j*8) if j < 32 else (vr, 192 + (j-32)*8)
    A.label('C_role')
    A.c('---- column-owner role setup; s3-NS = column block')
    A.i(f's_sub_u32 s3, s3, {NS}')
    A.i(f'v_and_b32 v{RT}, 63, v0')
    A.i(f'v_lshlrev_b32 v{vL16}, 4, v{RT}')
    setup_gather_addrs(A, vG, vLm0, vLm2, C_MEM, RT+1)
    A.i(f'v_add_u32 v{vAr}, {C_MEM}, v{vL16}')
    L, G, M, HF = RT, RT+1, RT+2, RT+3
    A.i(f'v_lshrrev_b32 v{G}, 4, v{L}'); A.i(f'v_and_b32 v{M}, 7, v{L}')
    A.i(f'v_lshrrev_b32 v{HF}, 3, v{L}'); A.i(f'v_and_b32 v{HF}, 1, v{HF}')
    A.i(f'v_cmp_eq_u32 vcc, 0, v{HF}')
    A.i(f'v_mov_b32 v{vIdx}, 0xeeee'); A.i(f'v_mov_b32 v{RT+4}, 0x4444'); A.i('s_nop 0')
    A.i(f'v_cndmask_b32 v{vIdx}, v{vIdx}, v{RT+4}, vcc')
    A.i('s_lshl_b32 s23, s16, 3')
    for u in range(4):
        A.i(f'v_add_u32 v{RT+4}, s23, v{HF}'); A.i(f'v_add_u32 v{RT+4}, {2*u}, v{RT+4}')
        A.i(f'v_mul_u32_u24 v{RT+4}, 640, v{RT+4}')
        A.i(f'v_add_u32 v{RT+5}, 1, v{G}'); A.i(f'v_lshlrev_b32 v{RT+5}, 7, v{RT+5}')
        A.i(f'v_lshlrev_b32 v{RT+6}, 4, v{M}')
        A.i(f'v_add3_u32 v{vPg+u}, v{RT+4}, v{RT+5}, v{RT+6}')
        remap(A, vPg+u, RT+4)
    A.i(f'v_lshlrev_b32 v{RT+4}, 2, v{HF}'); A.i(f'v_add3_u32 v{RT+4}, v{RT+4}, v{G}, s23')
    A.i(f'v_mul_u32_u24 v{RT+4}, 640, v{RT+4}'); A.i(f'v_lshlrev_b32 v{RT+6}, 4, v{M}')
    A.i(f'v_add_u32 v{vPg+4}, v{RT+4}, v{RT+6}')
    remap(A, vPg+4, RT+4)
    A.i('s_lshl_b32 s23, s16, 10'); A.i(f's_add_u32 s23, s23, {C_RED}')
    A.i(f'v_add_u32 v{vRw}, s23, v{vL16}')
    A.i(f'v_lshlrev_b32 v{RT+4}, 10, v{G}')
    A.i(f'v_lshlrev_b32 v{RT+5}, 4, v{HF}'); A.i(f'v_add_u32 v{RT+5}, v{RT+5}, v{M}'); A.i(f'v_lshlrev_b32 v{RT+5}, 4, v{RT+5}')
    A.i(f'v_add_u32 v{RT+4}, v{RT+4}, v{RT+5}')
    A.i(f'v_add_u32 v{vRr1}, {C_RED}, v{RT+4}')
    A.i(f'v_add_u32 v{vRr2}, {C_RED + (2*16+8)*16}, v{RT+4}')
    A.i('s_lshl_b32 s23, s3, 7')
    A.i(f'v_lshlrev_b32 v{RT+4}, 4, v{M}'); A.i(f'v_lshlrev_b32 v{RT+5}, 3, v{HF}'); A.i(f'v_add_u32 v{RT+4}, v{RT+4}, v{RT+5}')
    A.i(f'v_lshrrev_b32 v{RT+5}, 1, v{G}'); A.i(f'v_lshlrev_b32 v{RT+5}, 2, v{RT+5}')
    A.i(f'v_add3_u32 v{vPub}, v{RT+4}, v{RT+5}, s23')
    remap(A, vPub, RT+4)
    A.i(f'v_add_u32 v{vPub}, {MEM_STRIDE}, v{vPub}')
    A.i(f'v_and_b32 v{RT+4}, 1, v{G}'); A.i(f'v_cmp_eq_u32 vcc, 0, v{RT+4}')
    A.i(f'v_mov_b32 v{RT+5}, 0x80000000'); A.i('s_nop 0')
    A.i(f'v_cndmask_b32 v{vPub}, v{RT+5}, v{vPub}, vcc')
    A.i(f's_mul_i32 s23, s3, 327680'); A.i('s_mul_i32 s24, s16, 81920'); A.i('s_add_u32 s23, s23, s24'); A.i(f's_add_u32 s23, s23, {WS_BW}')
    for j in range(40):
        f, r = wreg(j)
        A.i(f'buffer_load_dwordx4 {f(r)}, v{vL16}, s[8:11], s23 offen')
        A.i(f'buffer_load_dwordx4 {f(r+4)}, v{vL16}, s[8:11], s23 offen offset:1024')
        A.i('s_add_u32 s23, s23, 2048')
        if j % 8 == 7: A.i('s_waitcnt vmcnt(32)')
    A.i('s_mul_i32 s20, s3, 16384'); A.i('s_lshl_b32 s23, s16, 12'); A.i('s_add_u32 s20, s20, s23'); A.i(f's_add_u32 s20, s20, {WS_VOT}')
    A.i('s_mul_i32 s21, s3, 4096'); A.i('s_lshl_b32 s23, s16, 10'); A.i('s_add_u32 s21, s21, s23'); A.i(f's_add_u32 s21, s21, {WS_VOM}')
    def vt_load(buf):
        for u in range(4):
            A.i(f'buffer_load_dwordx4 {vr(RVT+16*buf+4*u)}, v{vL16}, s[8:11], s20 offen offset:{u*1024}')
        A.i(f's_add_u32 s20, s20, {80*16384}')
    vt_load(0)
    A.i('s_waitcnt vmcnt(0)')

    def body(buf, tagp):
        gather_mem(A, f'C_poll{tagp}', 'R_fail', vG, vLm0, vLm2, RP)
        lg = LG(A)
        for kk in range(10):
            lg.issue(f'ds_read_b128 {vr(RA+4*kk)}, v{vAr} offset:{kk*1024}', f'A{kk}')
        lab = A.new('C_novt')
        A.i(f's_cmp_ge_u32 s17, {nsteps-1}'); A.i(f's_cbranch_scc1 {lab}')
        vt_load(buf ^ 1)
        A.label(lab)
        for r in range(16): A.i(f'v_mov_b32 v{RD+r}, 0')
        A.i('s_nop 1')
        for kk in range(10):
            lg.wait(f'A{kk}')
            for t in range(4):
                f, r = wreg(t*10 + kk)
                A.i(f'v_smfmac_f32_16x16x64_bf16 {vr(RD+4*t)}, {vr(RA+4*kk)}, {f(r,8)}, v{vIdx}')
        A.i('s_nop 7')
        for i in range(4):
            A.i(f'v_permlane32_swap_b32 v{RD+i}, v{RD+8+i}')
            A.i(f'v_permlane32_swap_b32 v{RD+4+i}, v{RD+12+i}')
        for i in range(4):
            A.i(f'v_add_f32 v{RD+i}, v{RD+i}, v{RD+8+i}')
            A.i(f'v_add_f32 v{RD+4+i}, v{RD+4+i}, v{RD+12+i}')
        A.i(f'v_cvt_pk_bf16_f32 v{RVM}, v{RD}, v{RD+1}'); A.i(f'v_cvt_pk_bf16_f32 v{RVM+1}, v{RD+2}, v{RD+3}')
        A.i(f'v_cvt_pk_bf16_f32 v{RVM+2}, v{RD+4}, v{RD+5}'); A.i(f'v_cvt_pk_bf16_f32 v{RVM+3}, v{RD+6}, v{RD+7}')
        A.i('s_nop 1')
        A.i(f'v_permlane16_swap_b32 v{RVM}, v{RVM+2}')
        A.i(f'v_permlane16_swap_b32 v{RVM+1}, v{RVM+3}')
        A.i('s_nop 1')
        A.i(f'buffer_store_dwordx4 {vr(RVM)}, v{vL16}, s[8:11], s21 offen')
        A.i(f's_add_u32 s21, s21, {80*4096}')
        A.i(f's_cmp_ge_u32 s17, {nsteps-1}'); A.i('s_cbranch_scc1 R_done')
        A.i('s_mov_b32 s22, 0')
        lbl = f'C_pp{tagp}'
        A.label(lbl)
        for u in range(5):
            A.i(f'buffer_load_dwordx4 {vr(RP+4*u)}, v{vPg+u}, s[8:11], s19 offen sc1')
        A.i('s_add_u32 s22, s22, 1'); A.i(f's_cmp_gt_u32 s22, {SPIN_MAX}'); A.i('s_cbranch_scc1 R_fail')
        x, y = RT, RT+1
        for u in range(5):
            A.i(f's_waitcnt vmcnt({4-u})')
            a_op = vr(RVT+16*buf+4*u) if u < 4 else vr(RVM)
            cc = '0' if u == 0 else vr(RO)
            A.i(f'v_mfma_f32_16x16x32_bf16 {vr(RO)}, {a_op}, {vr(RP+4*u)}, {cc}')
            p = RP+4*u
            if u == 0:
                A.i(f'v_max3_u32 v{x}, v{p}, v{p+1}, v{p+2}'); A.i(f'v_mov_b32 v{y}, v{p+3}')
            else:
                A.i(f'v_max3_u32 v{x}, v{p}, v{p+1}, v{x}'); A.i(f'v_max3_u32 v{y}, v{p+2}, v{p+3}, v{y}')
        A.mark('ro')
        A.i(f'v_max_u32 v{x}, v{x}, v{y}')
        A.i(f'v_cmp_eq_u32 vcc, -1, v{x}')
        A.i(f's_cbranch_vccnz {lbl}')
        A.need('ro', 8)
        A.i(f'ds_write_b128 v{vRw}, {vr(RO)}')
        A.i('s_waitcnt lgkmcnt(0)')
        A.i('s_barrier')
        lab = A.new('C_nopub')
        A.i('s_cmp_eq_u32 s16, 0'); A.i(f's_cbranch_scc0 {lab}')
        R1, R2 = RT+4, RT+8
        A.i(f'ds_read_b128 {vr(R1)}, v{vRr1}'); A.i(f'ds_read_b128 {vr(R2)}, v{vRr2}')
        A.i('s_waitcnt lgkmcnt(0)')
        for i in range(4): A.i(f'v_add_f32 v{R1+i}, v{R1+i}, v{R2+i}')
        A.i('s_nop 0')
        A.i(f'v_permlane32_swap_b32 v{R1}, v{R1+2}')
        A.i(f'v_permlane32_swap_b32 v{R1+1}, v{R1+3}')
        A.i(f'v_add_f32 v{R1}, v{R1}, v{R1+2}'); A.i(f'v_add_f32 v{R1+1}, v{R1+1}, v{R1+3}')
        A.i(f'v_mov_b32 v{R2}, v{R1}'); A.i(f'v_mov_b32 v{R2+1}, v{R1+1}')
        A.i('s_nop 0')
        A.i(f'v_permlane16_swap_b32 v{R1}, v{R2}')
        A.i(f'v_permlane16_swap_b32 v{R1+1}, v{R2+1}')
        A.i(f'v_add_f32 v{R1}, v{R1}, v{R2}'); A.i(f'v_add_f32 v{R1+1}, v{R1+1}, v{R2+1}')
        A.i(f'v_cvt_pk_bf16_f32 v{R1}, v{R1}, v{R1+1}')
        A.i(f'buffer_store_dword v{R1}, v{vPub}, s[8:11], s18 offen sc1')
        A.label(lab)
        A.i(f's_add_u32 s18, s18, {MEM_STRIDE}'); A.i(f's_add_u32 s19, s19, {P_STRIDE}')
        A.i('s_add_u32 s17, s17, 1')
    A.label('C_loop')
    body(0, 'a')
    body(1, 'b')
    A.i('s_branch C_loop')

def gen_rec(name='rec_kernel', nsteps=NSEG):
    A = Em()
    kernel_header(A, name)
    A.i(f's_load_dwordx2 s[4:5], s[0:1], {KA["ws"]}')
    A.i(f's_cmp_ge_u32 s2, {NS+NC}')
    A.i('s_cbranch_scc1 R_exit')
    A.i('v_lshrrev_b32 v1, 6, v0')
    A.i('s_waitcnt lgkmcnt(0)')
    srd(A, 8, 4, WS_SIZE)
    A.i('v_readfirstlane_b32 s16, v1')
    A.i('s_mov_b32 s3, s2')
    A.i('s_mov_b32 s17, 0')
    A.i(f's_mov_b32 s18, {WS_MEMB}')
    A.i(f's_mov_b32 s19, {WS_PB}')
    A.i(f's_cmp_lt_u32 s3, {NS}')
    A.i('s_cbranch_scc0 C_role')
    gen_S(A, nsteps)
    gen_C(A, nsteps)
    A.label('R_fail')
    A.label('R_done')
    A.i('s_waitcnt vmcnt(0)')
    A.label('R_exit')
    A.i('s_endpgm')
    return A.text(), kernel_desc(name, 512, 256)

if __name__ == '__main__':
    t, d = gen_rec()
    print('; @launch kernel=rec_kernel grid=(112,1,1) block=(256,1,1) lds=163840')
    print('.amdgcn_target "amdgcn-amd-amdhsa--gfx950"')
    print(t); print(d)
```

```python
from common import *
from rec import Em, fbits, LOG2E
from gemm import setup_dma192, vD192

def rnd_bf16(A, v, tmp=None):
    A.i(f'v_cvt_pk_bf16_f32 v{v}, v{v}, v{v}')
    A.i(f'v_lshlrev_b32 v{v}, 16, v{v}')

def role_mod(A):
    A.i(f's_load_dwordx2 s[6:7], s[0:1], {KA["c"]}')
    A.i(f's_load_dwordx2 s[18:19], s[0:1], {KA["wmod"]}')
    A.i('v_and_b32 v2, 63, v0')
    A.i('v_lshrrev_b32 v3, 3, v2')
    A.i('v_and_b32 v4, 7, v2')
    A.i('s_waitcnt lgkmcnt(0)')
    srd(A, 12, 6, 1280); srd(A, 28, 18, 640*7680)
    A.i('s_mul_i32 s23, s16, 160'); A.i('v_add_u32 v5, s23, v3')
    A.i('s_mov_b32 s24, 7680'); A.i('v_mul_lo_u32 v6, v5, s24'); A.i('v_lshlrev_b32 v7, 4, v4'); A.i('v_add_u32 v6, v6, v7')
    A.i('s_lshl_b32 s25, s40, 7')
    A.i('v_lshlrev_b32 v5, 1, v5')
    W, C = 32, 112
    for j in range(20):
        A.i(f'buffer_load_dwordx4 {vr(W+4*j)}, v6, s[28:31], s25 offen')
        A.i(f'buffer_load_ushort v{C+j}, v5, s[12:15], 0 offen offset:{16*j}')
        A.i(f's_add_u32 s25, s25, {8*7680}')
    ACC = 8
    for r in range(8): A.i(f'v_mov_b32 v{ACC+r}, 0')
    A.i(f's_mov_b32 s26, {fbits(-LOG2E):#x}')
    for j in range(20):
        A.i(f's_waitcnt vmcnt({2*(19-j)})')
        c = C + j
        A.i(f'v_lshlrev_b32 v{c}, 16, v{c}')
        A.i(f'v_mul_f32 v16, s26, v{c}'); A.i('v_exp_f32 v16, v16'); A.i('s_nop 0'); A.i('v_add_f32 v16, 1.0, v16'); A.i('v_rcp_f32 v16, v16'); A.i('s_nop 0')
        A.i(f'v_mul_f32 v16, v16, v{c}')
        rnd_bf16(A, 16)
        for d in range(4):
            w = W + 4*j + d
            A.i(f'v_lshlrev_b32 v17, 16, v{w}'); A.i(f'v_and_b32 v18, 0xffff0000, v{w}')
            A.i(f'v_fmac_f32 v{ACC+2*d}, v16, v17'); A.i(f'v_fmac_f32 v{ACC+2*d+1}, v16, v18')
    for r in range(8):
        x = ACC + r
        A.i('s_nop 1')
        A.i(f'v_add_f32_dpp v{x}, v{x}, v{x} row_ror:8 row_mask:0xf bank_mask:0xf')
        A.i(f'v_mov_b32 v16, v{x}'); A.i('s_nop 1'); A.i(f'v_permlane16_swap_b32 v{x}, v16'); A.i(f'v_add_f32 v{x}, v{x}, v16')
        A.i(f'v_mov_b32 v16, v{x}'); A.i('s_nop 1'); A.i(f'v_permlane32_swap_b32 v{x}, v16'); A.i(f'v_add_f32 v{x}, v{x}, v16')
    A.i('v_lshlrev_b32 v16, 5, v4'); A.i('s_lshl_b32 s23, s16, 8'); A.i('v_add_u32 v16, s23, v16')
    A.i('s_mov_b64 exec, 0xff')
    A.i(f'ds_write_b128 v16, {vr(ACC)}'); A.i(f'ds_write_b128 v16, {vr(ACC+4)} offset:16')
    A.i('s_mov_b64 exec, -1')
    A.i('s_waitcnt lgkmcnt(0)'); A.i('s_barrier')
    A.i('v_lshlrev_b32 v16, 2, v2')
    for w in range(4): A.i(f'ds_read_b32 v{20+w}, v16 offset:{256*w}')
    A.i('s_waitcnt lgkmcnt(0)')
    A.i('v_add_f32 v20, v20, v21'); A.i('v_add_f32 v22, v22, v23'); A.i('v_add_f32 v20, v20, v22')
    rnd_bf16(A, 20)
    A.i('s_lshl_b32 s23, s40, 8'); A.i(f's_add_u32 s23, s23, {WS_MOD}')
    lab = A.new('mod_skip')
    A.i('s_cmp_eq_u32 s16, 0'); A.i(f's_cbranch_scc0 {lab}')
    A.i('buffer_store_dword v20, v16, s[8:11], s23 offen')
    A.i('s_waitcnt vmcnt(0)')
    A.label(lab)

def role_wqk(A):
    A.i('s_mov_b32 s23, 0xcccd'); A.i('s_mul_i32 s41, s40, s23'); A.i('s_lshr_b32 s41, s41, 20')
    A.i('s_mul_i32 s23, s41, 20'); A.i('s_sub_u32 s42, s40, s23')
    A.i('s_cmp_ge_u32 s42, 10'); A.i('s_cselect_b32 s43, 1, 0')
    A.i('s_mul_i32 s23, s43, 10'); A.i('s_sub_u32 s42, s42, s23')
    A.i(f's_load_dwordx2 s[6:7], s[0:1], {KA["wq"]}'); A.i(f's_load_dwordx2 s[18:19], s[0:1], {KA["wk"]}')
    setup_dma192(A, 12288)
    A.i('s_waitcnt lgkmcnt(0)')
    A.i('s_cmp_eq_u32 s43, 0'); A.i('s_cselect_b32 s6, s6, s18'); A.i('s_cselect_b32 s7, s7, s19')
    srd(A, 12, 6, 640*12288)
    A.i(f's_mul_i32 s44, s42, {64*12288}'); A.i('s_mul_i32 s23, s41, 384'); A.i('s_add_u32 s44, s44, s23')
    A.i('s_mul_i32 s23, s16, 6144')
    for j in range(6):
        A.i(f's_add_u32 m0, s23, {j*1024}'); A.i('s_nop 0')
        A.i(f'buffer_load_dwordx4 v{vD192+j}, s[12:15], s44 offen lds')
    A.i('v_and_b32 v22, 63, v0'); A.i('v_lshrrev_b32 v23, 4, v22'); A.i('v_and_b32 v24, 15, v22')
    A.i('v_lshrrev_b32 v25, 1, v23'); A.i('v_lshlrev_b32 v25, 4, v25'); A.i('v_and_b32 v26, 1, v23'); A.i('v_lshlrev_b32 v26, 2, v26'); A.i('v_add_u32 v25, v25, v26')
    A.i('v_lshrrev_b32 v26, 2, v24')
    A.i('v_and_b32 v27, 1, v26'); A.i('v_lshrrev_b32 v26, 1, v26'); A.i('v_lshlrev_b32 v26, 3, v26'); A.i('v_add3_u32 v25, v25, v26, v27')
    A.i('v_and_b32 v24, 3, v24'); A.i('v_lshlrev_b32 v24, 2, v24'); A.i('s_mul_i32 s23, s16, 48'); A.i('v_add_u32 v24, s23, v24')
    A.i(f'v_lshlrev_b32 v1, 4, v22')
    A.i('s_mul_i32 s45, s41, 491520'); A.i('s_mul_i32 s23, s16, 122880'); A.i('s_add_u32 s45, s45, s23')
    A.i('s_mul_i32 s23, s43, 10'); A.i('s_add_u32 s23, s23, s42'); A.i('s_lshl_b32 s23, s23, 11'); A.i('s_add_u32 s45, s45, s23'); A.i(f's_add_u32 s45, s45, {WS_WQK}')
    A.i('s_waitcnt vmcnt(0)'); A.i('s_barrier')
    for p in range(3):
        for hb in range(2):
            for jj in range(2):
                A.i(f'v_add_u32 v28, {32*hb + 2*jj}, v25'); A.i(f'v_add_u32 v29, {16*p}, v24')
                A.i('v_lshrrev_b32 v30, 1, v28'); A.i('v_and_b32 v30, 1, v30'); A.i('v_lshrrev_b32 v31, 5, v29'); A.i('v_xor_b32 v30, v30, v31'); A.i('v_lshlrev_b32 v30, 6, v30')
                A.i('v_and_b32 v29, 31, v29'); A.i('v_lshlrev_b32 v29, 1, v29'); A.i('v_mul_u32_u24 v28, 384, v28'); A.i('v_add3_u32 v28, v28, v29, v30')
                r = 32 + 8*p + 4*hb + 2*jj
                A.i(f'ds_read_b64_tr_b16 v[{r}:{r+1}], v28')
    A.i('s_waitcnt lgkmcnt(0)')
    for p in range(3):
        for hb in range(2):
            A.i(f's_add_u32 s46, s45, {p*20*2048 + hb*1024}')
            A.i(f'buffer_store_dwordx4 {vr(32+8*p+4*hb)}, v1, s[8:11], s46 offen')
    A.i('s_waitcnt vmcnt(0)')

def role_fill(A, nwg):
    per = (WS_HAND_SIZE - MEM_STRIDE) // nwg
    assert per % 4096 == 0, per
    A.i(f's_mul_i32 s23, s40, {per}'); A.i(f's_add_u32 s23, s23, {WS_HAND + MEM_STRIDE}')
    A.i('v_lshlrev_b32 v1, 4, v0')
    for r in range(4): A.i(f'v_mov_b32 v{4+r}, -1')
    for j in range(per // 4096):
        A.i('buffer_store_dwordx4 v[4:7], v1, s[8:11], s23 offen sc1')
        A.i('s_add_u32 s23, s23, 4096')
    A.i('s_waitcnt vmcnt(0)')

def role_mem0(A):
    A.i(f's_load_dwordx2 s[6:7], s[0:1], {KA["mem0"]}')
    A.i('s_waitcnt lgkmcnt(0)')
    srd(A, 12, 6, 10240)
    for j in range(3):
        A.i(f'v_add_u32 v2, {256*j}, v0')
        A.i('v_lshrrev_b32 v3, 3, v2'); A.i('v_and_b32 v4, 7, v2')
        A.i('v_mul_u32_u24 v5, 1280, v4'); A.i('v_lshlrev_b32 v6, 4, v3'); A.i('v_add_u32 v5, v5, v6')
        A.i('v_lshlrev_b32 v6, 4, v2')
        A.i('v_lshrrev_b32 v7, 13, v6'); A.i('v_lshlrev_b32 v7, 14, v7'); A.i('v_and_b32 v6, 0x1fff, v6'); A.i('v_add_u32 v6, v6, v7')
        A.i('v_cmp_gt_u32 vcc, 640, v2'); A.i('v_mov_b32 v7, 0x80000000'); A.i('s_nop 0')
        A.i('v_cndmask_b32 v6, v7, v6, vcc'); A.i('v_cndmask_b32 v5, v7, v5, vcc')
        A.i('buffer_load_dwordx4 v[8:11], v5, s[12:15], 0 offen')
        A.i('s_waitcnt vmcnt(0)')
        for r in range(4): A.i(f'v_min_u32 v{8+r}, 0xfffffffe, v{8+r}')
        A.i(f's_mov_b32 s23, {WS_MEMB}')
        A.i('buffer_store_dwordx4 v[8:11], v6, s[8:11], s23 offen sc1')
        A.i('s_waitcnt vmcnt(0)')

def role_ln(A, src_srd_setup, src_soff, shift_idx, scale_idx, dst_ws):
    src_srd_setup()
    A.i('v_and_b32 v2, 63, v0'); A.i('v_lshrrev_b32 v3, 4, v2'); A.i('v_and_b32 v4, 15, v2')
    A.i('s_lshl_b32 s23, s40, 4'); A.i('s_lshl_b32 s24, s16, 2'); A.i('s_add_u32 s23, s23, s24')
    A.i('v_add_u32 v5, s23, v3')
    A.i('v_mul_u32_u24 v6, 1280, v5'); A.i('v_lshlrev_b32 v7, 4, v4'); A.i('v_add_u32 v6, v6, v7')
    X = 16
    for j in range(5):
        A.i(f'buffer_load_dwordx4 {vr(X+4*j)}, v6, s[12:15], {src_soff} offen offset:{256*j}')
    A.i('v_lshlrev_b32 v7, 5, v4')
    SC, SH = 40, 80
    A.i(f's_mov_b32 s25, {WS_MOD + scale_idx*2560}'); A.i(f's_mov_b32 s26, {WS_MOD + shift_idx*2560}')
    for j in range(5):
        A.i(f'buffer_load_dwordx4 {vr(SC+8*j)}, v7, s[8:11], s25 offen offset:{512*j}')
        A.i(f'buffer_load_dwordx4 {vr(SC+8*j+4)}, v7, s[8:11], s25 offen offset:{512*j+16}')
        A.i(f'buffer_load_dwordx4 {vr(SH+8*j)}, v7, s[8:11], s26 offen offset:{512*j}')
        A.i(f'buffer_load_dwordx4 {vr(SH+8*j+4)}, v7, s[8:11], s26 offen offset:{512*j+16}')
    F = 128
    A.i('s_waitcnt vmcnt(20)')
    for j in range(20):
        A.i(f'v_lshlrev_b32 v{F+2*j}, 16, v{X+j}'); A.i(f'v_and_b32 v{F+2*j+1}, 0xffff0000, v{X+j}')
    def rowsum(x, t):
        for ctl in ('quad_perm:[1,0,3,2]', 'quad_perm:[2,3,0,1]', 'row_half_mirror', 'row_mirror'):
            A.i('s_nop 1'); A.i(f'v_add_f32_dpp v{x}, v{x}, v{x} {ctl} row_mask:0xf bank_mask:0xf')
    A.i(f'v_add_f32 v8, v{F}, v{F+1}')
    for j in range(2, 40): A.i(f'v_add_f32 v8, v8, v{F+j}')
    rowsum(8, 9)
    A.i(f'v_mul_f32 v8, {fbits(1.0/640):#x}, v8')
    A.i('v_mov_b32 v9, 0')
    for j in range(40):
        A.i(f'v_sub_f32 v10, v{F+j}, v8'); A.i('v_fmac_f32 v9, v10, v10')
    rowsum(9, 10)
    A.i(f'v_mul_f32 v9, {fbits(1.0/640):#x}, v9')
    rnd_bf16(A, 8); rnd_bf16(A, 9)
    A.i(f'v_add_f32 v9, {fbits(1e-5):#x}, v9'); rnd_bf16(A, 9)
    A.i('v_sqrt_f32 v9, v9'); A.i('s_nop 0'); rnd_bf16(A, 9)
    A.i('v_rcp_f32 v9, v9'); A.i('s_nop 0')
    A.i('s_waitcnt vmcnt(0)')
    for j in range(0, 40, 2):
        a, b = F+j, F+j+1
        A.i(f'v_sub_f32 v{a}, v{a}, v8'); A.i(f'v_sub_f32 v{b}, v{b}, v8')
        A.i(f'v_cvt_pk_bf16_f32 v10, v{a}, v{b}'); A.i(f'v_lshlrev_b32 v{a}, 16, v10'); A.i(f'v_and_b32 v{b}, 0xffff0000, v10')
        A.i(f'v_mul_f32 v{a}, v{a}, v9'); A.i(f'v_mul_f32 v{b}, v{b}, v9')
        A.i(f'v_cvt_pk_bf16_f32 v10, v{a}, v{b}'); A.i(f'v_lshlrev_b32 v{a}, 16, v10'); A.i(f'v_and_b32 v{b}, 0xffff0000, v10')
        sa, sb = SC+j, SC+j+1
        A.i(f'v_add_f32 v{sa}, 1.0, v{sa}'); A.i(f'v_add_f32 v{sb}, 1.0, v{sb}')
        A.i(f'v_cvt_pk_bf16_f32 v10, v{sa}, v{sb}'); A.i(f'v_lshlrev_b32 v{sa}, 16, v10'); A.i(f'v_and_b32 v{sb}, 0xffff0000, v10')
        A.i(f'v_mul_f32 v{a}, v{a}, v{sa}'); A.i(f'v_mul_f32 v{b}, v{b}, v{sb}')
        A.i(f'v_cvt_pk_bf16_f32 v10, v{a}, v{b}'); A.i(f'v_lshlrev_b32 v{a}, 16, v10'); A.i(f'v_and_b32 v{b}, 0xffff0000, v10')
        A.i(f'v_add_f32 v{a}, v{a}, v{SH+j}'); A.i(f'v_add_f32 v{b}, v{b}, v{SH+j+1}')
        A.i(f'v_cvt_pk_bf16_f32 v{X + j//2}, v{a}, v{b}')
    A.i('v_lshrrev_b32 v8, 5, v5'); A.i(f'v_mul_u32_u24 v8, {40*1024}, v8')
    A.i('v_and_b32 v9, 31, v5'); A.i('v_lshlrev_b32 v9, 4, v9'); A.i('v_add_u32 v8, v8, v9')
    A.i('v_lshrrev_b32 v9, 1, v4'); A.i('v_lshlrev_b32 v9, 10, v9'); A.i('v_add_u32 v8, v8, v9')
    A.i('v_and_b32 v9, 1, v4'); A.i('v_lshlrev_b32 v9, 3, v9'); A.i('v_add_u32 v8, v8, v9')
    A.i(f's_mov_b32 s25, {dst_ws}')
    for j in range(5):
        A.i(f'buffer_store_dwordx2 v[{X+4*j}:{X+4*j+1}], v8, s[8:11], s25 offen')
        A.i(f'buffer_store_dwordx2 v[{X+4*j+2}:{X+4*j+3}], v8, s[8:11], s25 offen offset:512')
        A.i('s_add_u32 s25, s25, 8192')
    A.i('s_waitcnt vmcnt(0)')

def prolog(A, name, ngrid):
    kernel_header(A, name)
    A.i(f's_load_dwordx2 s[4:5], s[0:1], {KA["ws"]}')
    A.i(f's_cmp_ge_u32 s2, {ngrid}')
    A.i(f's_cbranch_scc1 {name}_exit')
    A.i('v_lshrrev_b32 v1, 6, v0')
    A.i('s_waitcnt lgkmcnt(0)')
    srd(A, 8, 4, WS_SIZE)
    A.i('v_readfirstlane_b32 s16, v1')
    A.i('s_nop 3')

NFILL = 191
PREP_GRID = 60 + 1 + NFILL + 640
def gen_prep(name='prep_kernel'):
    A = Em()
    prolog(A, name, PREP_GRID)
    A.i('s_cmp_lt_u32 s2, 60'); A.i(f's_cbranch_scc0 {name}_a')
    A.i('s_mov_b32 s40, s2'); role_mod(A); A.i('s_endpgm')
    A.label(f'{name}_a')
    A.i('s_cmp_eq_u32 s2, 60'); A.i(f's_cbranch_scc0 {name}_b')
    role_mem0(A); A.i('s_endpgm')
    A.label(f'{name}_b')
    A.i(f's_cmp_lt_u32 s2, {61+NFILL}'); A.i(f's_cbranch_scc0 {name}_c')
    A.i('s_sub_u32 s40, s2, 61'); role_fill(A, NFILL); A.i('s_endpgm')
    A.label(f'{name}_c')
    A.i(f's_sub_u32 s40, s2, {61+NFILL}'); role_wqk(A)
    A.label(f'{name}_exit')
    A.i('s_endpgm')
    return A.text(), kernel_desc(name, 136, 136)

def gen_ln(name, first):
    A = Em()
    prolog(A, name, 128)
    A.i('s_mov_b32 s40, s2')
    if first:
        def su():
            A.i(f's_load_dwordx2 s[6:7], s[0:1], {KA["x"]}'); A.i('s_waitcnt lgkmcnt(0)'); srd(A, 12, 6, 2048*1280)
        role_ln(A, su, '0', 0, 1, WS_H)
    else:
        def su():
            for r in range(4): A.i(f's_mov_b32 s{12+r}, s{8+r}')
            A.i(f's_mov_b32 s27, {WS_X1}')
        role_ln(A, su, 's27', 3, 4, WS_H2)
    A.label(f'{name}_exit')
    A.i('s_endpgm')
    return A.text(), kernel_desc(name, 176, 176)

if __name__ == '__main__':
    parts = [gen_prep(), gen_ln('ln1_kernel', True), gen_ln('ln2_kernel', False)]
    print(f'; @launch kernel=prep_kernel grid=({PREP_GRID},1,1) block=(256,1,1) lds=24576')
    print('.amdgcn_target "amdgcn-amd-amdhsa--gfx950"')
    for t, d in parts: print(t)
    for t, d in parts: print(d)
```

```python
import sys
from common import *
import rec, gemm, small, post
def build(path):
    launches = [
        ('prep_kernel', small.PREP_GRID, 24576, small.gen_prep()),
        ('bw_kernel', 160, 98304, gemm.gen_bw()),
        ('ln1_kernel', 128, 0, small.gen_ln('ln1_kernel', True)),
        ('pre_kernel', 1536, 98304, gemm.gen_pre()),
        ('rec_kernel', 112, 163840, rec.gen_rec()),
        ('t2_kernel', 320, 81920, post.gen_t2()),
        ('ln2_kernel', 128, 0, small.gen_ln('ln2_kernel', False)),
        ('ffn1_kernel', 128, 98304, post.gen_ffn1()),
        ('ffn2_kernel', 64, 98304, post.gen_ffn2()),
    ]
    hdr = open('adaLN_cond__memory_aug_recurrent_mem_tr__glu_gated_bilinear__prompt.s.ref').read().split('\n')
    head = [l for l in hdr if l.startswith(';') and '@launch' not in l and 'Override launch' not in l and 'grid=ceil' not in l]
    head = head[:head.index([l for l in head if 'd_ws ' in l][0])+1]
    out = head + ['; Generated by gen/build.py (hand-written generator scripts).']
    for n, g, lds, _ in launches: out.append(f'; @launch kernel={n} grid=({g},1,1) block=(256,1,1) lds={lds}')
    out.append('.amdgcn_target "amdgcn-amd-amdhsa--gfx950"')
    s = '\n'.join(out) + '\n'
    for _, _, _, (t, d) in launches: s += t
    for _, _, _, (t, d) in launches: s += d
    open(path, 'w').write(s)
    return s
if __name__ == '__main__':
    p = sys.argv[1] if len(sys.argv) > 1 else 'adaLN_cond__memory_aug_recurrent_mem_tr__glu_gated_bilinear__prompt.s'
    s = build(p)
    print(len(s), 'bytes')
```

```python
S_TOK, DM, NH, DH, NSEG, SEG, MM, FF = 2048, 640, 32, 192, 64, 32, 8, 1536

KA = dict(x=0, mem0=8, wq=16, wk=24, wv=32, wo=40, seglen=48, bx=56, wg=64, wu=72, wd=80, c=88, wmod=96, out=104, dbg=112, ws=120)

WS_TAB   = 0x0000000
WS_MOD   = 0x0001000
WS_FLAGS = 0x0020000
WS_FLAGS_SIZE = 0x20000
FL_KQ  = WS_FLAGS
FL_VVO = WS_FLAGS + 0x10000
FL_PT  = WS_FLAGS + 0x11000
FL_VM  = WS_FLAGS + 0x18000
FL_T2S = WS_FLAGS + 0x13000
FL_LNS = WS_FLAGS + 0x17000
FL_F1S = WS_FLAGS + 0x17800
FL_WF  = WS_FLAGS + 0x16f00
FL_T2  = WS_FLAGS + 0x15000
FL_LN  = WS_FLAGS + 0x15800
FL_F1  = WS_FLAGS + 0x16000
WS_HAND  = 0x0200000
WS_HAND_SIZE = 0x600000
MEM_STRIDE = 32768
P_STRIDE   = 65536
HB_MEM = 0
HB_P   = 0x200000
WS_H     = 0x0A00000
WS_X1    = 0x0D00000
WS_LOG   = 0x0F80000
WS_H2    = 0x1000000
WS_HM    = 0x1300000
WS_PTOK  = 0x1900000
WS_WQK   = 0x1E00000
WS_BW    = 0x2D00000
WS_KT    = 0x4600000
WS_QT    = 0x5E00000
WS_VOM   = 0x7600000
WS_VOT   = 0x8A00000
WS_WGF   = 0xDA00000
WS_WDF   = 0xDE00000
WS_SIZE  = 0x10000000
assert WS_VOT + 64*80*16384 <= WS_SIZE

def hand_base(A, dst, ptr_lo=4):
    f = A.i if hasattr(A, 'i') else A
    f(f's_sub_u32 s{dst}, 0, s{ptr_lo}')
    f(f's_and_b32 s{dst}, s{dst}, 0x1fffff')
    f(f's_add_u32 s{dst}, s{dst}, {WS_HAND}')

class Asm:
    def __init__(self):
        self.L = []
        self.uid = 0
    def __call__(self, s):
        for line in s.split('\n'):
            line = line.rstrip()
            if line.strip():
                self.L.append(line if line.endswith(':') and not line.startswith(' ') else '  ' + line.strip())
    def label(self, n):
        self.L.append(f'{n}:')
    def c(self, s):
        self.L.append(f'  ; {s}')
    def new(self, p='L'):
        self.uid += 1
        return f'{p}_{self.uid}'
    def text(self):
        return '\n'.join(self.L) + '\n'

def vr(b, n=4):
    return f'v[{b}:{b+n-1}]' if n > 1 else f'v{b}'
def ar(b, n=4):
    return f'a[{b}:{b+n-1}]' if n > 1 else f'a{b}'
def sr(b, n=2):
    return f's[{b}:{b+n-1}]' if n > 1 else f's{b}'

class Lgkm:
    def __init__(self, asm):
        self.asm = asm; self.q = []
    def issue(self, text, tag):
        self.asm(text); self.q.append(tag)
        assert len(self.q) <= 15, f'too many LDS ops in flight: {self.q}'
    def wait(self, tag):
        if tag not in self.q: return
        i = max(j for j, t in enumerate(self.q) if t == tag)
        n = len(self.q) - 1 - i
        self.asm(f's_waitcnt lgkmcnt({n})')
        self.q = self.q[i+1:]
    def wait_all(self):
        self.asm('s_waitcnt lgkmcnt(0)'); self.q = []

def kernel_header(A, name):
    A.L.append('.text')
    A.L.append(f'.globl {name}')
    A.L.append('.p2align 8')
    A.L.append(f'.type {name},@function')
    A.L.append(f'{name}:')

def kernel_desc(name, vgpr, accum, sgpr=100):
    return f'''.section .rodata,"a"
.p2align 6
.amdhsa_kernel {name}
  .amdhsa_next_free_vgpr {vgpr}
  .amdhsa_next_free_sgpr {sgpr}
  .amdhsa_accum_offset {accum}
  .amdhsa_group_segment_fixed_size 0
  .amdhsa_kernarg_size 128
  .amdhsa_user_sgpr_count 2
  .amdhsa_user_sgpr_kernarg_segment_ptr 1
  .amdhsa_system_sgpr_workgroup_id_x 1
  .amdhsa_float_denorm_mode_32 3
  .amdhsa_float_denorm_mode_16_64 3
.end_amdhsa_kernel
'''

def srd(A, dst, ptr, nbytes):
    A(f's_mov_b32 s{dst}, s{ptr}')
    A(f's_and_b32 s{dst+1}, s{ptr+1}, 0xffff')
    A(f's_mov_b32 s{dst+2}, {nbytes:#x}')
    A(f's_mov_b32 s{dst+3}, 0x20000')
```

```python
import re
MACROS = r'''
.macro M32 d, a, b, c
v_mfma_f32_32x32x16_bf16 v[\d:\d+15], \a, \b, \c
.endm
.macro MA d, a, b
v_mfma_f32_32x32x16_bf16 v[\d:\d+15], a[\a:\a+3], a[\b:\b+3], v[\d:\d+15]
.endm
.macro MB d, a, b
v_mfma_f32_32x32x16_bf16 v[\d:\d+15], v[\a:\a+3], a[\b:\b+3], v[\d:\d+15]
.endm
.macro MV d, a, b
v_mfma_f32_32x32x16_bf16 v[\d:\d+15], v[\a:\a+3], v[\b:\b+3], v[\d:\d+15]
.endm
.macro TR f, v, o
ds_read_b64_tr_b16 a[\f:\f+1], v\v offset:\o
.endm
.macro CV d, a, b
v_cvt_pk_bf16_f32 v\d, v\a, v\b
.endm
.macro WL n
s_waitcnt lgkmcnt(\n)
.endm
.macro WV n
s_waitcnt vmcnt(\n)
.endm
.macro DM v, r, s
buffer_load_dwordx4 v\v, s[\r:\r+3], s\s offen lds
.endm
.macro DMC v, r, s
buffer_load_dwordx4 v\v, s[\r:\r+3], s\s offen sc1 lds
.endm
.macro LA a, v, r, s, o
buffer_load_dwordx4 a[\a:\a+3], v\v, s[\r:\r+3], s\s offen offset:\o
.endm
.macro SH d, s
v_lshlrev_b32 v\d, 16, v\s
.endm
.macro HH d, s
v_and_b32 v\d, 0xffff0000, v\s
.endm
.macro SM d, a, b, i
v_smfmac_f32_16x16x64_bf16 v[\d:\d+3], v[\a:\a+3], \b, v\i
.endm
'''
RULES = [
 (re.compile(r'^v_mfma_f32_32x32x16_bf16 v\[(\d+):\d+\], a\[(\d+):\d+\], a\[(\d+):\d+\], v\[(\d+):\d+\]$'), lambda m: f'MA {m[1]},{m[2]},{m[3]}' if m[1] == m[4] else None),
 (re.compile(r'^v_mfma_f32_32x32x16_bf16 v\[(\d+):\d+\], v\[(\d+):\d+\], a\[(\d+):\d+\], v\[(\d+):\d+\]$'), lambda m: f'MB {m[1]},{m[2]},{m[3]}' if m[1] == m[4] else None),
 (re.compile(r'^v_mfma_f32_32x32x16_bf16 v\[(\d+):\d+\], v\[(\d+):\d+\], v\[(\d+):\d+\], v\[(\d+):\d+\]$'), lambda m: f'MV {m[1]},{m[2]},{m[3]}' if m[1] == m[4] else None),
 (re.compile(r'^ds_read_b64_tr_b16 a\[(\d+):\d+\], v(\d+) offset:(\d+)$'), lambda m: f'TR {m[1]},{m[2]},{m[3]}'),
 (re.compile(r'^v_cvt_pk_bf16_f32 v(\d+), v(\d+), v(\d+)$'), lambda m: f'CV {m[1]},{m[2]},{m[3]}'),
 (re.compile(r'^s_waitcnt lgkmcnt\((\d+)\)$'), lambda m: f'WL {m[1]}'),
 (re.compile(r'^s_waitcnt vmcnt\((\d+)\)$'), lambda m: f'WV {m[1]}'),
 (re.compile(r'^buffer_load_dwordx4 v(\d+), s\[(\d+):\d+\], s(\d+) offen lds$'), lambda m: f'DM {m[1]},{m[2]},{m[3]}'),
 (re.compile(r'^buffer_load_dwordx4 v(\d+), s\[(\d+):\d+\], s(\d+) offen sc1 lds$'), lambda m: f'DMC {m[1]},{m[2]},{m[3]}'),
 (re.compile(r'^buffer_load_dwordx4 a\[(\d+):\d+\], v(\d+), s\[(\d+):\d+\], s(\d+) offen offset:(\d+)$'), lambda m: f'LA {m[1]},{m[2]},{m[3]},{m[4]},{m[5]}'),
 (re.compile(r'^v_lshlrev_b32 v(\d+), 16, v(\d+)$'), lambda m: f'SH {m[1]},{m[2]}'),
 (re.compile(r'^v_and_b32 v(\d+), 0xffff0000, v(\d+)$'), lambda m: f'HH {m[1]},{m[2]}'),
 (re.compile(r'^v_smfmac_f32_16x16x64_bf16 v\[(\d+):\d+\], v\[(\d+):\d+\], (\S+), v(\d+)$'), lambda m: f'SM {m[1]},{m[2]},{m[3]},{m[4]}'),
]
def compact(text):
    out = []
    for line in text.split('\n'):
        t = line.strip()
        if not t: continue
        for rx, f in RULES:
            m = rx.match(t)
            if m:
                r = f(m)
                if r: t = r
                break
        out.append(t)
    return '\n'.join(out) + '\n'
```

```python
from common import *
from rec import Em, LG
from gemm import VM, MF
from post import unpack

ACC = 32
def reduce_quads(A, nt):
    A.i('v_and_b32 v22, 63, v0'); A.i('v_lshlrev_b32 v22, 4, v22')
    A.i('s_lshl_b32 s23, s16, 12'); A.i('v_add_u32 v23, s23, v22')
    A.i('s_lshl_b32 s23, s16, 10'); A.i('v_add_u32 v24, s23, v22')
    A.i('s_nop 7')
    for t in range(nt):
        for q in range(4):
            A.i(f'ds_write_b128 v23, {vr(ACC+16*t+4*q)} offset:{t*16384 + q*1024}')
    A.i('s_waitcnt lgkmcnt(0)'); A.i('s_barrier')
    R = 128
    for t in range(nt):
        for w in range(4):
            A.i(f'ds_read_b128 {vr(R+16*t+4*w)}, v24 offset:{t*16384 + w*4096}')
        if t % 2 == 1 or t == nt-1: A.i('s_waitcnt lgkmcnt(0)')
    for t in range(nt):
        b = R + 16*t; o = ACC + 4*t
        for h in (0, 2):
            A.i(f'v_pk_add_f32 v[{b+h}:{b+h+1}], v[{b+h}:{b+h+1}], v[{b+4+h}:{b+5+h}]')
            A.i(f'v_pk_add_f32 v[{b+8+h}:{b+9+h}], v[{b+8+h}:{b+9+h}], v[{b+12+h}:{b+13+h}]')
            A.i(f'v_pk_add_f32 v[{o+h}:{o+h+1}], v[{b+h}:{b+h+1}], v[{b+8+h}:{b+9+h}]')

def residual_quad(A, vm, pre_loaded, dst_srd, dst_soff, dst_sc, nt):
    vm.wait(pre_loaded)
    for t in range(nt):
        G, R = 100+4*t, 108+2*t
        for h2 in range(2):
            a, b = ACC + 4*t + 2*h2, ACC + 4*t + 2*h2 + 1
            A.i(f'v_cvt_pk_bf16_f32 v26, v{a}, v{b}'); unpack(A, a, b, 26)
            A.i(f'v_mul_f32 v{a}, v{a}, v{G+2*h2}'); A.i(f'v_mul_f32 v{b}, v{b}, v{G+2*h2+1}')
            A.i(f'v_cvt_pk_bf16_f32 v26, v{a}, v{b}'); unpack(A, a, b, 26)
            unpack(A, 27, 28, R+h2)
            A.i(f'v_add_f32 v{a}, v{a}, v27'); A.i(f'v_add_f32 v{b}, v{b}, v28')
            A.i(f'v_cvt_pk_bf16_f32 v{R+h2}, v{a}, v{b}')
        vm.issue(f'buffer_store_dwordx2 v[{R}:{R+1}], v116, s[{dst_srd}:{dst_srd+3}], {dst_soff} offen offset:{64*t}{dst_sc}')

def residual_prefetch(A, vm, seg_sgpr, ct_sgpr, mod_idx, res_srd, res_soff, res_sc, nt):
    A.i('v_and_b32 v22, 63, v0'); A.i('v_and_b32 v23, 31, v22'); A.i(f's_lshl_b32 s23, s{seg_sgpr}, 5'); A.i('v_add_u32 v23, s23, v23'); A.i('v_mul_u32_u24 v23, 1280, v23')
    A.i('v_lshrrev_b32 v24, 5, v22')
    A.i(f's_mul_i32 s24, s{ct_sgpr}, {32*nt}'); A.i('s_lshl_b32 s23, s16, 3'); A.i('s_add_u32 s24, s24, s23')
    A.i('v_lshlrev_b32 v25, 2, v24'); A.i('v_add_u32 v25, s24, v25')
    A.i('v_lshlrev_b32 v26, 1, v25'); A.i('v_add_u32 v116, v23, v26')
    A.i('v_lshlrev_b32 v25, 2, v25')
    A.i(f's_mov_b32 s24, {WS_MOD + mod_idx*2560}')
    for t in range(nt):
        vm.issue(f'buffer_load_dwordx4 {vr(100+4*t)}, v25, s[8:11], s24 offen offset:{128*t}', 'res')
        vm.issue(f'buffer_load_dwordx2 v[{108+2*t}:{109+2*t}], v116, s[{res_srd}:{res_srd+3}], {res_soff} offen offset:{64*t}{res_sc}', 'res')

def task_t2f(A, xsrd, tail):
    vm = VM(A)
    A.i('v_and_b32 v22, 63, v0'); A.i('v_lshlrev_b32 v1, 4, v22')
    A.i('v_and_b32 v23, 31, v22'); A.i('v_lshrrev_b32 v24, 3, v23'); A.i('v_and_b32 v23, 7, v23'); A.i('v_lshlrev_b32 v23, 4, v23')
    A.i('v_lshrrev_b32 v25, 5, v22'); A.i('v_lshlrev_b32 v26, 8, v25'); A.i('v_add_u32 v23, v23, v26')
    A.i('v_lshlrev_b32 v26, 14, v24'); A.i('v_add_u32 v2, v23, v26'); A.i('v_add_u32 v6, 65536, v2')
    A.i('v_lshlrev_b32 v26, 12, v24'); A.i('v_add_u32 v3, v23, v26'); A.i('v_add_u32 v7, 16384, v3')
    A.i('v_mul_u32_u24 v26, 2560, v25'); A.i('v_and_b32 v27, 31, v22'); A.i('v_lshlrev_b32 v27, 4, v27'); A.i('v_add_u32 v4, v26, v27'); A.i('v_add_u32 v4, 2048, v4')
    A.i('s_mul_i32 s44, s40, 80'); A.i('s_lshl_b32 s23, s41, 3'); A.i('s_add_u32 s44, s44, s23')
    A.i('s_lshl_b32 s45, s44, 12'); A.i('s_lshl_b32 s23, s16, 10'); A.i('s_add_u32 s45, s45, s23'); A.i(f's_add_u32 s45, s45, {WS_VOM}')
    A.i('s_lshl_b32 s44, s44, 14'); A.i('s_lshl_b32 s23, s16, 12'); A.i('s_add_u32 s44, s44, s23'); A.i(f's_add_u32 s44, s44, {WS_VOT}')
    A.i('s_lshl_b32 s46, s40, 5'); A.i('s_lshl_b32 s23, s16, 3'); A.i('s_add_u32 s46, s46, s23'); A.i('s_mul_i32 s46, s46, 2560'); A.i(f's_add_u32 s46, s46, {WS_PTOK}')
    A.i('s_mov_b32 s47, s46')
    n = 0
    for hh in range(8):
        for k in range(2):
            o = (hh >> 1)*1024 + k*512 + (hh & 1)*128
            vm.issue(f'buffer_load_dwordx4 {ar(12*n)}, v1, s[8:11], s46 offen offset:{k*1024} sc1', f'k{n}')
            vm.issue(f'buffer_load_dwordx4 {ar(12*n+4)}, v2, s[8:11], s44 offen offset:{o} sc1', f'k{n}')
            vm.issue(f'buffer_load_dwordx4 {ar(12*n+8)}, v6, s[8:11], s44 offen offset:{o} sc1', f'k{n}')
            n += 1
        A.i('s_add_u32 s46, s46, 2560')
    for vv in range(4):
        o = (vv & 1)*512 + (vv >> 1)*128
        vm.issue(f'buffer_load_dwordx4 {ar(12*n)}, v4, s[8:11], s47 offen sc1', f'k{n}')
        vm.issue(f'buffer_load_dwordx4 {ar(12*n+4)}, v3, s[8:11], s45 offen offset:{o} sc1', f'k{n}')
        vm.issue(f'buffer_load_dwordx4 {ar(12*n+8)}, v7, s[8:11], s45 offen offset:{o} sc1', f'k{n}')
        A.i('s_add_u32 s47, s47, 5120')
        n += 1
    for j in range(20):
        vm.wait(f'k{j}')
        for t in range(2):
            c = '0' if j == 0 else vr(ACC+16*t, 16)
            A.i(f'{MF} {vr(ACC+16*t,16)}, {ar(12*j+4+4*t)}, {ar(12*j)}, {c}')
        if j == 4: residual_prefetch(A, vm, 40, 41, 2, xsrd, '0', '', 2)
    tail()
    A.i('s_nop 7')
    reduce_quads(A, 2)
    A.i(f's_mov_b32 s49, {WS_X1}')
    residual_quad(A, vm, 'res', 8, 's49', ' sc1', 2)
    vm.wait_all()

def task_f1f(A, tail):
    vm = VM(A)
    A.i('v_and_b32 v22, 63, v0'); A.i('v_lshlrev_b32 v1, 4, v22')
    A.i('s_mul_i32 s44, s40, 40'); A.i('s_mul_i32 s23, s16, 10'); A.i('s_add_u32 s44, s44, s23'); A.i('s_lshl_b32 s44, s44, 10'); A.i(f's_add_u32 s44, s44, {WS_H2}')
    A.i('s_mul_i32 s45, s41, 160'); A.i('s_add_u32 s45, s45, s23'); A.i('s_lshl_b32 s45, s45, 10'); A.i(f's_add_u32 s45, s45, {WS_WGF}')
    for m in range(1, 4): A.i(f's_add_u32 s{45+m}, s45, {m*40*1024}')
    for j in range(10):
        if j and j % 4 == 0:
            for r in range(44, 49): A.i(f's_add_u32 s{r}, s{r}, 4096')
        vm.issue(f'buffer_load_dwordx4 {ar(20*j)}, v1, s[8:11], s44 offen offset:{(j%4)*1024} sc1', f'k{j}')
        for m in range(4):
            vm.issue(f'buffer_load_dwordx4 {ar(20*j+4+4*m)}, v1, s[8:11], s{45+m} offen offset:{(j%4)*1024}', f'k{j}')
    for j in range(10):
        vm.wait(f'k{j}')
        for m in range(4):
            c = '0' if j == 0 else vr(ACC+16*m, 16)
            A.i(f'{MF} {vr(ACC+16*m,16)}, {ar(20*j+4+4*m)}, {ar(20*j)}, {c}')
    tail()
    A.i('s_nop 7')
    reduce_quads(A, 4)
    A.i('s_mul_i32 s45, s40, 96'); A.i('s_lshl_b32 s23, s41, 2'); A.i('s_add_u32 s45, s45, s23'); A.i('s_lshr_b32 s23, s16, 1'); A.i('s_add_u32 s45, s45, s23')
    A.i('s_lshl_b32 s45, s45, 10'); A.i('s_and_b32 s23, s16, 1'); A.i('s_lshl_b32 s23, s23, 3'); A.i('s_add_u32 s45, s45, s23'); A.i(f's_add_u32 s45, s45, {WS_HM}')
    for f in range(2):
        g, u = ACC + 8*f, ACC + 8*f + 4
        for h2 in range(2):
            a, b = g + 2*h2, u + 2*h2
            A.i(f'v_cvt_pk_bf16_f32 v22, v{a}, v{a+1}'); unpack(A, a, a+1, 22)
            A.i(f'v_cvt_pk_bf16_f32 v22, v{b}, v{b+1}'); unpack(A, b, b+1, 22)
            A.i(f'v_mul_f32 v{a}, v{a}, v{b}'); A.i(f'v_mul_f32 v{a+1}, v{a+1}, v{b+1}')
            A.i(f'v_cvt_pk_bf16_f32 v{24+2*f+h2}, v{a}, v{a+1}')
        vm.issue(f'buffer_store_dwordx2 v[{24+2*f}:{25+2*f}], v1, s[8:11], s45 offen offset:{f*2048} sc1')
    vm.wait_all()

def task_f2f(A, out_srd, tail):
    vm = VM(A)
    A.i('v_and_b32 v22, 63, v0'); A.i('v_lshlrev_b32 v1, 4, v22')
    A.i('s_mul_i32 s23, s16, 24')
    A.i('s_mul_i32 s44, s40, 96'); A.i('s_add_u32 s44, s44, s23'); A.i('s_lshl_b32 s44, s44, 10'); A.i(f's_add_u32 s44, s44, {WS_HM}')
    A.i('s_mul_i32 s45, s41, 192'); A.i('s_add_u32 s45, s45, s23'); A.i('s_lshl_b32 s45, s45, 10'); A.i(f's_add_u32 s45, s45, {WS_WDF}')
    A.i(f's_add_u32 s46, s45, {96*1024}')
    BV = 128
    def issue(j):
        if j and j % 4 == 0: A.i('s_add_u32 s44, s44, 4096'); A.i('s_add_u32 s45, s45, 4096'); A.i('s_add_u32 s46, s46, 4096')
        vm.issue(f'buffer_load_dwordx4 {vr(BV+4*j)}, v1, s[8:11], s44 offen offset:{(j%4)*1024} sc1', f'k{j}')
        vm.issue(f'buffer_load_dwordx4 {ar(8*j)}, v1, s[8:11], s45 offen offset:{(j%4)*1024}', f'k{j}')
        vm.issue(f'buffer_load_dwordx4 {ar(8*j+4)}, v1, s[8:11], s46 offen offset:{(j%4)*1024}', f'k{j}')
    for j in range(20): issue(j)
    A.i(f's_mov_b32 s49, {WS_X1}')
    for j in range(24):
        vm.wait(f'k{j}')
        for t in range(2):
            c = '0' if j == 0 else vr(ACC+16*t, 16)
            A.i(f'{MF} {vr(ACC+16*t,16)}, {ar(8*j+4*t)}, {vr(BV+4*j)}, {c}')
        if j < 4: issue(20 + j)
        if j == 6: residual_prefetch(A, vm, 40, 41, 5, 8, 's49', ' sc1', 2)
    tail()
    A.i('s_nop 7')
    reduce_quads(A, 2)
    residual_quad(A, vm, 'res', out_srd, '0', '', 2)
    vm.wait_all()
```

```python
from common import *
from rec import Em, LG

NSLOT, DEPTH, SLOT = 4, 3, 24576
def set_ring(n):
    global NSLOT, DEPTH
    NSLOT, DEPTH = n, n-1

OPT = dict(spread=True, nodma=False, dma_t=(1, 4))
SW, SW5 = 90, 91
def setup_sw(A):
    A.i(f's_mul_i32 s{SW}, s16, 6144'); A.i(f's_mul_i32 s{SW5}, s16, 5120')

class VM:
    def __init__(self, A): self.A = A; self.q = []
    def issue(self, text, tag=None):
        self.A.i(text); self.q.append(tag)
    def wait(self, tag):
        if tag not in self.q: return
        k = max(j for j, t in enumerate(self.q) if t == tag)
        n = len(self.q) - 1 - k
        self.A.i(f's_waitcnt vmcnt({min(n, 63)})')
        self.q = self.q[k+1:] if n <= 63 else self.q[-63:]
    def wait_all(self):
        self.A.i('s_waitcnt vmcnt(0)'); self.q = []

vL16, vRdE, vRdO, vRd5 = 1, 2, 3, 4
vCur = 6
vD192, vD160 = 10, 16
vT = 22

def setup_lane(A):
    setup_sw(A)
    A.i('v_and_b32 v22, 63, v0')
    A.i(f'v_lshlrev_b32 v{vL16}, 4, v22')
    A.i('v_lshrrev_b32 v23, 5, v22'); A.i('v_lshlrev_b32 v23, 2, v23')
    A.i('v_and_b32 v24, 15, v22'); A.i('v_lshrrev_b32 v25, 2, v24'); A.i('v_add_u32 v23, v23, v25')
    A.i('v_lshrrev_b32 v25, 4, v22'); A.i('v_and_b32 v25, 1, v25'); A.i('v_lshlrev_b32 v25, 5, v25')
    A.i('v_and_b32 v26, 3, v24'); A.i('v_lshlrev_b32 v26, 3, v26'); A.i('v_add_u32 v25, v25, v26')
    A.i('v_mul_u32_u24 v26, 384, v23'); A.i('v_add_u32 v26, v26, v25')
    A.i('v_lshrrev_b32 v27, 1, v23'); A.i('v_and_b32 v27, 1, v27'); A.i('v_lshlrev_b32 v27, 6, v27')
    A.i(f'v_add_u32 v{vRdE}, v26, v27'); A.i(f'v_sub_u32 v{vRdO}, v26, v27')
    A.i('v_mul_u32_u24 v26, 320, v23'); A.i(f'v_add_u32 v{vRd5}, v26, v25')

def setup_dma192(A, pitch):
    A.i('v_and_b32 v22, 63, v0')
    for j in range(6):
        A.i(f's_mul_i32 s23, s16, 384'); A.i(f's_add_u32 s23, s23, {64*j}')
        A.i('v_add_u32 v23, s23, v22')
        A.i('v_mul_u32_u24 v24, 2731, v23'); A.i('v_lshrrev_b32 v24, 16, v24')
        A.i('v_mul_u32_u24 v25, 24, v24'); A.i('v_sub_u32 v25, v23, v25')
        A.i('v_lshrrev_b32 v26, 1, v24'); A.i('v_and_b32 v26, 1, v26'); A.i('v_lshlrev_b32 v26, 2, v26')
        A.i('v_xor_b32 v25, v25, v26'); A.i('v_lshlrev_b32 v25, 4, v25')
        A.i(f'v_mul_u32_u24 v24, {pitch}, v24'); A.i(f'v_add_u32 v{vD192+j}, v24, v25')

def setup_dma160(A, pitch):
    A.i('v_and_b32 v22, 63, v0')
    for j in range(5):
        A.i(f's_mul_i32 s23, s16, 320'); A.i(f's_add_u32 s23, s23, {64*j}')
        A.i('v_add_u32 v23, s23, v22')
        A.i('v_mul_u32_u24 v24, 3277, v23'); A.i('v_lshrrev_b32 v24, 16, v24')
        A.i('v_mul_u32_u24 v25, 20, v24'); A.i('v_sub_u32 v25, v23, v25'); A.i('v_lshlrev_b32 v25, 4, v25')
        A.i(f'v_mul_u32_u24 v24, {pitch}, v24'); A.i(f'v_add_u32 v{vD160+j}, v24, v25')

class Stage:
    def __init__(self, kind, srd, soff, add):
        self.kind, self.srd, self.soff, self.add = kind, srd, soff, add

class Engine:
    def __init__(self, A, vm, stages, fragbase, ldsbase=0):
        self.A, self.vm, self.stages, self.fb, self.lb = A, vm, stages, fragbase, ldsbase
        self.lg = LG(A)
        self.side = []
        self.dmaq = []
        self.side_rate = 2
    def dma(self, i, spread=False):
        if i >= len(self.stages): return
        A, st = self.A, self.stages[i]
        if OPT['nodma'] and i >= DEPTH: return
        if spread and OPT['spread']:
            n = 6 if st.kind == 192 else 5
            vb = vD192 if st.kind == 192 else vD160
            slot = self.lb + (i % NSLOT)*SLOT
            for j in range(n):
                def one(j=j):
                    A.i(f's_add_u32 m0, s{SW}, {slot + j*1024}' if st.kind == 192 else f's_add_u32 m0, s{SW5}, {slot + j*1024}')
                    A.i('s_nop 0')
                    self.vm.issue(f'buffer_load_dwordx4 v{vb+j}, s[{st.srd}:{st.srd+3}], s{st.soff} offen lds', f'st{i}')
                    if j == n-1 and st.add: A.i(f's_add_u32 s{st.soff}, s{st.soff}, {st.add}')
                self.dmaq.append(one)
            return
        n = 6 if st.kind == 192 else 5
        vb = vD192 if st.kind == 192 else vD160
        slot = self.lb + (i % NSLOT)*SLOT
        A.i(f's_mul_i32 s23, s16, {n*1024}')
        for j in range(n):
            A.i(f's_add_u32 m0, s23, {slot + j*1024}')
            if j == 0: A.i('s_nop 0')
            else: A.i(f's_nop 0')
            self.vm.issue(f'buffer_load_dwordx4 v{vb+j}, s[{st.srd}:{st.srd+3}], s{st.soff} offen lds', f'st{i}')
        if st.add: A.i(f's_add_u32 s{st.soff}, s{st.soff}, {st.add}')
    def set_bases(self, i):
        if i >= len(self.stages): return
        A, st = self.A, self.stages[i]
        slot = self.lb + (i % NSLOT)*SLOT
        p = vCur + 2*(i & 1)
        if st.kind == 192:
            A.i(f'v_add_u32 v{p}, {slot}, v{vRdE}'); A.i(f'v_add_u32 v{p+1}, {slot}, v{vRdO}')
        else:
            A.i(f'v_add_u32 v{p}, {slot}, v{vRd5}')
    def frag(self, j, t): return self.fb + (j & 1)*24 + 4*t
    def read(self, j, step, t):
        i, ksl = step['stage'], step['ksl']
        st = self.stages[i]; p = vCur + 2*(i & 1); f = self.frag(j, t)
        if st.kind == 192:
            base = p + (t & 1); pitch = 384
        else:
            base = p; pitch = 320
        o = 16*ksl*pitch + t*64
        self.lg.issue(f'ds_read_b64_tr_b16 a[{f}:{f+1}], v{base} offset:{o}', f'f{j}_{t}a')
        self.lg.issue(f'ds_read_b64_tr_b16 a[{f+2}:{f+3}], v{base} offset:{o + 8*pitch}', f'f{j}_{t}')
    def pop_side(self, n):
        while n > 0 and self.side:
            s = self.side.pop(0)
            if callable(s): s()
            else: self.A.i(s)
            n -= 1
    def flush_side(self): self.pop_side(10**9)
    def run(self, steps):
        A = self.A
        for i in range(DEPTH): self.dma(i)
        self.prologue_hook() if hasattr(self, 'prologue_hook') else None
        self.vm.wait('st0'); A.i('s_barrier')
        self.set_bases(0)
        for t in range(steps[0]['nt']): self.read(0, steps[0], t)
        for j, s in enumerate(steps):
            nxt = steps[j+1] if j+1 < len(steps) else None
            if s.get('pre'): s['pre']()
            if s['ksl'] == 2:
                i = s['stage']
                if i+1 < len(self.stages):
                    while self.dmaq: self.dmaq.pop(0)()
                    self.vm.wait(f'st{i+1}'); A.i('s_barrier')
                    self.dma(i + DEPTH, spread=True)
                    self.set_bases(i+1)
            for t in range(max(s['nt'], nxt['nt'] if nxt else 0)):
                if t < s['nt']:
                    self.lg.wait(f'f{j}_{t}')
                    A.i(s['mfma'](t, f'a[{self.frag(j,t)}:{self.frag(j,t)+3}]'))
                if nxt and t < nxt['nt']: self.read(j+1, nxt, t)
                if self.dmaq and t in OPT['dma_t']: self.dmaq.pop(0)()
                self.pop_side(self.side_rate)
            if s.get('post'): s['post']()
        while self.dmaq: self.dmaq.pop(0)()

MF = 'v_mfma_f32_32x32x16_bf16'

def load_act(A, vm, areg, nks, soff, sc=''):
    for ks in range(nks):
        if ks and ks % 4 == 0: A.i(f's_add_u32 s{soff}, s{soff}, 4096')
        vm.issue(f'buffer_load_dwordx4 a[{areg+4*ks}:{areg+4*ks+3}], v{vL16}, s[8:11], s{soff} offen offset:{(ks%4)*1024}{sc}', f'act{ks}')

def pass192_steps(stage0, acc, act, vm, first_pass):
    steps = []
    for ks in range(40):
        def mf(t, fr, ks=ks):
            c = '0' if ks == 0 else vr(acc+16*t, 16)
            return f'{MF} {vr(acc+16*t,16)}, {fr}, a[{act+4*ks}:{act+4*ks+3}], {c}'
        st = dict(stage=stage0 + ks//4, ksl=ks % 4, nt=6, mfma=mf)
        if first_pass: st['pre'] = (lambda ks=ks: vm.wait(f'act{ks}'))
        steps.append(st)
    return steps

def task_kq(A, w_ka, out_ws):
    ACT, FR, ACC = 0, 160, 32
    A.i(f's_load_dwordx2 s[6:7], s[0:1], {w_ka}')
    setup_dma192(A, 12288)
    A.i('s_waitcnt lgkmcnt(0)')
    srd(A, 12, 6, 640*12288)
    A.i('s_mul_i32 s42, s41, 384')
    A.i('s_lshl_b32 s43, s40, 2'); A.i('s_add_u32 s43, s43, s16')
    A.i(f's_mul_i32 s44, s43, {40*1024}'); A.i(f's_add_u32 s44, s44, {WS_H}')
    vm = VM(A)
    stages = [Stage(192, 12, 42, 64*12288) for _ in range(10)]
    e = Engine(A, vm, stages, FR)
    e.prologue_hook = lambda: load_act(A, vm, ACT, 40, 44)
    e.run(pass192_steps(0, ACC, ACT, vm, True))
    A.i('v_and_b32 v22, 63, v0'); A.i('v_lshrrev_b32 v23, 4, v22'); A.i('v_and_b32 v23, 1, v23'); A.i('v_mul_u32_u24 v23, 6144, v23')
    A.i('v_lshrrev_b32 v24, 5, v22'); A.i('v_lshlrev_b32 v24, 4, v24'); A.i('v_and_b32 v25, 15, v22'); A.i('v_add_u32 v24, v24, v25')
    A.i('v_lshlrev_b32 v24, 4, v24'); A.i('v_add_u32 v23, v23, v24')
    A.i('s_lshl_b32 s45, s43, 5'); A.i('s_add_u32 s45, s45, s41'); A.i('s_mul_i32 s45, s45, 12288'); A.i(f's_add_u32 s45, s45, {out_ws}')
    A.i('s_nop 7')
    for t in range(6):
        D = ACC + 16*t
        o = 24 + (t & 1)*0
        ga, gb = 24, 28
        A.i(f'v_cvt_pk_bf16_f32 v{ga}, v{D}, v{D+1}'); A.i(f'v_cvt_pk_bf16_f32 v{ga+1}, v{D+2}, v{D+3}')
        A.i(f'v_cvt_pk_bf16_f32 v{ga+2}, v{D+8}, v{D+9}'); A.i(f'v_cvt_pk_bf16_f32 v{ga+3}, v{D+10}, v{D+11}')
        A.i(f'v_cvt_pk_bf16_f32 v{gb}, v{D+4}, v{D+5}'); A.i(f'v_cvt_pk_bf16_f32 v{gb+1}, v{D+6}, v{D+7}')
        A.i(f'v_cvt_pk_bf16_f32 v{gb+2}, v{D+12}, v{D+13}'); A.i(f'v_cvt_pk_bf16_f32 v{gb+3}, v{D+14}, v{D+15}')
        if t == 4: A.i('s_add_u32 s45, s45, 4096')
        vm.issue(f'buffer_store_dwordx4 {vr(ga)}, v23, s[8:11], s45 offen offset:{(t%4)*1024}')
        vm.issue(f'buffer_store_dwordx4 {vr(gb)}, v23, s[8:11], s45 offen offset:{(t%4)*1024+512}')
        A.i('s_nop 1')
    vm.wait_all()

def vo_pass(A, e, vm, stage0, VOP, ACCS, store_tile):
    steps = []
    for cc in range(4):
        acc = ACCS[cc & 1]
        for ks in range(12):
            def mf(t, fr, ks=ks, acc=acc):
                c = '0' if ks == 0 else vr(acc+16*t, 16)
                return f'{MF} {vr(acc+16*t,16)}, {vr(VOP+4*ks)}, {fr}, {c}'
            st = dict(stage=stage0 + cc*3 + ks//4, ksl=ks % 4, nt=5, mfma=mf)
            if ks == 1 and cc > 0:
                def pre(cc=cc):
                    for t in range(5): e.side.extend(store_tile(cc-1, t, ACCS[(cc-1) & 1] + 16*t))
                st['pre'] = pre
            if ks == 11:
                st['post'] = (lambda: e.flush_side())
            steps.append(st)
    return steps

def wo_stages(srd_, soff):
    st = []
    for cc in range(4):
        for i in range(3):
            add = 64*1280 if i < 2 else (320 - 128*1280)
            st.append(Stage(160, srd_, soff, add))
    return st

def task_vvo(A):
    ACT, FR = 0, 160
    VACC, VOP, ACC0, ACC1, TMP = 32, 128, 32, 176, 112
    A.i(f's_load_dwordx2 s[6:7], s[0:1], {KA["wv"]}')
    A.i(f's_load_dwordx2 s[18:19], s[0:1], {KA["wo"]}')
    setup_dma192(A, 12288); setup_dma160(A, 1280)
    A.i('s_waitcnt lgkmcnt(0)')
    srd(A, 12, 6, 640*12288); srd(A, 28, 18, 6144*1280)
    A.i('s_mul_i32 s42, s41, 384')
    A.i(f's_mul_i32 s46, s41, {192*1280}')
    A.i('s_lshl_b32 s43, s40, 2'); A.i('s_add_u32 s43, s43, s16')
    A.i(f's_mul_i32 s44, s43, {40*1024}'); A.i(f's_add_u32 s44, s44, {WS_H}')
    vm = VM(A)
    stages = [Stage(192, 12, 42, 64*12288) for _ in range(10)] + wo_stages(28, 46)
    e = Engine(A, vm, stages, FR)
    e.prologue_hook = lambda: load_act(A, vm, ACT, 40, 44)
    steps = pass192_steps(0, VACC, ACT, vm, True)
    def conv():
        A.i('s_nop 7'); A.i('s_nop 7')
        for t in range(6):
            for a in range(2):
                for r in range(4):
                    s = VACC + 16*t + 8*a + 2*r
                    A.i(f'v_cvt_pk_bf16_f32 v{VOP + 4*(2*t+a) + r}, v{s}, v{s+1}')
        A.i('s_nop 1')
    steps[-1]['post'] = conv
    A.i('v_and_b32 v22, 63, v0'); A.i('v_and_b32 v23, 31, v22'); A.i('v_lshrrev_b32 v24, 3, v23'); A.i('v_lshlrev_b32 v24, 14, v24')
    A.i('v_lshrrev_b32 v25, 5, v22'); A.i('v_lshlrev_b32 v25, 8, v25'); A.i('v_and_b32 v23, 7, v23'); A.i('v_lshlrev_b32 v23, 4, v23')
    A.i('v_add3_u32 v21, v23, v24, v25')
    A.i(f's_mul_i32 s47, s43, {80*16384}'); A.i('s_lshr_b32 s23, s41, 1'); A.i('s_lshl_b32 s23, s23, 10'); A.i('s_add_u32 s47, s47, s23')
    A.i('s_and_b32 s23, s41, 1'); A.i('s_lshl_b32 s23, s23, 7'); A.i('s_add_u32 s47, s47, s23'); A.i(f's_add_u32 s47, s47, {WS_VOT}')
    def store_tile(cc, t, D):
        o = TMP + 8*(t & 1)
        L = []
        for q in range(4):
            L.append(f'v_cvt_pk_bf16_f32 v{o+2*q}, v{D+4*q}, v{D+4*q+1}')
            L.append(f'v_cvt_pk_bf16_f32 v{o+2*q+1}, v{D+4*q+2}, v{D+4*q+3}')
        L.append(f's_add_u32 s48, s47, {(cc*20 + t*4)*16384}')
        L.append('s_nop 0')
        for b in (0, 4):
            L.append(f'v_permlane32_swap_b32 v{o+b}, v{o+b+2}')
            L.append(f'v_permlane32_swap_b32 v{o+b+1}, v{o+b+3}')
        L.append(lambda: vm.issue(f'buffer_store_dwordx4 {vr(o)}, v21, s[8:11], s48 offen'))
        L.append(lambda: vm.issue(f'buffer_store_dwordx4 {vr(o+4)}, v21, s[8:11], s48 offen offset:512'))
        return L
    steps += vo_pass(A, e, vm, 10, VOP, (ACC0, ACC1), store_tile)
    e.run(steps)
    A.i('s_nop 7'); A.i('s_nop 7')
    for t in range(5):
        e.side.extend(store_tile(3, t, ACC1 + 16*t))
    e.flush_side()
    vm.wait_all()

def task_b(A):
    FR = 160
    VOP, ACC0, ACC1, TMP = 128, 32, 176, 112
    A.i(f's_load_dwordx2 s[6:7], s[0:1], {KA["wv"]}')
    A.i(f's_load_dwordx2 s[18:19], s[0:1], {KA["wo"]}')
    setup_dma160(A, 1280)
    A.i('s_waitcnt lgkmcnt(0)')
    srd(A, 12, 6, 640*12288); srd(A, 28, 18, 6144*1280)
    A.i(f's_mul_i32 s46, s41, {192*1280}')
    vm = VM(A)
    A.i('v_and_b32 v22, 63, v0'); A.i('v_and_b32 v23, 31, v22'); A.i('v_mul_u32_u24 v23, 12288, v23')
    A.i('v_lshrrev_b32 v24, 5, v22'); A.i('v_lshlrev_b32 v24, 4, v24'); A.i('v_add_u32 v23, v23, v24')
    A.i('s_lshl_b32 s43, s40, 2'); A.i('s_add_u32 s43, s43, s16')
    A.i(f's_mul_i32 s44, s43, {32*12288}'); A.i('s_mul_i32 s23, s41, 384'); A.i('s_add_u32 s44, s44, s23')
    e = Engine(A, vm, wo_stages(28, 46), FR)
    def hook():
        for ks in range(12):
            vm.issue(f'buffer_load_dwordx4 {vr(VOP+4*ks)}, v23, s[12:15], s44 offen offset:{32*ks}', f'act{ks}')
        vm.wait('act11')
        for ks in range(12):
            r = VOP + 4*ks
            A.i(f'v_permlane32_swap_b32 v{r}, v{r+2}'); A.i(f'v_permlane32_swap_b32 v{r+1}, v{r+3}')
        A.i('s_nop 1')
    e.prologue_hook = hook
    A.i('v_and_b32 v25, 31, v22'); A.i('v_lshrrev_b32 v26, 3, v25'); A.i('s_mov_b32 s23, 327680'); A.i('v_mul_lo_u32 v26, v26, s23')
    A.i('v_lshrrev_b32 v27, 5, v22'); A.i('v_lshlrev_b32 v27, 4, v27'); A.i('v_and_b32 v25, 7, v25'); A.i('v_add_u32 v25, v25, v27')
    A.i('s_lshr_b32 s23, s41, 2'); A.i('s_and_b32 s23, s23, 1'); A.i('s_lshl_b32 s23, s23, 3')
    A.i('v_add_u32 v25, s23, v25'); A.i('v_lshlrev_b32 v25, 4, v25'); A.i('v_add_u32 v21, v25, v26')
    A.i('s_lshr_b32 s47, s41, 3'); A.i('s_mul_i32 s47, s47, 81920'); A.i('s_and_b32 s23, s41, 3'); A.i('s_mul_i32 s23, s23, 20480'); A.i('s_add_u32 s47, s47, s23')
    A.i('s_lshl_b32 s23, s43, 10'); A.i('s_add_u32 s47, s47, s23'); A.i(f's_add_u32 s47, s47, {WS_BW}')
    def store_tile(cc, t, D):
        o = TMP + 8*(t & 1)
        L = []
        for g in range(2):
            b = D + 8*g
            L.append(f'v_cvt_pk_bf16_f32 v{o+4*g}, v{b}, v{b+1}')
            L.append(f'v_cvt_pk_bf16_f32 v{o+4*g+1}, v{b+4}, v{b+5}')
            L.append(f'v_cvt_pk_bf16_f32 v{o+4*g+2}, v{b+2}, v{b+3}')
            L.append(f'v_cvt_pk_bf16_f32 v{o+4*g+3}, v{b+6}, v{b+7}')
        L.append(f's_add_u32 s48, s47, {(cc*20 + t*4)*327680}')
        L.append(lambda: vm.issue(f'buffer_store_dwordx4 {vr(o)}, v21, s[8:11], s48 offen'))
        L.append(lambda: vm.issue(f'buffer_store_dwordx4 {vr(o+4)}, v21, s[8:11], s48 offen offset:512'))
        return L
    steps = vo_pass(A, e, vm, 0, VOP, (ACC0, ACC1), store_tile)
    e.run(steps)
    A.i('s_nop 7'); A.i('s_nop 7')
    for t in range(5):
        e.side.extend(store_tile(3, t, ACC1 + 16*t))
    e.flush_side()
    vm.wait_all()

def kernel_prolog(A, name, ngrid):
    kernel_header(A, name)
    A.i(f's_load_dwordx2 s[4:5], s[0:1], {KA["ws"]}')
    A.i(f's_cmp_ge_u32 s2, {ngrid}')
    A.i(f's_cbranch_scc1 {name}_exit')
    A.i('v_lshrrev_b32 v1, 6, v0')
    A.i('s_waitcnt lgkmcnt(0)')
    srd(A, 8, 4, WS_SIZE)
    A.i('v_readfirstlane_b32 s16, v1')

def gen_pre(name='pre_kernel'):
    A = Em()
    kernel_prolog(A, name, 1536)
    setup_lane(A)
    A.i('s_and_b32 s41, s2, 31'); A.i('s_lshr_b32 s40, s2, 5'); A.i('s_and_b32 s40, s40, 15')
    A.i('s_cmp_lt_u32 s2, 512'); A.i(f's_cbranch_scc0 {name}_kq')
    task_vvo(A)
    A.i('s_endpgm')
    A.label(f'{name}_kq')
    A.i('s_cmp_lt_u32 s2, 1024'); A.i(f's_cbranch_scc0 {name}_q')
    task_kq(A, KA['wk'], WS_KT)
    A.i('s_endpgm')
    A.label(f'{name}_q')
    task_kq(A, KA['wq'], WS_QT)
    A.label(f'{name}_exit')
    A.i('s_endpgm')
    return A.text(), kernel_desc(name, 512, 256)

def gen_bw(name='bw_kernel', calib=True):
    import small
    A = Em()
    kernel_prolog(A, name, 169)
    A.i('s_nop 3')
    A.i('s_cmp_lt_u32 s2, 160'); A.i(f's_cbranch_scc1 {name}_b')
    A.i('s_cmp_eq_u32 s2, 160'); A.i(f's_cbranch_scc0 {name}_c')
    small.role_mem0(A)
    A.i('s_endpgm')
    A.label(f'{name}_c')
    if calib: small.role_calib(A)
    A.i('s_endpgm')
    A.label(f'{name}_b')
    setup_lane(A)
    A.i('s_and_b32 s41, s2, 31'); A.i('s_lshr_b32 s40, s2, 5')
    task_b(A)
    A.label(f'{name}_exit')
    A.i('s_endpgm')
    return A.text(), kernel_desc(name, 512, 256)

if __name__ == '__main__':
    t, d = gen_pre(); t2, d2 = gen_bw()
    print('; @launch kernel=pre_kernel grid=(1536,1,1) block=(256,1,1) lds=98304')
    print('; @launch kernel=bw_kernel grid=(160,1,1) block=(256,1,1) lds=98304')
    print('.amdgcn_target "amdgcn-amd-amdhsa--gfx950"')
    print(t); print(t2); print(d); print(d2)
```

```python
from common import *
from rec import Em, LG
from gemm import *

def unpack(A, lo, hi, src):
    A.i(f'v_lshlrev_b32 v{lo}, 16, v{src}'); A.i(f'v_and_b32 v{hi}, 0xffff0000, v{src}')

def residual_epilogue(A, vm, tiles, col0_sgpr, mod_idx, res_srd, res_soff, dst_srd, dst_soff, row_sgpr, T=0, res_sc='', dst_sc=''):
    A.i('v_and_b32 v22, 63, v0'); A.i('v_and_b32 v23, 31, v22'); A.i(f'v_add_u32 v23, s{row_sgpr}, v23'); A.i('v_mul_u32_u24 v23, 1280, v23')
    A.i('v_lshrrev_b32 v24, 5, v22'); A.i('v_lshlrev_b32 v25, 3, v24'); A.i('v_add_u32 v23, v23, v25')
    A.i(f's_lshl_b32 s23, s{col0_sgpr}, 1'); A.i('v_add_u32 v23, s23, v23')
    A.i('v_lshlrev_b32 v24, 4, v24'); A.i(f's_lshl_b32 s23, s{col0_sgpr}, 2'); A.i('v_add_u32 v24, s23, v24')
    A.i(f's_mov_b32 s24, {WS_MOD + mod_idx*2560}')
    G, R = T, T+16
    for ti, D in enumerate(tiles):
        for q in range(4):
            vm.issue(f'buffer_load_dwordx4 {vr(G+4*q)}, v24, s[8:11], s24 offen offset:{ti*128 + q*32}', 'g')
            vm.issue(f'buffer_load_dwordx2 v[{R+2*q}:{R+2*q+1}], v23, s[{res_srd}:{res_srd+3}], {res_soff} offen offset:{ti*64 + q*16}{res_sc}', 'g')
        vm.wait('g')
        for q in range(4):
            d = D + 4*q
            for h2 in range(2):
                a, b = d + 2*h2, d + 2*h2 + 1
                A.i(f'v_cvt_pk_bf16_f32 v26, v{a}, v{b}'); unpack(A, a, b, 26)
                A.i(f'v_mul_f32 v{a}, v{a}, v{G+4*q+2*h2}'); A.i(f'v_mul_f32 v{b}, v{b}, v{G+4*q+2*h2+1}')
                A.i(f'v_cvt_pk_bf16_f32 v26, v{a}, v{b}'); unpack(A, a, b, 26)
                unpack(A, 27, 28, R+2*q+h2)
                A.i(f'v_add_f32 v{a}, v{a}, v27'); A.i(f'v_add_f32 v{b}, v{b}, v28')
                A.i(f'v_cvt_pk_bf16_f32 v{R+2*q+h2}, v{a}, v{b}')
            vm.issue(f'buffer_store_dwordx2 v[{R+2*q}:{R+2*q+1}], v23, s[{dst_srd}:{dst_srd+3}], {dst_soff} offen offset:{ti*64 + q*16}{dst_sc}')
        A.i('s_nop 1')

def task_t2(A, sc='', xsrd=None, tail=None):
    ACC, AF, BF, NPF = 32, 64, 48, 12
    vm = VM(A)
    A.i('v_and_b32 v22, 63, v0'); A.i('v_lshlrev_b32 v1, 4, v22')
    A.i(f's_mul_i32 s42, s40, {32*2560}'); A.i('s_mul_i32 s23, s16, 20480'); A.i('s_add_u32 s42, s42, s23'); A.i(f's_add_u32 s42, s42, {WS_PTOK}')
    for j in range(5):
        A.i(f's_add_u32 m0, s23, {j*4096}'); A.i('s_nop 0')
        for q in range(4): vm.issue(f'buffer_load_dwordx4 v1, s[8:11], s42 offen offset:{q*1024}{sc} lds', 'p')
        A.i('s_add_u32 s42, s42, 4096')
    A.i('v_and_b32 v23, 31, v22'); A.i('v_lshrrev_b32 v24, 3, v23'); A.i('v_and_b32 v23, 7, v23'); A.i('v_lshlrev_b32 v23, 4, v23')
    A.i('v_lshrrev_b32 v25, 5, v22'); A.i('v_lshlrev_b32 v26, 8, v25'); A.i('v_add_u32 v23, v23, v26')
    A.i('v_lshlrev_b32 v26, 14, v24'); A.i('v_add_u32 v2, v23, v26')
    A.i('v_lshlrev_b32 v26, 12, v24'); A.i('v_add_u32 v3, v23, v26')
    A.i('s_lshl_b32 s43, s41, 4'); A.i('s_lshl_b32 s23, s16, 2'); A.i('s_add_u32 s43, s43, s23')
    A.i('s_mul_i32 s44, s40, 80'); A.i('s_add_u32 s44, s44, s43')
    A.i('s_lshl_b32 s45, s44, 12'); A.i(f's_add_u32 s45, s45, {WS_VOM}')
    A.i('s_lshl_b32 s44, s44, 14'); A.i(f's_add_u32 s44, s44, {WS_VOT}')
    import rec
    if rec.KN.get('t2fake'): A.i('s_lshl_b32 s44, s43, 14'); A.i(f's_add_u32 s44, s44, {WS_VOT}')
    A.i('v_mul_u32_u24 v26, 2560, v25'); A.i('v_and_b32 v27, 31, v22'); A.i('v_lshlrev_b32 v27, 4, v27'); A.i('v_add3_u32 v4, v26, v27, 0')
    A.i('v_add_u32 v4, 2048, v4')
    ks = []
    for h in range(32):
        for k in range(2): ks.append(('t', h, k))
    for v in range(16): ks.append(('m', v, 0))
    cur = {'p': 0}
    def a_issue(j):
        kind, x, k = ks[j]; r = AF + 4*(j % NPF)
        if kind == 't':
            p = x >> 1
            if p != cur['p'] and p % 4 == 0: A.i('s_add_u32 s44, s44, 4096')
            cur['p'] = p
            vm.issue(f'buffer_load_dwordx4 {vr(r)}, v2, s[8:11], s44 offen offset:{(p%4)*1024 + k*512 + (x&1)*128}{sc}', f'a{j}')
        else:
            vm.issue(f'buffer_load_dwordx4 {vr(r)}, v3, s[8:11], s45 offen offset:{(x>>2)*1024 + (x&1)*512 + ((x>>1)&1)*128}{sc}', f'a{j}')
    lg = LG(A)
    def b_issue(j):
        kind, x, k = ks[j]; r = BF + 4*(j % 4)
        if kind == 't': lg.issue(f'ds_read_b128 {vr(r)}, v1 offset:{x*2560 + k*1024}' if x*2560 + k*1024 < 65536 else f'ds_read_b128 {vr(r)}, v5 offset:{x*2560 + k*1024 - 40960}', f'b{j}')
        else: lg.issue(f'ds_read_b128 {vr(r)}, v4 offset:{2*x*2560}' if 2*x*2560 < 60000 else f'ds_read_b128 {vr(r)}, v6 offset:{2*x*2560 - 40960}', f'b{j}')
    A.i('v_add_u32 v5, 40960, v1'); A.i('v_add_u32 v6, 40960, v4')
    for j in range(NPF): a_issue(j)
    vm.wait('p'); A.i('s_barrier')
    for j in range(3): b_issue(j)
    for j in range(80):
        vm.wait(f'a{j}'); lg.wait(f'b{j}')
        c = '0' if j == 0 else vr(ACC, 16)
        A.i(f'{MF} {vr(ACC,16)}, {vr(AF+4*(j%NPF))}, {vr(BF+4*(j%4))}, {c}')
        if j + NPF < 80: a_issue(j + NPF)
        if j + 3 < 80: b_issue(j + 3)
    A.i('s_nop 7'); A.i('s_nop 7')
    if tail: tail()
    if xsrd is None:
        A.i(f's_load_dwordx2 s[6:7], s[0:1], {KA["x"]}'); A.i('s_waitcnt lgkmcnt(0)'); srd(A, 12, 6, 2048*1280); xsrd = 12
    A.i('s_lshl_b32 s46, s43, 3')
    A.i('s_lshl_b32 s47, s40, 5')
    A.i(f's_mov_b32 s49, {WS_X1}')
    residual_epilogue(A, vm, [ACC], 46, 2, xsrd, '0', 8, 's49', 47, T=64, dst_sc=sc)
    vm.wait_all()

def gen_t2(name='t2_kernel'):
    A = Em()
    kernel_prolog(A, name, 320)
    A.i('s_nop 3')
    A.i('s_mul_i32 s40, s2, 0x3334'); A.i('s_lshr_b32 s40, s40, 16'); A.i('s_mul_i32 s23, s40, 5'); A.i('s_sub_u32 s41, s2, s23')
    task_t2(A)
    A.label(f'{name}_exit')
    A.i('s_endpgm')
    return A.text(), kernel_desc(name, 128, 128)

def task_ffn1(A, sc='', srds=None, tail=None):
    ACT, FR, ACCG, ACCU = 0, 160, 32, 128
    if srds is None:
        A.i(f's_load_dwordx2 s[6:7], s[0:1], {KA["wg"]}'); A.i(f's_load_dwordx2 s[18:19], s[0:1], {KA["wu"]}')
        A.i('s_waitcnt lgkmcnt(0)')
        srd(A, 12, 6, 640*3072); srd(A, 28, 18, 640*3072); srds = (12, 28)
    setup_dma192(A, 3072)
    A.i('s_mul_i32 s42, s41, 384'); A.i('s_mov_b32 s46, s42')
    A.i('s_lshl_b32 s43, s40, 2'); A.i('s_add_u32 s43, s43, s16')
    A.i(f's_mul_i32 s44, s43, {40*1024}'); A.i(f's_add_u32 s44, s44, {WS_H2}')
    vm = VM(A)
    stages = [Stage(192, srds[0], 42, 64*3072) for _ in range(10)] + [Stage(192, srds[1], 46, 64*3072) for _ in range(10)]
    e = Engine(A, vm, stages, FR)
    e.prologue_parts = act_parts(A, vm, ACT, 40, 44, sc)
    steps = pass192_steps(0, ACCG, ACT, vm, True) + pass192_steps(10, ACCU, ACT, vm, False)
    e.run(steps)
    if tail: tail()
    A.i('s_nop 7'); A.i('s_nop 7')
    A.i(f's_mul_i32 s45, s43, {96*1024}'); A.i(f's_mul_i32 s23, s41, {12*1024}'); A.i('s_add_u32 s45, s45, s23'); A.i(f's_add_u32 s45, s45, {WS_HM}')
    for t in range(6):
        for a in range(2):
            o = 24 if a == 0 else 28
            for r in range(4):
                g = ACCG + 16*t + 8*a + 2*r; u = ACCU + 16*t + 8*a + 2*r
                A.i(f'v_cvt_pk_bf16_f32 v22, v{g}, v{g+1}'); unpack(A, g, g+1, 22)
                A.i(f'v_cvt_pk_bf16_f32 v22, v{u}, v{u+1}'); unpack(A, u, u+1, 22)
                A.i(f'v_mul_f32 v{g}, v{g}, v{u}'); A.i(f'v_mul_f32 v{g+1}, v{g+1}, v{u+1}')
                A.i(f'v_cvt_pk_bf16_f32 v{o+r}, v{g}, v{g+1}')
            ks = 2*t + a
            if ks and ks % 4 == 0: A.i('s_add_u32 s45, s45, 4096')
            vm.issue(f'buffer_store_dwordx4 {vr(o)}, v{vL16}, s[8:11], s45 offen offset:{(ks%4)*1024}{sc}')
    vm.wait_all()

def task_ffn2(A, sc='', srds=None, tail=None):
    FR, ACC, AF, NPF = 160, 32, 0, 16
    if srds is None:
        A.i(f's_load_dwordx2 s[18:19], s[0:1], {KA["wd"]}'); A.i(f's_load_dwordx2 s[6:7], s[0:1], {KA["out"]}')
        A.i('s_waitcnt lgkmcnt(0)')
        srd(A, 28, 18, 1536*1280); srd(A, 12, 6, 2048*1280); srds = (28, 12)
    setup_dma160(A, 1280)
    A.i('s_mul_i32 s46, s41, 320')
    A.i('s_lshl_b32 s43, s40, 2'); A.i('s_add_u32 s43, s43, s16')
    A.i(f's_mul_i32 s44, s43, {96*1024}'); A.i(f's_add_u32 s44, s44, {WS_HM}')
    vm = VM(A)
    stages = [Stage(160, srds[0], 46, 64*1280) for _ in range(24)]
    e = Engine(A, vm, stages, FR)
    def act_issue(ks):
        if ks >= 96: return
        if ks and ks % 4 == 0: A.i('s_add_u32 s44, s44, 4096')
        r = AF + 4*(ks % NPF)
        vm.issue(f'buffer_load_dwordx4 a[{r}:{r+3}], v{vL16}, s[8:11], s44 offen offset:{(ks%4)*1024}{sc}', f'act{ks}')
    e.prologue_hook = lambda: [act_issue(k) for k in range(NPF)]
    steps = []
    for ks in range(96):
        def mf(t, fr, ks=ks):
            c = '0' if ks == 0 else vr(ACC+16*t, 16)
            r = AF + 4*(ks % NPF)
            return f'{MF} {vr(ACC+16*t,16)}, {fr}, a[{r}:{r+3}], {c}'
        steps.append(dict(stage=ks//4, ksl=ks % 4, nt=5, mfma=mf, pre=(lambda ks=ks: vm.wait(f'act{ks}')), post=(lambda ks=ks: act_issue(ks+NPF))))
    e.run(steps)
    if tail: tail()
    A.i('s_nop 7'); A.i('s_nop 7')
    A.i('s_mul_i32 s46, s41, 160'); A.i('s_lshl_b32 s47, s43, 5'); A.i(f's_mov_b32 s49, {WS_X1}')
    residual_epilogue(A, vm, [ACC+16*t for t in range(5)], 46, 5, 8, 's49', srds[1], '0', 47, T=128, res_sc=sc)
    vm.wait_all()

def gen_ffn1(name='ffn1_kernel'):
    A = Em()
    kernel_prolog(A, name, 128)
    setup_lane(A)
    A.i('s_and_b32 s41, s2, 7'); A.i('s_lshr_b32 s40, s2, 3')
    task_ffn1(A)
    A.label(f'{name}_exit')
    A.i('s_endpgm')
    return A.text(), kernel_desc(name, 512, 256)

def gen_ffn2(name='ffn2_kernel'):
    A = Em()
    kernel_prolog(A, name, 64)
    setup_lane(A)
    A.i('s_and_b32 s41, s2, 3'); A.i('s_lshr_b32 s40, s2, 2')
    task_ffn2(A)
    A.label(f'{name}_exit')
    A.i('s_endpgm')
    return A.text(), kernel_desc(name, 512, 256)
```

```python
from common import *
NS, NC = 32, 80
FL_DB = WS_FLAGS + 0x16800
KN = dict(join=True, db=True, dbS=6, dbC=12, dbCm=8, ring_at=0, preS=0, dC0=0, preC=0, log=False, flags=True, post=True)
SPIN_MAX = 0x400000
LOG2E = 1.4426950408889634
import struct
def fbits(x): return struct.unpack('<I', struct.pack('<f', x))[0]
class Em(Asm):
    def __init__(self):
        super().__init__(); self.n = 0; self.marks = {}
    def i(self, s):
        for line in s.split('\n'):
            if line.strip():
                self(line)
                t = line.strip()
                if t.startswith('s_nop'): self.n += int(t.split()[1]) + 1
                elif not t.endswith(':') and not t.startswith(';'): self.n += 1
    def mark(self, k): self.marks[k] = self.n
    def need(self, k, d):
        if k not in self.marks: return
        have = self.n - self.marks[k]
        if have < d:
            r = d - have
            while r > 0:
                q = min(r, 16); self.i(f's_nop {q-1}'); r -= q
class LG(Lgkm):
    def issue(self, text, tag):
        self.asm.i(text); self.q.append(tag)
        assert len(self.q) <= 15, f'too many LDS ops in flight: {self.q}'
    def wait(self, tag):
        if tag not in self.q: return
        k = max(j for j, t in enumerate(self.q) if t == tag)
        self.asm.i(f's_waitcnt lgkmcnt({len(self.q)-1-k})'); self.q = self.q[k+1:]
    def wait_all(self):
        self.asm.i('s_waitcnt lgkmcnt(0)'); self.q = []
def remap(A, v, tmp):
    A.i(f'v_lshrrev_b32 v{tmp}, 13, v{v}')
    A.i(f'v_lshlrev_b32 v{tmp}, 14, v{tmp}')
    A.i(f'v_and_b32 v{v}, 0x1fff, v{v}')
    A.i(f'v_add_u32 v{v}, v{v}, v{tmp}')
S_WRES, S_KQ, S_MEM, S_X = 0, 98304, 147456, 157696
C_MEM, C_RED = 0, 16384
def gather_mem(A, lbl, fail, gv, lv0, lv2, t0):
    A.i('s_mov_b32 s22, 0')
    A.label(lbl)
    for j in range(3):
        A.i(f'buffer_load_dwordx4 {vr(t0+4*j)}, v{gv+j}, s[8:11], s18 offen sc1')
    A.i('s_add_u32 s22, s22, 1')
    A.i(f's_cmp_gt_u32 s22, {SPIN_MAX}')
    A.i(f's_cbranch_scc1 {fail}')
    x, y = t0+12, t0+13
    A.i('s_waitcnt vmcnt(2)')
    A.i(f'ds_write_b128 v{lv0}, {vr(t0)}')
    A.i(f'v_max3_u32 v{x}, v{t0}, v{t0+1}, v{t0+2}')
    A.i('s_waitcnt vmcnt(1)')
    A.i(f'ds_write_b128 v{lv0}, {vr(t0+4)} offset:4096')
    A.i(f'v_max3_u32 v{y}, v{t0+3}, v{t0+4}, v{t0+5}')
    A.i(f'v_max3_u32 v{x}, v{t0+6}, v{t0+7}, v{x}')
    A.i('s_waitcnt vmcnt(0)')
    A.i(f'ds_write_b128 v{lv2}, {vr(t0+8)}')
    A.i(f'v_max3_u32 v{y}, v{t0+8}, v{t0+9}, v{y}')
    A.i(f'v_max3_u32 v{x}, v{t0+10}, v{t0+11}, v{x}')
    A.i(f'v_max_u32 v{x}, v{x}, v{y}')
    A.i(f'v_cmp_eq_u32 vcc, -1, v{x}')
    A.i(f's_cbranch_vccnz {lbl}')
    A.i('s_waitcnt lgkmcnt(0)')
    A.i('s_barrier')

def setup_gather_addrs(A, gv, lv0, lv2, ldsbase, tmp):
    A.i(f'v_lshlrev_b32 v{gv}, 4, v0')
    A.i(f'v_add_u32 v{gv+1}, 4096, v{gv}')
    A.i(f'v_add_u32 v{gv+2}, 16384, v{gv}')
    A.i(f'v_add_u32 v{lv0}, {ldsbase}, v{gv}')
    A.i(f'v_add_u32 v{lv2}, {ldsbase+8192}, v{gv}')
    A.i('v_cmp_gt_u32 vcc, 128, v0')
    A.i('s_nop 1')
    A.i(f'v_cndmask_b32 v{gv+2}, v{gv}, v{gv+2}, vcc')
    A.i(f'v_cndmask_b32 v{lv2}, v{lv0}, v{lv2}, vcc')
def poll_flag(A, off_sgpr, target, vtmp, fail='R_fail'):
    lab = A.new('pf')
    A.i('s_mov_b32 s22, 0'); A.i(f'v_mov_b32 v{vtmp}, 0')
    A.label(lab)
    A.i(f'buffer_load_dword v{vtmp+1}, v{vtmp}, s[8:11], s{off_sgpr} offen sc1')
    A.i('s_add_u32 s22, s22, 1'); A.i(f's_cmp_gt_u32 s22, {SPIN_MAX}'); A.i(f's_cbranch_scc1 {fail}')
    A.i('s_waitcnt vmcnt(0)'); A.i(f'v_readfirstlane_b32 s23, v{vtmp+1}'); A.i('s_nop 3')
    A.i(f's_cmp_ge_u32 s23, {target}'); A.i(f's_cbranch_scc0 {lab}')

def signal(A, base, shift, seg_sgpr, slot_sgpr, v):
    A.i(f's_lshl_b32 s23, s{seg_sgpr}, {shift}'); A.i(f's_add_u32 s23, s23, {base}')
    A.i('s_mov_b64 exec, 1'); A.i(f'v_mov_b32 v{v}, 1'); A.i(f'v_mov_b32 v{v+1}, s{slot_sgpr}'); A.i(f'v_lshlrev_b32 v{v+1}, 2, v{v+1}')
    A.i(f'buffer_store_dword v{v}, v{v+1}, s[8:11], s23 offen sc1')
    A.i('s_mov_b64 exec, -1')

def db_wait(A, vaddr, vdata, off_sgpr, tag_sgpr, extra_sleep=0):
    if not KN['db']: return
    l0, l1 = A.new('db'), A.new('db')
    A.i('s_cmp_eq_u32 s76, 0'); A.i(f's_cbranch_scc1 {l1}')
    A.i('s_mov_b32 s22, 0')
    A.label(l0)
    A.i(f'buffer_load_dword v{vdata}, v{vaddr}, s[8:11], s{off_sgpr} offen sc1')
    A.i('s_add_u32 s22, s22, 1'); A.i('s_cmp_gt_u32 s22, 256'); A.i(f's_cbranch_scc1 {l1}')
    A.i('s_waitcnt vmcnt(0)')
    A.i(f'v_cmp_gt_u32 vcc, s{tag_sgpr}, v{vdata}')
    A.i(f's_cbranch_vccnz {l0}')
    sleep(A, extra_sleep)
    A.label(l1)

def db_ring(A, vtmp, off_sgpr, tag_sgpr):
    if not KN['db']: return
    A.i('s_mov_b64 exec, 1'); A.i(f'v_mov_b32 v{vtmp}, s{tag_sgpr}')
    A.i(f'buffer_store_dword v{vtmp}, off, s[8:11], s{off_sgpr}')
    A.i('s_mov_b64 exec, -1')

def advance(A):
    A.i(f's_add_u32 s18, s18, {MEM_STRIDE}'); A.i(f's_add_u32 s19, s19, {P_STRIDE}')
    A.i('s_add_u32 s17, s17, 1')
    A.i('s_cmp_eq_u32 s17, 32'); A.i('s_cselect_b32 s23, s33, 0'); A.i('s_add_u32 s19, s19, s23')
def sleep(A, n):
    while n > 0:
        k = min(n, 100); A.i(f's_sleep {k}'); n -= k
def stamp(A, acc):
    if KN['log']:
        A.i(('s_memtime' if KN.get('clk') else 's_memrealtime') + ' s[34:35]'); A.i('s_waitcnt lgkmcnt(0)')
        A.i('s_sub_u32 s67, s34, s66'); A.i(f's_add_u32 s{acc}, s{acc}, s67'); A.i('s_mov_b32 s66, s34')
def ev(A, k, v):
    if KN.get('ev'):
        A.i('s_memrealtime s[34:35]'); A.i('s_waitcnt lgkmcnt(0)')
        A.i(f'v_mov_b32 v{v}, s34')
        A.i('s_lshl_b32 s67, s17, 5'); A.i('s_add_u32 s67, s67, s81')
        A.i(f'buffer_store_dword v{v}, off, s[8:11], s67 offset:{4*k}')

def xlane_reduce(A, op, x, t):
    A.i(f'v_mov_b32 v{t}, v{x}')
    A.i('s_nop 1')
    A.i(f'v_permlane16_swap_b32 v{x}, v{t}')
    A.i(f'{op} v{x}, v{x}, v{t}')
    A.i(f'v_mov_b32 v{t}, v{x}')
    A.i('s_nop 1')
    A.i(f'v_permlane32_swap_b32 v{x}, v{t}')
    A.i(f'{op} v{x}, v{x}, v{t}')
def s_wloc(tt, kk):
    lds = {(0,2):0,(1,4):1,(0,6):2,(1,8):3}
    key = (tt & 1, kk)
    if key in lds: return ('l', (tt >> 1)*4 + lds[key])
    idx = 0
    for t in range(6):
        for k in range(10):
            if (t & 1, k) in lds: continue
            if (t, k) == (tt, kk):
                return ('a', idx*8) if idx < 32 else ('v', 128 + (idx-32)*8)
            idx += 1
def gen_S(A, nsteps):
    vL16, vG, vLm0, vLm2, vAr, vWr, vXw, vB, vXk, vKt, vPu, vP0, vIdx = 1, 2, 5, 6, 7, 8, 9, 10, 11, 12, 13, 14, 15
    RA, RST, RACC, RAIN, RD3, RSC, RSEL, RCI = 16, 56, 72, 96, 100, 104, 116, 120
    T0, T1, T2, VNINF = 124, 125, 126, 127
    A.label('S_role')
    A.c('---- score role setup; s3 = head')
    A.c('weights of this head: row-major tiles -> sparse-MFMA dense operands')
    WD, WA, WT = 2, 112, 16
    A.i(f's_load_dwordx2 s[6:7], s[0:1], {KA["wq"]}'); A.i(f's_load_dwordx2 s[40:41], s[0:1], {KA["wk"]}')
    A.i('v_and_b32 v22, 63, v0')
    for j in range(6):
        A.i(f's_mul_i32 s23, s16, 384'); A.i(f's_add_u32 s23, s23, {64*j}')
        A.i('v_add_u32 v23, s23, v22')
        A.i('v_mul_u32_u24 v24, 2731, v23'); A.i('v_lshrrev_b32 v24, 16, v24')
        A.i('v_mul_u32_u24 v25, 24, v24'); A.i('v_sub_u32 v25, v23, v25')
        A.i('v_lshrrev_b32 v26, 1, v24'); A.i('v_and_b32 v26, 1, v26'); A.i('v_lshlrev_b32 v26, 2, v26')
        A.i('v_xor_b32 v25, v25, v26'); A.i('v_lshlrev_b32 v25, 4, v25')
        A.i('v_mul_u32_u24 v24, 12288, v24'); A.i(f'v_add_u32 v{WD+j}, v24, v25')
    A.i('v_lshrrev_b32 v23, 4, v22'); A.i('v_and_b32 v24, 15, v22')
    A.i('v_lshrrev_b32 v25, 1, v23'); A.i('v_lshlrev_b32 v25, 4, v25'); A.i('v_and_b32 v26, 1, v23'); A.i('v_lshlrev_b32 v26, 2, v26'); A.i('v_add_u32 v25, v25, v26')
    A.i('v_lshrrev_b32 v26, 2, v24')
    A.i('v_and_b32 v27, 1, v26'); A.i('v_lshrrev_b32 v26, 1, v26'); A.i('v_lshlrev_b32 v26, 3, v26'); A.i('v_add3_u32 v25, v25, v26, v27')
    A.i('v_and_b32 v24, 3, v24'); A.i('v_lshlrev_b32 v24, 2, v24'); A.i('s_mul_i32 s23, s16, 48'); A.i('v_add_u32 v24, s23, v24')
    for p in range(3):
        for hb in range(2):
            for jj in range(2):
                A.i(f'v_add_u32 v28, {32*hb + 2*jj}, v25'); A.i(f'v_add_u32 v29, {16*p}, v24')
                A.i('v_lshrrev_b32 v30, 1, v28'); A.i('v_and_b32 v30, 1, v30'); A.i('v_lshrrev_b32 v31, 5, v29'); A.i('v_xor_b32 v30, v30, v31'); A.i('v_lshlrev_b32 v30, 6, v30')
                A.i('v_and_b32 v29, 31, v29'); A.i('v_lshlrev_b32 v29, 1, v29'); A.i('v_mul_u32_u24 v28, 384, v28'); A.i(f'v_add3_u32 v{WA+4*p+2*hb+jj}, v28, v29, v30')
    A.i('s_waitcnt lgkmcnt(0)')
    srd(A, 28, 6, 640*12288); srd(A, 44, 40, 640*12288)
    A.i('s_mul_i32 s42, s3, 384'); A.i('s_mov_b32 s43, s42'); A.i('s_mul_i32 s52, s16, 6144')
    tiles = [(kk, mt) for kk in range(10) for mt in range(2)]
    NB = 6
    def tile_dma(i):
        kk, mt = tiles[i]
        for j in range(6):
            A.i(f's_add_u32 m0, s52, {(i % NB)*24576 + j*1024}'); A.i('s_nop 0')
            A.i(f'buffer_load_dwordx4 v{WD+j}, s[{44 if mt else 28}:{47 if mt else 31}], s{43 if mt else 42} offen lds')
        A.i(f's_add_u32 s{43 if mt else 42}, s{43 if mt else 42}, {64*12288}')
    for i in range(NB-1): tile_dma(i)
    for i, (kk, mt) in enumerate(tiles):
        A.i(f's_waitcnt vmcnt({6*min(NB-2, 19-i)})'); A.i('s_barrier')
        if i + NB-1 < 20: tile_dma(i + NB-1)
        buf = (i % NB)*24576
        for p in range(3):
            kind, r = s_wloc(2*p+mt, kk)
            for hb in range(2):
                for jj in range(2):
                    if kind == 'l': dst = f'v[{WT + r*8 + 4*hb + 2*jj}:{WT + r*8 + 4*hb + 2*jj + 1}]'
                    else: dst = f'{kind}[{r + 4*hb + 2*jj}:{r + 4*hb + 2*jj + 1}]'
                    base = WA + 4*p + 2*hb + jj
                    if buf < 65536: A.i(f'ds_read_b64_tr_b16 {dst}, v{base} offset:{buf}')
                    else:
                        A.i(f'v_add_u32 v1, {buf}, v{base}'); A.i(f'ds_read_b64_tr_b16 {dst}, v1')
        A.i('s_waitcnt lgkmcnt(0)')
    A.i('s_barrier')
    A.i('v_and_b32 v1, 63, v0'); A.i('v_lshlrev_b32 v1, 4, v1'); A.i('s_mul_i32 s23, s16, 24576'); A.i('v_add_u32 v1, s23, v1')
    for slot in range(12):
        for hb in range(2):
            A.i(f'ds_write_b128 v1, {vr(WT + slot*8 + 4*hb)} offset:{S_WRES + slot*2048 + hb*1024}')
        if slot % 4 == 3: A.i('s_waitcnt lgkmcnt(0)')
    A.i('s_barrier')
    A.i('v_and_b32 v16, 63, v0')
    A.i(f'v_lshlrev_b32 v{vL16}, 4, v16')
    setup_gather_addrs(A, vG, vLm0, vLm2, S_MEM, 17)
    A.i(f'v_add_u32 v{vAr}, {S_MEM}, v{vL16}')
    A.i(f's_mul_i32 s23, s16, 24576')
    A.i(f'v_add_u32 v{vWr}, s23, v{vL16}')
    A.i('v_and_b32 v17, 15, v16'); A.i('v_lshrrev_b32 v18, 4, v16'); A.i('v_and_b32 v19, 7, v16')
    A.i('s_mul_i32 s23, s16, 3')
    A.i('s_lshr_b32 s24, s23, 1'); A.i('s_lshl_b32 s24, s24, 10'); A.i('s_and_b32 s25, s23, 1'); A.i('s_lshl_b32 s25, s25, 3')
    A.i('s_add_u32 s24, s24, s25'); A.i(f's_add_u32 s24, s24, {S_X}')
    A.i(f'v_add_u32 v{vXw}, s24, v{vL16}')
    A.i('s_and_b32 s25, s16, 1')
    A.i('s_cmp_eq_u32 s25, 0')
    A.i('s_cselect_b32 s40, 8, 1016')
    A.i('s_mov_b32 s41, 1024')
    A.i(f'v_lshlrev_b32 v20, 4, v18'); A.i('v_add_u32 v20, v20, v19')
    A.i(f'v_lshlrev_b32 v20, 4, v20')
    A.i(f'v_add_u32 v{vXk}, {S_X+128}, v20')
    A.i(f'v_add_u32 v{vB}, {S_X}, v20')
    A.i('s_cmp_eq_u32 s16, 0')
    lab = A.new('S_notq')
    A.i(f's_cbranch_scc1 {lab}')
    A.i('s_sub_u32 s23, s16, 2'); A.i('s_mul_i32 s23, s23, 6144'); A.i(f's_add_u32 s23, s23, {S_KQ+12288}')
    A.i(f'v_add_u32 v{vB}, s23, v{vL16}')
    A.label(lab)
    A.i(f'v_add_u32 v{vKt}, {S_KQ}, v{vL16}')
    A.i('s_mov_b32 s36, 24576')
    A.i('v_and_b32 v20, 8, v16'); A.i('v_cmp_eq_u32 vcc, 0, v20')
    A.i(f'v_mov_b32 v{vIdx}, 0xeeee'); A.i('v_mov_b32 v21, 0x4444'); A.i('s_nop 0')
    A.i(f'v_cndmask_b32 v{vIdx}, v{vIdx}, v21, vcc')
    A.i('v_lshlrev_b32 v20, 2, v18'); A.i('v_and_b32 v20, 7, v20')
    A.i('v_sub_u32 v21, v17, v20')
    A.i('v_subrev_u32 v22, 8, v21')
    ONE = 0x3f80
    for r in range(4):
        src = 21 if r < 2 else 22
        e0 = (r & 1)*2
        A.i(f'v_cmp_eq_u32 vcc, {e0}, v{src}'); A.i('v_mov_b32 v23, 0'); A.i(f'v_mov_b32 v24, {ONE:#x}')
        A.i('v_cndmask_b32 v25, v23, v24, vcc')
        A.i(f'v_cmp_eq_u32 vcc, {e0+1}, v{src}'); A.i(f'v_mov_b32 v24, {ONE<<16:#x}'); A.i('s_nop 0')
        A.i('v_cndmask_b32 v26, v23, v24, vcc')
        A.i(f'v_or_b32 v{RSEL+r}, v25, v26')
    A.i(f'v_mov_b32 v{VNINF}, 0xff800000')
    A.i('v_cmp_gt_u32 vcc, 32, v16'); A.i('s_nop 3'); A.i('s_mov_b64 s[42:43], vcc')
    A.i('v_and_b32 v20, 8, v16'); A.i('v_cmp_eq_u32 vcc, 0, v20'); A.i('s_nop 3'); A.i('s_and_b64 s[44:45], vcc, s[42:43]')
    A.i('s_cmp_eq_u32 s16, 0'); A.i('s_cselect_b64 s[42:43], s[44:45], s[42:43]')
    A.i('v_mov_b32 v23, 0'); A.i('s_nop 1')
    for r in range(4): A.i(f'v_cndmask_b32 v{RCI+r}, v{VNINF}, v23, s[42:43]')
    A.i('s_mov_b32 s26, 0xff00ff00'); A.i('s_mov_b32 s27, 0xff00ff00')
    A.i('v_lshlrev_b32 v20, 2, v18')
    for r in range(4):
        A.i(f'v_add_u32 v21, {r}, v20'); A.i('v_cmp_le_u32 vcc, v21, v17'); A.i('s_nop 3'); A.i('s_mov_b64 s[44:45], vcc')
        A.i('s_cmp_eq_u32 s16, 2')
        A.i(f's_cselect_b64 s[{48+2*r}:{49+2*r}], s[44:45], -1')
        A.i(f's_cselect_b64 s[{56+2*r}:{57+2*r}], 0, s[44:45]')
    A.i('s_mul_i32 s23, s3, 640')
    A.i('v_lshrrev_b32 v20, 3, v16'); A.i('v_and_b32 v20, 1, v20'); A.i('v_lshlrev_b32 v20, 1, v20')
    A.i('v_lshrrev_b32 v21, 1, v18'); A.i('v_add3_u32 v20, v20, v21, 1')
    A.i('v_lshlrev_b32 v20, 7, v20'); A.i('v_lshlrev_b32 v21, 4, v19'); A.i('v_add_u32 v20, v20, v21')
    A.i('v_and_b32 v21, 1, v18'); A.i('v_lshlrev_b32 v21, 3, v21')
    A.i(f'v_add3_u32 v{vPu}, v20, v21, s23')
    remap(A, vPu, 22)
    A.i('v_lshlrev_b32 v20, 4, v19'); A.i('v_lshlrev_b32 v21, 3, v18'); A.i(f'v_add3_u32 v{vP0}, v20, v21, s23')
    remap(A, vP0, 22)
    A.i('v_cmp_gt_u32 vcc, 32, v16'); A.i('s_nop 3'); A.i('s_mov_b64 s[44:45], vcc')
    A.i('v_and_b32 v20, 8, v16'); A.i('v_cmp_eq_u32 vcc, 0, v20'); A.i('s_nop 3'); A.i('s_and_b64 s[44:45], vcc, s[44:45]')
    A.i('v_mov_b32 v22, 0x80000000'); A.i('s_nop 0')
    A.i(f'v_cndmask_b32 v{vP0}, v22, v{vP0}, s[44:45]')
    lab = A.new('S_tokoff')
    A.i('s_cmp_lt_u32 s16, 2'); A.i(f's_cbranch_scc1 {lab}')
    A.i('s_sub_u32 s23, s16, 2'); A.i('s_lshl_b32 s23, s23, 4')
    A.i('v_add_u32 v20, s23, v17')
    A.i('v_lshrrev_b32 v21, 1, v18'); A.i('v_lshlrev_b32 v21, 5, v21'); A.i('v_add_u32 v21, v21, v20'); A.i('v_lshlrev_b32 v21, 4, v21')
    A.i('v_and_b32 v22, 1, v18'); A.i('v_lshlrev_b32 v22, 3, v22')
    A.i(f'v_add_u32 v{vPu}, v21, v22')
    A.i('v_lshlrev_b32 v21, 4, v20'); A.i('v_lshlrev_b32 v22, 3, v18'); A.i('v_add_u32 v21, v21, v22')
    A.i(f'v_add_u32 v{vP0}, 2048, v21')
    A.i('v_cmp_gt_u32 vcc, 32, v16'); A.i('v_mov_b32 v22, 0x80000000'); A.i('s_nop 0')
    A.i(f'v_cndmask_b32 v{vP0}, v22, v{vP0}, vcc')
    A.label(lab)
    A.i(f's_mul_i32 s20, s3, 12288'); A.i(f's_add_u32 s21, s20, {WS_QT}'); A.i(f's_add_u32 s20, s20, {WS_KT}')
    A.i(f's_mul_i32 s37, s3, 2560'); A.i(f's_add_u32 s37, s37, {WS_PTOK}')
    A.i(f's_mov_b32 s38, {S_KQ}')
    def kq_dma():
        for which, so in ((0, 's20'), (1, 's21')):
            for blk in range(3):
                A.i(f's_add_u32 m0, s38, {which*12288 + blk*4096}')
                A.i(f's_add_u32 s23, {so}, {blk*4096}')
                for q in range(4):
                    A.i(f'buffer_load_dwordx4 v{vL16}, s[8:11], s23 offen offset:{q*1024} sc1 lds')
    A.i(f's_lshl_b32 s65, s3, 7'); A.i(f's_add_u32 s65, s65, {FL_KQ}')
    lab = A.new('S_nodma0')
    A.i('s_cmp_eq_u32 s16, 1'); A.i(f's_cbranch_scc0 {lab}')
    if KN['flags']: poll_flag(A, 65, 1, T0)
    kq_dma()
    A.label(lab)
    A.i(f's_add_u32 s20, s20, {32*12288}'); A.i(f's_add_u32 s21, s21, {32*12288}')
    A.i(f's_add_u32 s38, s38, s36')
    for r in range(24): A.i(f'v_mov_b32 v{RACC+r}, 0')
    A.i(f's_mov_b32 s24, {fbits(DH**-0.5*LOG2E):#x}')
    A.i('s_waitcnt vmcnt(0)')
    A.i('s_barrier')
    A.i('s_lshr_b32 s77, s3, 3'); A.i('s_lshl_b32 s77, s77, 8'); A.i(f's_add_u32 s77, s77, {FL_DB}')
    A.i('s_add_u32 s78, s77, 128')
    A.i('s_and_b32 s23, s3, 7'); A.i('s_lshl_b32 s23, s23, 2'); A.i('s_add_u32 s77, s77, s23')
    A.i('v_and_b32 v0, 63, v0'); A.i('v_min_u32 v0, 19, v0'); A.i('v_lshlrev_b32 v0, 2, v0')
    A.i('s_mov_b32 s25, s24')
    A.i(f's_mov_b32 s82, {WS_FLAGS + 0x16e00}')
    A.i('s_lshl_b32 s83, s3, 2'); A.i(f's_add_u32 s83, s83, {FL_PT}')
    placement_ok(A, RA)
    if KN['log']: A.i(('s_memtime' if KN.get('clk') else 's_memrealtime') + ' s[34:35]'); A.i('s_waitcnt lgkmcnt(0)'); A.i('s_mov_b32 s66, s34')
    A.label('S_loop')
    db_wait(A, 0, RA+14, 78, 17, KN['dbS'])
    ev(A, 0, T2)
    sleep(A, KN['preS'])
    gather_mem(A, 'S_poll', 'R_fail', vG, vLm0, vLm2, RA)
    if KN['log']: A.i('s_add_u32 s72, s72, s22')
    stamp(A, 68)
    ev(A, 1, T2)
    lg = LG(A)
    Areg = lambda kk: RA + 4*kk
    for kk in range(10):
        lg.issue(f'ds_read_b128 {vr(Areg(kk))}, v{vAr} offset:{kk*1024}', f'A{kk}')
    def wread(slot, half):
        st = RST + 8*(slot & 1) + 4*half
        lg.issue(f'ds_read_b128 {vr(st)}, v{vWr} offset:{slot*2048 + half*1024}', f'W{slot}' if half else f'W{slot}a')
    wread(0, 0); wread(0, 1)
    ktreg = lambda j: Areg(j) if j < 10 else RST + 4*(j-10)
    def kt_issue(j):
        T, kq = j & 1, j >> 1
        lg.issue(f'ds_read_b128 {vr(ktreg(j))}, v{vKt} offset:{(T*6+kq)*1024}', f'K{j}')
    def T_cvt1(p, r):
        src = RACC + 8*p + (0 if r < 2 else 4) + 2*(r & 1)
        A.need(f'acc{p}', 8)
        A.i(f'v_cvt_pk_bf16_f32 v{RAIN+r}, v{src}, v{src+1}'); A.mark('ain')
    def T_mfma(p):
        A.need('ain', 2)
        A.i(f'v_mfma_f32_16x16x32_bf16 {vr(RD3)}, {vr(RAIN)}, {vr(RSEL)}, 0'); A.mark('d3')
    def T_cvt2(p, h):
        A.need('d3', 8)
        A.i(f'v_cvt_pk_bf16_f32 v{T0+h}, v{RD3+2*h}, v{RD3+2*h+1}')
    def T_addr(p): A.i(f'v_add_u32 v{T2}, s{39+p}, v{vXw}')
    def T_write(p):
        lg.issue(f'ds_write_b64 v{vXw if p == 0 else T2}, v[{T0}:{T0+1}]', f'X{p}')
    def extras(p):
        ex = {}
        def put(pos, f):
            while pos in ex: pos += 1
            ex[pos] = f
        b = 4*p
        put(0, lambda: wread(b+1, 0)); put(1, lambda: wread(b+1, 1))
        put(5, lambda: wread(b+2, 0)); put(6, lambda: wread(b+2, 1))
        put(10, lambda: wread(b+3, 0)); put(13, lambda: wread(b+3, 1))
        if p < 2:
            put(14, lambda: wread(b+4, 0)); put(15, lambda: wread(b+4, 1))
        if p > 0:
            q = p-1
            put(4, lambda: T_cvt1(q, 0)); put(7, lambda: T_cvt1(q, 1)); put(8, lambda: T_cvt1(q, 2)); put(9, lambda: T_cvt1(q, 3))
            put(12, lambda: T_mfma(q))
            if q > 0: put(2, lambda: T_addr(q))
            put(17, lambda: T_cvt2(q, 0)); put(18, lambda: T_cvt2(q, 1))
        return ex
    for p in range(3):
        ex = extras(p)
        for pos in range(20):
            kk, isk = pos >> 1, pos & 1
            tt = 2*p + isk
            kind, r = s_wloc(tt, kk)
            if p == 0 and isk == 0 and kk in (0, 2, 5): lg.wait(f'A{ {0:1, 2:4, 5:9}[kk] }')
            if p == 2 and pos == 0: T_write(0)
            if kind == 'l':
                lg.wait(f'W{r}')
                breg = vr(RST + 8*(r & 1), 8)
            else:
                breg = (ar if kind == 'a' else vr)(r, 8)
            A.i(f'v_smfmac_f32_16x16x64_bf16 {vr(RACC+4*tt)}, {vr(Areg(kk))}, {breg}, v{vIdx}')
            if pos == 19: A.mark(f'acc{p}')
            if pos in ex: ex[pos]()
            if p == 2:
                if pos >= 2 and pos % 2 == 0: kt_issue(pos//2 - 1)
                if pos == 15: kt_issue(10)
                if pos == 17: kt_issue(11)
    T_write(1)
    kt_issue(9)
    for r in range(4): T_cvt1(2, r)
    T_addr(2)
    T_mfma(2)
    T_cvt2(2, 0); T_cvt2(2, 1)
    T_write(2)
    lg.wait_all()
    A.i('s_barrier')
    stamp(A, 69)
    ev(A, 2, T2)
    D0, D1, D2 = RSC, RSC+4, RSC+8
    xb = lambda b: RACC + 8*b
    def scores():
        lg = LG(A)
        def x_issue(kq):
            b = kq % 3
            lg.issue(f'ds_read_b128 {vr(xb(b))}, v{vB} offset:{kq*1024}', f'B{kq}')
            lg.issue(f'ds_read_b128 {vr(xb(b)+4)}, v{vXk} offset:{kq*1024}', f'Xk{kq}')
        for kq in range(3): x_issue(kq)
        for kq in range(6):
            b = kq % 3
            lg.wait(f'B{kq}')
            c0 = vr(RCI) if kq == 0 else vr(D0)
            c1 = '0' if kq == 0 else vr(D1)
            c2 = '0' if kq == 0 else vr(D2)
            A.i(f'v_mfma_f32_16x16x32_bf16 {vr(D1)}, {vr(ktreg(2*kq))}, {vr(xb(b))}, {c1}')
            A.i(f'v_mfma_f32_16x16x32_bf16 {vr(D2)}, {vr(ktreg(2*kq+1))}, {vr(xb(b))}, {c2}')
            lg.wait(f'Xk{kq}')
            A.i(f'v_mfma_f32_16x16x32_bf16 {vr(D0)}, {vr(xb(b)+4)}, {vr(xb(b))}, {c0}')
            if kq < 3: x_issue(kq+3)
        A.mark('sc')
    A.i('s_cmp_eq_u32 s16, 0')
    A.i('s_cbranch_scc0 S_notw0')
    A.c('memory queries')
    scores()
    U = RACC
    ML, MG, TT, F, SM = RAIN, RAIN+1, RAIN+2, RAIN+3, RD3
    E = RACC+8
    A.need('sc', 8)
    for r in range(4): A.i(f'v_cndmask_b32 v{U+r}, v{D1+r}, v{D2+r}, s[26:27]')
    A.i(f'v_max3_f32 v{ML}, v{D0}, v{D0+1}, v{D0+2}')
    A.i(f'v_max3_f32 v{TT}, v{U}, v{U+1}, v{U+2}')
    A.i(f'v_max3_f32 v{ML}, v{ML}, v{D0+3}, v{U+3}')
    A.i(f'v_max_f32 v{ML}, v{ML}, v{TT}')
    A.i(f'v_mul_f32 v{ML}, s24, v{ML}')
    def pkfma(d, sreg): A.i(f'v_pk_fma_f32 v[{d}:{d+1}], v[{sreg}:{sreg+1}], s[24:25], v[{ML}:{ML+1}] op_sel_hi:[1,1,0] neg_lo:[0,0,1] neg_hi:[0,0,1]')
    pkfma(E, U); pkfma(E+2, U+2)
    A.i(f'v_max_f32_dpp v{MG}, v{ML}, v{ML} row_ror:8 row_mask:0xf bank_mask:0xf')
    A.i(f'v_mov_b32 v{TT}, v{MG}')
    pkfma(E+4, D0); pkfma(E+6, D0+2)
    A.i(f'v_permlane16_swap_b32 v{MG}, v{TT}')
    A.i(f'v_exp_f32 v{E}, v{E}')
    A.i(f'v_max_f32 v{MG}, v{MG}, v{TT}')
    A.i(f'v_exp_f32 v{E+1}, v{E+1}')
    A.i(f'v_mov_b32 v{TT}, v{MG}')
    A.i(f'v_exp_f32 v{E+2}, v{E+2}'); A.i(f'v_exp_f32 v{E+3}, v{E+3}')
    A.i(f'v_permlane32_swap_b32 v{MG}, v{TT}')
    A.i(f'v_exp_f32 v{E+4}, v{E+4}')
    A.i(f'v_max_f32 v{MG}, v{MG}, v{TT}')
    A.i(f'v_exp_f32 v{E+5}, v{E+5}')
    A.i(f'v_sub_f32 v{F}, v{ML}, v{MG}')
    A.i(f'v_exp_f32 v{E+6}, v{E+6}'); A.i(f'v_exp_f32 v{E+7}, v{E+7}')
    A.i(f'v_exp_f32 v{F}, v{F}')
    A.i(f'v_pk_add_f32 v[{SM}:{SM+1}], v[{E}:{E+1}], v[{E+2}:{E+3}]')
    A.i(f'v_pk_add_f32 v[{SM+2}:{SM+3}], v[{E+4}:{E+5}], v[{E+6}:{E+7}]')
    A.i(f'v_pk_add_f32 v[{SM}:{SM+1}], v[{SM}:{SM+1}], v[{SM+2}:{SM+3}]')
    A.i(f'v_add_f32 v{SM}, v{SM}, v{SM+1}')
    A.i(f'v_mul_f32 v{SM}, v{SM}, v{F}')
    A.i('s_nop 1')
    A.i(f'v_add_f32_dpp v{SM}, v{SM}, v{SM} row_ror:8 row_mask:0xf bank_mask:0xf')
    xlane_reduce(A, 'v_add_f32', SM, TT)
    A.i(f'v_rcp_f32 v{SM}, v{SM}')
    A.i('s_nop 0')
    A.i(f'v_mul_f32 v{F}, v{F}, v{SM}')
    for j in range(0, 4, 2): A.i(f'v_pk_mul_f32 v[{E+j}:{E+j+1}], v[{E+j}:{E+j+1}], v[{F-1}:{F}] op_sel:[0,1] op_sel_hi:[1,1]')
    A.i(f'v_cvt_pk_bf16_f32 v{U}, v{E}, v{E+1}'); A.i(f'v_cvt_pk_bf16_f32 v{U+1}, v{E+2}, v{E+3}')
    A.i(f'buffer_store_dwordx2 v[{U}:{U+1}], v{vPu}, s[8:11], s19 offen sc1')
    for j in range(4, 8, 2): A.i(f'v_pk_mul_f32 v[{E+j}:{E+j+1}], v[{E+j}:{E+j+1}], v[{F-1}:{F}] op_sel:[0,1] op_sel_hi:[1,1]')
    A.i(f'v_cvt_pk_bf16_f32 v{U+2}, v{E+4}, v{E+5}'); A.i(f'v_cvt_pk_bf16_f32 v{U+3}, v{E+6}, v{E+7}')
    A.i(f'buffer_store_dwordx2 v[{U+2}:{U+3}], v{vP0}, s[8:11], s19 offen sc1')
    A.i('s_branch S_end')
    A.label('S_notw0')
    A.i('s_cmp_eq_u32 s16, 1')
    A.i('s_cbranch_scc1 S_wave1')
    if KN['post']:
        lab = A.new('S_nopt')
        A.i('s_cmp_eq_u32 s16, 3'); A.i(f's_cbranch_scc0 {lab}')
        A.i('s_mov_b64 exec, 1')
        A.i(f'buffer_store_dword v{vIdx}, off, s[8:11], s82 sc1')
        A.i('s_mov_b64 exec, -1')
        A.i('s_mov_b32 s82, s83'); A.i('s_add_u32 s83, s83, 128')
        A.label(lab)
    scores()
    MX, SM = RAIN, RAIN+2
    TT = RAIN+1
    A.i('s_nop 7')
    for r in range(4):
        A.i(f'v_cndmask_b32 v{D1+r}, v{VNINF}, v{D1+r}, s[{48+2*r}:{49+2*r}]')
        A.i(f'v_cndmask_b32 v{D2+r}, v{VNINF}, v{D2+r}, s[{56+2*r}:{57+2*r}]')
    A.i(f'v_max3_f32 v{MX}, v{D0}, v{D0+1}, v{D0+2}')
    A.i(f'v_max3_f32 v{TT}, v{D1}, v{D1+1}, v{D1+2}')
    A.i(f'v_max3_f32 v{MX}, v{MX}, v{D0+3}, v{D1+3}')
    A.i(f'v_max3_f32 v{TT}, v{TT}, v{D2}, v{D2+1}')
    A.i(f'v_max3_f32 v{MX}, v{MX}, v{D2+2}, v{D2+3}')
    A.i(f'v_max_f32 v{MX}, v{MX}, v{TT}')
    xlane_reduce(A, 'v_max_f32', MX, TT)
    A.i(f'v_mul_f32 v{MX}, s24, v{MX}')
    E = RACC
    for j in range(12): A.i(f'v_fma_f32 v{E+j}, v{D0+j}, s24, -v{MX}')
    for j in range(12): A.i(f'v_exp_f32 v{E+j}, v{E+j}')
    A.i(f'v_add_f32 v{SM}, v{E}, v{E+1}')
    for j in range(2, 12): A.i(f'v_add_f32 v{SM}, v{SM}, v{E+j}')
    xlane_reduce(A, 'v_add_f32', SM, TT)
    A.i(f'v_rcp_f32 v{SM}, v{SM}')
    A.i('s_nop 0')
    for j in range(12): A.i(f'v_mul_f32 v{E+j}, v{E+j}, v{SM}')
    O = RACC+12
    for j in range(6): A.i(f'v_cvt_pk_bf16_f32 v{O+j}, v{E+2*j}, v{E+2*j+1}')
    A.i(f'buffer_store_dwordx2 v[{O}:{O+1}], v{vP0}, s[8:11], s37 offen sc1')
    A.i(f'buffer_store_dwordx2 v[{O+2}:{O+3}], v{vPu}, s[8:11], s37 offen sc1')
    A.i(f'buffer_store_dwordx2 v[{O+4}:{O+5}], v{vPu}, s[8:11], s37 offen offset:1024 sc1')
    A.i('s_branch S_end')
    A.label('S_wave1')
    sleep(A, KN['ring_at'])
    A.i('s_add_u32 s79, s17, 1')
    db_ring(A, T0, 77, 79)
    A.i(f's_cmp_ge_u32 s17, {nsteps-1}')
    A.i('s_cbranch_scc1 S_end')
    if KN['flags']:
        lab = A.new('S_noflag')
        A.i('s_add_u32 s23, s17, 1'); A.i('s_and_b32 s23, s23, 3'); A.i('s_cmp_eq_u32 s23, 0'); A.i(f's_cbranch_scc0 {lab}')
        A.i(f's_add_u32 s65, s65, {32*128}')
        poll_flag(A, 65, 1, T0)
        A.label(lab)
    kq_dma()
    A.label('S_end')
    stamp(A, 70)
    ev(A, 3, T2)
    A.i('s_nop 1')
    for r in range(24): A.i(f'v_mov_b32 v{RACC+r}, 0')
    A.i(f'v_add_u32 v{vKt}, s36, v{vKt}')
    A.i('s_cmp_eq_u32 s16, 0'); A.i('s_cselect_b32 s23, 0, s36')
    A.i(f'v_add_u32 v{vB}, s23, v{vB}')
    A.i('s_sub_u32 s38, s38, s36')
    A.i('s_sub_u32 s36, 0, s36')
    A.i(f's_add_u32 s20, s20, {32*12288}'); A.i(f's_add_u32 s21, s21, {32*12288}')
    A.i(f's_add_u32 s37, s37, {32*2560}')
    advance(A)
    A.i(f's_cmp_lt_u32 s17, {nsteps}')
    A.i('s_cbranch_scc1 S_loop')
    if KN['post']:
        A.i('s_waitcnt vmcnt(0)'); A.i('s_barrier')
        A.i('s_cmp_eq_u32 s16, 1'); A.i('s_cbranch_scc0 R_done')
        A.i(f's_mov_b32 s79, {nsteps-1}'); signal(A, FL_PT, 7, 79, 3, T0)
    A.i('s_branch R_done')
def gen_C(A, nsteps):
    vL16, vG, vLm0, vLm2, vAr, vIdx, vPg, vRw, vRr1, vRr2, vPub = 1, 2, 5, 6, 7, 8, 9, 14, 15, 16, 17
    RA, RD, RVM, RVT, RP, RO, RT = 20, 60, 76, 80, 112, 132, 136
    wreg = lambda j: (ar, j*8) if j < 32 else (vr, 192 + (j-32)*8)
    A.label('C_role')
    A.c('---- column-owner role setup; s3-NS = column block')
    A.i(f's_sub_u32 s3, s3, {NS}')
    A.i(f'v_and_b32 v{RT}, 63, v0')
    A.i(f'v_lshlrev_b32 v{vL16}, 4, v{RT}')
    setup_gather_addrs(A, vG, vLm0, vLm2, C_MEM, RT+1)
    A.i(f'v_add_u32 v{vAr}, {C_MEM}, v{vL16}')
    L, G, M, HF = RT, RT+1, RT+2, RT+3
    A.i(f'v_lshrrev_b32 v{G}, 4, v{L}'); A.i(f'v_and_b32 v{M}, 7, v{L}')
    A.i(f'v_lshrrev_b32 v{HF}, 3, v{L}'); A.i(f'v_and_b32 v{HF}, 1, v{HF}')
    A.i(f'v_cmp_eq_u32 vcc, 0, v{HF}')
    A.i(f'v_mov_b32 v{vIdx}, 0xeeee'); A.i(f'v_mov_b32 v{RT+4}, 0x4444'); A.i('s_nop 0')
    A.i(f'v_cndmask_b32 v{vIdx}, v{vIdx}, v{RT+4}, vcc')
    A.i('s_lshl_b32 s23, s16, 3')
    for u in range(4):
        A.i(f'v_add_u32 v{RT+4}, s23, v{HF}'); A.i(f'v_add_u32 v{RT+4}, {2*u}, v{RT+4}')
        A.i(f'v_mul_u32_u24 v{RT+4}, 640, v{RT+4}')
        A.i(f'v_add_u32 v{RT+5}, 1, v{G}'); A.i(f'v_lshlrev_b32 v{RT+5}, 7, v{RT+5}')
        A.i(f'v_lshlrev_b32 v{RT+6}, 4, v{M}')
        A.i(f'v_add3_u32 v{vPg+u}, v{RT+4}, v{RT+5}, v{RT+6}')
        remap(A, vPg+u, RT+4)
    A.i(f'v_lshlrev_b32 v{RT+4}, 2, v{HF}'); A.i(f'v_add3_u32 v{RT+4}, v{RT+4}, v{G}, s23')
    A.i(f'v_mul_u32_u24 v{RT+4}, 640, v{RT+4}'); A.i(f'v_lshlrev_b32 v{RT+6}, 4, v{M}')
    A.i(f'v_add_u32 v{vPg+4}, v{RT+4}, v{RT+6}')
    remap(A, vPg+4, RT+4)
    A.i('s_lshl_b32 s23, s16, 10'); A.i(f's_add_u32 s23, s23, {C_RED}')
    A.i(f'v_add_u32 v{vRw}, s23, v{vL16}')
    A.i(f'v_lshlrev_b32 v{RT+4}, 10, v{G}')
    A.i(f'v_lshlrev_b32 v{RT+5}, 4, v{HF}'); A.i(f'v_add_u32 v{RT+5}, v{RT+5}, v{M}'); A.i(f'v_lshlrev_b32 v{RT+5}, 4, v{RT+5}')
    A.i(f'v_add_u32 v{RT+4}, v{RT+4}, v{RT+5}')
    A.i(f'v_add_u32 v{vRr1}, {C_RED}, v{RT+4}')
    A.i(f'v_add_u32 v{vRr2}, {C_RED + (2*16+8)*16}, v{RT+4}')
    A.i('s_lshl_b32 s23, s3, 7')
    A.i(f'v_lshlrev_b32 v{RT+4}, 4, v{M}'); A.i(f'v_lshlrev_b32 v{RT+5}, 3, v{HF}'); A.i(f'v_add_u32 v{RT+4}, v{RT+4}, v{RT+5}')
    A.i(f'v_lshrrev_b32 v{RT+5}, 1, v{G}'); A.i(f'v_lshlrev_b32 v{RT+5}, 2, v{RT+5}')
    A.i(f'v_add3_u32 v{vPub}, v{RT+4}, v{RT+5}, s23')
    remap(A, vPub, RT+4)
    A.i(f'v_add_u32 v{vPub}, {MEM_STRIDE}, v{vPub}')
    A.i(f'v_and_b32 v{RT+4}, 1, v{G}'); A.i(f'v_cmp_eq_u32 vcc, 0, v{RT+4}')
    A.i(f'v_mov_b32 v{RT+5}, 0x80000000'); A.i('s_nop 0')
    A.i(f'v_cndmask_b32 v{vPub}, v{RT+5}, v{vPub}, vcc')
    A.i(f's_mul_i32 s23, s3, 327680'); A.i('s_mul_i32 s24, s16, 81920'); A.i('s_add_u32 s23, s23, s24'); A.i(f's_add_u32 s23, s23, {WS_BW}')
    for j in range(40):
        f, r = wreg(j)
        A.i(f'buffer_load_dwordx4 {f(r)}, v{vL16}, s[8:11], s23 offen')
        A.i(f'buffer_load_dwordx4 {f(r+4)}, v{vL16}, s[8:11], s23 offen offset:1024')
        A.i('s_add_u32 s23, s23, 2048')
        if j % 8 == 7: A.i('s_waitcnt vmcnt(32)')
    A.i('s_mul_i32 s20, s3, 16384'); A.i('s_lshl_b32 s23, s16, 12'); A.i('s_add_u32 s20, s20, s23'); A.i(f's_add_u32 s20, s20, {WS_VOT}')
    A.i('s_mul_i32 s21, s3, 4096'); A.i('s_lshl_b32 s23, s16, 10'); A.i('s_add_u32 s21, s21, s23'); A.i(f's_add_u32 s21, s21, {WS_VOM}')
    def vt_load(buf):
        for u in range(4):
            A.i(f'buffer_load_dwordx4 {vr(RVT+16*buf+4*u)}, v{vL16}, s[8:11], s20 offen offset:{u*1024} sc1')
        A.i(f's_add_u32 s20, s20, {80*16384}')
    A.i(f's_mov_b32 s65, {FL_VVO}')
    if KN['flags']: poll_flag(A, 65, 32, RT)
    vt_load(0)
    A.i('s_waitcnt vmcnt(0)')
    A.i('s_mul_i32 s77, s3, 3277'); A.i('s_lshr_b32 s77, s77, 16')
    A.i('s_mul_i32 s23, s77, 20'); A.i('s_sub_u32 s79, s3, s23')
    A.i('s_lshl_b32 s77, s77, 8'); A.i(f's_add_u32 s78, s77, {FL_DB}')
    A.i('s_add_u32 s80, s78, 128')
    A.i('s_lshl_b32 s79, s79, 2'); A.i('s_add_u32 s77, s80, s79')
    vDS, vDC = 18, 19
    A.i(f'v_and_b32 v{vDS}, 63, v0'); A.i(f'v_min_u32 v{vDC}, 19, v{vDS}'); A.i(f'v_lshlrev_b32 v{vDC}, 2, v{vDC}')
    A.i(f'v_min_u32 v{vDS}, 7, v{vDS}'); A.i(f'v_lshlrev_b32 v{vDS}, 2, v{vDS}')
    placement_ok(A, RT)
    if KN['log']: A.i(('s_memtime' if KN.get('clk') else 's_memrealtime') + ' s[34:35]'); A.i('s_waitcnt lgkmcnt(0)'); A.i('s_mov_b32 s66, s34')

    def body(buf, tagp):
        db_wait(A, vDC, RT, 80, 17, KN['dbCm'])
        ev(A, 0, RT+3)
        sleep(A, KN['dC0'])
        gather_mem(A, f'C_poll{tagp}', 'R_fail', vG, vLm0, vLm2, RP)
        if KN['log']: A.i('s_add_u32 s72, s72, s22')
        stamp(A, 68)
        ev(A, 1, RT+3)
        lg = LG(A)
        for kk in range(10):
            lg.issue(f'ds_read_b128 {vr(RA+4*kk)}, v{vAr} offset:{kk*1024}', f'A{kk}')
        lab = A.new('C_novt')
        A.i(f's_cmp_ge_u32 s17, {nsteps-1}'); A.i(f's_cbranch_scc1 {lab}')
        if KN['flags']:
            l2 = A.new('C_noflag')
            A.i('s_add_u32 s23, s17, 1'); A.i('s_and_b32 s23, s23, 3'); A.i('s_cmp_eq_u32 s23, 0'); A.i(f's_cbranch_scc0 {l2}')
            A.i('s_add_u32 s65, s65, 128')
            poll_flag(A, 65, 32, RT)
            A.label(l2)
        if KN.get('vtlat'): A.i('s_memrealtime s[86:87]'); A.i('s_waitcnt lgkmcnt(0)')
        vt_load(buf ^ 1)
        if KN.get('vtlat'):
            A.i('s_waitcnt vmcnt(0)'); A.i('s_memrealtime s[88:89]'); A.i('s_waitcnt lgkmcnt(0)'); A.i('s_sub_u32 s88, s88, s86')
            A.i('s_mov_b32 m0, s17'); A.i('s_nop 0'); A.i('v_writelane_b32 v151, s88, m0')
        A.label(lab)
        for r in range(16): A.i(f'v_mov_b32 v{RD+r}, 0')
        A.i('s_nop 1')
        for kk in range(10):
            lg.wait(f'A{kk}')
            for t in range(4):
                f, r = wreg(t*10 + kk)
                A.i(f'v_smfmac_f32_16x16x64_bf16 {vr(RD+4*t)}, {vr(RA+4*kk)}, {f(r,8)}, v{vIdx}')
        A.i('s_nop 7')
        for i in range(4):
            A.i(f'v_permlane32_swap_b32 v{RD+i}, v{RD+8+i}')
            A.i(f'v_permlane32_swap_b32 v{RD+4+i}, v{RD+12+i}')
        for i in range(4):
            A.i(f'v_add_f32 v{RD+i}, v{RD+i}, v{RD+8+i}')
            A.i(f'v_add_f32 v{RD+4+i}, v{RD+4+i}, v{RD+12+i}')
        A.i(f'v_cvt_pk_bf16_f32 v{RVM}, v{RD}, v{RD+1}'); A.i(f'v_cvt_pk_bf16_f32 v{RVM+1}, v{RD+2}, v{RD+3}')
        A.i(f'v_cvt_pk_bf16_f32 v{RVM+2}, v{RD+4}, v{RD+5}'); A.i(f'v_cvt_pk_bf16_f32 v{RVM+3}, v{RD+6}, v{RD+7}')
        A.i('s_nop 1')
        A.i(f'v_permlane16_swap_b32 v{RVM}, v{RVM+2}')
        A.i(f'v_permlane16_swap_b32 v{RVM+1}, v{RVM+3}')
        A.i(f's_cmp_ge_u32 s17, {nsteps-1}'); A.i('s_cbranch_scc1 C_last')
        stamp(A, 69)
        ev(A, 2, RT+3)
        A.i('s_add_u32 s79, s17, 1')
        db_wait(A, vDS, RT, 78, 79, KN['dbC'])
        ev(A, 3, RT+3)
        sleep(A, KN['preC'])
        A.i('s_mov_b32 s22, 0')
        A.i(f'v_mov_b32 v{RT+2}, s79')
        lbl = f'C_pp{tagp}'
        A.label(lbl)
        for u in range(5):
            A.i(f'buffer_load_dwordx4 {vr(RP+4*u)}, v{vPg+u}, s[8:11], s19 offen sc1')
        A.i('s_add_u32 s22, s22, 1'); A.i(f's_cmp_gt_u32 s22, {SPIN_MAX}'); A.i('s_cbranch_scc1 R_fail')
        x, y = RT, RT+1
        for u in range(5):
            A.i(f's_waitcnt vmcnt({4-u})')
            a_op = vr(RVT+16*buf+4*u) if u < 4 else vr(RVM)
            cc = '0' if u == 0 else vr(RO)
            A.i(f'v_mfma_f32_16x16x32_bf16 {vr(RO)}, {a_op}, {vr(RP+4*u)}, {cc}')
            p = RP+4*u
            if u == 0:
                A.i(f'v_max3_u32 v{x}, v{p}, v{p+1}, v{p+2}'); A.i(f'v_mov_b32 v{y}, v{p+3}')
            else:
                A.i(f'v_max3_u32 v{x}, v{p}, v{p+1}, v{x}'); A.i(f'v_max3_u32 v{y}, v{p+2}, v{p+3}, v{y}')
        A.mark('ro')
        A.i(f'v_max_u32 v{x}, v{x}, v{y}')
        A.i(f'v_cmp_eq_u32 vcc, -1, v{x}')
        A.i(f's_cbranch_vccnz {lbl}')
        if KN['log']: A.i('s_add_u32 s73, s73, s22')
        stamp(A, 70)
        ev(A, 4, RT+3)
        A.need('ro', 8)
        A.i(f'ds_write_b128 v{vRw}, {vr(RO)}')
        lab = A.new('C_nopub'); lab2 = A.new('C_join')
        A.i('s_cmp_eq_u32 s16, 0'); A.i(f's_cbranch_scc0 {lab}')
        if KN['db']:
            A.i('s_mov_b64 exec, 1'); A.i(f'buffer_store_dword v{RT+2}, off, s[8:11], s77'); A.i('s_mov_b64 exec, -1')
        A.i('s_waitcnt lgkmcnt(0)')
        A.i('s_barrier')
        R1, R2 = RT+4, RT+8
        A.i(f'ds_read_b128 {vr(R1)}, v{vRr1}'); A.i(f'ds_read_b128 {vr(R2)}, v{vRr2}')
        A.i('s_waitcnt lgkmcnt(0)')
        A.i(f'v_pk_add_f32 v[{R1}:{R1+1}], v[{R1}:{R1+1}], v[{R2}:{R2+1}]'); A.i(f'v_pk_add_f32 v[{R1+2}:{R1+3}], v[{R1+2}:{R1+3}], v[{R2+2}:{R2+3}]')
        A.i('s_nop 1')
        A.i(f'v_permlane32_swap_b32 v{R1}, v{R1+2}')
        A.i(f'v_permlane32_swap_b32 v{R1+1}, v{R1+3}')
        A.i(f'v_pk_add_f32 v[{R1}:{R1+1}], v[{R1}:{R1+1}], v[{R1+2}:{R1+3}]')
        A.i(f'v_mov_b32 v{R2}, v{R1}'); A.i(f'v_mov_b32 v{R2+1}, v{R1+1}')
        A.i('s_nop 0')
        A.i(f'v_permlane16_swap_b32 v{R1}, v{R2}')
        A.i(f'v_permlane16_swap_b32 v{R1+1}, v{R2+1}')
        A.i(f'v_pk_add_f32 v[{R1}:{R1+1}], v[{R1}:{R1+1}], v[{R2}:{R2+1}]')
        A.i(f'v_cvt_pk_bf16_f32 v{R1}, v{R1}, v{R1+1}')
        A.i(f'buffer_store_dword v{R1}, v{vPub}, s[8:11], s18 offen sc1')
        A.i(f's_branch {lab2}')
        A.label(lab)
        A.i('s_waitcnt lgkmcnt(0)')
        A.i('s_barrier')
        A.label(lab2)
        A.i(f'buffer_store_dwordx4 {vr(RVM)}, v{vL16}, s[8:11], s21 offen sc1')
        A.i(f's_add_u32 s21, s21, {80*4096}')
        stamp(A, 71)
        ev(A, 5, RT+3)
        if KN['log']:
            A.i('s_mov_b32 m0, s17'); A.i('s_nop 0'); A.i('v_writelane_b32 v150, s34, m0')
        advance(A)
    A.label('C_loop')
    body(0, 'a')
    body(1, 'b')
    A.i('s_branch C_loop')
    A.label('C_last')
    A.i('s_nop 1')
    A.i(f'buffer_store_dwordx4 {vr(RVM)}, v{vL16}, s[8:11], s21 offen sc1')
    if KN['post']:
        A.i('s_waitcnt vmcnt(0)'); A.i('s_barrier')
        A.i('s_cmp_eq_u32 s16, 1'); A.i('s_cbranch_scc0 R_done')
        signal(A, FL_VM, 9, 17, 3, RT)
    A.i('s_branch R_done')
def placement_ok(A, v):
    l0, l1 = A.new('pl'), A.new('pl')
    A.i('s_mov_b32 s76, 0'); A.i('s_mov_b32 s22, 0')
    A.i(f'v_mov_b32 v{v}, 96')
    A.label(l0)
    A.i(f'buffer_load_dwordx2 v[{v+2}:{v+3}], v{v}, s[12:15], 0 offen sc1')
    A.i('s_waitcnt vmcnt(0)'); A.i(f'v_readfirstlane_b32 s23, v{v+2}'); A.i(f'v_readfirstlane_b32 s79, v{v+3}')
    A.i('s_add_u32 s22, s22, 1'); A.i('s_cmp_gt_u32 s22, 0x1000'); A.i(f's_cbranch_scc1 {l1}')
    A.i(f's_cmp_ge_u32 s23, {NGRID}'); A.i(f's_cbranch_scc0 {l0}')
    A.i(f's_cmp_eq_u32 s79, {NS+NC}'); A.i('s_cselect_b32 s76, 1, 0')
    A.label(l1)

NGRID = 256
def assign_role(A, ngrid):
    A.i(f's_load_dwordx2 s[6:7], s[0:1], {KA["dbg"]}')
    A.i('s_getreg_b32 s50, hwreg(HW_REG_XCC_ID)'); A.i('s_and_b32 s50, s50, 15')
    A.i('s_waitcnt lgkmcnt(0)')
    srd(A, 12, 6, 256)
    A.i('s_mov_b32 s3, -1')
    A.i('s_cmp_eq_u32 s16, 0'); A.i('s_cbranch_scc0 R_role_wait')
    A.i('s_mov_b64 exec, 1')
    def atomic(op, val, off):
        A.i(f'v_mov_b32 v2, {val}'); A.i(f'v_mov_b32 v3, {off}')
        A.i(f'buffer_atomic_{op} v2, v3, s[12:15], 0 offen sc0')
        A.i('s_waitcnt vmcnt(0)'); A.i('v_readfirstlane_b32 s51, v2'); A.i('s_nop 3')
    def claim(ok):
        A.i('s_lshr_b32 s53, s52, 5'); A.i('s_lshl_b32 s53, s53, 2'); A.i('s_add_u32 s53, s53, 64')
        A.i('s_and_b32 s54, s52, 31'); A.i('s_lshl_b32 s54, 1, s54')
        atomic('or', 's54', 's53')
        A.i('s_and_b32 s51, s51, s54'); A.i('s_cmp_eq_u32 s51, 0'); A.i('s_cselect_b32 s3, s52, s3')
    A.i('s_cmp_lt_u32 s50, 4'); A.i('s_cbranch_scc0 R_role_arr')
    A.i('s_lshl_b32 s52, s50, 2'); atomic('add', '1', 's52')
    A.i('s_cmp_lt_u32 s51, 8'); A.i('s_cbranch_scc0 R_role_c')
    A.i('s_lshl_b32 s52, s50, 3'); A.i('s_add_u32 s52, s52, s51'); A.i('s_branch R_role_try')
    A.label('R_role_c')
    A.i('s_cmp_lt_u32 s51, 28'); A.i('s_cbranch_scc0 R_role_arr')
    A.i('s_mul_i32 s52, s50, 20'); A.i('s_add_u32 s52, s52, s51'); A.i('s_add_u32 s52, s52, 24')
    A.label('R_role_try')
    claim(None)
    A.i('s_cmp_lt_i32 s3, 0'); A.i('s_cbranch_scc1 R_role_arr')
    atomic('add', '1', '100')
    A.label('R_role_arr')
    atomic('add', '1', '96')
    A.i('s_cmp_lt_i32 s3, 0'); A.i('s_cbranch_scc0 R_role_pub')
    A.i('s_mov_b32 s22, 0')
    A.label('R_role_spin')
    atomic('add', '0', '96')
    A.i(f's_cmp_ge_u32 s51, {ngrid}'); A.i('s_cbranch_scc1 R_role_scan')
    A.i('s_sleep 8'); A.i('s_add_u32 s22, s22, 1'); A.i('s_cmp_lt_u32 s22, 0x4000'); A.i('s_cbranch_scc1 R_role_spin')
    A.label('R_role_scan')
    for k in range(4):
        lab, nx = f'R_scan{k}', f'R_scan{k}_n'
        valid = 0xffffffff if k < 3 else 0xffff
        A.label(lab)
        atomic('add', '0', str(64 + 4*k))
        A.i('s_not_b32 s51, s51'); A.i(f's_and_b32 s51, s51, {valid:#x}'); A.i('s_cmp_eq_u32 s51, 0'); A.i(f's_cbranch_scc1 {nx}')
        A.i('s_ff1_i32_b32 s52, s51'); A.i(f's_add_u32 s52, s52, {32*k}')
        claim(None)
        A.i('s_cmp_lt_i32 s3, 0'); A.i('s_cbranch_scc0 R_role_pub'); A.i(f's_branch {lab}')
        A.label(nx)
    A.label('R_role_pub')
    A.i('v_mov_b32 v2, s3'); A.i('v_mov_b32 v3, 0'); A.i('ds_write_b32 v3, v2'); A.i('s_waitcnt lgkmcnt(0)')
    A.i('s_mov_b64 exec, -1')
    A.label('R_role_wait')
    A.i('s_barrier')
    A.i('v_mov_b32 v3, 0'); A.i('ds_read_b32 v2, v3'); A.i('s_waitcnt lgkmcnt(0)'); A.i('v_readfirstlane_b32 s3, v2'); A.i('s_nop 3')
    A.i('s_barrier')
def gen_rec(name='rec_kernel', nsteps=NSEG, ngrid=256, workers=None):
    A = Em()
    kernel_header(A, name)
    A.i(f's_load_dwordx2 s[4:5], s[0:1], {KA["ws"]}')
    A.i(f's_cmp_ge_u32 s2, {ngrid}')
    A.i('s_cbranch_scc1 R_exit')
    A.i('v_lshrrev_b32 v1, 6, v0')
    A.i('s_waitcnt lgkmcnt(0)')
    srd(A, 8, 4, WS_SIZE)
    A.i('v_readfirstlane_b32 s16, v1')
    A.i(f's_load_dwordx4 s[44:47], s[4:5], {WS_TAB}')
    A.i('s_nop 3')
    assign_role(A, ngrid)
    A.i(f's_cmp_lt_u32 s3, {NS+NC}'); A.i('s_cbranch_scc0 W_role' if workers else 's_cbranch_scc0 R_exit')
    A.i('s_and_b32 s44, s44, 8192'); A.i('s_and_b32 s45, s45, 8192'); A.i('s_and_b32 s46, s46, 8192')
    hand_base(A, 18)
    A.i(f's_add_u32 s19, s18, {HB_P}'); A.i('s_add_u32 s19, s19, s45')
    A.i('s_add_u32 s18, s18, s44')
    A.i('s_sub_u32 s33, s46, s45')
    A.i('s_mov_b32 s17, 0')
    if KN.get('ev'):
        A.i('s_lshl_b32 s81, s3, 2'); A.i('s_add_u32 s81, s81, s16'); A.i('s_lshl_b32 s81, s81, 11'); A.i(f's_add_u32 s81, s81, {0xE000000}')
    if KN['log']:
        A.i('s_mov_b32 s64, s3')
        for r in range(68, 76): A.i(f's_mov_b32 s{r}, 0')
    A.i(f's_cmp_lt_u32 s3, {NS}')
    A.i('s_cbranch_scc0 C_role')
    gen_S(A, nsteps)
    gen_C(A, nsteps)
    A.label('R_fail')
    A.label('R_done')
    if KN['log']:
        A.i('s_lshl_b32 s23, s64, 2'); A.i('s_add_u32 s23, s23, s16'); A.i('s_lshl_b32 s23, s23, 5'); A.i(f's_add_u32 s23, s23, {WS_LOG}')
        A.i('s_mov_b64 exec, 1'); A.i('v_mov_b32 v1, 0')
        for r in range(8): A.i(f'v_mov_b32 v{2+r}, s{68+r}')
        A.i('buffer_store_dwordx4 v[2:5], v1, s[8:11], s23 offen'); A.i('buffer_store_dwordx4 v[6:9], v1, s[8:11], s23 offen offset:16')
        A.i('s_mov_b64 exec, -1'); A.i('v_and_b32 v1, 63, v0'); A.i('v_lshlrev_b32 v1, 2, v1')
        A.i('s_lshl_b32 s23, s64, 2'); A.i('s_add_u32 s23, s23, s16'); A.i('s_lshl_b32 s23, s23, 8'); A.i(f's_add_u32 s23, s23, {WS_LOG + 0x10000}')
        A.i('buffer_store_dword v150, v1, s[8:11], s23 offen')
        if KN.get('vtlat'):
            A.i(f's_add_u32 s23, s23, {0x50000}'); A.i('buffer_store_dword v151, v1, s[8:11], s23 offen')
    A.label('R_wexit')
    A.i('s_waitcnt vmcnt(0)')
    if workers and KN['post'] and KN['join']:
        A.i('s_mov_b64 exec, -1'); A.i('s_barrier')
        A.i('v_mbcnt_lo_u32_b32 v0, -1, 0'); A.i('v_mbcnt_hi_u32_b32 v0, -1, v0'); A.i('s_lshl_b32 s23, s16, 6'); A.i('v_add_u32 v0, s23, v0')
        A.i('s_getpc_b64 s[92:93]')
        A.label('R_pc')
        A.i('s_add_u32 s92, s92, P_phase-R_pc'); A.i('s_addc_u32 s93, s93, 0')
        A.i('s_setpc_b64 s[92:93]')
    A.label('R_exit')
    A.i('s_endpgm')
    if workers: workers(A)
    return A.text(), kernel_desc(name, 512, 256)
if __name__ == '__main__':
    t, d = gen_rec()
    print('; @launch kernel=rec_kernel grid=(112,1,1) block=(256,1,1) lds=163840')
    print('.amdgcn_target "amdgcn-amd-amdhsa--gfx950"')
    print(t); print(d)
```

```python
from common import *
from rec import Em, fbits, LOG2E
from gemm import setup_dma192, setup_dma160, setup_lane, vD192, vD160, vRdE, vRdO, vRd5, vL16

def rnd_bf16(A, v, tmp=None):
    A.i(f'v_cvt_pk_bf16_f32 v{v}, v{v}, v{v}')
    A.i(f'v_lshlrev_b32 v{v}, 16, v{v}')

def role_mod(A):
    A.i(f's_load_dwordx2 s[6:7], s[0:1], {KA["c"]}')
    A.i(f's_load_dwordx2 s[18:19], s[0:1], {KA["wmod"]}')
    A.i('v_and_b32 v2, 63, v0')
    A.i('v_lshrrev_b32 v3, 3, v2')
    A.i('v_and_b32 v4, 7, v2')
    A.i('s_waitcnt lgkmcnt(0)')
    srd(A, 12, 6, 1280); srd(A, 28, 18, 640*7680)
    A.i('s_mul_i32 s23, s16, 160'); A.i('v_add_u32 v5, s23, v3')
    A.i('s_mov_b32 s24, 7680'); A.i('v_mul_lo_u32 v6, v5, s24'); A.i('v_lshlrev_b32 v7, 4, v4'); A.i('v_add_u32 v6, v6, v7')
    A.i('s_lshl_b32 s25, s40, 7')
    A.i('v_lshlrev_b32 v5, 1, v5')
    W, C = 32, 112
    for j in range(20):
        A.i(f'buffer_load_dwordx4 {vr(W+4*j)}, v6, s[28:31], s25 offen')
        A.i(f'buffer_load_ushort v{C+j}, v5, s[12:15], 0 offen offset:{16*j}')
        A.i(f's_add_u32 s25, s25, {8*7680}')
    ACC = 8
    for r in range(8): A.i(f'v_mov_b32 v{ACC+r}, 0')
    A.i(f's_mov_b32 s26, {fbits(-LOG2E):#x}')
    for j in range(20):
        A.i(f's_waitcnt vmcnt({2*(19-j)})')
        c = C + j
        A.i(f'v_lshlrev_b32 v{c}, 16, v{c}')
        A.i(f'v_mul_f32 v16, s26, v{c}'); A.i('v_exp_f32 v16, v16'); A.i('s_nop 0'); A.i('v_add_f32 v16, 1.0, v16'); A.i('v_rcp_f32 v16, v16'); A.i('s_nop 0')
        A.i(f'v_mul_f32 v16, v16, v{c}')
        rnd_bf16(A, 16)
        for d in range(4):
            w = W + 4*j + d
            A.i(f'v_lshlrev_b32 v17, 16, v{w}'); A.i(f'v_and_b32 v18, 0xffff0000, v{w}')
            A.i(f'v_fmac_f32 v{ACC+2*d}, v16, v17'); A.i(f'v_fmac_f32 v{ACC+2*d+1}, v16, v18')
    for r in range(8):
        x = ACC + r
        A.i('s_nop 1')
        A.i(f'v_add_f32_dpp v{x}, v{x}, v{x} row_ror:8 row_mask:0xf bank_mask:0xf')
        A.i(f'v_mov_b32 v16, v{x}'); A.i('s_nop 1'); A.i(f'v_permlane16_swap_b32 v{x}, v16'); A.i(f'v_add_f32 v{x}, v{x}, v16')
        A.i(f'v_mov_b32 v16, v{x}'); A.i('s_nop 1'); A.i(f'v_permlane32_swap_b32 v{x}, v16'); A.i(f'v_add_f32 v{x}, v{x}, v16')
    A.i('v_lshlrev_b32 v16, 5, v4'); A.i('s_lshl_b32 s23, s16, 8'); A.i('v_add_u32 v16, s23, v16')
    A.i('s_mov_b64 exec, 0xff')
    A.i(f'ds_write_b128 v16, {vr(ACC)}'); A.i(f'ds_write_b128 v16, {vr(ACC+4)} offset:16')
    A.i('s_mov_b64 exec, -1')
    A.i('s_waitcnt lgkmcnt(0)'); A.i('s_barrier')
    A.i('v_lshlrev_b32 v16, 2, v2')
    for w in range(4): A.i(f'ds_read_b32 v{20+w}, v16 offset:{256*w}')
    A.i('s_waitcnt lgkmcnt(0)')
    A.i('v_add_f32 v20, v20, v21'); A.i('v_add_f32 v22, v22, v23'); A.i('v_add_f32 v20, v20, v22')
    rnd_bf16(A, 20)
    A.i('s_lshl_b32 s23, s40, 8'); A.i(f's_add_u32 s23, s23, {WS_MOD}')
    lab = A.new('mod_skip')
    A.i('s_cmp_eq_u32 s16, 0'); A.i(f's_cbranch_scc0 {lab}')
    A.i('buffer_store_dword v20, v16, s[8:11], s23 offen')
    A.i('s_waitcnt vmcnt(0)')
    A.label(lab)

def role_wqk(A):
    A.i('s_mov_b32 s23, 0xcccd'); A.i('s_mul_i32 s41, s40, s23'); A.i('s_lshr_b32 s41, s41, 20')
    A.i('s_mul_i32 s23, s41, 20'); A.i('s_sub_u32 s42, s40, s23')
    A.i('s_cmp_ge_u32 s42, 10'); A.i('s_cselect_b32 s43, 1, 0')
    A.i('s_mul_i32 s23, s43, 10'); A.i('s_sub_u32 s42, s42, s23')
    A.i(f's_load_dwordx2 s[6:7], s[0:1], {KA["wq"]}'); A.i(f's_load_dwordx2 s[18:19], s[0:1], {KA["wk"]}')
    setup_dma192(A, 12288)
    A.i('s_waitcnt lgkmcnt(0)')
    A.i('s_cmp_eq_u32 s43, 0'); A.i('s_cselect_b32 s6, s6, s18'); A.i('s_cselect_b32 s7, s7, s19')
    srd(A, 12, 6, 640*12288)
    A.i(f's_mul_i32 s44, s42, {64*12288}'); A.i('s_mul_i32 s23, s41, 384'); A.i('s_add_u32 s44, s44, s23')
    A.i('s_mul_i32 s23, s16, 6144')
    for j in range(6):
        A.i(f's_add_u32 m0, s23, {j*1024}'); A.i('s_nop 0')
        A.i(f'buffer_load_dwordx4 v{vD192+j}, s[12:15], s44 offen lds')
    A.i('v_and_b32 v22, 63, v0'); A.i('v_lshrrev_b32 v23, 4, v22'); A.i('v_and_b32 v24, 15, v22')
    A.i('v_lshrrev_b32 v25, 1, v23'); A.i('v_lshlrev_b32 v25, 4, v25'); A.i('v_and_b32 v26, 1, v23'); A.i('v_lshlrev_b32 v26, 2, v26'); A.i('v_add_u32 v25, v25, v26')
    A.i('v_lshrrev_b32 v26, 2, v24')
    A.i('v_and_b32 v27, 1, v26'); A.i('v_lshrrev_b32 v26, 1, v26'); A.i('v_lshlrev_b32 v26, 3, v26'); A.i('v_add3_u32 v25, v25, v26, v27')
    A.i('v_and_b32 v24, 3, v24'); A.i('v_lshlrev_b32 v24, 2, v24'); A.i('s_mul_i32 s23, s16, 48'); A.i('v_add_u32 v24, s23, v24')
    A.i(f'v_lshlrev_b32 v1, 4, v22')
    A.i('s_mul_i32 s45, s41, 491520'); A.i('s_mul_i32 s23, s16, 122880'); A.i('s_add_u32 s45, s45, s23')
    A.i('s_mul_i32 s23, s43, 10'); A.i('s_add_u32 s23, s23, s42'); A.i('s_lshl_b32 s23, s23, 11'); A.i('s_add_u32 s45, s45, s23'); A.i(f's_add_u32 s45, s45, {WS_WQK}')
    A.i('s_waitcnt vmcnt(0)'); A.i('s_barrier')
    for p in range(3):
        for hb in range(2):
            for jj in range(2):
                A.i(f'v_add_u32 v28, {32*hb + 2*jj}, v25'); A.i(f'v_add_u32 v29, {16*p}, v24')
                A.i('v_lshrrev_b32 v30, 1, v28'); A.i('v_and_b32 v30, 1, v30'); A.i('v_lshrrev_b32 v31, 5, v29'); A.i('v_xor_b32 v30, v30, v31'); A.i('v_lshlrev_b32 v30, 6, v30')
                A.i('v_and_b32 v29, 31, v29'); A.i('v_lshlrev_b32 v29, 1, v29'); A.i('v_mul_u32_u24 v28, 384, v28'); A.i('v_add3_u32 v28, v28, v29, v30')
                r = 32 + 8*p + 4*hb + 2*jj
                A.i(f'ds_read_b64_tr_b16 v[{r}:{r+1}], v28')
    A.i('s_waitcnt lgkmcnt(0)')
    for p in range(3):
        for hb in range(2):
            A.i(f's_add_u32 s46, s45, {p*20*2048 + hb*1024}')
            A.i(f'buffer_store_dwordx4 {vr(32+8*p+4*hb)}, v1, s[8:11], s46 offen')
    A.i('s_waitcnt vmcnt(0)')

def role_fill(A, nwg):
    per = WS_HAND_SIZE // nwg
    assert per % 4096 == 0, per
    hand_base(A, 24)
    A.i(f's_mul_i32 s23, s40, {per}'); A.i('s_add_u32 s23, s23, s24')
    A.i('v_lshlrev_b32 v1, 4, v0')
    for r in range(4): A.i(f'v_mov_b32 v{4+r}, -1')
    for j in range(per // 4096):
        A.i('buffer_store_dwordx4 v[4:7], v1, s[8:11], s23 offen sc1')
        A.i('s_add_u32 s23, s23, 4096')
    A.i('s_waitcnt vmcnt(0)')

def role_wfrag(A, sc=''):
    setup_lane(A)
    lab = A.new('wf_down'); end = A.new('wf_end')
    A.i('s_cmp_lt_u32 s40, 160'); A.i(f's_cbranch_scc0 {lab}')
    A.i('s_cmp_ge_u32 s40, 80'); A.i('s_cselect_b32 s43, 1, 0'); A.i('s_mul_i32 s23, s43, 80'); A.i('s_sub_u32 s41, s40, s23')
    A.i('s_mul_i32 s42, s41, 6554'); A.i('s_lshr_b32 s42, s42, 16'); A.i('s_mul_i32 s23, s42, 10'); A.i('s_sub_u32 s41, s41, s23')
    A.i(f's_load_dwordx2 s[6:7], s[0:1], {KA["wg"]}'); A.i(f's_load_dwordx2 s[18:19], s[0:1], {KA["wu"]}')
    setup_dma192(A, 3072)
    A.i('s_waitcnt lgkmcnt(0)')
    A.i('s_cmp_eq_u32 s43, 0'); A.i('s_cselect_b32 s6, s6, s18'); A.i('s_cselect_b32 s7, s7, s19')
    srd(A, 28, 6, 640*3072)
    A.i(f's_mul_i32 s44, s41, {64*3072}'); A.i('s_mul_i32 s23, s42, 384'); A.i('s_add_u32 s44, s44, s23')
    A.i('s_mul_i32 s23, s16, 6144')
    for j in range(6):
        A.i(f's_add_u32 m0, s23, {j*1024}'); A.i('s_nop 0')
        A.i(f'buffer_load_dwordx4 v{vD192+j}, s[28:31], s44 offen lds')
    A.i('s_mul_i32 s45, s42, 12'); A.i('s_add_u32 s45, s45, s43'); A.i('s_mul_i32 s45, s45, 40'); A.i('s_lshl_b32 s23, s41, 2'); A.i('s_add_u32 s45, s45, s23')
    A.i('s_add_u32 s45, s45, s16'); A.i('s_lshl_b32 s45, s45, 10'); A.i(f's_add_u32 s45, s45, {WS_WGF}')
    A.i(f's_mul_i32 s23, s16, {16*384}'); A.i(f'v_add_u32 v28, s23, v{vRdE}'); A.i(f'v_add_u32 v29, s23, v{vRdO}')
    A.i('s_waitcnt vmcnt(0)'); A.i('s_barrier')
    for t in range(6):
        A.i(f'ds_read_b64_tr_b16 v[{32+4*t}:{33+4*t}], v{28 + (t & 1)} offset:{t*64}')
        A.i(f'ds_read_b64_tr_b16 v[{34+4*t}:{35+4*t}], v{28 + (t & 1)} offset:{t*64 + 8*384}')
    A.i('s_waitcnt lgkmcnt(0)')
    for t in range(6):
        A.i(f'buffer_store_dwordx4 {vr(32+4*t)}, v{vL16}, s[8:11], s45 offen{sc}')
        A.i(f's_add_u32 s45, s45, {80*1024}')
    A.i(f's_branch {end}')
    A.label(lab)
    A.i('s_sub_u32 s41, s40, 160'); A.i('s_mul_i32 s42, s41, 2731'); A.i('s_lshr_b32 s42, s42, 16'); A.i('s_mul_i32 s23, s42, 24'); A.i('s_sub_u32 s41, s41, s23')
    A.i(f's_load_dwordx2 s[6:7], s[0:1], {KA["wd"]}')
    setup_dma160(A, 1280)
    A.i('s_waitcnt lgkmcnt(0)')
    srd(A, 28, 6, 1536*1280)
    A.i(f's_mul_i32 s44, s41, {64*1280}'); A.i('s_mul_i32 s23, s42, 320'); A.i('s_add_u32 s44, s44, s23')
    A.i('s_mul_i32 s23, s16, 5120')
    for j in range(5):
        A.i(f's_add_u32 m0, s23, {j*1024}'); A.i('s_nop 0')
        A.i(f'buffer_load_dwordx4 v{vD160+j}, s[28:31], s44 offen lds')
    A.i('s_mul_i32 s45, s42, 480'); A.i('s_lshl_b32 s23, s41, 2'); A.i('s_add_u32 s45, s45, s23'); A.i('s_add_u32 s45, s45, s16')
    A.i('s_lshl_b32 s45, s45, 10'); A.i(f's_add_u32 s45, s45, {WS_WDF}')
    A.i(f's_mul_i32 s23, s16, {16*320}'); A.i(f'v_add_u32 v28, s23, v{vRd5}')
    A.i('s_waitcnt vmcnt(0)'); A.i('s_barrier')
    for t in range(5):
        A.i(f'ds_read_b64_tr_b16 v[{32+4*t}:{33+4*t}], v28 offset:{t*64}')
        A.i(f'ds_read_b64_tr_b16 v[{34+4*t}:{35+4*t}], v28 offset:{t*64 + 8*320}')
    A.i('s_waitcnt lgkmcnt(0)')
    for t in range(5):
        A.i(f'buffer_store_dwordx4 {vr(32+4*t)}, v{vL16}, s[8:11], s45 offen{sc}')
        A.i(f's_add_u32 s45, s45, {96*1024}')
    A.label(end)
    A.i('s_waitcnt vmcnt(0)')

def role_zero(A):
    A.i(f's_mul_i32 s23, s40, {WS_FLAGS_SIZE//4}'); A.i(f's_add_u32 s23, s23, {WS_FLAGS}')
    A.i('v_lshlrev_b32 v1, 4, v0')
    for r in range(4): A.i(f'v_mov_b32 v{4+r}, 0')
    for j in range(WS_FLAGS_SIZE // 4 // 4096):
        A.i('buffer_store_dwordx4 v[4:7], v1, s[8:11], s23 offen sc1')
        A.i('s_add_u32 s23, s23, 4096')
    A.i('s_waitcnt vmcnt(0)')

def role_mem0(A):
    A.i(f's_load_dwordx2 s[6:7], s[0:1], {KA["mem0"]}')
    A.i('s_waitcnt lgkmcnt(0)')
    srd(A, 12, 6, 10240)
    hand_base(A, 24)
    A.i('s_add_u32 s25, s24, 8192')
    for j in range(3):
        A.i(f'v_add_u32 v2, {256*j}, v0')
        A.i('v_lshrrev_b32 v3, 3, v2'); A.i('v_and_b32 v4, 7, v2')
        A.i('v_mul_u32_u24 v5, 1280, v4'); A.i('v_lshlrev_b32 v6, 4, v3'); A.i('v_add_u32 v5, v5, v6')
        A.i('v_lshlrev_b32 v6, 4, v2')
        A.i('v_lshrrev_b32 v7, 13, v6'); A.i('v_lshlrev_b32 v7, 14, v7'); A.i('v_and_b32 v6, 0x1fff, v6'); A.i('v_add_u32 v6, v6, v7')
        A.i('v_cmp_gt_u32 vcc, 640, v2'); A.i('v_mov_b32 v7, 0x80000000'); A.i('s_nop 0')
        A.i('v_cndmask_b32 v6, v7, v6, vcc'); A.i('v_cndmask_b32 v5, v7, v5, vcc')
        A.i('buffer_load_dwordx4 v[8:11], v5, s[12:15], 0 offen')
        A.i('s_waitcnt vmcnt(0)')
        for r in range(4): A.i(f'v_min_u32 v{8+r}, 0xfffffffe, v{8+r}')
        A.i('buffer_store_dwordx4 v[8:11], v6, s[8:11], s24 offen sc1')
        A.i('buffer_store_dwordx4 v[8:11], v6, s[8:11], s25 offen sc1')
        A.i('s_waitcnt vmcnt(0)')

def role_calib(A):
    lab = A.new('cal_skip')
    A.i('s_getreg_b32 s50, hwreg(HW_REG_XCC_ID)'); A.i('s_and_b32 s50, s50, 15')
    A.i('s_cmp_eq_u32 s50, 0'); A.i(f's_cbranch_scc0 {lab}')
    A.i('s_cmp_lt_u32 s16, 3'); A.i(f's_cbranch_scc0 {lab}')
    hand_base(A, 24)
    A.i('s_lshl_b32 s25, s16, 21'); A.i('s_add_u32 s24, s24, s25'); A.i(f's_add_u32 s24, s24, {65536 + 49152 + 4096}')
    A.i('s_mov_b64 exec, 1')
    A.i('v_mov_b32 v2, 0'); A.i('v_mov_b32 v3, 8192')
    A.i('s_mov_b32 s40, -1'); A.i('s_mov_b32 s41, -1')
    for rep in range(6):
        for par in range(2):
            A.i('v_mov_b32 v4, 0')
            A.i('s_memtime s[42:43]'); A.i('s_waitcnt lgkmcnt(0)')
            A.i(f'buffer_atomic_add v4, v{2+par}, s[8:11], s24 offen sc0')
            A.i('s_waitcnt vmcnt(0)')
            A.i('s_memtime s[44:45]'); A.i('s_waitcnt lgkmcnt(0)')
            A.i('s_sub_u32 s44, s44, s42')
            if rep > 0: A.i(f's_min_u32 s{40+par}, s{40+par}, s44')
    A.i('s_cmp_lt_u32 s41, s40'); A.i('s_cselect_b32 s46, 8192, 0')
    A.i('v_mov_b32 v4, s46'); A.i('s_lshl_b32 s25, s16, 2'); A.i('v_mov_b32 v5, s25')
    A.i(f's_mov_b32 s26, {WS_TAB}')
    A.i('buffer_store_dword v4, v5, s[8:11], s26 offen')
    A.i('s_waitcnt vmcnt(0)')
    A.i('s_mov_b64 exec, -1')
    A.label(lab)

def role_ln(A, src_srd_setup, src_soff, shift_idx, scale_idx, dst_ws, sc='', ssrd=12):
    src_srd_setup()
    A.i('v_and_b32 v2, 63, v0'); A.i('v_lshrrev_b32 v3, 4, v2'); A.i('v_and_b32 v4, 15, v2')
    A.i('s_lshl_b32 s23, s40, 4'); A.i('s_lshl_b32 s24, s16, 2'); A.i('s_add_u32 s23, s23, s24')
    A.i('v_add_u32 v5, s23, v3')
    A.i('v_mul_u32_u24 v6, 1280, v5'); A.i('v_lshlrev_b32 v7, 4, v4'); A.i('v_add_u32 v6, v6, v7')
    X = 16
    for j in range(5):
        A.i(f'buffer_load_dwordx4 {vr(X+4*j)}, v6, s[{ssrd}:{ssrd+3}], {src_soff} offen offset:{256*j}{sc}')
    A.i('v_lshlrev_b32 v7, 5, v4')
    SC, SH = 40, 80
    A.i(f's_mov_b32 s25, {WS_MOD + scale_idx*2560}'); A.i(f's_mov_b32 s26, {WS_MOD + shift_idx*2560}')
    for j in range(5):
        A.i(f'buffer_load_dwordx4 {vr(SC+8*j)}, v7, s[8:11], s25 offen offset:{512*j}')
        A.i(f'buffer_load_dwordx4 {vr(SC+8*j+4)}, v7, s[8:11], s25 offen offset:{512*j+16}')
        A.i(f'buffer_load_dwordx4 {vr(SH+8*j)}, v7, s[8:11], s26 offen offset:{512*j}')
        A.i(f'buffer_load_dwordx4 {vr(SH+8*j+4)}, v7, s[8:11], s26 offen offset:{512*j+16}')
    F = 128
    A.i('s_waitcnt vmcnt(20)')
    for j in range(20):
        A.i(f'v_lshlrev_b32 v{F+2*j}, 16, v{X+j}'); A.i(f'v_and_b32 v{F+2*j+1}, 0xffff0000, v{X+j}')
    def rowsum(x, t):
        for ctl in ('quad_perm:[1,0,3,2]', 'quad_perm:[2,3,0,1]', 'row_half_mirror', 'row_mirror'):
            A.i('s_nop 1'); A.i(f'v_add_f32_dpp v{x}, v{x}, v{x} {ctl} row_mask:0xf bank_mask:0xf')
    A.i(f'v_add_f32 v8, v{F}, v{F+1}')
    for j in range(2, 40): A.i(f'v_add_f32 v8, v8, v{F+j}')
    rowsum(8, 9)
    A.i(f'v_mul_f32 v8, {fbits(1.0/640):#x}, v8')
    A.i('v_mov_b32 v9, 0')
    for j in range(40):
        A.i(f'v_sub_f32 v10, v{F+j}, v8'); A.i('v_fmac_f32 v9, v10, v10')
    rowsum(9, 10)
    A.i(f'v_mul_f32 v9, {fbits(1.0/640):#x}, v9')
    rnd_bf16(A, 8); rnd_bf16(A, 9)
    A.i(f'v_add_f32 v9, {fbits(1e-5):#x}, v9'); rnd_bf16(A, 9)
    A.i('v_sqrt_f32 v9, v9'); A.i('s_nop 0'); rnd_bf16(A, 9)
    A.i('v_rcp_f32 v9, v9'); A.i('s_nop 0')
    A.i('s_waitcnt vmcnt(0)')
    for j in range(0, 40, 2):
        a, b = F+j, F+j+1
        A.i(f'v_sub_f32 v{a}, v{a}, v8'); A.i(f'v_sub_f32 v{b}, v{b}, v8')
        A.i(f'v_cvt_pk_bf16_f32 v10, v{a}, v{b}'); A.i(f'v_lshlrev_b32 v{a}, 16, v10'); A.i(f'v_and_b32 v{b}, 0xffff0000, v10')
        A.i(f'v_mul_f32 v{a}, v{a}, v9'); A.i(f'v_mul_f32 v{b}, v{b}, v9')
        A.i(f'v_cvt_pk_bf16_f32 v10, v{a}, v{b}'); A.i(f'v_lshlrev_b32 v{a}, 16, v10'); A.i(f'v_and_b32 v{b}, 0xffff0000, v10')
        sa, sb = SC+j, SC+j+1
        A.i(f'v_add_f32 v{sa}, 1.0, v{sa}'); A.i(f'v_add_f32 v{sb}, 1.0, v{sb}')
        A.i(f'v_cvt_pk_bf16_f32 v10, v{sa}, v{sb}'); A.i(f'v_lshlrev_b32 v{sa}, 16, v10'); A.i(f'v_and_b32 v{sb}, 0xffff0000, v10')
        A.i(f'v_mul_f32 v{a}, v{a}, v{sa}'); A.i(f'v_mul_f32 v{b}, v{b}, v{sb}')
        A.i(f'v_cvt_pk_bf16_f32 v10, v{a}, v{b}'); A.i(f'v_lshlrev_b32 v{a}, 16, v10'); A.i(f'v_and_b32 v{b}, 0xffff0000, v10')
        A.i(f'v_add_f32 v{a}, v{a}, v{SH+j}'); A.i(f'v_add_f32 v{b}, v{b}, v{SH+j+1}')
        A.i(f'v_cvt_pk_bf16_f32 v{X + j//2}, v{a}, v{b}')
    A.i('v_lshrrev_b32 v8, 5, v5'); A.i(f'v_mul_u32_u24 v8, {40*1024}, v8')
    A.i('v_and_b32 v9, 31, v5'); A.i('v_lshlrev_b32 v9, 4, v9'); A.i('v_add_u32 v8, v8, v9')
    A.i('v_lshrrev_b32 v9, 1, v4'); A.i('v_lshlrev_b32 v9, 10, v9'); A.i('v_add_u32 v8, v8, v9')
    A.i('v_and_b32 v9, 1, v4'); A.i('v_lshlrev_b32 v9, 3, v9'); A.i('v_add_u32 v8, v8, v9')
    A.i(f's_mov_b32 s25, {dst_ws}')
    for j in range(5):
        A.i(f'buffer_store_dwordx2 v[{X+4*j}:{X+4*j+1}], v8, s[8:11], s25 offen{sc}')
        A.i(f'buffer_store_dwordx2 v[{X+4*j+2}:{X+4*j+3}], v8, s[8:11], s25 offen offset:512{sc}')
        A.i('s_add_u32 s25, s25, 8192')
    A.i('s_waitcnt vmcnt(0)')

def prolog(A, name, ngrid):
    kernel_header(A, name)
    A.i(f's_load_dwordx2 s[4:5], s[0:1], {KA["ws"]}')
    A.i(f's_cmp_ge_u32 s2, {ngrid}')
    A.i(f's_cbranch_scc1 {name}_exit')
    A.i('v_lshrrev_b32 v1, 6, v0')
    A.i('s_waitcnt lgkmcnt(0)')
    srd(A, 8, 4, WS_SIZE)
    A.i('v_readfirstlane_b32 s16, v1')
    A.i('s_nop 3')

NFILL = 192
PREP_GRID = 64 + NFILL + 640 + 256
def gen_prep(name='prep_kernel'):
    A = Em()
    prolog(A, name, PREP_GRID)
    A.i('s_cmp_lt_u32 s2, 60'); A.i(f's_cbranch_scc0 {name}_a')
    A.i('s_mov_b32 s40, s2'); role_mod(A); A.i('s_endpgm')
    A.label(f'{name}_a')
    A.i('s_cmp_lt_u32 s2, 64'); A.i(f's_cbranch_scc0 {name}_b')
    A.i('s_sub_u32 s40, s2, 60'); role_zero(A); A.i('s_endpgm')
    A.label(f'{name}_b')
    A.i(f's_cmp_lt_u32 s2, {64+NFILL}'); A.i(f's_cbranch_scc0 {name}_c')
    A.i('s_sub_u32 s40, s2, 64'); role_fill(A, NFILL); A.i('s_endpgm')
    A.label(f'{name}_c')
    A.i(f's_cmp_lt_u32 s2, {64+NFILL+640}'); A.i(f's_cbranch_scc1 {name}_d')
    A.i(f's_sub_u32 s40, s2, {64+NFILL+640}'); role_wfrag(A); A.i('s_endpgm')
    A.label(f'{name}_d')
    A.i(f's_sub_u32 s40, s2, {64+NFILL}'); role_wqk(A)
    A.label(f'{name}_exit')
    A.i('s_endpgm')
    return A.text(), kernel_desc(name, 136, 136)

def gen_prep2(name='prep_kernel'):
    import gemm
    A = Em()
    prolog(A, name, 256)
    A.i('s_cmp_lt_u32 s2, 160'); A.i(f's_cbranch_scc1 {name}_b')
    A.i('s_cmp_lt_u32 s2, 220'); A.i(f's_cbranch_scc0 {name}_z')
    A.i('s_sub_u32 s40, s2, 160'); role_mod(A); A.i('s_endpgm')
    A.label(f'{name}_z')
    A.i('s_cmp_lt_u32 s2, 224'); A.i(f's_cbranch_scc0 {name}_f')
    A.i('s_sub_u32 s40, s2, 220'); role_zero(A); A.i('s_endpgm')
    A.label(f'{name}_f')
    A.i('s_sub_u32 s40, s2, 224'); role_fill(A, 32); A.i('s_endpgm')
    A.label(f'{name}_b')
    gemm.setup_lane(A)
    A.i('s_and_b32 s41, s2, 31'); A.i('s_lshr_b32 s40, s2, 5')
    gemm.task_b(A)
    A.label(f'{name}_exit')
    A.i('s_endpgm')
    return A.text(), kernel_desc(name, 512, 256)

LN1_GRID = 128 + 1 + 8
def gen_ln(name, first):
    A = Em()
    prolog(A, name, LN1_GRID if first else 128)
    A.i('s_mov_b32 s40, s2')
    if first:
        A.i('s_cmp_lt_u32 s2, 128'); A.i(f's_cbranch_scc1 {name}_ln')
        A.i('s_cmp_eq_u32 s2, 128'); A.i(f's_cbranch_scc0 {name}_cal')
        role_mem0(A); A.i('s_endpgm')
        A.label(f'{name}_cal')
        role_calib(A); A.i('s_endpgm')
        A.label(f'{name}_ln')
    if first:
        def su():
            A.i(f's_load_dwordx2 s[6:7], s[0:1], {KA["x"]}'); A.i('s_waitcnt lgkmcnt(0)'); srd(A, 12, 6, 2048*1280)
        role_ln(A, su, '0', 0, 1, WS_H)
    else:
        def su():
            for r in range(4): A.i(f's_mov_b32 s{12+r}, s{8+r}')
            A.i(f's_mov_b32 s27, {WS_X1}')
        role_ln(A, su, 's27', 3, 4, WS_H2)
    A.label(f'{name}_exit')
    A.i('s_endpgm')
    return A.text(), kernel_desc(name, 176, 176)

if __name__ == '__main__':
    parts = [gen_prep(), gen_ln('ln1_kernel', True), gen_ln('ln2_kernel', False)]
    print(f'; @launch kernel=prep_kernel grid=({PREP_GRID},1,1) block=(256,1,1) lds=24576')
    print('.amdgcn_target "amdgcn-amd-amdhsa--gfx950"')
    for t, d in parts: print(t)
    for t, d in parts: print(d)
```

```python
from common import *
from rec import Em, LG, SPIN_MAX, KN
import gemm, post, small, fast
from gemm import *

SRD_WQ, SRD_WK, SRD_WV, SRD_WO = 68, 72, 76, 80
W_NSLOT = 6
LDS_BC = W_NSLOT*SLOT
vNEXT = 5
Q_WORD = 128

def signal_add(A, off_sgpr):
    lab = A.new('sig')
    A.i('s_cmp_eq_u32 s16, 0'); A.i(f's_cbranch_scc0 {lab}')
    A.i('s_mov_b64 exec, 1'); A.i('v_mov_b32 v22, 1'); A.i('v_mov_b32 v23, 0')
    A.i(f'buffer_atomic_add v22, v23, s[8:11], s{off_sgpr} offen')
    A.i('s_mov_b64 exec, -1')
    A.label(lab)

def kq_store_tile(vm, D, t, soff, o, addr=21):
    ga, gb = o, o+4
    L = [f'v_cvt_pk_bf16_f32 v{ga}, v{D}, v{D+1}', f'v_cvt_pk_bf16_f32 v{ga+1}, v{D+2}, v{D+3}',
         f'v_cvt_pk_bf16_f32 v{ga+2}, v{D+8}, v{D+9}', f'v_cvt_pk_bf16_f32 v{ga+3}, v{D+10}, v{D+11}',
         f'v_cvt_pk_bf16_f32 v{gb}, v{D+4}, v{D+5}', f'v_cvt_pk_bf16_f32 v{gb+1}, v{D+6}, v{D+7}',
         f'v_cvt_pk_bf16_f32 v{gb+2}, v{D+12}, v{D+13}', f'v_cvt_pk_bf16_f32 v{gb+3}, v{D+14}, v{D+15}']
    if t == 4: L.append(f's_add_u32 s{soff}, s{soff}, 4096')
    L.append(lambda: vm.issue(f'buffer_store_dwordx4 {vr(ga)}, v{addr}, s[8:11], s{soff} offen offset:{(t%4)*1024} sc1'))
    L.append(lambda: vm.issue(f'buffer_store_dwordx4 {vr(gb)}, v{addr}, s[8:11], s{soff} offen offset:{(t%4)*1024+512} sc1'))
    return L

def task_kq2(A, tail):
    ACT, FR, ACCK, ACCQ, TMP = 0, 160, 32, 128, 224
    A.i('s_mul_i32 s42, s41, 384'); A.i('s_mov_b32 s46, s42')
    A.i('s_lshl_b32 s43, s40, 2'); A.i('s_add_u32 s43, s43, s16')
    A.i(f's_mul_i32 s44, s43, {40*1024}'); A.i(f's_add_u32 s44, s44, {WS_H}')
    A.i('v_and_b32 v22, 63, v0'); A.i('v_lshrrev_b32 v23, 4, v22'); A.i('v_and_b32 v23, 1, v23'); A.i('v_mul_u32_u24 v23, 6144, v23')
    A.i('v_lshrrev_b32 v24, 5, v22'); A.i('v_lshlrev_b32 v24, 4, v24'); A.i('v_and_b32 v25, 15, v22'); A.i('v_add_u32 v24, v24, v25')
    A.i('v_lshlrev_b32 v24, 4, v24'); A.i('v_add_u32 v21, v23, v24')
    A.i('s_lshl_b32 s45, s43, 5'); A.i('s_add_u32 s45, s45, s41'); A.i('s_mul_i32 s45, s45, 12288')
    A.i(f's_add_u32 s47, s45, {WS_QT}'); A.i(f's_add_u32 s45, s45, {WS_KT}')
    vm = VM(A)
    stages = [Stage(192, SRD_WK, 42, 64*12288) for _ in range(10)] + [Stage(192, SRD_WQ, 46, 64*12288) for _ in range(10)]
    e = Engine(A, vm, stages, FR)
    e.prologue_hook = lambda: load_act(A, vm, ACT, 40, 44)
    steps = pass192_steps(0, ACCK, ACT, vm, True) + pass192_steps(10, ACCQ, ACT, vm, False)
    def qk():
        for t in range(6): e.side.extend(kq_store_tile(vm, ACCK+16*t, t, 45, TMP + 8*(t & 1)))
    steps[42]['pre'] = qk
    e.run(steps)
    tail()
    e.flush_side()
    A.i('s_nop 7')
    for t in range(6): e.side.extend(kq_store_tile(vm, ACCQ+16*t, t, 47, TMP + 8*(t & 1)))
    e.flush_side()
    vm.wait_all()
    A.i('s_lshl_b32 s48, s40, 5'); A.i('s_add_u32 s48, s48, s41'); A.i('s_lshl_b32 s48, s48, 7'); A.i(f's_add_u32 s48, s48, {FL_KQ}')

def task_vvo2(A, tail):
    ACT, FR = 0, 160
    VACC, VOP, ACC0, ACC1, TMP = 32, 128, 32, 176, 112
    A.i('s_mul_i32 s42, s41, 384')
    A.i(f's_mul_i32 s46, s41, {192*1280}')
    A.i('s_lshl_b32 s43, s40, 2'); A.i('s_add_u32 s43, s43, s16')
    A.i(f's_mul_i32 s44, s43, {40*1024}'); A.i(f's_add_u32 s44, s44, {WS_H}')
    vm = VM(A)
    stages = [Stage(192, SRD_WV, 42, 64*12288) for _ in range(10)] + wo_stages(SRD_WO, 46)
    e = Engine(A, vm, stages, FR)
    e.prologue_hook = lambda: load_act(A, vm, ACT, 40, 44)
    steps = pass192_steps(0, VACC, ACT, vm, True)
    def conv():
        A.i('s_nop 7'); A.i('s_nop 7')
        for t in range(6):
            for a in range(2):
                for r in range(4):
                    s = VACC + 16*t + 8*a + 2*r
                    A.i(f'v_cvt_pk_bf16_f32 v{VOP + 4*(2*t+a) + r}, v{s}, v{s+1}')
        A.i('s_nop 1')
    steps[-1]['post'] = conv
    A.i('v_and_b32 v22, 63, v0'); A.i('v_and_b32 v23, 31, v22'); A.i('v_lshrrev_b32 v24, 3, v23'); A.i('v_lshlrev_b32 v24, 14, v24')
    A.i('v_lshrrev_b32 v25, 5, v22'); A.i('v_lshlrev_b32 v25, 8, v25'); A.i('v_and_b32 v23, 7, v23'); A.i('v_lshlrev_b32 v23, 4, v23')
    A.i('v_add3_u32 v21, v23, v24, v25')
    A.i(f's_mul_i32 s47, s43, {80*16384}'); A.i('s_lshr_b32 s23, s41, 1'); A.i('s_lshl_b32 s23, s23, 10'); A.i('s_add_u32 s47, s47, s23')
    A.i('s_and_b32 s23, s41, 1'); A.i('s_lshl_b32 s23, s23, 7'); A.i('s_add_u32 s47, s47, s23'); A.i(f's_add_u32 s47, s47, {WS_VOT}')
    def store_tile(cc, t, D):
        o = TMP + 8*(t & 1)
        L = []
        for q in range(4):
            L.append(f'v_cvt_pk_bf16_f32 v{o+2*q}, v{D+4*q}, v{D+4*q+1}')
            L.append(f'v_cvt_pk_bf16_f32 v{o+2*q+1}, v{D+4*q+2}, v{D+4*q+3}')
        L.append(f's_add_u32 s48, s47, {(cc*20 + t*4)*16384}')
        L.append('s_nop 0')
        for b in (0, 4):
            L.append(f'v_permlane32_swap_b32 v{o+b}, v{o+b+2}')
            L.append(f'v_permlane32_swap_b32 v{o+b+1}, v{o+b+3}')
        L.append(lambda: vm.issue(f'buffer_store_dwordx4 {vr(o)}, v21, s[8:11], s48 offen sc1'))
        L.append(lambda: vm.issue(f'buffer_store_dwordx4 {vr(o+4)}, v21, s[8:11], s48 offen offset:512 sc1'))
        return L
    steps += vo_pass(A, e, vm, 10, VOP, (ACC0, ACC1), store_tile)
    e.run(steps)
    tail()
    A.i('s_nop 7'); A.i('s_nop 7')
    for t in range(5):
        e.side.extend(store_tile(3, t, ACC1 + 16*t))
    e.flush_side()
    vm.wait_all()
    A.i('s_lshl_b32 s48, s40, 7'); A.i(f's_add_u32 s48, s48, {FL_VVO}')

def task_head(A, tail):
    ACT, FR = 0, 160
    VACC, VOP, ACC0, ACC1, TMP = 32, 128, 32, 176, 112
    ACCK, ACCQ, TMPK = 32, 128, 224
    A.i('s_mul_i32 s42, s41, 384'); A.i('s_mov_b32 s49, s42'); A.i('s_mov_b32 s50, s42')
    A.i(f's_mul_i32 s46, s41, {192*1280}')
    A.i('s_lshl_b32 s43, s40, 2'); A.i('s_add_u32 s43, s43, s16')
    A.i(f's_mul_i32 s44, s43, {40*1024}'); A.i(f's_add_u32 s44, s44, {WS_H}')
    vm = VM(A)
    stages = ([Stage(192, SRD_WV, 42, 64*12288) for _ in range(10)] + wo_stages(SRD_WO, 46) +
              [Stage(192, SRD_WK, 49, 64*12288) for _ in range(10)] + [Stage(192, SRD_WQ, 50, 64*12288) for _ in range(10)])
    e = Engine(A, vm, stages, FR)
    e.prologue_hook = lambda: load_act(A, vm, ACT, 40, 44)
    steps = pass192_steps(0, VACC, ACT, vm, True)
    def conv():
        A.i('s_nop 7'); A.i('s_nop 7')
        for t in range(6):
            for a in range(2):
                for r in range(4):
                    s = VACC + 16*t + 8*a + 2*r
                    A.i(f'v_cvt_pk_bf16_f32 v{VOP + 4*(2*t+a) + r}, v{s}, v{s+1}')
        A.i('s_nop 1')
    steps[-1]['post'] = conv
    A.i('v_and_b32 v22, 63, v0'); A.i('v_and_b32 v23, 31, v22'); A.i('v_lshrrev_b32 v24, 3, v23'); A.i('v_lshlrev_b32 v24, 14, v24')
    A.i('v_lshrrev_b32 v25, 5, v22'); A.i('v_lshlrev_b32 v25, 8, v25'); A.i('v_and_b32 v23, 7, v23'); A.i('v_lshlrev_b32 v23, 4, v23')
    A.i('v_add3_u32 v21, v23, v24, v25')
    A.i('v_lshrrev_b32 v23, 4, v22'); A.i('v_and_b32 v23, 1, v23'); A.i('v_mul_u32_u24 v23, 6144, v23')
    A.i('v_lshrrev_b32 v24, 5, v22'); A.i('v_lshlrev_b32 v24, 4, v24'); A.i('v_and_b32 v25, 15, v22'); A.i('v_add_u32 v24, v24, v25')
    A.i('v_lshlrev_b32 v24, 4, v24'); A.i('v_add_u32 v30, v23, v24')
    A.i(f's_mul_i32 s47, s43, {80*16384}'); A.i('s_lshr_b32 s23, s41, 1'); A.i('s_lshl_b32 s23, s23, 10'); A.i('s_add_u32 s47, s47, s23')
    A.i('s_and_b32 s23, s41, 1'); A.i('s_lshl_b32 s23, s23, 7'); A.i('s_add_u32 s47, s47, s23'); A.i(f's_add_u32 s47, s47, {WS_VOT}')
    A.i('s_lshl_b32 s45, s43, 5'); A.i('s_add_u32 s45, s45, s41'); A.i('s_mul_i32 s45, s45, 12288')
    A.i(f's_add_u32 s51, s45, {WS_QT}'); A.i(f's_add_u32 s45, s45, {WS_KT}')
    def store_tile(cc, t, D, tmp=TMP):
        o = tmp + 8*(t & 1)
        L = []
        for q in range(4):
            L.append(f'v_cvt_pk_bf16_f32 v{o+2*q}, v{D+4*q}, v{D+4*q+1}')
            L.append(f'v_cvt_pk_bf16_f32 v{o+2*q+1}, v{D+4*q+2}, v{D+4*q+3}')
        L.append(f's_add_u32 s48, s47, {(cc*20 + t*4)*16384}')
        L.append('s_nop 0')
        for b in (0, 4):
            L.append(f'v_permlane32_swap_b32 v{o+b}, v{o+b+2}')
            L.append(f'v_permlane32_swap_b32 v{o+b+1}, v{o+b+3}')
        L.append(lambda: vm.issue(f'buffer_store_dwordx4 {vr(o)}, v21, s[8:11], s48 offen sc1'))
        L.append(lambda: vm.issue(f'buffer_store_dwordx4 {vr(o+4)}, v21, s[8:11], s48 offen offset:512 sc1'))
        return L
    steps += vo_pass(A, e, vm, 10, VOP, (ACC0, ACC1), store_tile)
    ks_ = pass192_steps(22, ACCK, ACT, vm, False)
    def last_vo():
        for t in range(5): e.side.extend(store_tile(3, t, ACC1 + 16*t, VOP))
    ks_[1]['pre'] = last_vo
    qs_ = pass192_steps(32, ACCQ, ACT, vm, False)
    def kq_tiles(acc, soff):
        for t in range(6):
            L = kq_store_tile(vm, acc+16*t, t, soff, TMPK + 8*(t & 1), addr=30)
            e.side.extend(L)
    qs_[0]['pre'] = lambda: e.flush_side()
    qs_[2]['pre'] = lambda: kq_tiles(ACCK, 45)
    steps += ks_ + qs_
    e.run(steps)
    tail()
    e.flush_side()
    A.i('s_nop 7')
    kq_tiles(ACCQ, 51)
    e.flush_side()
    vm.wait_all()
    A.i('s_lshl_b32 s48, s40, 7'); A.i(f's_add_u32 s48, s48, {FL_VVO}')
    A.i('s_lshl_b32 s49, s40, 5'); A.i('s_add_u32 s49, s49, s41'); A.i('s_lshl_b32 s49, s49, 7'); A.i(f's_add_u32 s49, s49, {FL_KQ}')

def wait_dep(A, off_sgpr, target, backoff=12):
    l0, l1 = A.new('dep'), A.new('dep')
    A.i('s_cmp_eq_u32 s16, 0'); A.i(f's_cbranch_scc0 {l1}')
    A.i('s_mov_b32 s22, 0'); A.i('v_mov_b32 v22, 0')
    A.label(l0)
    A.i(f'buffer_load_dword v23, v22, s[8:11], s{off_sgpr} offen sc1')
    A.i('s_add_u32 s22, s22, 1'); A.i(f's_cmp_gt_u32 s22, {SPIN_MAX//8}'); A.i(f's_cbranch_scc1 {l1}')
    A.i('s_waitcnt vmcnt(0)'); A.i('v_readfirstlane_b32 s23, v23'); A.i('s_nop 3')
    A.i(f's_cmp_ge_u32 s23, {target}'); A.i(f's_cbranch_scc1 {l1}')
    A.i(f's_sleep {backoff}'); A.i(f's_branch {l0}')
    A.label(l1)
    A.i('s_barrier')

def wait_words(A, off_sgpr, n, backoff=12):
    l0, l1 = A.new('dw'), A.new('dw')
    A.i('s_cmp_eq_u32 s16, 0'); A.i(f's_cbranch_scc0 {l1}')
    A.i('s_mov_b32 s22, 0')
    A.i('v_and_b32 v22, 63, v0'); A.i('v_min_u32 v24, %d, v22' % (min(n, 64)-1)); A.i('v_lshlrev_b32 v24, 2, v24')
    if n > 64:
        A.i('v_add_u32 v25, 64, v22'); A.i(f'v_min_u32 v25, {n-1}, v25'); A.i('v_lshlrev_b32 v25, 2, v25')
    A.label(l0)
    A.i(f'buffer_load_dword v23, v24, s[8:11], s{off_sgpr} offen sc1')
    if n > 64: A.i(f'buffer_load_dword v26, v25, s[8:11], s{off_sgpr} offen sc1')
    A.i('s_add_u32 s22, s22, 1'); A.i(f's_cmp_gt_u32 s22, {SPIN_MAX//8}'); A.i(f's_cbranch_scc1 {l1}')
    A.i('s_waitcnt vmcnt(0)')
    if n > 64: A.i('v_min_u32 v23, v23, v26')
    A.i('v_cmp_eq_u32 vcc, 0, v23'); A.i(f's_cbranch_vccz {l1}')
    A.i(f's_sleep {backoff}'); A.i(f's_branch {l0}')
    A.label(l1)
    A.i('s_barrier')

SRD_WG, SRD_WU, SRD_WD, SRD_X, SRD_OUT = 68, 72, 76, 80, 84
NENG = 13
NBACK = 8
def post_table():
    T = []
    def e(ty, a, n):
        for i in range(n): T.append((ty << 16) | (a << 8) | i)
    for i in range(256): T.append((8 << 16) | i)
    ST = ((0, 20), (1, 4), (2, 8), (3, 4))
    for ty, n in ST:
        for r in range(NBACK): e(ty, r, n)
    for d in range(NBACK, NENG + 3):
        for back in (3, 2, 1, 0):
            r = d - back
            if NBACK <= r < NENG: e(ST[back][0], r, ST[back][1])
    s0 = 4*NENG
    FS = ((4, 10), (5, 2), (6, 24), (7, 10))
    LAG = 2
    for d in range(s0, 64 + 3*LAG):
        for back in (3, 2, 1, 0):
            r = d - LAG*back
            if s0 <= r < 64: e(FS[back][0], r, FS[back][1])
    return T
POST_T = post_table()
NPOST = len(POST_T)

def gen_post(A, fetch, publish, log_end):
    A.label('P_phase')
    for reg, key, nb in ((SRD_WG, 'wg', 640*3072), (SRD_WU, 'wu', 640*3072), (SRD_WD, 'wd', 1536*1280), (SRD_X, 'x', 2048*1280), (SRD_OUT, 'out', 2048*1280)):
        A.i(f's_load_dwordx2 s[6:7], s[0:1], {KA[key]}'); A.i('s_waitcnt lgkmcnt(0)'); srd(A, reg, 6, nb)
    A.i(f's_load_dwordx2 s[6:7], s[0:1], {KA["dbg"]}'); A.i('s_waitcnt lgkmcnt(0)'); srd(A, 12, 6, 256)
    A.i('s_mov_b32 s58, 4'); A.i('s_mov_b32 s54, 0')
    fetch(); A.i('s_waitcnt vmcnt(0)'); publish()
    A.i('s_barrier')
    A.label('P_loop')
    A.i(f'v_mov_b32 v22, {LDS_BC}'); A.i('ds_read_b32 v23, v22'); A.i('s_waitcnt lgkmcnt(0)'); A.i('v_readfirstlane_b32 s60, v23'); A.i('s_nop 3')
    A.i('s_barrier')
    A.i(f's_cmp_ge_u32 s60, {NPOST}'); A.i('s_cbranch_scc0 P_go')
    A.i('s_waitcnt vmcnt(0)'); A.i('s_endpgm')
    A.label('P_go')
    A.i('s_getpc_b64 s[92:93]')
    A.label('P_pc')
    A.i('s_add_u32 s92, s92, P_table-P_pc'); A.i('s_addc_u32 s93, s93, 0')
    A.i('s_lshl_b32 s23, s60, 2'); A.i('s_load_dword s57, s[92:93], s23'); A.i('s_waitcnt lgkmcnt(0)')
    A.i('s_lshr_b32 s56, s57, 16'); A.i('s_lshr_b32 s40, s57, 8'); A.i('s_and_b32 s40, s40, 255'); A.i('s_and_b32 s41, s57, 255')
    if KN['log']: A.i('s_memrealtime s[62:63]'); A.i('s_waitcnt lgkmcnt(0)')
    for ty, lab in ((8, 'P_wf'), (7, 'P_f2f'), (6, 'P_f1f'), (5, 'P_lnf'), (4, 'P_t2f'), (3, 'P_f2'), (2, 'P_f1'), (1, 'P_ln')):
        A.i(f's_cmp_eq_u32 s56, {ty}'); A.i(f's_cbranch_scc1 {lab}')
    A.i('s_mul_i32 s24, s41, 13108'); A.i('s_lshr_b32 s24, s24, 16')
    A.i('s_mul_i32 s25, s24, 5'); A.i('s_sub_u32 s41, s41, s25')
    A.i('s_mov_b32 s55, s40'); A.i('s_lshl_b32 s40, s40, 2'); A.i('s_add_u32 s40, s40, s24')
    def wait_seg(bo=12):
        l5, l6 = A.new('ws'), A.new('ws')
        A.i('s_cmp_ge_u32 s40, 62'); A.i(f's_cbranch_scc1 {l5}')
        A.i('s_add_u32 s48, s40, 1'); A.i('s_lshl_b32 s48, s48, 7'); A.i(f's_add_u32 s48, s48, {FL_PT}')
        wait_words(A, 48, 32, bo)
        A.i(f's_branch {l6}')
        A.label(l5)
        A.i(f's_mov_b32 s48, {FL_PT + 63*128}'); A.i(f's_mov_b32 s49, {FL_VM + 63*512}')
        wait_words(A, 48, 32, 2); wait_words(A, 49, 80, 2)
        A.label(l6)
    wait_seg()
    post.task_t2(A, sc=' sc1', xsrd=SRD_X, tail=fetch)
    A.i('s_lshl_b32 s48, s55, 7'); A.i(f's_add_u32 s48, s48, {FL_T2}')
    A.i('s_branch P_end')
    A.label('P_ln')
    A.i('s_mov_b32 s55, s40')
    A.i('s_lshl_b32 s48, s40, 7'); A.i(f's_add_u32 s48, s48, {FL_T2}')
    wait_dep(A, 48, 20)
    A.i('s_lshl_b32 s40, s40, 2'); A.i('s_add_u32 s40, s40, s41'); A.i('s_lshl_b32 s40, s40, 1')
    A.i(f's_mov_b32 s27, {WS_X1}')
    for it in range(2):
        small.role_ln(A, lambda: None, 's27', 3, 4, WS_H2, sc=' sc1', ssrd=8)
        if it == 0: A.i('s_add_u32 s40, s40, 1')
    fetch()
    A.i('s_waitcnt vmcnt(0)')
    A.i('s_lshl_b32 s48, s55, 7'); A.i(f's_add_u32 s48, s48, {FL_LN}')
    A.i('s_branch P_end')
    A.label('P_f1')
    A.i('s_lshl_b32 s48, s40, 7'); A.i(f's_add_u32 s48, s48, {FL_LN}')
    wait_dep(A, 48, 4)
    setup_lane(A)
    post.task_ffn1(A, sc=' sc1', srds=(SRD_WG, SRD_WU), tail=fetch)
    A.i('s_lshl_b32 s48, s40, 7'); A.i(f's_add_u32 s48, s48, {FL_F1}')
    A.i('s_branch P_end')
    A.label('P_f2')
    A.i('s_lshl_b32 s48, s40, 7'); A.i(f's_add_u32 s48, s48, {FL_F1}')
    wait_dep(A, 48, 8)
    setup_lane(A)
    post.task_ffn2(A, sc=' sc1', srds=(SRD_WD, SRD_OUT), tail=fetch)
    A.i('s_mov_b32 s48, -1')
    A.i('s_branch P_end')
    A.label('P_t2f')
    wait_seg(4)
    fast.task_t2f(A, SRD_X, fetch)
    A.i('s_lshl_b32 s48, s40, 7'); A.i(f's_add_u32 s48, s48, {FL_T2S}')
    A.i('s_branch P_end')
    A.label('P_lnf')
    A.i('s_mov_b32 s55, s40')
    A.i('s_lshl_b32 s48, s40, 7'); A.i(f's_add_u32 s48, s48, {FL_T2S}')
    wait_dep(A, 48, 10, 4)
    A.i('s_lshl_b32 s40, s40, 1'); A.i('s_add_u32 s40, s40, s41')
    A.i(f's_mov_b32 s27, {WS_X1}')
    small.role_ln(A, lambda: None, 's27', 3, 4, WS_H2, sc=' sc1', ssrd=8)
    fetch()
    A.i('s_waitcnt vmcnt(0)')
    A.i('s_lshl_b32 s48, s55, 7'); A.i(f's_add_u32 s48, s48, {FL_LNS - 48*128}')
    A.i('s_branch P_end')
    A.label('P_wf')
    A.i('s_mov_b32 s40, s41')
    small.role_wfrag(A, ' sc1')
    fetch(); A.i('s_waitcnt vmcnt(0)')
    A.i(f's_mov_b32 s48, {FL_WF}')
    A.i('s_branch P_end')
    def wf_ready():
        lab = A.new('wfok')
        A.i('s_cmp_eq_u32 s54, 1'); A.i(f's_cbranch_scc1 {lab}')
        A.i(f's_mov_b32 s48, {FL_WF}'); wait_dep(A, 48, 256, 8); A.i('s_mov_b32 s54, 1')
        A.label(lab)
    A.label('P_f1f')
    wf_ready()
    A.i('s_lshl_b32 s48, s40, 7'); A.i(f's_add_u32 s48, s48, {FL_LNS - 48*128}')
    wait_dep(A, 48, 2, 4)
    fast.task_f1f(A, fetch)
    A.i('s_lshl_b32 s48, s40, 7'); A.i(f's_add_u32 s48, s48, {FL_F1S - 48*128}')
    A.i('s_branch P_end')
    A.label('P_f2f')
    wf_ready()
    A.i('s_lshl_b32 s48, s40, 7'); A.i(f's_add_u32 s48, s48, {FL_F1S - 48*128}')
    wait_dep(A, 48, 24, 4)
    fast.task_f2f(A, SRD_OUT, fetch)
    A.i('s_mov_b32 s48, -1')
    A.label('P_end')
    publish()
    A.i('s_barrier')
    lab = A.new('P_nosig')
    A.i('s_cmp_eq_u32 s48, -1'); A.i(f's_cbranch_scc1 {lab}')
    signal_add(A, 48)
    A.label(lab)
    log_end(4*QLEN)
    A.i('s_branch P_loop')
    A.L.append('.p2align 2')
    A.L.append('.type P_table,@object')
    A.label('P_table')
    for i in range(0, NPOST, 16):
        A.L.append('.long ' + ','.join(str(x) for x in POST_T[i:i+16]))
    A.L.append(f'.size P_table, {4*NPOST}')

QLEN = 96 + 80
def gen_worker(A):
    gemm.set_ring(W_NSLOT)
    A.label('W_role')
    for reg, key, nb in ((SRD_WQ, 'wq', 640*12288), (SRD_WK, 'wk', 640*12288), (SRD_WV, 'wv', 640*12288), (SRD_WO, 'wo', 6144*1280)):
        A.i(f's_load_dwordx2 s[6:7], s[0:1], {KA[key]}'); A.i('s_waitcnt lgkmcnt(0)'); srd(A, reg, 6, nb)
    A.i(f's_load_dwordx2 s[6:7], s[0:1], {KA["dbg"]}'); A.i('s_waitcnt lgkmcnt(0)'); srd(A, 12, 6, 256)
    setup_lane(A); setup_dma192(A, 12288); setup_dma160(A, 1280)
    A.i('s_getreg_b32 s58, hwreg(HW_REG_XCC_ID)'); A.i('s_and_b32 s58, s58, 3')
    A.i('s_mov_b32 s59, 0')
    def fetch():
        lab = A.new('W_f')
        A.i('s_cmp_eq_u32 s16, 0'); A.i(f's_cbranch_scc0 {lab}')
        A.i('s_lshl_b32 s23, s58, 2'); A.i(f's_add_u32 s23, s23, {Q_WORD}')
        A.i('s_mov_b64 exec, 1'); A.i(f'v_mov_b32 v{vNEXT}, 1'); A.i('v_mov_b32 v22, s23')
        A.i(f'buffer_atomic_add v{vNEXT}, v22, s[12:15], 0 offen sc0')
        A.i('s_mov_b64 exec, -1')
        A.label(lab)
    def publish():
        lab = A.new('W_p')
        A.i('s_cmp_eq_u32 s16, 0'); A.i(f's_cbranch_scc0 {lab}')
        A.i('s_mov_b64 exec, 1'); A.i(f'v_mov_b32 v22, {LDS_BC}'); A.i(f'ds_write_b32 v22, v{vNEXT}'); A.i('s_waitcnt lgkmcnt(0)')
        A.i('s_mov_b64 exec, -1')
        A.label(lab)
    A.label('W_refetch')
    fetch(); A.i('s_waitcnt vmcnt(0)'); publish()
    A.i('s_barrier')
    A.label('W_loop')
    A.i(f'v_mov_b32 v22, {LDS_BC}'); A.i('ds_read_b32 v23, v22'); A.i('s_waitcnt lgkmcnt(0)'); A.i('v_readfirstlane_b32 s60, v23'); A.i('s_nop 3')
    A.i('s_barrier')
    A.i(f's_cmp_ge_u32 s60, {QLEN}'); A.i('s_cbranch_scc0 W_have')
    A.i('s_add_u32 s59, s59, 1'); A.i('s_cmp_ge_u32 s59, 4'); A.i('s_cbranch_scc1 W_done')
    A.i('s_add_u32 s58, s58, 1'); A.i('s_and_b32 s58, s58, 3'); A.i('s_branch W_refetch')
    A.label('W_have')
    A.i('s_mov_b32 s61, s58')
    if KN['log']: A.i('s_memrealtime s[62:63]'); A.i('s_waitcnt lgkmcnt(0)')
    A.i('s_cmp_lt_u32 s60, 96'); A.i('s_cbranch_scc0 W_head')
    A.i('s_and_b32 s40, s60, 1'); A.i('s_lshr_b32 s23, s60, 5'); A.i('s_lshl_b32 s23, s23, 1'); A.i('s_add_u32 s40, s40, s23')
    A.i('s_lshr_b32 s41, s60, 2'); A.i('s_and_b32 s41, s41, 7'); A.i('s_lshl_b32 s23, s61, 3'); A.i('s_add_u32 s41, s41, s23')
    A.i('s_bitcmp1_b32 s60, 1'); A.i('s_cbranch_scc1 W_kq')
    task_vvo2(A, fetch)
    A.i('s_mov_b32 s49, -1')
    A.i('s_branch W_end')
    A.label('W_kq')
    task_kq2(A, fetch)
    A.i('s_mov_b32 s49, s48'); A.i('s_mov_b32 s48, -1')
    A.i('s_branch W_end')
    A.label('W_head')
    A.i('s_sub_u32 s23, s60, 96')
    A.i('s_cmp_lt_u32 s23, 64'); A.i('s_cbranch_scc0 W_head_last')
    A.i('s_lshr_b32 s40, s23, 5'); A.i('s_lshl_b32 s40, s40, 2'); A.i('s_and_b32 s24, s23, 3'); A.i('s_add_u32 s40, s40, s24'); A.i('s_add_u32 s40, s40, 6')
    A.i('s_lshr_b32 s41, s23, 2'); A.i('s_and_b32 s41, s41, 7'); A.i('s_branch W_head_go')
    A.label('W_head_last')
    A.i('s_sub_u32 s23, s23, 64'); A.i('s_and_b32 s40, s23, 1'); A.i('s_add_u32 s40, s40, 14'); A.i('s_lshr_b32 s41, s23, 1')
    A.label('W_head_go')
    A.i('s_lshl_b32 s23, s61, 3'); A.i('s_add_u32 s41, s41, s23')
    task_head(A, fetch)
    A.label('W_end')
    publish()
    A.i('s_barrier')
    for r in (48, 49):
        lab = A.new('W_nosig')
        A.i(f's_cmp_eq_u32 s{r}, -1'); A.i(f's_cbranch_scc1 {lab}')
        signal_add(A, r)
        A.label(lab)
    def log_end(base, mulq=False):
        if not KN['log']: return
        A.i('s_memrealtime s[64:65]'); A.i('s_waitcnt lgkmcnt(0)')
        A.i('s_getreg_b32 s66, hwreg(HW_REG_XCC_ID)')
        A.i('s_lshl_b32 s66, s66, 16'); A.i('s_lshl_b32 s23, s40, 8'); A.i('s_or_b32 s66, s66, s23'); A.i('s_or_b32 s66, s66, s41')
        A.i('v_mov_b32 v24, s62'); A.i('v_mov_b32 v25, s64'); A.i('v_mov_b32 v26, s66'); A.i('v_mov_b32 v27, s60'); A.i('v_mov_b32 v23, 0')
        if mulq: A.i(f's_mul_i32 s23, s61, {QLEN}'); A.i('s_add_u32 s23, s23, s60')
        else: A.i(f's_add_u32 s23, s60, {base}')
        A.i('s_lshl_b32 s23, s23, 4'); A.i(f's_add_u32 s23, s23, {WS_LOG + 0x30000}')
        A.i('s_mov_b64 exec, 1'); A.i('buffer_store_dwordx4 v[24:27], v23, s[8:11], s23 offen'); A.i('s_mov_b64 exec, -1')
    log_end(0, True)
    A.i('s_branch W_loop')
    A.label('W_done')
    if KN['post']: gen_post(A, fetch, publish, log_end)
    else: A.i('s_waitcnt vmcnt(0)'); A.i('s_endpgm')
    gemm.set_ring(4)
```

```python
import sys
from common import *
import rec, gemm, small, post, worker
from compact import compact, MACROS
def build(path):
    launches = ([] if rec.KN['unified'] else [('prep_kernel', small.PRE4_GRID, 81920, small.gen_pre4())]) + [
        ('main_kernel', 256, 163840, rec.gen_rec('main_kernel', workers=worker.gen_worker)),
    ]
    hdr = open('adaLN_cond__memory_aug_recurrent_mem_tr__glu_gated_bilinear__prompt.s.ref').read().split('\n')
    head = [l for l in hdr if l.startswith(';') and '@launch' not in l and 'Override launch' not in l and 'grid=ceil' not in l]
    head = head[:head.index([l for l in head if 'd_ws ' in l][0])+1]
    out = head + ['; Generated by gen/build.py (hand-written generator scripts).']
    for n, g, lds, _ in launches: out.append(f'; @launch kernel={n} grid=({g},1,1) block=(256,1,1) lds={lds}')
    out.append('.amdgcn_target "amdgcn-amd-amdhsa--gfx950"')
    s = '\n'.join(out) + '\n' + MACROS
    for _, _, _, (t, d) in launches: s += compact(t)
    for _, _, _, (t, d) in launches: s += d
    open(path, 'w').write(s)
    return s
if __name__ == '__main__':
    p = sys.argv[1] if len(sys.argv) > 1 else 'adaLN_cond__memory_aug_recurrent_mem_tr__glu_gated_bilinear__prompt.s'
    s = build(p)
    print(len(s), 'bytes')
```

```python
S_TOK, DM, NH, DH, NSEG, SEG, MM, FF = 2048, 640, 32, 192, 64, 32, 8, 1536

KA = dict(x=0, mem0=8, wq=16, wk=24, wv=32, wo=40, seglen=48, bx=56, wg=64, wu=72, wd=80, c=88, wmod=96, out=104, dbg=112, ws=120)

WS_TAB   = 0x0000000
WS_MOD   = 0x0001000
WS_FLAGS = 0x0020000
WS_FLAGS_SIZE = 0x20000
FL_KQ  = WS_FLAGS
FL_VVO = WS_FLAGS + 0x10000
FL_PT  = WS_FLAGS + 0x11000
FL_VM  = WS_FLAGS + 0x18000
FL_T2S = WS_FLAGS + 0x13000
FL_LNS = WS_FLAGS + 0x17000
FL_F1S = WS_FLAGS + 0x17800
FL_CAL = WS_FLAGS + 0x16d00
FL_B   = WS_FLAGS + 0x16c00
FL_WF  = WS_FLAGS + 0x16f00
FL_T2  = WS_FLAGS + 0x15000
FL_LN  = WS_FLAGS + 0x15800
FL_F1  = WS_FLAGS + 0x16000
WS_HAND  = 0x0200000
WS_HAND_SIZE = 0x600000
MEM_STRIDE = 32768
P_STRIDE   = 65536
HB_MEM = 0
HB_P   = 0x200000
WS_H     = 0x0A00000
WS_X1    = 0x0D00000
WS_LOG   = 0x0F80000
WS_H2    = 0x1000000
WS_HM    = 0x1300000
WS_PTOK  = 0x1900000
WS_WQK   = 0x1E00000
WS_BW    = 0x2D00000
WS_KT    = 0x4600000
WS_QT    = 0x5E00000
WS_VOM   = 0x7600000
WS_VOT   = 0x8A00000
WS_WGF   = 0xDA00000
WS_WDF   = 0xDE00000
WS_SIZE  = 0x10000000
assert WS_VOT + 64*80*16384 <= WS_SIZE

def hand_base(A, dst, ptr_lo=4):
    f = A.i if hasattr(A, 'i') else A
    f(f's_sub_u32 s{dst}, 0, s{ptr_lo}')
    f(f's_and_b32 s{dst}, s{dst}, 0x1fffff')
    f(f's_add_u32 s{dst}, s{dst}, {WS_HAND}')

class Asm:
    def __init__(self):
        self.L = []
        self.uid = 0
    def __call__(self, s):
        for line in s.split('\n'):
            line = line.rstrip()
            if line.strip():
                self.L.append(line if line.endswith(':') and not line.startswith(' ') else '  ' + line.strip())
    def label(self, n):
        self.L.append(f'{n}:')
    def c(self, s):
        self.L.append(f'  ; {s}')
    def new(self, p='L'):
        self.uid += 1
        return f'{p}_{self.uid}'
    def text(self):
        return '\n'.join(self.L) + '\n'

def vr(b, n=4):
    return f'v[{b}:{b+n-1}]' if n > 1 else f'v{b}'
def ar(b, n=4):
    return f'a[{b}:{b+n-1}]' if n > 1 else f'a{b}'
def sr(b, n=2):
    return f's[{b}:{b+n-1}]' if n > 1 else f's{b}'

class Lgkm:
    def __init__(self, asm):
        self.asm = asm; self.q = []
    def issue(self, text, tag):
        self.asm(text); self.q.append(tag)
        assert len(self.q) <= 15, f'too many LDS ops in flight: {self.q}'
    def wait(self, tag):
        if tag not in self.q: return
        i = max(j for j, t in enumerate(self.q) if t == tag)
        n = len(self.q) - 1 - i
        self.asm(f's_waitcnt lgkmcnt({n})')
        self.q = self.q[i+1:]
    def wait_all(self):
        self.asm('s_waitcnt lgkmcnt(0)'); self.q = []

TS = dict(on=False)
def ts_stamp(A, slot, vtmp=2):
    if not TS['on']: return
    f = A.i if hasattr(A, 'i') else A
    f('s_memrealtime s[98:99]'); f('s_waitcnt lgkmcnt(0)'); f(f'v_mov_b32 v{vtmp}, s98')
    f('s_lshl_b32 s97, s2, 2'); f(f's_add_u32 s97, s97, {0xF80000 + 0x70000 + slot*4096}')
    f(f'buffer_store_dword v{vtmp}, off, s[8:11], s97'); f('s_waitcnt vmcnt(0)')

def kernel_header(A, name):
    A.L.append('.text')
    A.L.append(f'.globl {name}')
    A.L.append('.p2align 8')
    A.L.append(f'.type {name},@function')
    A.L.append(f'{name}:')

def kernel_desc(name, vgpr, accum, sgpr=100):
    return f'''.section .rodata,"a"
.p2align 6
.amdhsa_kernel {name}
  .amdhsa_next_free_vgpr {vgpr}
  .amdhsa_next_free_sgpr {sgpr}
  .amdhsa_accum_offset {accum}
  .amdhsa_group_segment_fixed_size 0
  .amdhsa_kernarg_size 128
  .amdhsa_user_sgpr_count 2
  .amdhsa_user_sgpr_kernarg_segment_ptr 1
  .amdhsa_system_sgpr_workgroup_id_x 1
  .amdhsa_float_denorm_mode_32 3
  .amdhsa_float_denorm_mode_16_64 3
.end_amdhsa_kernel
'''

def srd(A, dst, ptr, nbytes):
    A(f's_mov_b32 s{dst}, s{ptr}')
    A(f's_and_b32 s{dst+1}, s{ptr+1}, 0xffff')
    A(f's_mov_b32 s{dst+2}, {nbytes:#x}')
    A(f's_mov_b32 s{dst+3}, 0x20000')
```

```python
from common import *
from rec import Em, LG
from gemm import VM, MF
from post import unpack

ACC = 32
def reduce_quads(A, nt):
    A.i('v_and_b32 v22, 63, v0'); A.i('v_lshlrev_b32 v22, 4, v22')
    A.i('s_lshl_b32 s23, s16, 12'); A.i('v_add_u32 v23, s23, v22')
    A.i('s_lshl_b32 s23, s16, 10'); A.i('v_add_u32 v24, s23, v22')
    A.i('s_nop 7')
    for t in range(nt):
        for q in range(4):
            A.i(f'ds_write_b128 v23, {vr(ACC+16*t+4*q)} offset:{t*16384 + q*1024}')
    A.i('s_waitcnt lgkmcnt(0)'); A.i('s_barrier')
    R = 128
    for t in range(nt):
        for w in range(4):
            A.i(f'ds_read_b128 {vr(R+16*t+4*w)}, v24 offset:{t*16384 + w*4096}')
        if t % 2 == 1 or t == nt-1: A.i('s_waitcnt lgkmcnt(0)')
    for t in range(nt):
        b = R + 16*t; o = ACC + 4*t
        for h in (0, 2):
            A.i(f'v_pk_add_f32 v[{b+h}:{b+h+1}], v[{b+h}:{b+h+1}], v[{b+4+h}:{b+5+h}]')
            A.i(f'v_pk_add_f32 v[{b+8+h}:{b+9+h}], v[{b+8+h}:{b+9+h}], v[{b+12+h}:{b+13+h}]')
            A.i(f'v_pk_add_f32 v[{o+h}:{o+h+1}], v[{b+h}:{b+h+1}], v[{b+8+h}:{b+9+h}]')

def residual_quad(A, vm, pre_loaded, dst_srd, dst_soff, dst_sc, nt):
    vm.wait(pre_loaded)
    for t in range(nt):
        G, R = 100+4*t, 108+2*t
        for h2 in range(2):
            a, b = ACC + 4*t + 2*h2, ACC + 4*t + 2*h2 + 1
            A.i(f'v_cvt_pk_bf16_f32 v26, v{a}, v{b}'); unpack(A, a, b, 26)
            A.i(f'v_mul_f32 v{a}, v{a}, v{G+2*h2}'); A.i(f'v_mul_f32 v{b}, v{b}, v{G+2*h2+1}')
            A.i(f'v_cvt_pk_bf16_f32 v26, v{a}, v{b}'); unpack(A, a, b, 26)
            unpack(A, 27, 28, R+h2)
            A.i(f'v_add_f32 v{a}, v{a}, v27'); A.i(f'v_add_f32 v{b}, v{b}, v28')
            A.i(f'v_cvt_pk_bf16_f32 v{R+h2}, v{a}, v{b}')
        vm.issue(f'buffer_store_dwordx2 v[{R}:{R+1}], v116, s[{dst_srd}:{dst_srd+3}], {dst_soff} offen offset:{64*t}{dst_sc}')

def residual_prefetch(A, vm, seg_sgpr, ct_sgpr, mod_idx, res_srd, res_soff, res_sc, nt):
    A.i('v_and_b32 v22, 63, v0'); A.i('v_and_b32 v23, 31, v22'); A.i(f's_lshl_b32 s23, s{seg_sgpr}, 5'); A.i('v_add_u32 v23, s23, v23'); A.i('v_mul_u32_u24 v23, 1280, v23')
    A.i('v_lshrrev_b32 v24, 5, v22')
    A.i(f's_mul_i32 s24, s{ct_sgpr}, {32*nt}'); A.i('s_lshl_b32 s23, s16, 3'); A.i('s_add_u32 s24, s24, s23')
    A.i('v_lshlrev_b32 v25, 2, v24'); A.i('v_add_u32 v25, s24, v25')
    A.i('v_lshlrev_b32 v26, 1, v25'); A.i('v_add_u32 v116, v23, v26')
    A.i('v_lshlrev_b32 v25, 2, v25')
    A.i(f's_mov_b32 s24, {WS_MOD + mod_idx*2560}')
    for t in range(nt):
        vm.issue(f'buffer_load_dwordx4 {vr(100+4*t)}, v25, s[8:11], s24 offen offset:{128*t}', 'res')
        vm.issue(f'buffer_load_dwordx2 v[{108+2*t}:{109+2*t}], v116, s[{res_srd}:{res_srd+3}], {res_soff} offen offset:{64*t}{res_sc}', 'res')

def task_t2f(A, xsrd, tail, dep):
    vm = VM(A)
    A.i('v_and_b32 v22, 63, v0'); A.i('v_lshlrev_b32 v1, 4, v22')
    A.i('v_and_b32 v23, 31, v22'); A.i('v_lshrrev_b32 v24, 3, v23'); A.i('v_and_b32 v23, 7, v23'); A.i('v_lshlrev_b32 v23, 4, v23')
    A.i('v_lshrrev_b32 v25, 5, v22'); A.i('v_lshlrev_b32 v26, 8, v25'); A.i('v_add_u32 v23, v23, v26')
    A.i('v_lshlrev_b32 v26, 14, v24'); A.i('v_add_u32 v2, v23, v26'); A.i('v_add_u32 v6, 65536, v2')
    A.i('v_lshlrev_b32 v26, 12, v24'); A.i('v_add_u32 v3, v23, v26'); A.i('v_add_u32 v7, 16384, v3')
    A.i('v_mul_u32_u24 v26, 2560, v25'); A.i('v_and_b32 v27, 31, v22'); A.i('v_lshlrev_b32 v27, 4, v27'); A.i('v_add_u32 v4, v26, v27'); A.i('v_add_u32 v4, 2048, v4')
    A.i('s_mul_i32 s44, s40, 80'); A.i('s_lshl_b32 s23, s41, 3'); A.i('s_add_u32 s44, s44, s23')
    A.i('s_lshl_b32 s45, s44, 12'); A.i('s_lshl_b32 s23, s16, 10'); A.i('s_add_u32 s45, s45, s23'); A.i(f's_add_u32 s45, s45, {WS_VOM}')
    A.i('s_lshl_b32 s44, s44, 14'); A.i('s_lshl_b32 s23, s16, 12'); A.i('s_add_u32 s44, s44, s23'); A.i(f's_add_u32 s44, s44, {WS_VOT}')
    A.i('s_lshl_b32 s46, s40, 5'); A.i('s_lshl_b32 s23, s16, 3'); A.i('s_add_u32 s46, s46, s23'); A.i('s_mul_i32 s46, s46, 2560'); A.i(f's_add_u32 s46, s46, {WS_PTOK}')
    A.i('s_mov_b32 s47, s46')
    for hh in range(8):
        for k in range(2):
            n = 2*hh + k; o = (hh >> 1)*1024 + k*512 + (hh & 1)*128
            vm.issue(f'buffer_load_dwordx4 {ar(12*n+4)}, v2, s[8:11], s44 offen offset:{o} sc1', 'vo')
            vm.issue(f'buffer_load_dwordx4 {ar(12*n+8)}, v6, s[8:11], s44 offen offset:{o} sc1', 'vo')
    residual_prefetch(A, vm, 40, 41, 2, xsrd, '0', '', 2)
    dep()
    vm.q = []
    pend = 32 + 4
    for hh in range(8):
        for k in range(2):
            n = 2*hh + k
            vm.issue(f'buffer_load_dwordx4 {ar(12*n)}, v1, s[8:11], s46 offen offset:{k*1024} sc1', f'k{n}')
        A.i('s_add_u32 s46, s46, 2560')
    for vv in range(4):
        n = 16 + vv; o = (vv & 1)*512 + (vv >> 1)*128
        vm.issue(f'buffer_load_dwordx4 {ar(12*n)}, v4, s[8:11], s47 offen sc1', f'k{n}')
        vm.issue(f'buffer_load_dwordx4 {ar(12*n+4)}, v3, s[8:11], s45 offen offset:{o} sc1', f'k{n}')
        vm.issue(f'buffer_load_dwordx4 {ar(12*n+8)}, v7, s[8:11], s45 offen offset:{o} sc1', f'k{n}')
        A.i('s_add_u32 s47, s47, 5120')
    for j in range(20):
        vm.wait(f'k{j}')
        for t in range(2):
            c = '0' if j == 0 else vr(ACC+16*t, 16)
            A.i(f'{MF} {vr(ACC+16*t,16)}, {ar(12*j+4+4*t)}, {ar(12*j)}, {c}')
    tail()
    A.i('s_nop 7')
    reduce_quads(A, 2)
    A.i(f's_mov_b32 s49, {WS_X1}')
    residual_quad(A, vm, 'res', 8, 's49', ' sc1', 2)
    vm.wait_all()

def task_f1f(A, tail, dep):
    vm = VM(A)
    A.i('v_and_b32 v22, 63, v0'); A.i('v_lshlrev_b32 v1, 4, v22')
    A.i('s_mul_i32 s44, s40, 40'); A.i('s_mul_i32 s23, s16, 10'); A.i('s_add_u32 s44, s44, s23'); A.i('s_lshl_b32 s44, s44, 10'); A.i(f's_add_u32 s44, s44, {WS_H2}')
    A.i('s_mul_i32 s45, s41, 160'); A.i('s_add_u32 s45, s45, s23'); A.i('s_lshl_b32 s45, s45, 10'); A.i(f's_add_u32 s45, s45, {WS_WGF}')
    for m in range(1, 4): A.i(f's_add_u32 s{45+m}, s45, {m*40*1024}')
    for j in range(10):
        if j and j % 4 == 0:
            for r in range(45, 49): A.i(f's_add_u32 s{r}, s{r}, 4096')
        for m in range(4):
            vm.issue(f'buffer_load_dwordx4 {ar(20*j+4+4*m)}, v1, s[8:11], s{45+m} offen offset:{(j%4)*1024}', 'w')
    dep()
    vm.q = []
    for j in range(10):
        if j and j % 4 == 0: A.i('s_add_u32 s44, s44, 4096')
        vm.issue(f'buffer_load_dwordx4 {ar(20*j)}, v1, s[8:11], s44 offen offset:{(j%4)*1024} sc1', f'k{j}')
    for j in range(10):
        vm.wait(f'k{j}')
        for m in range(4):
            c = '0' if j == 0 else vr(ACC+16*m, 16)
            A.i(f'{MF} {vr(ACC+16*m,16)}, {ar(20*j+4+4*m)}, {ar(20*j)}, {c}')
    tail()
    A.i('s_nop 7')
    reduce_quads(A, 4)
    A.i('s_mul_i32 s45, s40, 96'); A.i('s_lshl_b32 s23, s41, 2'); A.i('s_add_u32 s45, s45, s23'); A.i('s_lshr_b32 s23, s16, 1'); A.i('s_add_u32 s45, s45, s23')
    A.i('s_lshl_b32 s45, s45, 10'); A.i('s_and_b32 s23, s16, 1'); A.i('s_lshl_b32 s23, s23, 3'); A.i('s_add_u32 s45, s45, s23'); A.i(f's_add_u32 s45, s45, {WS_HM}')
    for f in range(2):
        g, u = ACC + 8*f, ACC + 8*f + 4
        for h2 in range(2):
            a, b = g + 2*h2, u + 2*h2
            A.i(f'v_cvt_pk_bf16_f32 v22, v{a}, v{a+1}'); unpack(A, a, a+1, 22)
            A.i(f'v_cvt_pk_bf16_f32 v22, v{b}, v{b+1}'); unpack(A, b, b+1, 22)
            A.i(f'v_mul_f32 v{a}, v{a}, v{b}'); A.i(f'v_mul_f32 v{a+1}, v{a+1}, v{b+1}')
            A.i(f'v_cvt_pk_bf16_f32 v{24+2*f+h2}, v{a}, v{a+1}')
        vm.issue(f'buffer_store_dwordx2 v[{24+2*f}:{25+2*f}], v1, s[8:11], s45 offen offset:{f*2048} sc1')
    vm.wait_all()

def task_f2f(A, out_srd, tail, dep):
    vm = VM(A)
    A.i('v_and_b32 v22, 63, v0'); A.i('v_lshlrev_b32 v1, 4, v22')
    A.i('s_mul_i32 s23, s16, 24')
    A.i('s_mul_i32 s44, s40, 96'); A.i('s_add_u32 s44, s44, s23'); A.i('s_lshl_b32 s44, s44, 10'); A.i(f's_add_u32 s44, s44, {WS_HM}')
    A.i('s_mul_i32 s45, s41, 192'); A.i('s_add_u32 s45, s45, s23'); A.i('s_lshl_b32 s45, s45, 10'); A.i(f's_add_u32 s45, s45, {WS_WDF}')
    A.i(f's_add_u32 s46, s45, {96*1024}')
    BV = 128
    for j in range(24):
        if j and j % 4 == 0: A.i('s_add_u32 s45, s45, 4096'); A.i('s_add_u32 s46, s46, 4096')
        vm.issue(f'buffer_load_dwordx4 {ar(8*j)}, v1, s[8:11], s45 offen offset:{(j%4)*1024}', 'w')
        vm.issue(f'buffer_load_dwordx4 {ar(8*j+4)}, v1, s[8:11], s46 offen offset:{(j%4)*1024}', 'w')
    dep()
    vm.q = []
    for j in range(24):
        if j and j % 4 == 0: A.i('s_add_u32 s44, s44, 4096')
        vm.issue(f'buffer_load_dwordx4 {vr(BV+4*j)}, v1, s[8:11], s44 offen offset:{(j%4)*1024} sc1', f'k{j}')
    A.i(f's_mov_b32 s49, {WS_X1}')
    residual_prefetch(A, vm, 40, 41, 5, 8, 's49', ' sc1', 2)
    for j in range(24):
        vm.wait(f'k{j}')
        for t in range(2):
            c = '0' if j == 0 else vr(ACC+16*t, 16)
            A.i(f'{MF} {vr(ACC+16*t,16)}, {ar(8*j+4*t)}, {vr(BV+4*j)}, {c}')
    tail()
    A.i('s_nop 7')
    reduce_quads(A, 2)
    residual_quad(A, vm, 'res', out_srd, '0', '', 2)
    vm.wait_all()
```

```python
from common import *
from rec import Em, LG

NSLOT, DEPTH, SLOT = 4, 3, 24576
def set_ring(n, slot=24576):
    global NSLOT, DEPTH, SLOT
    NSLOT, DEPTH, SLOT = n, n-1, slot

OPT = dict(spread=True, nodma=False, dma_t=(1, 4))
SW, SW5 = 90, 91
def setup_sw(A):
    A.i(f's_mul_i32 s{SW}, s16, 6144'); A.i(f's_mul_i32 s{SW5}, s16, 5120')

class VM:
    def __init__(self, A): self.A = A; self.q = []
    def issue(self, text, tag=None):
        self.A.i(text); self.q.append(tag)
    def wait(self, tag):
        if tag not in self.q: return
        k = max(j for j, t in enumerate(self.q) if t == tag)
        n = len(self.q) - 1 - k
        self.A.i(f's_waitcnt vmcnt({min(n, 63)})')
        self.q = self.q[k+1:] if n <= 63 else self.q[-63:]
    def wait_all(self):
        self.A.i('s_waitcnt vmcnt(0)'); self.q = []

vL16, vRdE, vRdO, vRd5 = 1, 2, 3, 4
vCur = 6
vD192, vD160 = 10, 16
vT = 22

def setup_lane(A):
    setup_sw(A)
    A.i('v_and_b32 v22, 63, v0')
    A.i(f'v_lshlrev_b32 v{vL16}, 4, v22')
    A.i('v_lshrrev_b32 v23, 5, v22'); A.i('v_lshlrev_b32 v23, 2, v23')
    A.i('v_and_b32 v24, 15, v22'); A.i('v_lshrrev_b32 v25, 2, v24'); A.i('v_add_u32 v23, v23, v25')
    A.i('v_lshrrev_b32 v25, 4, v22'); A.i('v_and_b32 v25, 1, v25'); A.i('v_lshlrev_b32 v25, 5, v25')
    A.i('v_and_b32 v26, 3, v24'); A.i('v_lshlrev_b32 v26, 3, v26'); A.i('v_add_u32 v25, v25, v26')
    A.i('v_mul_u32_u24 v26, 384, v23'); A.i('v_add_u32 v26, v26, v25')
    A.i('v_lshrrev_b32 v27, 1, v23'); A.i('v_and_b32 v27, 1, v27'); A.i('v_lshlrev_b32 v27, 6, v27')
    A.i(f'v_add_u32 v{vRdE}, v26, v27'); A.i(f'v_sub_u32 v{vRdO}, v26, v27')
    A.i('v_mul_u32_u24 v26, 320, v23'); A.i(f'v_add_u32 v{vRd5}, v26, v25')

def setup_dma192(A, pitch):
    A.i('v_and_b32 v22, 63, v0')
    for j in range(6):
        A.i(f's_mul_i32 s23, s16, 384'); A.i(f's_add_u32 s23, s23, {64*j}')
        A.i('v_add_u32 v23, s23, v22')
        A.i('v_mul_u32_u24 v24, 2731, v23'); A.i('v_lshrrev_b32 v24, 16, v24')
        A.i('v_mul_u32_u24 v25, 24, v24'); A.i('v_sub_u32 v25, v23, v25')
        A.i('v_lshrrev_b32 v26, 1, v24'); A.i('v_and_b32 v26, 1, v26'); A.i('v_lshlrev_b32 v26, 2, v26')
        A.i('v_xor_b32 v25, v25, v26'); A.i('v_lshlrev_b32 v25, 4, v25')
        A.i(f'v_mul_u32_u24 v24, {pitch}, v24'); A.i(f'v_add_u32 v{vD192+j}, v24, v25')

def setup_dma160(A, pitch):
    A.i('v_and_b32 v22, 63, v0')
    for j in range(5):
        A.i(f's_mul_i32 s23, s16, 320'); A.i(f's_add_u32 s23, s23, {64*j}')
        A.i('v_add_u32 v23, s23, v22')
        A.i('v_mul_u32_u24 v24, 3277, v23'); A.i('v_lshrrev_b32 v24, 16, v24')
        A.i('v_mul_u32_u24 v25, 20, v24'); A.i('v_sub_u32 v25, v23, v25'); A.i('v_lshlrev_b32 v25, 4, v25')
        A.i(f'v_mul_u32_u24 v24, {pitch}, v24'); A.i(f'v_add_u32 v{vD160+j}, v24, v25')

class Stage:
    def __init__(self, kind, srd, soff, add):
        self.kind, self.srd, self.soff, self.add = kind, srd, soff, add

class Engine:
    def __init__(self, A, vm, stages, fragbase, ldsbase=0):
        self.A, self.vm, self.stages, self.fb, self.lb = A, vm, stages, fragbase, ldsbase
        self.lg = LG(A)
        self.side = []
        self.dmaq = []
        self.side_rate = 2
    def dma(self, i, spread=False):
        if i >= len(self.stages): return
        A, st = self.A, self.stages[i]
        if OPT['nodma'] and i >= DEPTH: return
        if spread and OPT['spread']:
            n = 6 if st.kind == 192 else 5
            vb = vD192 if st.kind == 192 else vD160
            slot = self.lb + (i % NSLOT)*SLOT
            for j in range(n):
                def one(j=j):
                    A.i(f's_add_u32 m0, s{SW}, {slot + j*1024}' if st.kind == 192 else f's_add_u32 m0, s{SW5}, {slot + j*1024}')
                    A.i('s_nop 0')
                    self.vm.issue(f'buffer_load_dwordx4 v{vb+j}, s[{st.srd}:{st.srd+3}], s{st.soff} offen lds', f'st{i}')
                    if j == n-1 and st.add: A.i(f's_add_u32 s{st.soff}, s{st.soff}, {st.add}')
                self.dmaq.append(one)
            return
        n = 6 if st.kind == 192 else 5
        vb = vD192 if st.kind == 192 else vD160
        slot = self.lb + (i % NSLOT)*SLOT
        A.i(f's_mul_i32 s23, s16, {n*1024}')
        for j in range(n):
            A.i(f's_add_u32 m0, s23, {slot + j*1024}')
            if j == 0: A.i('s_nop 0')
            else: A.i(f's_nop 0')
            self.vm.issue(f'buffer_load_dwordx4 v{vb+j}, s[{st.srd}:{st.srd+3}], s{st.soff} offen lds', f'st{i}')
        if st.add: A.i(f's_add_u32 s{st.soff}, s{st.soff}, {st.add}')
    def set_bases(self, i):
        if i >= len(self.stages): return
        A, st = self.A, self.stages[i]
        slot = self.lb + (i % NSLOT)*SLOT
        p = vCur + 2*(i & 1)
        if st.kind == 192:
            A.i(f'v_add_u32 v{p}, {slot}, v{vRdE}'); A.i(f'v_add_u32 v{p+1}, {slot}, v{vRdO}')
        else:
            A.i(f'v_add_u32 v{p}, {slot}, v{vRd5}')
    def frag(self, j, t): return self.fb + (j & 1)*24 + 4*t
    def read(self, j, step, t):
        i, ksl = step['stage'], step['ksl']
        st = self.stages[i]; p = vCur + 2*(i & 1); f = self.frag(j, t)
        if st.kind == 192:
            base = p + (t & 1); pitch = 384
        else:
            base = p; pitch = 320
        o = 16*ksl*pitch + t*64
        self.lg.issue(f'ds_read_b64_tr_b16 a[{f}:{f+1}], v{base} offset:{o}', f'f{j}_{t}a')
        self.lg.issue(f'ds_read_b64_tr_b16 a[{f+2}:{f+3}], v{base} offset:{o + 8*pitch}', f'f{j}_{t}')
    def pop_side(self, n):
        while n > 0 and self.side:
            s = self.side.pop(0)
            if callable(s): s()
            else: self.A.i(s)
            n -= 1
    def flush_side(self): self.pop_side(10**9)
    def run(self, steps):
        A = self.A
        parts = getattr(self, 'prologue_parts', None)
        for i in range(DEPTH):
            self.dma(i)
            if parts and i < len(parts): parts[i]()
        if parts:
            for p in parts[DEPTH:]: p()
        self.prologue_hook() if hasattr(self, 'prologue_hook') else None
        self.vm.wait('st0'); A.i('s_barrier')
        self.set_bases(0)
        for t in range(steps[0]['nt']): self.read(0, steps[0], t)
        for j, s in enumerate(steps):
            nxt = steps[j+1] if j+1 < len(steps) else None
            if s.get('pre'): s['pre']()
            if s['ksl'] == 2:
                i = s['stage']
                if i+1 < len(self.stages):
                    while self.dmaq: self.dmaq.pop(0)()
                    self.vm.wait(f'st{i+1}'); A.i('s_barrier')
                    self.dma(i + DEPTH, spread=True)
                    self.set_bases(i+1)
            for t in range(max(s['nt'], nxt['nt'] if nxt else 0)):
                if t < s['nt']:
                    self.lg.wait(f'f{j}_{t}')
                    A.i(s['mfma'](t, f'a[{self.frag(j,t)}:{self.frag(j,t)+3}]'))
                if nxt and t < nxt['nt']: self.read(j+1, nxt, t)
                if self.dmaq and t in OPT['dma_t']: self.dmaq.pop(0)()
                self.pop_side(self.side_rate)
            if s.get('post'): s['post']()
        while self.dmaq: self.dmaq.pop(0)()

MF = 'v_mfma_f32_32x32x16_bf16'

def load_act(A, vm, areg, nks, soff, sc=''):
    for ks in range(nks):
        if ks and ks % 4 == 0: A.i(f's_add_u32 s{soff}, s{soff}, 4096')
        vm.issue(f'buffer_load_dwordx4 a[{areg+4*ks}:{areg+4*ks+3}], v{vL16}, s[8:11], s{soff} offen offset:{(ks%4)*1024}{sc}', f'act{ks}')

def act_parts(A, vm, areg, nks, soff, sc=''):
    def grp(g):
        def f():
            for ks in range(4*g, min(4*g+4, nks)):
                if ks and ks % 4 == 0: A.i(f's_add_u32 s{soff}, s{soff}, 4096')
                vm.issue(f'buffer_load_dwordx4 a[{areg+4*ks}:{areg+4*ks+3}], v{vL16}, s[8:11], s{soff} offen offset:{(ks%4)*1024}{sc}', f'act{ks}')
        return f
    return [grp(g) for g in range((nks+3)//4)]

def pass192_steps(stage0, acc, act, vm, first_pass):
    steps = []
    for ks in range(40):
        def mf(t, fr, ks=ks):
            c = '0' if ks == 0 else vr(acc+16*t, 16)
            return f'{MF} {vr(acc+16*t,16)}, {fr}, a[{act+4*ks}:{act+4*ks+3}], {c}'
        st = dict(stage=stage0 + ks//4, ksl=ks % 4, nt=6, mfma=mf)
        if first_pass: st['pre'] = (lambda ks=ks: vm.wait(f'act{ks}'))
        steps.append(st)
    return steps

def task_kq(A, w_ka, out_ws):
    ACT, FR, ACC = 0, 160, 32
    A.i(f's_load_dwordx2 s[6:7], s[0:1], {w_ka}')
    setup_dma192(A, 12288)
    A.i('s_waitcnt lgkmcnt(0)')
    srd(A, 12, 6, 640*12288)
    A.i('s_mul_i32 s42, s41, 384')
    A.i('s_lshl_b32 s43, s40, 2'); A.i('s_add_u32 s43, s43, s16')
    A.i(f's_mul_i32 s44, s43, {40*1024}'); A.i(f's_add_u32 s44, s44, {WS_H}')
    vm = VM(A)
    stages = [Stage(192, 12, 42, 64*12288) for _ in range(10)]
    e = Engine(A, vm, stages, FR)
    e.prologue_hook = lambda: load_act(A, vm, ACT, 40, 44)
    e.run(pass192_steps(0, ACC, ACT, vm, True))
    A.i('v_and_b32 v22, 63, v0'); A.i('v_lshrrev_b32 v23, 4, v22'); A.i('v_and_b32 v23, 1, v23'); A.i('v_mul_u32_u24 v23, 6144, v23')
    A.i('v_lshrrev_b32 v24, 5, v22'); A.i('v_lshlrev_b32 v24, 4, v24'); A.i('v_and_b32 v25, 15, v22'); A.i('v_add_u32 v24, v24, v25')
    A.i('v_lshlrev_b32 v24, 4, v24'); A.i('v_add_u32 v23, v23, v24')
    A.i('s_lshl_b32 s45, s43, 5'); A.i('s_add_u32 s45, s45, s41'); A.i('s_mul_i32 s45, s45, 12288'); A.i(f's_add_u32 s45, s45, {out_ws}')
    A.i('s_nop 7')
    for t in range(6):
        D = ACC + 16*t
        o = 24 + (t & 1)*0
        ga, gb = 24, 28
        A.i(f'v_cvt_pk_bf16_f32 v{ga}, v{D}, v{D+1}'); A.i(f'v_cvt_pk_bf16_f32 v{ga+1}, v{D+2}, v{D+3}')
        A.i(f'v_cvt_pk_bf16_f32 v{ga+2}, v{D+8}, v{D+9}'); A.i(f'v_cvt_pk_bf16_f32 v{ga+3}, v{D+10}, v{D+11}')
        A.i(f'v_cvt_pk_bf16_f32 v{gb}, v{D+4}, v{D+5}'); A.i(f'v_cvt_pk_bf16_f32 v{gb+1}, v{D+6}, v{D+7}')
        A.i(f'v_cvt_pk_bf16_f32 v{gb+2}, v{D+12}, v{D+13}'); A.i(f'v_cvt_pk_bf16_f32 v{gb+3}, v{D+14}, v{D+15}')
        if t == 4: A.i('s_add_u32 s45, s45, 4096')
        vm.issue(f'buffer_store_dwordx4 {vr(ga)}, v23, s[8:11], s45 offen offset:{(t%4)*1024}')
        vm.issue(f'buffer_store_dwordx4 {vr(gb)}, v23, s[8:11], s45 offen offset:{(t%4)*1024+512}')
        A.i('s_nop 1')
    vm.wait_all()

def vo_pass(A, e, vm, stage0, VOP, ACCS, store_tile):
    steps = []
    for cc in range(4):
        acc = ACCS[cc & 1]
        for ks in range(12):
            def mf(t, fr, ks=ks, acc=acc):
                c = '0' if ks == 0 else vr(acc+16*t, 16)
                return f'{MF} {vr(acc+16*t,16)}, {vr(VOP+4*ks)}, {fr}, {c}'
            st = dict(stage=stage0 + cc*3 + ks//4, ksl=ks % 4, nt=5, mfma=mf)
            if ks == 1 and cc > 0:
                def pre(cc=cc):
                    for t in range(5): e.side.extend(store_tile(cc-1, t, ACCS[(cc-1) & 1] + 16*t))
                st['pre'] = pre
            if ks == 11:
                st['post'] = (lambda: e.flush_side())
            steps.append(st)
    return steps

def wo_stages(srd_, soff):
    st = []
    for cc in range(4):
        for i in range(3):
            add = 64*1280 if i < 2 else (320 - 128*1280)
            st.append(Stage(160, srd_, soff, add))
    return st

def task_vvo(A):
    ACT, FR = 0, 160
    VACC, VOP, ACC0, ACC1, TMP = 32, 128, 32, 176, 112
    A.i(f's_load_dwordx2 s[6:7], s[0:1], {KA["wv"]}')
    A.i(f's_load_dwordx2 s[18:19], s[0:1], {KA["wo"]}')
    setup_dma192(A, 12288); setup_dma160(A, 1280)
    A.i('s_waitcnt lgkmcnt(0)')
    srd(A, 12, 6, 640*12288); srd(A, 28, 18, 6144*1280)
    A.i('s_mul_i32 s42, s41, 384')
    A.i(f's_mul_i32 s46, s41, {192*1280}')
    A.i('s_lshl_b32 s43, s40, 2'); A.i('s_add_u32 s43, s43, s16')
    A.i(f's_mul_i32 s44, s43, {40*1024}'); A.i(f's_add_u32 s44, s44, {WS_H}')
    vm = VM(A)
    stages = [Stage(192, 12, 42, 64*12288) for _ in range(10)] + wo_stages(28, 46)
    e = Engine(A, vm, stages, FR)
    e.prologue_hook = lambda: load_act(A, vm, ACT, 40, 44)
    steps = pass192_steps(0, VACC, ACT, vm, True)
    def conv():
        A.i('s_nop 7'); A.i('s_nop 7')
        for t in range(6):
            for a in range(2):
                for r in range(4):
                    s = VACC + 16*t + 8*a + 2*r
                    A.i(f'v_cvt_pk_bf16_f32 v{VOP + 4*(2*t+a) + r}, v{s}, v{s+1}')
        A.i('s_nop 1')
    steps[-1]['post'] = conv
    A.i('v_and_b32 v22, 63, v0'); A.i('v_and_b32 v23, 31, v22'); A.i('v_lshrrev_b32 v24, 3, v23'); A.i('v_lshlrev_b32 v24, 14, v24')
    A.i('v_lshrrev_b32 v25, 5, v22'); A.i('v_lshlrev_b32 v25, 8, v25'); A.i('v_and_b32 v23, 7, v23'); A.i('v_lshlrev_b32 v23, 4, v23')
    A.i('v_add3_u32 v21, v23, v24, v25')
    A.i(f's_mul_i32 s47, s43, {80*16384}'); A.i('s_lshr_b32 s23, s41, 1'); A.i('s_lshl_b32 s23, s23, 10'); A.i('s_add_u32 s47, s47, s23')
    A.i('s_and_b32 s23, s41, 1'); A.i('s_lshl_b32 s23, s23, 7'); A.i('s_add_u32 s47, s47, s23'); A.i(f's_add_u32 s47, s47, {WS_VOT}')
    def store_tile(cc, t, D):
        o = TMP + 8*(t & 1)
        L = []
        for q in range(4):
            L.append(f'v_cvt_pk_bf16_f32 v{o+2*q}, v{D+4*q}, v{D+4*q+1}')
            L.append(f'v_cvt_pk_bf16_f32 v{o+2*q+1}, v{D+4*q+2}, v{D+4*q+3}')
        L.append(f's_add_u32 s48, s47, {(cc*20 + t*4)*16384}')
        L.append('s_nop 0')
        for b in (0, 4):
            L.append(f'v_permlane32_swap_b32 v{o+b}, v{o+b+2}')
            L.append(f'v_permlane32_swap_b32 v{o+b+1}, v{o+b+3}')
        L.append(lambda: vm.issue(f'buffer_store_dwordx4 {vr(o)}, v21, s[8:11], s48 offen'))
        L.append(lambda: vm.issue(f'buffer_store_dwordx4 {vr(o+4)}, v21, s[8:11], s48 offen offset:512'))
        return L
    steps += vo_pass(A, e, vm, 10, VOP, (ACC0, ACC1), store_tile)
    e.run(steps)
    A.i('s_nop 7'); A.i('s_nop 7')
    for t in range(5):
        e.side.extend(store_tile(3, t, ACC1 + 16*t))
    e.flush_side()
    vm.wait_all()

def task_b(A, wv_srd=12, wo_srd=28, sc=''):
    FR = 160
    VOP, ACC0, ACC1, TMP = 128, 32, 176, 112
    A.i(f's_load_dwordx2 s[6:7], s[0:1], {KA["wv"]}')
    A.i(f's_load_dwordx2 s[56:57], s[0:1], {KA["wo"]}')
    setup_dma160(A, 1280)
    A.i('s_waitcnt lgkmcnt(0)')
    srd(A, wv_srd, 6, 640*12288); srd(A, wo_srd, 56, 6144*1280)
    A.i(f's_mul_i32 s46, s41, {192*1280}')
    vm = VM(A)
    A.i('v_and_b32 v22, 63, v0'); A.i('v_and_b32 v23, 31, v22'); A.i('v_mul_u32_u24 v23, 12288, v23')
    A.i('v_lshrrev_b32 v24, 5, v22'); A.i('v_lshlrev_b32 v24, 4, v24'); A.i('v_add_u32 v23, v23, v24')
    A.i('s_lshl_b32 s43, s40, 2'); A.i('s_add_u32 s43, s43, s16')
    A.i(f's_mul_i32 s44, s43, {32*12288}'); A.i('s_mul_i32 s23, s41, 384'); A.i('s_add_u32 s44, s44, s23')
    e = Engine(A, vm, wo_stages(wo_srd, 46), FR)
    def hook():
        for ks in range(12):
            vm.issue(f'buffer_load_dwordx4 {vr(VOP+4*ks)}, v23, s[{wv_srd}:{wv_srd+3}], s44 offen offset:{32*ks}', f'act{ks}')
        vm.wait('act11')
        for ks in range(12):
            r = VOP + 4*ks
            A.i(f'v_permlane32_swap_b32 v{r}, v{r+2}'); A.i(f'v_permlane32_swap_b32 v{r+1}, v{r+3}')
        A.i('s_nop 1')
    e.prologue_hook = hook
    A.i('v_and_b32 v25, 31, v22'); A.i('v_lshrrev_b32 v26, 3, v25'); A.i('s_mov_b32 s23, 327680'); A.i('v_mul_lo_u32 v26, v26, s23')
    A.i('v_lshrrev_b32 v27, 5, v22'); A.i('v_lshlrev_b32 v27, 4, v27'); A.i('v_and_b32 v25, 7, v25'); A.i('v_add_u32 v25, v25, v27')
    A.i('s_lshr_b32 s23, s41, 2'); A.i('s_and_b32 s23, s23, 1'); A.i('s_lshl_b32 s23, s23, 3')
    A.i('v_add_u32 v25, s23, v25'); A.i('v_lshlrev_b32 v25, 4, v25'); A.i('v_add_u32 v21, v25, v26')
    A.i('s_lshr_b32 s47, s41, 3'); A.i('s_mul_i32 s47, s47, 81920'); A.i('s_and_b32 s23, s41, 3'); A.i('s_mul_i32 s23, s23, 20480'); A.i('s_add_u32 s47, s47, s23')
    A.i('s_lshl_b32 s23, s43, 10'); A.i('s_add_u32 s47, s47, s23'); A.i(f's_add_u32 s47, s47, {WS_BW}')
    def store_tile(cc, t, D):
        o = TMP + 8*(t & 1)
        L = []
        for g in range(2):
            b = D + 8*g
            L.append(f'v_cvt_pk_bf16_f32 v{o+4*g}, v{b}, v{b+1}')
            L.append(f'v_cvt_pk_bf16_f32 v{o+4*g+1}, v{b+4}, v{b+5}')
            L.append(f'v_cvt_pk_bf16_f32 v{o+4*g+2}, v{b+2}, v{b+3}')
            L.append(f'v_cvt_pk_bf16_f32 v{o+4*g+3}, v{b+6}, v{b+7}')
        L.append(f's_add_u32 s48, s47, {(cc*20 + t*4)*327680}')
        L.append(lambda: vm.issue(f'buffer_store_dwordx4 {vr(o)}, v21, s[8:11], s48 offen{sc}'))
        L.append(lambda: vm.issue(f'buffer_store_dwordx4 {vr(o+4)}, v21, s[8:11], s48 offen offset:512{sc}'))
        return L
    steps = vo_pass(A, e, vm, 0, VOP, (ACC0, ACC1), store_tile)
    e.run(steps)
    A.i('s_nop 7'); A.i('s_nop 7')
    for t in range(5):
        e.side.extend(store_tile(3, t, ACC1 + 16*t))
    e.flush_side()
    vm.wait_all()

def task_b_half(A):
    FR = 0
    VOP, ACC, TMP = 128, 32, 112
    A.i(f's_load_dwordx2 s[6:7], s[0:1], {KA["wv"]}')
    A.i(f's_load_dwordx2 s[56:57], s[0:1], {KA["wo"]}')
    setup_dma160(A, 1280)
    A.i('s_waitcnt lgkmcnt(0)')
    srd(A, 12, 6, 640*12288); srd(A, 28, 56, 6144*1280)
    A.i(f's_mul_i32 s46, s41, {192*1280}'); A.i('s_mul_i32 s23, s39, 640'); A.i('s_add_u32 s46, s46, s23')
    vm = VM(A)
    A.i('v_and_b32 v22, 63, v0'); A.i('v_and_b32 v23, 31, v22'); A.i('v_mul_u32_u24 v23, 12288, v23')
    A.i('v_lshrrev_b32 v24, 5, v22'); A.i('v_lshlrev_b32 v24, 4, v24'); A.i('v_add_u32 v23, v23, v24')
    A.i('s_lshl_b32 s43, s40, 2'); A.i('s_add_u32 s43, s43, s16')
    A.i(f's_mul_i32 s44, s43, {32*12288}'); A.i('s_mul_i32 s23, s41, 384'); A.i('s_add_u32 s44, s44, s23')
    for ks in range(12):
        vm.issue(f'buffer_load_dwordx4 {vr(VOP+4*ks)}, v23, s[12:15], s44 offen offset:{32*ks}', f'act{ks}')
    e = Engine(A, vm, wo_stages(28, 46)[:6], FR)
    def hook():
        vm.wait('act11')
        for ks in range(12):
            r = VOP + 4*ks
            A.i(f'v_permlane32_swap_b32 v{r}, v{r+2}'); A.i(f'v_permlane32_swap_b32 v{r+1}, v{r+3}')
        A.i('s_nop 1')
    e.prologue_hook = hook
    A.i('v_and_b32 v25, 31, v22'); A.i('v_lshrrev_b32 v26, 3, v25'); A.i('s_mov_b32 s23, 327680'); A.i('v_mul_lo_u32 v26, v26, s23')
    A.i('v_lshrrev_b32 v27, 5, v22'); A.i('v_lshlrev_b32 v27, 4, v27'); A.i('v_and_b32 v25, 7, v25'); A.i('v_add_u32 v25, v25, v27')
    A.i('s_lshr_b32 s23, s41, 2'); A.i('s_and_b32 s23, s23, 1'); A.i('s_lshl_b32 s23, s23, 3')
    A.i('v_add_u32 v25, s23, v25'); A.i('v_lshlrev_b32 v25, 4, v25'); A.i('v_add_u32 v21, v25, v26')
    A.i('s_lshr_b32 s47, s41, 3'); A.i('s_mul_i32 s47, s47, 81920'); A.i('s_and_b32 s23, s41, 3'); A.i('s_mul_i32 s23, s23, 20480'); A.i('s_add_u32 s47, s47, s23')
    A.i('s_lshl_b32 s23, s43, 10'); A.i('s_add_u32 s47, s47, s23'); A.i(f's_add_u32 s47, s47, {WS_BW}')
    A.i(f's_mul_i32 s23, s39, {40*327680}'); A.i('s_add_u32 s47, s47, s23')
    def store_chunk(cc):
        A.i('s_nop 7'); A.i('s_nop 7')
        for t in range(5):
            D = ACC + 16*t; o = TMP + 8*(t & 1)
            for g in range(2):
                b = D + 8*g
                A.i(f'v_cvt_pk_bf16_f32 v{o+4*g}, v{b}, v{b+1}'); A.i(f'v_cvt_pk_bf16_f32 v{o+4*g+1}, v{b+4}, v{b+5}')
                A.i(f'v_cvt_pk_bf16_f32 v{o+4*g+2}, v{b+2}, v{b+3}'); A.i(f'v_cvt_pk_bf16_f32 v{o+4*g+3}, v{b+6}, v{b+7}')
            A.i(f's_add_u32 s48, s47, {(cc*20 + t*4)*327680}')
            if OPT.get('bnostore'): continue
            vm.issue(f'buffer_store_dwordx4 {vr(o)}, v21, s[8:11], s48 offen' + OPT.get('bsc', ''))
            vm.issue(f'buffer_store_dwordx4 {vr(o+4)}, v21, s[8:11], s48 offen offset:512' + OPT.get('bsc', ''))
    steps = []
    for cc in range(2):
        for ks in range(12):
            def mf(t, fr, ks=ks):
                c = '0' if ks == 0 else vr(ACC+16*t, 16)
                return f'{MF} {vr(ACC+16*t,16)}, {vr(VOP+4*ks)}, {fr}, {c}'
            st = dict(stage=cc*3 + ks//4, ksl=ks % 4, nt=5, mfma=mf)
            if ks == 11: st['post'] = (lambda cc=cc: store_chunk(cc))
            steps.append(st)
    e.run(steps)
    vm.wait_all()

def kernel_prolog(A, name, ngrid):
    kernel_header(A, name)
    A.i(f's_load_dwordx2 s[4:5], s[0:1], {KA["ws"]}')
    A.i(f's_cmp_ge_u32 s2, {ngrid}')
    A.i(f's_cbranch_scc1 {name}_exit')
    A.i('v_lshrrev_b32 v1, 6, v0')
    A.i('s_waitcnt lgkmcnt(0)')
    srd(A, 8, 4, WS_SIZE)
    A.i('v_readfirstlane_b32 s16, v1')

def gen_pre(name='pre_kernel'):
    A = Em()
    kernel_prolog(A, name, 1536)
    setup_lane(A)
    A.i('s_and_b32 s41, s2, 31'); A.i('s_lshr_b32 s40, s2, 5'); A.i('s_and_b32 s40, s40, 15')
    A.i('s_cmp_lt_u32 s2, 512'); A.i(f's_cbranch_scc0 {name}_kq')
    task_vvo(A)
    A.i('s_endpgm')
    A.label(f'{name}_kq')
    A.i('s_cmp_lt_u32 s2, 1024'); A.i(f's_cbranch_scc0 {name}_q')
    task_kq(A, KA['wk'], WS_KT)
    A.i('s_endpgm')
    A.label(f'{name}_q')
    task_kq(A, KA['wq'], WS_QT)
    A.label(f'{name}_exit')
    A.i('s_endpgm')
    return A.text(), kernel_desc(name, 512, 256)

def gen_bw(name='bw_kernel', calib=True):
    import small
    A = Em()
    kernel_prolog(A, name, 169)
    A.i('s_nop 3')
    A.i('s_cmp_lt_u32 s2, 160'); A.i(f's_cbranch_scc1 {name}_b')
    A.i('s_cmp_eq_u32 s2, 160'); A.i(f's_cbranch_scc0 {name}_c')
    small.role_mem0(A)
    A.i('s_endpgm')
    A.label(f'{name}_c')
    if calib: small.role_calib(A)
    A.i('s_endpgm')
    A.label(f'{name}_b')
    setup_lane(A)
    A.i('s_and_b32 s41, s2, 31'); A.i('s_lshr_b32 s40, s2, 5')
    task_b(A)
    A.label(f'{name}_exit')
    A.i('s_endpgm')
    return A.text(), kernel_desc(name, 512, 256)

if __name__ == '__main__':
    t, d = gen_pre(); t2, d2 = gen_bw()
    print('; @launch kernel=pre_kernel grid=(1536,1,1) block=(256,1,1) lds=98304')
    print('; @launch kernel=bw_kernel grid=(160,1,1) block=(256,1,1) lds=98304')
    print('.amdgcn_target "amdgcn-amd-amdhsa--gfx950"')
    print(t); print(t2); print(d); print(d2)
```

```python
from common import *
NS, NC = 32, 80
FL_DB = WS_FLAGS + 0x16800
KN = dict(late=False, lateC=False, adapt=False, up=2, down=3, loS=1, hiS=12, loC=4, hiC=18, gl='sc1', bmain=False, join=True, db=True, dbS=6, dbC=12, dbCm=8, ring_at=0, preS=0, dC0=0, preC=0, log=False, flags=True, post=True)
SPIN_MAX = 0x400000
LOG2E = 1.4426950408889634
import struct
def fbits(x): return struct.unpack('<I', struct.pack('<f', x))[0]
class Em(Asm):
    def __init__(self):
        super().__init__(); self.n = 0; self.marks = {}
    def i(self, s):
        for line in s.split('\n'):
            if line.strip():
                self(line)
                t = line.strip()
                if t.startswith('s_nop'): self.n += int(t.split()[1]) + 1
                elif not t.endswith(':') and not t.startswith(';'): self.n += 1
    def mark(self, k): self.marks[k] = self.n
    def need(self, k, d):
        if k not in self.marks: return
        have = self.n - self.marks[k]
        if have < d:
            r = d - have
            while r > 0:
                q = min(r, 16); self.i(f's_nop {q-1}'); r -= q
class LG(Lgkm):
    def issue(self, text, tag):
        self.asm.i(text); self.q.append(tag)
        assert len(self.q) <= 15, f'too many LDS ops in flight: {self.q}'
    def wait(self, tag):
        if tag not in self.q: return
        k = max(j for j, t in enumerate(self.q) if t == tag)
        self.asm.i(f's_waitcnt lgkmcnt({len(self.q)-1-k})'); self.q = self.q[k+1:]
    def wait_all(self):
        self.asm.i('s_waitcnt lgkmcnt(0)'); self.q = []
def remap(A, v, tmp):
    A.i(f'v_lshrrev_b32 v{tmp}, 13, v{v}')
    A.i(f'v_lshlrev_b32 v{tmp}, 14, v{tmp}')
    A.i(f'v_and_b32 v{v}, 0x1fff, v{v}')
    A.i(f'v_add_u32 v{v}, v{v}, v{tmp}')
S_WRES, S_KQ, S_MEM, S_X = 0, 98304, 147456, 157696
C_MEM, C_RED = 0, 16384
def gather_mem(A, lbl, fail, gv, lv0, lv2, t0):
    A.i('s_mov_b32 s22, 0')
    A.label(lbl)
    for j in range(3):
        A.i(f'buffer_load_dwordx4 {vr(t0+4*j)}, v{gv+j}, s[8:11], s18 offen {KN["gl"]}')
    A.i('s_add_u32 s22, s22, 1')
    A.i(f's_cmp_gt_u32 s22, {SPIN_MAX}')
    A.i(f's_cbranch_scc1 {fail}')
    x, y = t0+12, t0+13
    A.i('s_waitcnt vmcnt(2)')
    A.i(f'ds_write_b128 v{lv0}, {vr(t0)}')
    A.i(f'v_max3_u32 v{x}, v{t0}, v{t0+1}, v{t0+2}')
    A.i('s_waitcnt vmcnt(1)')
    A.i(f'ds_write_b128 v{lv0}, {vr(t0+4)} offset:4096')
    A.i(f'v_max3_u32 v{y}, v{t0+3}, v{t0+4}, v{t0+5}')
    A.i(f'v_max3_u32 v{x}, v{t0+6}, v{t0+7}, v{x}')
    A.i('s_waitcnt vmcnt(0)')
    A.i(f'ds_write_b128 v{lv2}, {vr(t0+8)}')
    A.i(f'v_max3_u32 v{y}, v{t0+8}, v{t0+9}, v{y}')
    A.i(f'v_max3_u32 v{x}, v{t0+10}, v{t0+11}, v{x}')
    A.i(f'v_max_u32 v{x}, v{x}, v{y}')
    A.i(f'v_cmp_eq_u32 vcc, -1, v{x}')
    A.i(f's_cbranch_vccnz {lbl}')
    A.i('s_waitcnt lgkmcnt(0)')
    A.i('s_barrier')

def setup_gather_addrs(A, gv, lv0, lv2, ldsbase, tmp):
    A.i(f'v_lshlrev_b32 v{gv}, 4, v0')
    A.i(f'v_add_u32 v{gv+1}, 4096, v{gv}')
    A.i(f'v_add_u32 v{gv+2}, 16384, v{gv}')
    A.i(f'v_add_u32 v{lv0}, {ldsbase}, v{gv}')
    A.i(f'v_add_u32 v{lv2}, {ldsbase+8192}, v{gv}')
    A.i('v_cmp_gt_u32 vcc, 128, v0')
    A.i('s_nop 1')
    A.i(f'v_cndmask_b32 v{gv+2}, v{gv}, v{gv+2}, vcc')
    A.i(f'v_cndmask_b32 v{lv2}, v{lv0}, v{lv2}, vcc')
def poll_flag(A, off_sgpr, target, vtmp, fail='R_fail', backoff=0):
    lab = A.new('pf')
    A.i('s_mov_b32 s22, 0'); A.i(f'v_mov_b32 v{vtmp}, 0')
    A.label(lab)
    A.i(f'buffer_load_dword v{vtmp+1}, v{vtmp}, s[8:11], s{off_sgpr} offen sc1')
    A.i('s_add_u32 s22, s22, 1'); A.i(f's_cmp_gt_u32 s22, {SPIN_MAX}'); A.i(f's_cbranch_scc1 {fail}')
    A.i('s_waitcnt vmcnt(0)'); A.i(f'v_readfirstlane_b32 s23, v{vtmp+1}'); A.i('s_nop 3')
    if backoff:
        l2 = A.new('pf')
        A.i(f's_cmp_ge_u32 s23, {target}'); A.i(f's_cbranch_scc1 {l2}'); A.i(f's_sleep {backoff}'); A.i(f's_branch {lab}'); A.label(l2)
    else:
        A.i(f's_cmp_ge_u32 s23, {target}'); A.i(f's_cbranch_scc0 {lab}')

def signal(A, base, shift, seg_sgpr, slot_sgpr, v):
    A.i(f's_lshl_b32 s23, s{seg_sgpr}, {shift}'); A.i(f's_add_u32 s23, s23, {base}')
    A.i('s_mov_b64 exec, 1'); A.i(f'v_mov_b32 v{v}, 1'); A.i(f'v_mov_b32 v{v+1}, s{slot_sgpr}'); A.i(f'v_lshlrev_b32 v{v+1}, 2, v{v+1}')
    A.i(f'buffer_store_dword v{v}, v{v+1}, s[8:11], s23 offen sc1')
    A.i('s_mov_b64 exec, -1')

def adapt(A, areg, creg, lo, hi):
    if not (KN['db'] and KN['adapt']): return
    l1, l2 = A.new('ad'), A.new('ad')
    A.i('s_cmp_gt_u32 s22, 1'); A.i(f's_cbranch_scc0 {l1}')
    A.i(f's_add_u32 s{areg}, s{areg}, {KN["up"]}'); A.i(f's_min_u32 s{areg}, s{areg}, {hi}'); A.i(f's_mov_b32 s{creg}, 0'); A.i(f's_branch {l2}')
    A.label(l1)
    A.i(f's_add_u32 s{creg}, s{creg}, 1'); A.i(f's_cmp_ge_u32 s{creg}, {KN["down"]}'); A.i(f's_cbranch_scc0 {l2}')
    A.i(f's_mov_b32 s{creg}, 0'); A.i(f's_sub_u32 s{areg}, s{areg}, 1'); A.i(f's_max_u32 s{areg}, s{areg}, {lo}')
    A.label(l2)

def db_wait(A, vaddr, vdata, off_sgpr, tag_sgpr, extra_sleep=0, areg=None):
    if not KN['db']: return
    l0, l1 = A.new('db'), A.new('db')
    A.i('s_cmp_eq_u32 s76, 0'); A.i(f's_cbranch_scc1 {l1}')
    A.i('s_mov_b32 s22, 0')
    A.label(l0)
    A.i(f'buffer_load_dword v{vdata}, v{vaddr}, s[8:11], s{off_sgpr} offen sc1')
    A.i('s_add_u32 s22, s22, 1'); A.i('s_cmp_gt_u32 s22, 256'); A.i(f's_cbranch_scc1 {l1}')
    A.i('s_waitcnt vmcnt(0)')
    A.i(f'v_cmp_gt_u32 vcc, s{tag_sgpr}, v{vdata}')
    A.i(f's_cbranch_vccnz {l0}')
    if areg is None: sleep(A, extra_sleep)
    else:
        l2 = A.new('db')
        A.i(f's_mov_b32 s86, s{areg}')
        A.label(l2)
        A.i('s_sleep 1'); A.i('s_sub_u32 s86, s86, 1'); A.i('s_cmp_gt_i32 s86, 0'); A.i(f's_cbranch_scc1 {l2}')
    A.label(l1)

def db_ring(A, vtmp, off_sgpr, tag_sgpr):
    if not KN['db']: return
    A.i('s_mov_b64 exec, 1'); A.i(f'v_mov_b32 v{vtmp}, s{tag_sgpr}')
    A.i(f'buffer_store_dword v{vtmp}, off, s[8:11], s{off_sgpr}')
    A.i('s_mov_b64 exec, -1')

def read_parity(A, v):
    lab = A.new('par')
    A.i(f's_mov_b32 s23, {FL_CAL}'); A.i(f'v_mov_b32 v{v}, 0'); A.i('s_mov_b32 s22, 0')
    A.label(lab)
    A.i(f'buffer_load_dwordx4 v[{v+2}:{v+5}], v{v}, s[8:11], s23 offen sc1')
    A.i('s_add_u32 s22, s22, 1'); A.i(f's_cmp_gt_u32 s22, {SPIN_MAX}'); A.i('s_cbranch_scc1 R_fail')
    A.i('s_waitcnt vmcnt(0)')
    A.i(f'v_and_b32 v{v+1}, v{v+2}, v{v+3}'); A.i(f'v_and_b32 v{v+1}, v{v+1}, v{v+4}'); A.i('s_nop 0')
    A.i(f'v_readfirstlane_b32 s79, v{v+1}'); A.i(f'v_readfirstlane_b32 s44, v{v+2}'); A.i(f'v_readfirstlane_b32 s45, v{v+3}'); A.i(f'v_readfirstlane_b32 s46, v{v+4}')
    A.i('s_nop 3'); A.i('s_bitcmp1_b32 s79, 16'); A.i(f's_cbranch_scc0 {lab}')
    A.i('s_and_b32 s44, s44, 8192'); A.i('s_and_b32 s45, s45, 8192'); A.i('s_and_b32 s46, s46, 8192')
    hand_base(A, 18)
    A.i(f's_add_u32 s19, s18, {HB_P}'); A.i('s_add_u32 s19, s19, s45')
    A.i('s_add_u32 s18, s18, s44')
    A.i('s_sub_u32 s33, s46, s45')

def probe_parity(A):
    lab = A.new('cal')
    A.i('s_cmp_eq_u32 s3, 0'); A.i(f's_cbranch_scc0 {lab}')
    A.i('s_cmp_lt_u32 s16, 3'); A.i(f's_cbranch_scc0 {lab}')
    hand_base(A, 24)
    A.i('s_lshl_b32 s25, s16, 21'); A.i('s_add_u32 s24, s24, s25'); A.i(f's_add_u32 s24, s24, {65536 + 49152 + 4096}')
    A.i('s_mov_b64 exec, 1')
    A.i('v_mov_b32 v2, 0'); A.i('v_mov_b32 v3, 8192')
    A.i('s_mov_b32 s40, -1'); A.i('s_mov_b32 s41, -1')
    for rep in range(5):
        for par in range(2):
            A.i('v_mov_b32 v4, 0')
            A.i('s_memtime s[42:43]'); A.i('s_waitcnt lgkmcnt(0)')
            A.i(f'buffer_atomic_add v4, v{2+par}, s[8:11], s24 offen sc0')
            A.i('s_waitcnt vmcnt(0)')
            A.i('s_memtime s[48:49]'); A.i('s_waitcnt lgkmcnt(0)')
            A.i('s_sub_u32 s48, s48, s42')
            if rep > 0: A.i(f's_min_u32 s{40+par}, s{40+par}, s48')
    A.i('s_cmp_lt_u32 s41, s40'); A.i('s_cselect_b32 s46, 8192, 0'); A.i('s_or_b32 s46, s46, 0x10000')
    A.i('v_mov_b32 v4, s46'); A.i('s_lshl_b32 s25, s16, 2'); A.i('v_mov_b32 v5, s25')
    A.i(f's_mov_b32 s26, {FL_CAL}')
    A.i('buffer_store_dword v4, v5, s[8:11], s26 offen sc1')
    A.i('s_waitcnt vmcnt(0)')
    A.i('s_mov_b64 exec, -1')
    A.label(lab)

def advance(A):
    A.i(f's_add_u32 s18, s18, {MEM_STRIDE}'); A.i(f's_add_u32 s19, s19, {P_STRIDE}')
    A.i('s_add_u32 s17, s17, 1')
    A.i('s_cmp_eq_u32 s17, 32'); A.i('s_cselect_b32 s23, s33, 0'); A.i('s_add_u32 s19, s19, s23')
def sleep(A, n):
    while n > 0:
        k = min(n, 100); A.i(f's_sleep {k}'); n -= k
def stamp(A, acc):
    if KN['log']:
        A.i(('s_memtime' if KN.get('clk') else 's_memrealtime') + ' s[34:35]'); A.i('s_waitcnt lgkmcnt(0)')
        A.i('s_sub_u32 s67, s34, s66'); A.i(f's_add_u32 s{acc}, s{acc}, s67'); A.i('s_mov_b32 s66, s34')
def ev(A, k, v):
    if KN.get('ev'):
        A.i('s_memrealtime s[34:35]'); A.i('s_waitcnt lgkmcnt(0)')
        A.i(f'v_mov_b32 v{v}, s34')
        A.i('s_lshl_b32 s67, s17, 5'); A.i('s_add_u32 s67, s67, s81')
        A.i(f'buffer_store_dword v{v}, off, s[8:11], s67 offset:{4*k}')

def xlane_reduce(A, op, x, t):
    A.i(f'v_mov_b32 v{t}, v{x}')
    A.i('s_nop 1')
    A.i(f'v_permlane16_swap_b32 v{x}, v{t}')
    A.i(f'{op} v{x}, v{x}, v{t}')
    A.i(f'v_mov_b32 v{t}, v{x}')
    A.i('s_nop 1')
    A.i(f'v_permlane32_swap_b32 v{x}, v{t}')
    A.i(f'{op} v{x}, v{x}, v{t}')
def s_wloc(tt, kk):
    lds = {(0,2):0,(1,4):1,(0,6):2,(1,8):3}
    key = (tt & 1, kk)
    if key in lds: return ('l', (tt >> 1)*4 + lds[key])
    idx = 0
    for t in range(6):
        for k in range(10):
            if (t & 1, k) in lds: continue
            if (t, k) == (tt, kk):
                return ('a', idx*8) if idx < 32 else ('v', 128 + (idx-32)*8)
            idx += 1
def gen_S(A, nsteps):
    vL16, vG, vLm0, vLm2, vAr, vWr, vXw, vB, vXk, vKt, vPu, vP0, vIdx = 1, 2, 5, 6, 7, 8, 9, 10, 11, 12, 13, 14, 15
    RA, RST, RACC, RAIN, RD3, RSC, RSEL, RCI = 16, 56, 72, 96, 100, 104, 116, 120
    T0, T1, T2, VNINF = 124, 125, 126, 127
    A.label('S_role')
    A.c('---- score role setup; s3 = head')
    A.c('weights of this head: row-major tiles -> sparse-MFMA dense operands')
    WD, WA, WT = 2, 112, 16
    A.i(f's_load_dwordx2 s[6:7], s[0:1], {KA["wq"]}'); A.i(f's_load_dwordx2 s[40:41], s[0:1], {KA["wk"]}')
    A.i('v_and_b32 v22, 63, v0')
    for j in range(6):
        A.i(f's_mul_i32 s23, s16, 384'); A.i(f's_add_u32 s23, s23, {64*j}')
        A.i('v_add_u32 v23, s23, v22')
        A.i('v_mul_u32_u24 v24, 2731, v23'); A.i('v_lshrrev_b32 v24, 16, v24')
        A.i('v_mul_u32_u24 v25, 24, v24'); A.i('v_sub_u32 v25, v23, v25')
        A.i('v_lshrrev_b32 v26, 1, v24'); A.i('v_and_b32 v26, 1, v26'); A.i('v_lshlrev_b32 v26, 2, v26')
        A.i('v_xor_b32 v25, v25, v26'); A.i('v_lshlrev_b32 v25, 4, v25')
        A.i('v_mul_u32_u24 v24, 12288, v24'); A.i(f'v_add_u32 v{WD+j}, v24, v25')
    A.i('v_lshrrev_b32 v23, 4, v22'); A.i('v_and_b32 v24, 15, v22')
    A.i('v_lshrrev_b32 v25, 1, v23'); A.i('v_lshlrev_b32 v25, 4, v25'); A.i('v_and_b32 v26, 1, v23'); A.i('v_lshlrev_b32 v26, 2, v26'); A.i('v_add_u32 v25, v25, v26')
    A.i('v_lshrrev_b32 v26, 2, v24')
    A.i('v_and_b32 v27, 1, v26'); A.i('v_lshrrev_b32 v26, 1, v26'); A.i('v_lshlrev_b32 v26, 3, v26'); A.i('v_add3_u32 v25, v25, v26, v27')
    A.i('v_and_b32 v24, 3, v24'); A.i('v_lshlrev_b32 v24, 2, v24'); A.i('s_mul_i32 s23, s16, 48'); A.i('v_add_u32 v24, s23, v24')
    for p in range(3):
        for hb in range(2):
            for jj in range(2):
                A.i(f'v_add_u32 v28, {32*hb + 2*jj}, v25'); A.i(f'v_add_u32 v29, {16*p}, v24')
                A.i('v_lshrrev_b32 v30, 1, v28'); A.i('v_and_b32 v30, 1, v30'); A.i('v_lshrrev_b32 v31, 5, v29'); A.i('v_xor_b32 v30, v30, v31'); A.i('v_lshlrev_b32 v30, 6, v30')
                A.i('v_and_b32 v29, 31, v29'); A.i('v_lshlrev_b32 v29, 1, v29'); A.i('v_mul_u32_u24 v28, 384, v28'); A.i(f'v_add3_u32 v{WA+4*p+2*hb+jj}, v28, v29, v30')
    A.i('s_waitcnt lgkmcnt(0)')
    srd(A, 28, 6, 640*12288); srd(A, 44, 40, 640*12288)
    A.i('s_mul_i32 s42, s3, 384'); A.i('s_mov_b32 s43, s42'); A.i('s_mul_i32 s52, s16, 6144')
    tiles = [(kk, mt) for kk in range(10) for mt in range(2)]
    NB = 6
    def tile_dma(i):
        kk, mt = tiles[i]
        for j in range(6):
            A.i(f's_add_u32 m0, s52, {(i % NB)*24576 + j*1024}'); A.i('s_nop 0')
            A.i(f'buffer_load_dwordx4 v{WD+j}, s[{44 if mt else 28}:{47 if mt else 31}], s{43 if mt else 42} offen lds')
        A.i(f's_add_u32 s{43 if mt else 42}, s{43 if mt else 42}, {64*12288}')
    for i in range(NB-1): tile_dma(i)
    for i, (kk, mt) in enumerate(tiles):
        A.i(f's_waitcnt vmcnt({6*min(NB-2, 19-i)})'); A.i('s_barrier')
        if i + NB-1 < 20: tile_dma(i + NB-1)
        buf = (i % NB)*24576
        for p in range(3):
            kind, r = s_wloc(2*p+mt, kk)
            for hb in range(2):
                for jj in range(2):
                    if kind == 'l': dst = f'v[{WT + r*8 + 4*hb + 2*jj}:{WT + r*8 + 4*hb + 2*jj + 1}]'
                    else: dst = f'{kind}[{r + 4*hb + 2*jj}:{r + 4*hb + 2*jj + 1}]'
                    base = WA + 4*p + 2*hb + jj
                    if buf < 65536: A.i(f'ds_read_b64_tr_b16 {dst}, v{base} offset:{buf}')
                    else:
                        A.i(f'v_add_u32 v1, {buf}, v{base}'); A.i(f'ds_read_b64_tr_b16 {dst}, v1')
        A.i('s_waitcnt lgkmcnt(0)')
    A.i('s_barrier')
    A.i('v_and_b32 v1, 63, v0'); A.i('v_lshlrev_b32 v1, 4, v1'); A.i('s_mul_i32 s23, s16, 24576'); A.i('v_add_u32 v1, s23, v1')
    for slot in range(12):
        for hb in range(2):
            A.i(f'ds_write_b128 v1, {vr(WT + slot*8 + 4*hb)} offset:{S_WRES + slot*2048 + hb*1024}')
        if slot % 4 == 3: A.i('s_waitcnt lgkmcnt(0)')
    A.i('s_barrier')
    A.i('v_and_b32 v16, 63, v0')
    A.i(f'v_lshlrev_b32 v{vL16}, 4, v16')
    setup_gather_addrs(A, vG, vLm0, vLm2, S_MEM, 17)
    A.i(f'v_add_u32 v{vAr}, {S_MEM}, v{vL16}')
    A.i(f's_mul_i32 s23, s16, 24576')
    A.i(f'v_add_u32 v{vWr}, s23, v{vL16}')
    A.i('v_and_b32 v17, 15, v16'); A.i('v_lshrrev_b32 v18, 4, v16'); A.i('v_and_b32 v19, 7, v16')
    A.i('s_mul_i32 s23, s16, 3')
    A.i('s_lshr_b32 s24, s23, 1'); A.i('s_lshl_b32 s24, s24, 10'); A.i('s_and_b32 s25, s23, 1'); A.i('s_lshl_b32 s25, s25, 3')
    A.i('s_add_u32 s24, s24, s25'); A.i(f's_add_u32 s24, s24, {S_X}')
    A.i(f'v_add_u32 v{vXw}, s24, v{vL16}')
    A.i('s_and_b32 s25, s16, 1')
    A.i('s_cmp_eq_u32 s25, 0')
    A.i('s_cselect_b32 s40, 8, 1016')
    A.i('s_mov_b32 s41, 1024')
    A.i(f'v_lshlrev_b32 v20, 4, v18'); A.i('v_add_u32 v20, v20, v19')
    A.i(f'v_lshlrev_b32 v20, 4, v20')
    A.i(f'v_add_u32 v{vXk}, {S_X+128}, v20')
    A.i(f'v_add_u32 v{vB}, {S_X}, v20')
    A.i('s_cmp_eq_u32 s16, 0')
    lab = A.new('S_notq')
    A.i(f's_cbranch_scc1 {lab}')
    A.i('s_sub_u32 s23, s16, 2'); A.i('s_mul_i32 s23, s23, 6144'); A.i(f's_add_u32 s23, s23, {S_KQ+12288}')
    A.i(f'v_add_u32 v{vB}, s23, v{vL16}')
    A.label(lab)
    A.i(f'v_add_u32 v{vKt}, {S_KQ}, v{vL16}')
    A.i('s_mov_b32 s36, 24576')
    A.i('v_and_b32 v20, 8, v16'); A.i('v_cmp_eq_u32 vcc, 0, v20')
    A.i(f'v_mov_b32 v{vIdx}, 0xeeee'); A.i('v_mov_b32 v21, 0x4444'); A.i('s_nop 0')
    A.i(f'v_cndmask_b32 v{vIdx}, v{vIdx}, v21, vcc')
    A.i('v_lshlrev_b32 v20, 2, v18'); A.i('v_and_b32 v20, 7, v20')
    A.i('v_sub_u32 v21, v17, v20')
    A.i('v_subrev_u32 v22, 8, v21')
    ONE = 0x3f80
    for r in range(4):
        src = 21 if r < 2 else 22
        e0 = (r & 1)*2
        A.i(f'v_cmp_eq_u32 vcc, {e0}, v{src}'); A.i('v_mov_b32 v23, 0'); A.i(f'v_mov_b32 v24, {ONE:#x}')
        A.i('v_cndmask_b32 v25, v23, v24, vcc')
        A.i(f'v_cmp_eq_u32 vcc, {e0+1}, v{src}'); A.i(f'v_mov_b32 v24, {ONE<<16:#x}'); A.i('s_nop 0')
        A.i('v_cndmask_b32 v26, v23, v24, vcc')
        A.i(f'v_or_b32 v{RSEL+r}, v25, v26')
    A.i(f'v_mov_b32 v{VNINF}, 0xff800000')
    A.i('v_cmp_gt_u32 vcc, 32, v16'); A.i('s_nop 3'); A.i('s_mov_b64 s[42:43], vcc')
    A.i('v_and_b32 v20, 8, v16'); A.i('v_cmp_eq_u32 vcc, 0, v20'); A.i('s_nop 3'); A.i('s_and_b64 s[44:45], vcc, s[42:43]')
    A.i('s_cmp_eq_u32 s16, 0'); A.i('s_cselect_b64 s[42:43], s[44:45], s[42:43]')
    A.i('v_mov_b32 v23, 0'); A.i('s_nop 1')
    for r in range(4): A.i(f'v_cndmask_b32 v{RCI+r}, v{VNINF}, v23, s[42:43]')
    A.i('s_mov_b32 s26, 0xff00ff00'); A.i('s_mov_b32 s27, 0xff00ff00')
    A.i('v_lshlrev_b32 v20, 2, v18')
    for r in range(4):
        A.i(f'v_add_u32 v21, {r}, v20'); A.i('v_cmp_le_u32 vcc, v21, v17'); A.i('s_nop 3'); A.i('s_mov_b64 s[44:45], vcc')
        A.i('s_cmp_eq_u32 s16, 2')
        A.i(f's_cselect_b64 s[{48+2*r}:{49+2*r}], s[44:45], -1')
        A.i(f's_cselect_b64 s[{56+2*r}:{57+2*r}], 0, s[44:45]')
    A.i('s_mul_i32 s23, s3, 640')
    A.i('v_lshrrev_b32 v20, 3, v16'); A.i('v_and_b32 v20, 1, v20'); A.i('v_lshlrev_b32 v20, 1, v20')
    A.i('v_lshrrev_b32 v21, 1, v18'); A.i('v_add3_u32 v20, v20, v21, 1')
    A.i('v_lshlrev_b32 v20, 7, v20'); A.i('v_lshlrev_b32 v21, 4, v19'); A.i('v_add_u32 v20, v20, v21')
    A.i('v_and_b32 v21, 1, v18'); A.i('v_lshlrev_b32 v21, 3, v21')
    A.i(f'v_add3_u32 v{vPu}, v20, v21, s23')
    remap(A, vPu, 22)
    A.i('v_lshlrev_b32 v20, 4, v19'); A.i('v_lshlrev_b32 v21, 3, v18'); A.i(f'v_add3_u32 v{vP0}, v20, v21, s23')
    remap(A, vP0, 22)
    A.i('v_cmp_gt_u32 vcc, 32, v16'); A.i('s_nop 3'); A.i('s_mov_b64 s[44:45], vcc')
    A.i('v_and_b32 v20, 8, v16'); A.i('v_cmp_eq_u32 vcc, 0, v20'); A.i('s_nop 3'); A.i('s_and_b64 s[44:45], vcc, s[44:45]')
    A.i('v_mov_b32 v22, 0x80000000'); A.i('s_nop 0')
    A.i(f'v_cndmask_b32 v{vP0}, v22, v{vP0}, s[44:45]')
    lab = A.new('S_tokoff')
    A.i('s_cmp_lt_u32 s16, 2'); A.i(f's_cbranch_scc1 {lab}')
    A.i('s_sub_u32 s23, s16, 2'); A.i('s_lshl_b32 s23, s23, 4')
    A.i('v_add_u32 v20, s23, v17')
    A.i('v_lshrrev_b32 v21, 1, v18'); A.i('v_lshlrev_b32 v21, 5, v21'); A.i('v_add_u32 v21, v21, v20'); A.i('v_lshlrev_b32 v21, 4, v21')
    A.i('v_and_b32 v22, 1, v18'); A.i('v_lshlrev_b32 v22, 3, v22')
    A.i(f'v_add_u32 v{vPu}, v21, v22')
    A.i('v_lshlrev_b32 v21, 4, v20'); A.i('v_lshlrev_b32 v22, 3, v18'); A.i('v_add_u32 v21, v21, v22')
    A.i(f'v_add_u32 v{vP0}, 2048, v21')
    A.i('v_cmp_gt_u32 vcc, 32, v16'); A.i('v_mov_b32 v22, 0x80000000'); A.i('s_nop 0')
    A.i(f'v_cndmask_b32 v{vP0}, v22, v{vP0}, vcc')
    A.label(lab)
    ts_stamp(A, 7, 16)
    A.i(f's_mul_i32 s20, s3, 12288'); A.i(f's_add_u32 s21, s20, {WS_QT}'); A.i(f's_add_u32 s20, s20, {WS_KT}')
    A.i(f's_mul_i32 s37, s3, 2560'); A.i(f's_add_u32 s37, s37, {WS_PTOK}')
    A.i(f's_mov_b32 s38, {S_KQ}')
    def kq_dma():
        for which, so in ((0, 's20'), (1, 's21')):
            for blk in range(3):
                A.i(f's_add_u32 m0, s38, {which*12288 + blk*4096}')
                A.i(f's_add_u32 s23, {so}, {blk*4096}')
                for q in range(4):
                    A.i(f'buffer_load_dwordx4 v{vL16}, s[8:11], s23 offen offset:{q*1024} sc1 lds')
    A.i(f's_lshl_b32 s65, s3, 7'); A.i(f's_add_u32 s65, s65, {FL_KQ}')
    lab = A.new('S_nodma0')
    A.i('s_cmp_eq_u32 s16, 1'); A.i(f's_cbranch_scc0 {lab}')
    if KN['flags']: poll_flag(A, 65, 1, T0, backoff=4)
    kq_dma()
    A.label(lab)
    A.i(f's_add_u32 s20, s20, {32*12288}'); A.i(f's_add_u32 s21, s21, {32*12288}')
    A.i(f's_add_u32 s38, s38, s36')
    for r in range(24): A.i(f'v_mov_b32 v{RACC+r}, 0')
    A.i(f's_mov_b32 s24, {fbits(DH**-0.5*LOG2E):#x}')
    A.i('s_waitcnt vmcnt(0)')
    A.i('s_barrier')
    A.i('s_lshr_b32 s77, s3, 3'); A.i('s_lshl_b32 s77, s77, 8'); A.i(f's_add_u32 s77, s77, {FL_DB}')
    A.i('s_add_u32 s78, s77, 128')
    A.i('s_and_b32 s23, s3, 7'); A.i('s_lshl_b32 s23, s23, 2'); A.i('s_add_u32 s77, s77, s23')
    A.i('v_and_b32 v0, 63, v0'); A.i('v_min_u32 v0, 19, v0'); A.i('v_lshlrev_b32 v0, 2, v0')
    A.i('s_mov_b32 s25, s24')
    A.i(f's_mov_b32 s82, {WS_FLAGS + 0x16e00}')
    A.i('s_lshl_b32 s83, s3, 2'); A.i(f's_add_u32 s83, s83, {FL_PT}')
    placement_ok(A, RA)
    A.i(f's_mov_b32 s87, {KN["dbS"]}'); A.i('s_mov_b32 s88, 0')
    read_parity(A, RA)
    if KN['log']: A.i(('s_memtime' if KN.get('clk') else 's_memrealtime') + ' s[34:35]'); A.i('s_waitcnt lgkmcnt(0)'); A.i('s_mov_b32 s66, s34')
    A.label('S_loop')
    db_wait(A, 0, RA+14, 78, 17, KN['dbS'], 87 if KN['adapt'] else None)
    ev(A, 0, T2)
    sleep(A, KN['preS'])
    gather_mem(A, 'S_poll', 'R_fail', vG, vLm0, vLm2, RA)
    if KN['adapt']: A.i('s_mov_b32 s94, s22')
    if KN['log']: A.i('s_add_u32 s72, s72, s22')
    stamp(A, 68)
    ev(A, 1, T2)
    lg = LG(A)
    Areg = lambda kk: RA + 4*kk
    for kk in range(10):
        lg.issue(f'ds_read_b128 {vr(Areg(kk))}, v{vAr} offset:{kk*1024}', f'A{kk}')
    def wread(slot, half):
        st = RST + 8*(slot & 1) + 4*half
        lg.issue(f'ds_read_b128 {vr(st)}, v{vWr} offset:{slot*2048 + half*1024}', f'W{slot}' if half else f'W{slot}a')
    wread(0, 0); wread(0, 1)
    ktreg = lambda j: Areg(j) if j < 10 else RST + 4*(j-10)
    def kt_issue(j):
        T, kq = j & 1, j >> 1
        lg.issue(f'ds_read_b128 {vr(ktreg(j))}, v{vKt} offset:{(T*6+kq)*1024}', f'K{j}')
    def T_cvt1(p, r):
        src = RACC + 8*p + (0 if r < 2 else 4) + 2*(r & 1)
        A.need(f'acc{p}', 8)
        A.i(f'v_cvt_pk_bf16_f32 v{RAIN+r}, v{src}, v{src+1}'); A.mark('ain')
    def T_mfma(p):
        A.need('ain', 2)
        A.i(f'v_mfma_f32_16x16x32_bf16 {vr(RD3)}, {vr(RAIN)}, {vr(RSEL)}, 0'); A.mark('d3')
    def T_cvt2(p, h):
        A.need('d3', 8)
        A.i(f'v_cvt_pk_bf16_f32 v{T0+h}, v{RD3+2*h}, v{RD3+2*h+1}')
    def T_addr(p): A.i(f'v_add_u32 v{T2}, s{39+p}, v{vXw}')
    def T_write(p):
        lg.issue(f'ds_write_b64 v{vXw if p == 0 else T2}, v[{T0}:{T0+1}]', f'X{p}')
    def extras(p):
        ex = {}
        def put(pos, f):
            while pos in ex: pos += 1
            ex[pos] = f
        b = 4*p
        put(0, lambda: wread(b+1, 0)); put(1, lambda: wread(b+1, 1))
        put(5, lambda: wread(b+2, 0)); put(6, lambda: wread(b+2, 1))
        put(10, lambda: wread(b+3, 0)); put(13, lambda: wread(b+3, 1))
        if p < 2:
            put(14, lambda: wread(b+4, 0)); put(15, lambda: wread(b+4, 1))
        if p > 0:
            q = p-1
            put(4, lambda: T_cvt1(q, 0)); put(7, lambda: T_cvt1(q, 1)); put(8, lambda: T_cvt1(q, 2)); put(9, lambda: T_cvt1(q, 3))
            put(12, lambda: T_mfma(q))
            if q > 0: put(2, lambda: T_addr(q))
            put(17, lambda: T_cvt2(q, 0)); put(18, lambda: T_cvt2(q, 1))
        return ex
    for p in range(3):
        ex = extras(p)
        for pos in range(20):
            kk, isk = pos >> 1, pos & 1
            tt = 2*p + isk
            kind, r = s_wloc(tt, kk)
            if p == 0 and isk == 0 and kk in (0, 2, 5): lg.wait(f'A{ {0:1, 2:4, 5:9}[kk] }')
            if p == 2 and pos == 0: T_write(0)
            if kind == 'l':
                lg.wait(f'W{r}')
                breg = vr(RST + 8*(r & 1), 8)
            else:
                breg = (ar if kind == 'a' else vr)(r, 8)
            A.i(f'v_smfmac_f32_16x16x64_bf16 {vr(RACC+4*tt)}, {vr(Areg(kk))}, {breg}, v{vIdx}')
            if pos == 19: A.mark(f'acc{p}')
            if pos in ex: ex[pos]()
            if p == 2:
                if pos >= 2 and pos % 2 == 0: kt_issue(pos//2 - 1)
                if pos == 15: kt_issue(10)
                if pos == 17: kt_issue(11)
    T_write(1)
    kt_issue(9)
    for r in range(4): T_cvt1(2, r)
    T_addr(2)
    T_mfma(2)
    T_cvt2(2, 0); T_cvt2(2, 1)
    T_write(2)
    lg.wait_all()
    A.i('s_barrier')
    stamp(A, 69)
    ev(A, 2, T2)
    D0, D1, D2 = RSC, RSC+4, RSC+8
    xb = lambda b: RACC + 8*b
    def scores():
        lg = LG(A)
        def x_issue(kq):
            b = kq % 3
            lg.issue(f'ds_read_b128 {vr(xb(b))}, v{vB} offset:{kq*1024}', f'B{kq}')
            lg.issue(f'ds_read_b128 {vr(xb(b)+4)}, v{vXk} offset:{kq*1024}', f'Xk{kq}')
        for kq in range(3): x_issue(kq)
        for kq in range(6):
            b = kq % 3
            lg.wait(f'B{kq}')
            c0 = vr(RCI) if kq == 0 else vr(D0)
            c1 = '0' if kq == 0 else vr(D1)
            c2 = '0' if kq == 0 else vr(D2)
            A.i(f'v_mfma_f32_16x16x32_bf16 {vr(D1)}, {vr(ktreg(2*kq))}, {vr(xb(b))}, {c1}')
            A.i(f'v_mfma_f32_16x16x32_bf16 {vr(D2)}, {vr(ktreg(2*kq+1))}, {vr(xb(b))}, {c2}')
            lg.wait(f'Xk{kq}')
            A.i(f'v_mfma_f32_16x16x32_bf16 {vr(D0)}, {vr(xb(b)+4)}, {vr(xb(b))}, {c0}')
            if kq < 3: x_issue(kq+3)
        A.mark('sc')
    A.i('s_cmp_eq_u32 s16, 0')
    A.i('s_cbranch_scc0 S_notw0')
    A.c('memory queries')
    scores()
    U = RACC
    ML, MG, TT, F, SM = RAIN, RAIN+1, RAIN+2, RAIN+3, RD3
    E = RACC+8
    A.need('sc', 8)
    for r in range(4): A.i(f'v_cndmask_b32 v{U+r}, v{D1+r}, v{D2+r}, s[26:27]')
    A.i(f'v_max3_f32 v{ML}, v{D0}, v{D0+1}, v{D0+2}')
    A.i(f'v_max3_f32 v{TT}, v{U}, v{U+1}, v{U+2}')
    A.i(f'v_max3_f32 v{ML}, v{ML}, v{D0+3}, v{U+3}')
    A.i(f'v_max_f32 v{ML}, v{ML}, v{TT}')
    A.i(f'v_mul_f32 v{ML}, s24, v{ML}')
    def pkfma(d, sreg): A.i(f'v_pk_fma_f32 v[{d}:{d+1}], v[{sreg}:{sreg+1}], s[24:25], v[{ML}:{ML+1}] op_sel_hi:[1,1,0] neg_lo:[0,0,1] neg_hi:[0,0,1]')
    pkfma(E, U); pkfma(E+2, U+2)
    A.i(f'v_max_f32_dpp v{MG}, v{ML}, v{ML} row_ror:8 row_mask:0xf bank_mask:0xf')
    A.i(f'v_mov_b32 v{TT}, v{MG}')
    pkfma(E+4, D0); pkfma(E+6, D0+2)
    A.i(f'v_permlane16_swap_b32 v{MG}, v{TT}')
    A.i(f'v_exp_f32 v{E}, v{E}')
    A.i(f'v_max_f32 v{MG}, v{MG}, v{TT}')
    A.i(f'v_exp_f32 v{E+1}, v{E+1}')
    A.i(f'v_mov_b32 v{TT}, v{MG}')
    A.i(f'v_exp_f32 v{E+2}, v{E+2}'); A.i(f'v_exp_f32 v{E+3}, v{E+3}')
    A.i(f'v_permlane32_swap_b32 v{MG}, v{TT}')
    A.i(f'v_exp_f32 v{E+4}, v{E+4}')
    A.i(f'v_max_f32 v{MG}, v{MG}, v{TT}')
    A.i(f'v_exp_f32 v{E+5}, v{E+5}')
    A.i(f'v_sub_f32 v{F}, v{ML}, v{MG}')
    A.i(f'v_exp_f32 v{E+6}, v{E+6}'); A.i(f'v_exp_f32 v{E+7}, v{E+7}')
    A.i(f'v_exp_f32 v{F}, v{F}')
    A.i(f'v_pk_add_f32 v[{SM}:{SM+1}], v[{E}:{E+1}], v[{E+2}:{E+3}]')
    A.i(f'v_pk_add_f32 v[{SM+2}:{SM+3}], v[{E+4}:{E+5}], v[{E+6}:{E+7}]')
    A.i(f'v_pk_add_f32 v[{SM}:{SM+1}], v[{SM}:{SM+1}], v[{SM+2}:{SM+3}]')
    A.i(f'v_add_f32 v{SM}, v{SM}, v{SM+1}')
    A.i(f'v_mul_f32 v{SM}, v{SM}, v{F}')
    A.i('s_nop 1')
    A.i(f'v_add_f32_dpp v{SM}, v{SM}, v{SM} row_ror:8 row_mask:0xf bank_mask:0xf')
    xlane_reduce(A, 'v_add_f32', SM, TT)
    A.i(f'v_rcp_f32 v{SM}, v{SM}')
    A.i('s_nop 0')
    A.i(f'v_mul_f32 v{F}, v{F}, v{SM}')
    for j in range(0, 4, 2): A.i(f'v_pk_mul_f32 v[{E+j}:{E+j+1}], v[{E+j}:{E+j+1}], v[{F-1}:{F}] op_sel:[0,1] op_sel_hi:[1,1]')
    A.i(f'v_cvt_pk_bf16_f32 v{U}, v{E}, v{E+1}'); A.i(f'v_cvt_pk_bf16_f32 v{U+1}, v{E+2}, v{E+3}')
    A.i(f'buffer_store_dwordx2 v[{U}:{U+1}], v{vPu}, s[8:11], s19 offen sc1')
    for j in range(4, 8, 2): A.i(f'v_pk_mul_f32 v[{E+j}:{E+j+1}], v[{E+j}:{E+j+1}], v[{F-1}:{F}] op_sel:[0,1] op_sel_hi:[1,1]')
    A.i(f'v_cvt_pk_bf16_f32 v{U+2}, v{E+4}, v{E+5}'); A.i(f'v_cvt_pk_bf16_f32 v{U+3}, v{E+6}, v{E+7}')
    A.i(f'buffer_store_dwordx2 v[{U+2}:{U+3}], v{vP0}, s[8:11], s19 offen sc1')
    if KN['late']:
        A.i('s_add_u32 s79, s17, 1'); db_ring(A, T0, 77, 79)
    A.i('s_branch S_end')
    A.label('S_notw0')
    A.i('s_cmp_eq_u32 s16, 1')
    A.i('s_cbranch_scc1 S_wave1')
    if KN['post']:
        lab = A.new('S_nopt')
        A.i('s_cmp_eq_u32 s16, 3'); A.i(f's_cbranch_scc0 {lab}')
        A.i('s_mov_b64 exec, 1')
        A.i(f'buffer_store_dword v{vIdx}, off, s[8:11], s82 sc1')
        A.i('s_mov_b64 exec, -1')
        A.i('s_mov_b32 s82, s83'); A.i('s_add_u32 s83, s83, 128')
        A.label(lab)
    scores()
    MX, SM = RAIN, RAIN+2
    TT = RAIN+1
    A.i('s_nop 7')
    for r in range(4):
        A.i(f'v_cndmask_b32 v{D1+r}, v{VNINF}, v{D1+r}, s[{48+2*r}:{49+2*r}]')
        A.i(f'v_cndmask_b32 v{D2+r}, v{VNINF}, v{D2+r}, s[{56+2*r}:{57+2*r}]')
    A.i(f'v_max3_f32 v{MX}, v{D0}, v{D0+1}, v{D0+2}')
    A.i(f'v_max3_f32 v{TT}, v{D1}, v{D1+1}, v{D1+2}')
    A.i(f'v_max3_f32 v{MX}, v{MX}, v{D0+3}, v{D1+3}')
    A.i(f'v_max3_f32 v{TT}, v{TT}, v{D2}, v{D2+1}')
    A.i(f'v_max3_f32 v{MX}, v{MX}, v{D2+2}, v{D2+3}')
    A.i(f'v_max_f32 v{MX}, v{MX}, v{TT}')
    xlane_reduce(A, 'v_max_f32', MX, TT)
    A.i(f'v_mul_f32 v{MX}, s24, v{MX}')
    E = RACC
    for j in range(12): A.i(f'v_fma_f32 v{E+j}, v{D0+j}, s24, -v{MX}')
    for j in range(12): A.i(f'v_exp_f32 v{E+j}, v{E+j}')
    A.i(f'v_add_f32 v{SM}, v{E}, v{E+1}')
    for j in range(2, 12): A.i(f'v_add_f32 v{SM}, v{SM}, v{E+j}')
    xlane_reduce(A, 'v_add_f32', SM, TT)
    A.i(f'v_rcp_f32 v{SM}, v{SM}')
    A.i('s_nop 0')
    for j in range(12): A.i(f'v_mul_f32 v{E+j}, v{E+j}, v{SM}')
    O = RACC+12
    for j in range(6): A.i(f'v_cvt_pk_bf16_f32 v{O+j}, v{E+2*j}, v{E+2*j+1}')
    A.i(f'buffer_store_dwordx2 v[{O}:{O+1}], v{vP0}, s[8:11], s37 offen sc1')
    A.i(f'buffer_store_dwordx2 v[{O+2}:{O+3}], v{vPu}, s[8:11], s37 offen sc1')
    A.i(f'buffer_store_dwordx2 v[{O+4}:{O+5}], v{vPu}, s[8:11], s37 offen offset:1024 sc1')
    A.i('s_branch S_end')
    A.label('S_wave1')
    sleep(A, KN['ring_at'])
    if not KN['late']:
        A.i('s_add_u32 s79, s17, 1')
        db_ring(A, T0, 77, 79)
    A.i(f's_cmp_ge_u32 s17, {nsteps-1}')
    A.i('s_cbranch_scc1 S_end')
    if KN['flags']:
        lab = A.new('S_noflag')
        A.i('s_add_u32 s23, s17, 1'); A.i('s_and_b32 s23, s23, 3'); A.i('s_cmp_eq_u32 s23, 0'); A.i(f's_cbranch_scc0 {lab}')
        A.i(f's_add_u32 s65, s65, {32*128}')
        poll_flag(A, 65, 1, T0)
        A.label(lab)
    kq_dma()
    A.label('S_end')
    stamp(A, 70)
    ev(A, 3, T2)
    if KN['adapt']:
        A.i('s_mov_b32 s22, s94'); adapt(A, 87, 88, KN['loS'], KN['hiS'])
    A.i('s_nop 1')
    for r in range(24): A.i(f'v_mov_b32 v{RACC+r}, 0')
    A.i(f'v_add_u32 v{vKt}, s36, v{vKt}')
    A.i('s_cmp_eq_u32 s16, 0'); A.i('s_cselect_b32 s23, 0, s36')
    A.i(f'v_add_u32 v{vB}, s23, v{vB}')
    A.i('s_sub_u32 s38, s38, s36')
    A.i('s_sub_u32 s36, 0, s36')
    A.i(f's_add_u32 s20, s20, {32*12288}'); A.i(f's_add_u32 s21, s21, {32*12288}')
    A.i(f's_add_u32 s37, s37, {32*2560}')
    advance(A)
    A.i(f's_cmp_lt_u32 s17, {nsteps}')
    A.i('s_cbranch_scc1 S_loop')
    if KN['post']:
        A.i('s_waitcnt vmcnt(0)'); A.i('s_barrier')
        A.i('s_cmp_eq_u32 s16, 1'); A.i('s_cbranch_scc0 R_done')
        A.i(f's_mov_b32 s79, {nsteps-1}'); signal(A, FL_PT, 7, 79, 3, T0)
    A.i('s_branch R_done')
def gen_C(A, nsteps):
    vL16, vG, vLm0, vLm2, vAr, vIdx, vPg, vRw, vRr1, vRr2, vPub = 1, 2, 5, 6, 7, 8, 9, 14, 15, 16, 17
    RA, RD, RVM, RVT, RP, RO, RT = 20, 60, 76, 80, 112, 132, 136
    wreg = lambda j: (ar, j*8) if j < 32 else (vr, 192 + (j-32)*8)
    A.label('C_role')
    A.c('---- column-owner role setup; s3-NS = column block')
    A.i(f's_sub_u32 s3, s3, {NS}')
    probe_parity(A)
    if KN['bmain']:
        import gemm
        gemm.set_ring(6)
        gemm.setup_lane(A)
        A.i('s_mov_b32 s85, s3')
        A.label('C_btask')
        A.i('s_and_b32 s41, s85, 31'); A.i('s_lshr_b32 s40, s85, 5')
        gemm.task_b(A, wv_srd=36, wo_srd=28, sc=' sc1')
        A.i('s_barrier')
        lab = A.new('C_bsig')
        A.i('s_cmp_eq_u32 s16, 0'); A.i(f's_cbranch_scc0 {lab}')
        A.i('s_mov_b64 exec, 1'); A.i('v_mov_b32 v22, 1'); A.i('v_mov_b32 v23, 0'); A.i(f's_mov_b32 s23, {FL_B}')
        A.i('buffer_atomic_add v22, v23, s[8:11], s23 offen'); A.i('s_mov_b64 exec, -1')
        A.label(lab)
        if TS['on']:
            l9 = A.new('tsb'); A.i('s_cmp_lt_u32 s85, 80'); A.i(f's_cbranch_scc0 {l9}'); ts_stamp(A, 1, 22); A.label(l9)
        A.i('s_add_u32 s85, s85, 80'); A.i('s_cmp_lt_u32 s85, 160'); A.i('s_cbranch_scc1 C_btask')
        gemm.set_ring(4)
        A.i(f's_mov_b32 s65, {FL_B}')
        poll_flag(A, 65, 160, RT, backoff=10)
        ts_stamp(A, 2, 22)
    A.i(f'v_and_b32 v{RT}, 63, v0')
    A.i(f'v_lshlrev_b32 v{vL16}, 4, v{RT}')
    setup_gather_addrs(A, vG, vLm0, vLm2, C_MEM, RT+1)
    A.i(f'v_add_u32 v{vAr}, {C_MEM}, v{vL16}')
    L, G, M, HF = RT, RT+1, RT+2, RT+3
    A.i(f'v_lshrrev_b32 v{G}, 4, v{L}'); A.i(f'v_and_b32 v{M}, 7, v{L}')
    A.i(f'v_lshrrev_b32 v{HF}, 3, v{L}'); A.i(f'v_and_b32 v{HF}, 1, v{HF}')
    A.i(f'v_cmp_eq_u32 vcc, 0, v{HF}')
    A.i(f'v_mov_b32 v{vIdx}, 0xeeee'); A.i(f'v_mov_b32 v{RT+4}, 0x4444'); A.i('s_nop 0')
    A.i(f'v_cndmask_b32 v{vIdx}, v{vIdx}, v{RT+4}, vcc')
    A.i('s_lshl_b32 s23, s16, 3')
    for u in range(4):
        A.i(f'v_add_u32 v{RT+4}, s23, v{HF}'); A.i(f'v_add_u32 v{RT+4}, {2*u}, v{RT+4}')
        A.i(f'v_mul_u32_u24 v{RT+4}, 640, v{RT+4}')
        A.i(f'v_add_u32 v{RT+5}, 1, v{G}'); A.i(f'v_lshlrev_b32 v{RT+5}, 7, v{RT+5}')
        A.i(f'v_lshlrev_b32 v{RT+6}, 4, v{M}')
        A.i(f'v_add3_u32 v{vPg+u}, v{RT+4}, v{RT+5}, v{RT+6}')
        remap(A, vPg+u, RT+4)
    A.i(f'v_lshlrev_b32 v{RT+4}, 2, v{HF}'); A.i(f'v_add3_u32 v{RT+4}, v{RT+4}, v{G}, s23')
    A.i(f'v_mul_u32_u24 v{RT+4}, 640, v{RT+4}'); A.i(f'v_lshlrev_b32 v{RT+6}, 4, v{M}')
    A.i(f'v_add_u32 v{vPg+4}, v{RT+4}, v{RT+6}')
    remap(A, vPg+4, RT+4)
    A.i('s_lshl_b32 s23, s16, 10'); A.i(f's_add_u32 s23, s23, {C_RED}')
    A.i(f'v_add_u32 v{vRw}, s23, v{vL16}')
    A.i(f'v_lshlrev_b32 v{RT+4}, 10, v{G}')
    A.i(f'v_lshlrev_b32 v{RT+5}, 4, v{HF}'); A.i(f'v_add_u32 v{RT+5}, v{RT+5}, v{M}'); A.i(f'v_lshlrev_b32 v{RT+5}, 4, v{RT+5}')
    A.i(f'v_add_u32 v{RT+4}, v{RT+4}, v{RT+5}')
    A.i(f'v_add_u32 v{vRr1}, {C_RED}, v{RT+4}')
    A.i(f'v_add_u32 v{vRr2}, {C_RED + (2*16+8)*16}, v{RT+4}')
    A.i('s_lshl_b32 s23, s3, 7')
    A.i(f'v_lshlrev_b32 v{RT+4}, 4, v{M}'); A.i(f'v_lshlrev_b32 v{RT+5}, 3, v{HF}'); A.i(f'v_add_u32 v{RT+4}, v{RT+4}, v{RT+5}')
    A.i(f'v_lshrrev_b32 v{RT+5}, 1, v{G}'); A.i(f'v_lshlrev_b32 v{RT+5}, 2, v{RT+5}')
    A.i(f'v_add3_u32 v{vPub}, v{RT+4}, v{RT+5}, s23')
    remap(A, vPub, RT+4)
    A.i(f'v_add_u32 v{vPub}, {MEM_STRIDE}, v{vPub}')
    A.i(f'v_and_b32 v{RT+4}, 1, v{G}'); A.i(f'v_cmp_eq_u32 vcc, 0, v{RT+4}')
    A.i(f'v_mov_b32 v{RT+5}, 0x80000000'); A.i('s_nop 0')
    A.i(f'v_cndmask_b32 v{vPub}, v{RT+5}, v{vPub}, vcc')
    A.i(f's_mul_i32 s23, s3, 327680'); A.i('s_mul_i32 s24, s16, 81920'); A.i('s_add_u32 s23, s23, s24'); A.i(f's_add_u32 s23, s23, {WS_BW}')
    for j in range(40):
        f, r = wreg(j)
        A.i(f'buffer_load_dwordx4 {f(r)}, v{vL16}, s[8:11], s23 offen sc1')
        A.i(f'buffer_load_dwordx4 {f(r+4)}, v{vL16}, s[8:11], s23 offen offset:1024 sc1')
        A.i('s_add_u32 s23, s23, 2048')
        if j % 8 == 7: A.i('s_waitcnt vmcnt(32)')
    A.i('s_waitcnt vmcnt(0)')
    ts_stamp(A, 8, RT)
    A.i('s_mul_i32 s20, s3, 16384'); A.i('s_lshl_b32 s23, s16, 12'); A.i('s_add_u32 s20, s20, s23'); A.i(f's_add_u32 s20, s20, {WS_VOT}')
    A.i('s_mul_i32 s21, s3, 4096'); A.i('s_lshl_b32 s23, s16, 10'); A.i('s_add_u32 s21, s21, s23'); A.i(f's_add_u32 s21, s21, {WS_VOM}')
    def vt_load(buf):
        for u in range(4):
            A.i(f'buffer_load_dwordx4 {vr(RVT+16*buf+4*u)}, v{vL16}, s[8:11], s20 offen offset:{u*1024} sc1')
        A.i(f's_add_u32 s20, s20, {80*16384}')
    A.i(f's_mov_b32 s65, {FL_VVO}')
    if KN['flags']: poll_flag(A, 65, 32, RT, backoff=4)
    vt_load(0)
    A.i('s_waitcnt vmcnt(0)')
    A.i('s_mul_i32 s77, s3, 3277'); A.i('s_lshr_b32 s77, s77, 16')
    A.i('s_mul_i32 s23, s77, 20'); A.i('s_sub_u32 s79, s3, s23')
    A.i('s_lshl_b32 s77, s77, 8'); A.i(f's_add_u32 s78, s77, {FL_DB}')
    A.i('s_add_u32 s80, s78, 128')
    A.i('s_lshl_b32 s79, s79, 2'); A.i('s_add_u32 s77, s80, s79')
    vDS, vDC = 18, 19
    A.i(f'v_and_b32 v{vDS}, 63, v0'); A.i(f'v_min_u32 v{vDC}, 19, v{vDS}'); A.i(f'v_lshlrev_b32 v{vDC}, 2, v{vDC}')
    A.i(f'v_min_u32 v{vDS}, 7, v{vDS}'); A.i(f'v_lshlrev_b32 v{vDS}, 2, v{vDS}')
    placement_ok(A, RT)
    A.i(f's_mov_b32 s87, {KN["dbC"]}'); A.i('s_mov_b32 s88, 0')
    read_parity(A, RT)
    if KN['log']: A.i(('s_memtime' if KN.get('clk') else 's_memrealtime') + ' s[34:35]'); A.i('s_waitcnt lgkmcnt(0)'); A.i('s_mov_b32 s66, s34')

    def body(buf, tagp):
        db_wait(A, vDC, RT, 80, 17, KN['dbCm'])
        ev(A, 0, RT+3)
        sleep(A, KN['dC0'])
        gather_mem(A, f'C_poll{tagp}', 'R_fail', vG, vLm0, vLm2, RP)
        if KN['log']: A.i('s_add_u32 s72, s72, s22')
        stamp(A, 68)
        ev(A, 1, RT+3)
        lg = LG(A)
        for kk in range(10):
            lg.issue(f'ds_read_b128 {vr(RA+4*kk)}, v{vAr} offset:{kk*1024}', f'A{kk}')
        lab = A.new('C_novt')
        A.i(f's_cmp_ge_u32 s17, {nsteps-1}'); A.i(f's_cbranch_scc1 {lab}')
        if KN['flags']:
            l2 = A.new('C_noflag')
            A.i('s_add_u32 s23, s17, 1'); A.i('s_and_b32 s23, s23, 3'); A.i('s_cmp_eq_u32 s23, 0'); A.i(f's_cbranch_scc0 {l2}')
            A.i('s_add_u32 s65, s65, 128')
            poll_flag(A, 65, 32, RT)
            A.label(l2)
        if KN.get('vtlat'): A.i('s_memrealtime s[86:87]'); A.i('s_waitcnt lgkmcnt(0)')
        vt_load(buf ^ 1)
        if KN.get('vtlat'):
            A.i('s_waitcnt vmcnt(0)'); A.i('s_memrealtime s[88:89]'); A.i('s_waitcnt lgkmcnt(0)'); A.i('s_sub_u32 s88, s88, s86')
            A.i('s_mov_b32 m0, s17'); A.i('s_nop 0'); A.i('v_writelane_b32 v151, s88, m0')
        A.label(lab)
        for r in range(16): A.i(f'v_mov_b32 v{RD+r}, 0')
        A.i('s_nop 1')
        for kk in range(10):
            lg.wait(f'A{kk}')
            for t in range(4):
                f, r = wreg(t*10 + kk)
                A.i(f'v_smfmac_f32_16x16x64_bf16 {vr(RD+4*t)}, {vr(RA+4*kk)}, {f(r,8)}, v{vIdx}')
        A.i('s_nop 7')
        for i in range(4):
            A.i(f'v_permlane32_swap_b32 v{RD+i}, v{RD+8+i}')
            A.i(f'v_permlane32_swap_b32 v{RD+4+i}, v{RD+12+i}')
        for i in range(4):
            A.i(f'v_add_f32 v{RD+i}, v{RD+i}, v{RD+8+i}')
            A.i(f'v_add_f32 v{RD+4+i}, v{RD+4+i}, v{RD+12+i}')
        A.i(f'v_cvt_pk_bf16_f32 v{RVM}, v{RD}, v{RD+1}'); A.i(f'v_cvt_pk_bf16_f32 v{RVM+1}, v{RD+2}, v{RD+3}')
        A.i(f'v_cvt_pk_bf16_f32 v{RVM+2}, v{RD+4}, v{RD+5}'); A.i(f'v_cvt_pk_bf16_f32 v{RVM+3}, v{RD+6}, v{RD+7}')
        A.i('s_nop 1')
        A.i(f'v_permlane16_swap_b32 v{RVM}, v{RVM+2}')
        A.i(f'v_permlane16_swap_b32 v{RVM+1}, v{RVM+3}')
        A.i(f's_cmp_ge_u32 s17, {nsteps-1}'); A.i('s_cbranch_scc1 C_last')
        stamp(A, 69)
        ev(A, 2, RT+3)
        A.i('s_add_u32 s79, s17, 1')
        db_wait(A, vDS, RT, 78, 79, KN['dbC'], 87 if KN['adapt'] else None)
        ev(A, 3, RT+3)
        sleep(A, KN['preC'])
        A.i('s_mov_b32 s22, 0')
        A.i(f'v_mov_b32 v{RT+2}, s79')
        lbl = f'C_pp{tagp}'
        A.label(lbl)
        for u in range(5):
            A.i(f'buffer_load_dwordx4 {vr(RP+4*u)}, v{vPg+u}, s[8:11], s19 offen {KN["gl"]}')
        A.i('s_add_u32 s22, s22, 1'); A.i(f's_cmp_gt_u32 s22, {SPIN_MAX}'); A.i('s_cbranch_scc1 R_fail')
        x, y = RT, RT+1
        for u in range(5):
            A.i(f's_waitcnt vmcnt({4-u})')
            a_op = vr(RVT+16*buf+4*u) if u < 4 else vr(RVM)
            cc = '0' if u == 0 else vr(RO)
            A.i(f'v_mfma_f32_16x16x32_bf16 {vr(RO)}, {a_op}, {vr(RP+4*u)}, {cc}')
            p = RP+4*u
            if u == 0:
                A.i(f'v_max3_u32 v{x}, v{p}, v{p+1}, v{p+2}'); A.i(f'v_mov_b32 v{y}, v{p+3}')
            else:
                A.i(f'v_max3_u32 v{x}, v{p}, v{p+1}, v{x}'); A.i(f'v_max3_u32 v{y}, v{p+2}, v{p+3}, v{y}')
        A.mark('ro')
        A.i(f'v_max_u32 v{x}, v{x}, v{y}')
        A.i(f'v_cmp_eq_u32 vcc, -1, v{x}')
        A.i(f's_cbranch_vccnz {lbl}')
        if KN['log']: A.i('s_add_u32 s73, s73, s22')
        stamp(A, 70)
        ev(A, 4, RT+3)
        A.need('ro', 8)
        A.i(f'ds_write_b128 v{vRw}, {vr(RO)}')
        lab = A.new('C_nopub'); lab2 = A.new('C_join')
        A.i('s_cmp_eq_u32 s16, 0'); A.i(f's_cbranch_scc0 {lab}')
        if KN['db'] and not KN['lateC']:
            A.i('s_mov_b64 exec, 1'); A.i(f'buffer_store_dword v{RT+2}, off, s[8:11], s77'); A.i('s_mov_b64 exec, -1')
        A.i('s_waitcnt lgkmcnt(0)')
        A.i('s_barrier')
        R1, R2 = RT+4, RT+8
        A.i(f'ds_read_b128 {vr(R1)}, v{vRr1}'); A.i(f'ds_read_b128 {vr(R2)}, v{vRr2}')
        A.i('s_waitcnt lgkmcnt(0)')
        A.i(f'v_pk_add_f32 v[{R1}:{R1+1}], v[{R1}:{R1+1}], v[{R2}:{R2+1}]'); A.i(f'v_pk_add_f32 v[{R1+2}:{R1+3}], v[{R1+2}:{R1+3}], v[{R2+2}:{R2+3}]')
        A.i('s_nop 1')
        A.i(f'v_permlane32_swap_b32 v{R1}, v{R1+2}')
        A.i(f'v_permlane32_swap_b32 v{R1+1}, v{R1+3}')
        A.i(f'v_pk_add_f32 v[{R1}:{R1+1}], v[{R1}:{R1+1}], v[{R1+2}:{R1+3}]')
        A.i(f'v_mov_b32 v{R2}, v{R1}'); A.i(f'v_mov_b32 v{R2+1}, v{R1+1}')
        A.i('s_nop 0')
        A.i(f'v_permlane16_swap_b32 v{R1}, v{R2}')
        A.i(f'v_permlane16_swap_b32 v{R1+1}, v{R2+1}')
        A.i(f'v_pk_add_f32 v[{R1}:{R1+1}], v[{R1}:{R1+1}], v[{R2}:{R2+1}]')
        A.i(f'v_cvt_pk_bf16_f32 v{R1}, v{R1}, v{R1+1}')
        A.i(f'buffer_store_dword v{R1}, v{vPub}, s[8:11], s18 offen sc1')
        if KN['db'] and KN['lateC']:
            A.i('s_mov_b64 exec, 1'); A.i(f'buffer_store_dword v{RT+2}, off, s[8:11], s77'); A.i('s_mov_b64 exec, -1')
        A.i(f's_branch {lab2}')
        A.label(lab)
        A.i('s_waitcnt lgkmcnt(0)')
        A.i('s_barrier')
        A.label(lab2)
        adapt(A, 87, 88, KN['loC'], KN['hiC'])
        A.i(f'buffer_store_dwordx4 {vr(RVM)}, v{vL16}, s[8:11], s21 offen sc1')
        A.i(f's_add_u32 s21, s21, {80*4096}')
        stamp(A, 71)
        ev(A, 5, RT+3)
        if KN['log'] or KN.get('lite'):
            if not KN['log']: A.i('s_memrealtime s[34:35]'); A.i('s_waitcnt lgkmcnt(0)')
            A.i('s_mov_b32 m0, s17'); A.i('s_nop 0'); A.i('v_writelane_b32 v150, s34, m0')
            if KN.get('lite'):
                A.i('v_writelane_b32 v151, s22, m0')
                A.i('s_memtime s[34:35]'); A.i('s_waitcnt lgkmcnt(0)'); A.i('v_writelane_b32 v152, s34, m0')
        advance(A)
    A.label('C_loop')
    body(0, 'a')
    body(1, 'b')
    A.i('s_branch C_loop')
    A.label('C_last')
    A.i('s_nop 1')
    A.i(f'buffer_store_dwordx4 {vr(RVM)}, v{vL16}, s[8:11], s21 offen sc1')
    if KN['post']:
        A.i('s_waitcnt vmcnt(0)'); A.i('s_barrier')
        A.i('s_cmp_eq_u32 s16, 1'); A.i('s_cbranch_scc0 R_done')
        signal(A, FL_VM, 9, 17, 3, RT)
    A.i('s_branch R_done')
def placement_ok(A, v):
    l0, l1 = A.new('pl'), A.new('pl')
    A.i('s_mov_b32 s76, 0'); A.i('s_mov_b32 s22, 0')
    A.i(f'v_mov_b32 v{v}, 0')
    A.label(l0)
    A.i(f'buffer_load_dwordx4 v[{v+2}:{v+5}], v{v}, s[12:15], 0 offen sc1')
    A.i(f'buffer_load_dword v{v+1}, v{v}, s[12:15], 0 offen offset:96 sc1')
    A.i('s_waitcnt vmcnt(0)')
    A.i(f'v_min_u32 v{v+2}, v{v+2}, v{v+3}'); A.i(f'v_min3_u32 v{v+2}, v{v+2}, v{v+4}, v{v+5}'); A.i('s_nop 0')
    A.i(f'v_readfirstlane_b32 s23, v{v+2}'); A.i(f'v_readfirstlane_b32 s79, v{v+1}')
    A.i('s_add_u32 s22, s22, 1'); A.i('s_cmp_gt_u32 s22, 0x400'); A.i(f's_cbranch_scc1 {l1}')
    A.i('s_cmp_ge_u32 s23, 28'); A.i(f's_cbranch_scc0 {l0}')
    A.i('s_cmp_eq_u32 s79, 0'); A.i('s_cselect_b32 s76, 1, 0')
    A.label(l1)

NGRID = 256
def assign_role(A, ngrid):
    A.i(f's_load_dwordx2 s[6:7], s[0:1], {KA["dbg"]}')
    A.i('s_getreg_b32 s50, hwreg(HW_REG_XCC_ID)'); A.i('s_and_b32 s50, s50, 7')
    A.i('s_waitcnt lgkmcnt(0)')
    srd(A, 12, 6, 256)
    A.i('s_mov_b32 s3, -1')
    A.i('s_cmp_eq_u32 s16, 0'); A.i('s_cbranch_scc0 R_role_wait')
    A.i('s_mov_b64 exec, 1')
    def atomic(op, val, off):
        A.i(f'v_mov_b32 v2, {val}'); A.i(f'v_mov_b32 v3, {off}')
        A.i(f'buffer_atomic_{op} v2, v3, s[12:15], 0 offen sc0')
        A.i('s_waitcnt vmcnt(0)'); A.i('v_readfirstlane_b32 s51, v2'); A.i('s_nop 3')
    def claim():
        A.i('s_lshr_b32 s53, s52, 5'); A.i('s_lshl_b32 s53, s53, 2'); A.i('s_add_u32 s53, s53, 64')
        A.i('s_and_b32 s54, s52, 31'); A.i('s_lshl_b32 s54, 1, s54')
        atomic('or', 's54', 's53')
        A.i('s_and_b32 s51, s51, s54'); A.i('s_cmp_eq_u32 s51, 0'); A.i('s_cselect_b32 s3, s52, s3')
    A.i('s_lshl_b32 s52, s50, 2'); atomic('add', '1', 's52')
    A.i('s_cmp_lt_u32 s50, 4'); A.i('s_cbranch_scc0 R_role_free')
    A.i('s_cmp_lt_u32 s51, 8'); A.i('s_cbranch_scc0 R_role_c')
    A.i('s_lshl_b32 s52, s50, 3'); A.i('s_add_u32 s52, s52, s51'); A.i('s_branch R_role_try')
    A.label('R_role_c')
    A.i('s_cmp_lt_u32 s51, 28'); A.i('s_cbranch_scc0 R_role_free')
    A.i('s_mul_i32 s52, s50, 20'); A.i('s_add_u32 s52, s52, s51'); A.i('s_add_u32 s52, s52, 24')
    A.label('R_role_try')
    claim()
    A.i('s_cmp_lt_i32 s3, 0'); A.i('s_cbranch_scc0 R_role_pub')
    A.label('R_role_free')
    A.i('s_mov_b32 s22, 0'); A.i('v_mov_b32 v3, 0')
    A.label('R_role_spin')
    A.i('buffer_load_dwordx4 v[4:7], v3, s[12:15], 0 offen sc1'); A.i('buffer_load_dwordx4 v[8:11], v3, s[12:15], 0 offen offset:16 sc1')
    A.i('s_waitcnt vmcnt(0)')
    A.i('v_min_u32 v2, v4, v5'); A.i('v_min3_u32 v2, v2, v6, v7')
    A.i('v_add3_u32 v4, v4, v5, v6'); A.i('v_add3_u32 v8, v8, v9, v10'); A.i('v_add3_u32 v4, v4, v7, v8'); A.i('v_add_u32 v4, v4, v11'); A.i('s_nop 0')
    A.i('v_readfirstlane_b32 s51, v2'); A.i('v_readfirstlane_b32 s52, v4'); A.i('s_nop 3')
    A.i('s_cmp_ge_u32 s51, 28'); A.i('s_cbranch_scc1 R_role_pub')
    A.i(f's_cmp_ge_u32 s52, {ngrid}'); A.i('s_cbranch_scc1 R_role_scan')
    A.i('s_sleep 4'); A.i('s_add_u32 s22, s22, 1'); A.i('s_cmp_lt_u32 s22, 0x4000'); A.i('s_cbranch_scc1 R_role_spin')
    A.label('R_role_scan')
    for k in range(4):
        lab, nx = f'R_scan{k}', f'R_scan{k}_n'
        valid = 0xffffffff if k < 3 else 0xffff
        A.label(lab)
        atomic('add', '0', str(64 + 4*k))
        A.i('s_not_b32 s51, s51'); A.i(f's_and_b32 s51, s51, {valid:#x}'); A.i('s_cmp_eq_u32 s51, 0'); A.i(f's_cbranch_scc1 {nx}')
        A.i('s_ff1_i32_b32 s55, s51'); A.i(f's_add_u32 s55, s55, {32*k}')
        atomic('add', '1', '96')
        A.i('s_mov_b32 s52, s55')
        claim()
        A.i('s_cmp_lt_i32 s3, 0'); A.i('s_cbranch_scc0 R_role_pub'); A.i(f's_branch {lab}')
        A.label(nx)
    A.label('R_role_pub')
    A.i('v_mov_b32 v2, s3'); A.i('v_mov_b32 v3, 0'); A.i('ds_write_b32 v3, v2'); A.i('s_waitcnt lgkmcnt(0)')
    A.i('s_mov_b64 exec, -1')
    A.label('R_role_wait')
    A.i('s_barrier')
    A.i('v_mov_b32 v3, 0'); A.i('ds_read_b32 v2, v3'); A.i('s_waitcnt lgkmcnt(0)'); A.i('v_readfirstlane_b32 s3, v2'); A.i('s_nop 3')
    A.i('s_barrier')

def gen_rec(name='rec_kernel', nsteps=NSEG, ngrid=256, workers=None):
    A = Em()
    kernel_header(A, name)
    A.i(f's_load_dwordx2 s[4:5], s[0:1], {KA["ws"]}')
    A.i(f's_cmp_ge_u32 s2, {ngrid}')
    A.i('s_cbranch_scc1 R_exit')
    A.i('v_lshrrev_b32 v1, 6, v0')
    A.i('s_waitcnt lgkmcnt(0)')
    srd(A, 8, 4, WS_SIZE)
    A.i('v_readfirstlane_b32 s16, v1')
    ts_stamp(A, 4)
    assign_role(A, ngrid)
    ts_stamp(A, 6)
    A.i(f's_cmp_lt_u32 s3, {NS+NC}'); A.i('s_cbranch_scc0 W_role' if workers else 's_cbranch_scc0 R_exit')
    A.i('s_mov_b32 s17, 0')
    if KN.get('ev'):
        A.i('s_lshl_b32 s81, s3, 2'); A.i('s_add_u32 s81, s81, s16'); A.i('s_lshl_b32 s81, s81, 11'); A.i(f's_add_u32 s81, s81, {0xE000000}')
    if KN.get('lite'): A.i('s_mov_b32 s64, s3')
    if KN['log']:
        A.i('s_mov_b32 s64, s3')
        for r in range(68, 76): A.i(f's_mov_b32 s{r}, 0')
    A.i(f's_cmp_lt_u32 s3, {NS}')
    A.i('s_cbranch_scc0 C_role')
    gen_S(A, nsteps)
    gen_C(A, nsteps)
    A.label('R_fail')
    A.label('R_done')
    if KN.get('lite'):
        A.i('s_mov_b64 exec, -1'); A.i('v_mbcnt_lo_u32_b32 v1, -1, 0'); A.i('v_mbcnt_hi_u32_b32 v1, -1, v1'); A.i('v_lshlrev_b32 v1, 2, v1')
        A.i('s_lshl_b32 s23, s64, 2'); A.i('s_add_u32 s23, s23, s16'); A.i('s_lshl_b32 s23, s23, 8'); A.i(f's_add_u32 s23, s23, {WS_LOG + 0x10000}')
        A.i('buffer_store_dword v150, v1, s[8:11], s23 offen'); A.i(f's_add_u32 s23, s23, {0x30000}'); A.i('buffer_store_dword v151, v1, s[8:11], s23 offen')
        lab = A.new('lt'); A.i('s_cmp_eq_u32 s16, 0'); A.i(f's_cbranch_scc0 {lab}')
        A.i('s_lshl_b32 s23, s64, 8'); A.i(f's_add_u32 s23, s23, {WS_LOG + 0x5C000}'); A.i('buffer_store_dword v152, v1, s[8:11], s23 offen')
        A.label(lab)
    if KN['log']:
        A.i('s_lshl_b32 s23, s64, 2'); A.i('s_add_u32 s23, s23, s16'); A.i('s_lshl_b32 s23, s23, 5'); A.i(f's_add_u32 s23, s23, {WS_LOG}')
        A.i('s_mov_b64 exec, 1'); A.i('v_mov_b32 v1, 0')
        for r in range(8): A.i(f'v_mov_b32 v{2+r}, s{68+r}')
        A.i('buffer_store_dwordx4 v[2:5], v1, s[8:11], s23 offen'); A.i('buffer_store_dwordx4 v[6:9], v1, s[8:11], s23 offen offset:16')
        A.i('s_mov_b64 exec, -1'); A.i('v_and_b32 v1, 63, v0'); A.i('v_lshlrev_b32 v1, 2, v1')
        A.i('s_lshl_b32 s23, s64, 2'); A.i('s_add_u32 s23, s23, s16'); A.i('s_lshl_b32 s23, s23, 8'); A.i(f's_add_u32 s23, s23, {WS_LOG + 0x10000}')
        A.i('buffer_store_dword v150, v1, s[8:11], s23 offen')
        if KN.get('vtlat'):
            A.i(f's_add_u32 s23, s23, {0x50000}'); A.i('buffer_store_dword v151, v1, s[8:11], s23 offen')
    A.label('R_wexit')
    A.i('s_waitcnt vmcnt(0)')
    if workers and KN['post'] and KN['join']:
        A.i('s_mov_b64 exec, -1'); A.i('s_barrier')
        A.i('v_mbcnt_lo_u32_b32 v0, -1, 0'); A.i('v_mbcnt_hi_u32_b32 v0, -1, v0'); A.i('s_lshl_b32 s23, s16, 6'); A.i('v_add_u32 v0, s23, v0')
        A.i('s_mov_b32 s58, 5')
        A.i('s_getpc_b64 s[92:93]')
        A.label('R_pc')
        A.i('s_add_u32 s92, s92, P_phase-R_pc'); A.i('s_addc_u32 s93, s93, 0')
        A.i('s_setpc_b64 s[92:93]')
    A.label('R_exit')
    A.i('s_endpgm')
    if workers: workers(A)
    return A.text(), kernel_desc(name, 512, 256)
if __name__ == '__main__':
    t, d = gen_rec()
    print('; @launch kernel=rec_kernel grid=(112,1,1) block=(256,1,1) lds=163840')
    print('.amdgcn_target "amdgcn-amd-amdhsa--gfx950"')
    print(t); print(d)
```

```python
from common import *
from rec import Em, fbits, LOG2E
from gemm import setup_dma192, setup_dma160, setup_lane, vD192, vD160, vRdE, vRdO, vRd5, vL16

def rnd_bf16(A, v, tmp=None):
    A.i(f'v_cvt_pk_bf16_f32 v{v}, v{v}, v{v}')
    A.i(f'v_lshlrev_b32 v{v}, 16, v{v}')

def role_mod(A, signal=False):
    A.i(f's_load_dwordx2 s[6:7], s[0:1], {KA["c"]}')
    A.i(f's_load_dwordx2 s[18:19], s[0:1], {KA["wmod"]}')
    A.i('v_and_b32 v2, 63, v0')
    A.i('v_lshrrev_b32 v3, 3, v2')
    A.i('v_and_b32 v4, 7, v2')
    A.i('s_waitcnt lgkmcnt(0)')
    srd(A, 12, 6, 1280); srd(A, 28, 18, 640*7680)
    A.i('s_mul_i32 s23, s16, 160'); A.i('v_add_u32 v5, s23, v3')
    A.i('s_mov_b32 s24, 7680'); A.i('v_mul_lo_u32 v6, v5, s24'); A.i('v_lshlrev_b32 v7, 4, v4'); A.i('v_add_u32 v6, v6, v7')
    A.i('s_lshl_b32 s25, s40, 7')
    A.i('v_lshlrev_b32 v5, 1, v5')
    W, C = 32, 112
    for j in range(20):
        A.i(f'buffer_load_dwordx4 {vr(W+4*j)}, v6, s[28:31], s25 offen')
        A.i(f'buffer_load_ushort v{C+j}, v5, s[12:15], 0 offen offset:{16*j}')
        A.i(f's_add_u32 s25, s25, {8*7680}')
    ACC = 8
    for r in range(8): A.i(f'v_mov_b32 v{ACC+r}, 0')
    A.i(f's_mov_b32 s26, {fbits(-LOG2E):#x}')
    for j in range(20):
        A.i(f's_waitcnt vmcnt({2*(19-j)})')
        c = C + j
        A.i(f'v_lshlrev_b32 v{c}, 16, v{c}')
        A.i(f'v_mul_f32 v16, s26, v{c}'); A.i('v_exp_f32 v16, v16'); A.i('s_nop 0'); A.i('v_add_f32 v16, 1.0, v16'); A.i('v_rcp_f32 v16, v16'); A.i('s_nop 0')
        A.i(f'v_mul_f32 v16, v16, v{c}')
        rnd_bf16(A, 16)
        for d in range(4):
            w = W + 4*j + d
            A.i(f'v_lshlrev_b32 v17, 16, v{w}'); A.i(f'v_and_b32 v18, 0xffff0000, v{w}')
            A.i(f'v_fmac_f32 v{ACC+2*d}, v16, v17'); A.i(f'v_fmac_f32 v{ACC+2*d+1}, v16, v18')
    for r in range(8):
        x = ACC + r
        A.i('s_nop 1')
        A.i(f'v_add_f32_dpp v{x}, v{x}, v{x} row_ror:8 row_mask:0xf bank_mask:0xf')
        A.i(f'v_mov_b32 v16, v{x}'); A.i('s_nop 1'); A.i(f'v_permlane16_swap_b32 v{x}, v16'); A.i(f'v_add_f32 v{x}, v{x}, v16')
        A.i(f'v_mov_b32 v16, v{x}'); A.i('s_nop 1'); A.i(f'v_permlane32_swap_b32 v{x}, v16'); A.i(f'v_add_f32 v{x}, v{x}, v16')
    A.i('v_lshlrev_b32 v16, 5, v4'); A.i('s_lshl_b32 s23, s16, 8'); A.i('v_add_u32 v16, s23, v16')
    A.i('s_mov_b64 exec, 0xff')
    A.i(f'ds_write_b128 v16, {vr(ACC)}'); A.i(f'ds_write_b128 v16, {vr(ACC+4)} offset:16')
    A.i('s_mov_b64 exec, -1')
    A.i('s_waitcnt lgkmcnt(0)'); A.i('s_barrier')
    A.i('v_lshlrev_b32 v16, 2, v2')
    for w in range(4): A.i(f'ds_read_b32 v{20+w}, v16 offset:{256*w}')
    A.i('s_waitcnt lgkmcnt(0)')
    A.i('v_add_f32 v20, v20, v21'); A.i('v_add_f32 v22, v22, v23'); A.i('v_add_f32 v20, v20, v22')
    rnd_bf16(A, 20)
    A.i('s_lshl_b32 s23, s40, 8'); A.i(f's_add_u32 s23, s23, {WS_MOD}')
    lab = A.new('mod_skip')
    A.i('s_cmp_eq_u32 s16, 0'); A.i(f's_cbranch_scc0 {lab}')
    A.i('buffer_store_dword v20, v16, s[8:11], s23 offen sc1')
    A.i('s_waitcnt vmcnt(0)')
    if signal:
        A.i(f's_load_dwordx2 s[6:7], s[0:1], {KA["dbg"]}'); A.i('s_waitcnt lgkmcnt(0)'); srd(A, 12, 6, 256)
        A.i('s_mov_b64 exec, 1'); A.i('v_mov_b32 v2, 1'); A.i('v_mov_b32 v3, 0')
        A.i('buffer_atomic_add v2, v3, s[12:15], 0 offen'); A.i('s_waitcnt vmcnt(0)'); A.i('s_mov_b64 exec, -1')
    A.label(lab)

def role_wqk(A):
    A.i('s_mov_b32 s23, 0xcccd'); A.i('s_mul_i32 s41, s40, s23'); A.i('s_lshr_b32 s41, s41, 20')
    A.i('s_mul_i32 s23, s41, 20'); A.i('s_sub_u32 s42, s40, s23')
    A.i('s_cmp_ge_u32 s42, 10'); A.i('s_cselect_b32 s43, 1, 0')
    A.i('s_mul_i32 s23, s43, 10'); A.i('s_sub_u32 s42, s42, s23')
    A.i(f's_load_dwordx2 s[6:7], s[0:1], {KA["wq"]}'); A.i(f's_load_dwordx2 s[18:19], s[0:1], {KA["wk"]}')
    setup_dma192(A, 12288)
    A.i('s_waitcnt lgkmcnt(0)')
    A.i('s_cmp_eq_u32 s43, 0'); A.i('s_cselect_b32 s6, s6, s18'); A.i('s_cselect_b32 s7, s7, s19')
    srd(A, 12, 6, 640*12288)
    A.i(f's_mul_i32 s44, s42, {64*12288}'); A.i('s_mul_i32 s23, s41, 384'); A.i('s_add_u32 s44, s44, s23')
    A.i('s_mul_i32 s23, s16, 6144')
    for j in range(6):
        A.i(f's_add_u32 m0, s23, {j*1024}'); A.i('s_nop 0')
        A.i(f'buffer_load_dwordx4 v{vD192+j}, s[12:15], s44 offen lds')
    A.i('v_and_b32 v22, 63, v0'); A.i('v_lshrrev_b32 v23, 4, v22'); A.i('v_and_b32 v24, 15, v22')
    A.i('v_lshrrev_b32 v25, 1, v23'); A.i('v_lshlrev_b32 v25, 4, v25'); A.i('v_and_b32 v26, 1, v23'); A.i('v_lshlrev_b32 v26, 2, v26'); A.i('v_add_u32 v25, v25, v26')
    A.i('v_lshrrev_b32 v26, 2, v24')
    A.i('v_and_b32 v27, 1, v26'); A.i('v_lshrrev_b32 v26, 1, v26'); A.i('v_lshlrev_b32 v26, 3, v26'); A.i('v_add3_u32 v25, v25, v26, v27')
    A.i('v_and_b32 v24, 3, v24'); A.i('v_lshlrev_b32 v24, 2, v24'); A.i('s_mul_i32 s23, s16, 48'); A.i('v_add_u32 v24, s23, v24')
    A.i(f'v_lshlrev_b32 v1, 4, v22')
    A.i('s_mul_i32 s45, s41, 491520'); A.i('s_mul_i32 s23, s16, 122880'); A.i('s_add_u32 s45, s45, s23')
    A.i('s_mul_i32 s23, s43, 10'); A.i('s_add_u32 s23, s23, s42'); A.i('s_lshl_b32 s23, s23, 11'); A.i('s_add_u32 s45, s45, s23'); A.i(f's_add_u32 s45, s45, {WS_WQK}')
    A.i('s_waitcnt vmcnt(0)'); A.i('s_barrier')
    for p in range(3):
        for hb in range(2):
            for jj in range(2):
                A.i(f'v_add_u32 v28, {32*hb + 2*jj}, v25'); A.i(f'v_add_u32 v29, {16*p}, v24')
                A.i('v_lshrrev_b32 v30, 1, v28'); A.i('v_and_b32 v30, 1, v30'); A.i('v_lshrrev_b32 v31, 5, v29'); A.i('v_xor_b32 v30, v30, v31'); A.i('v_lshlrev_b32 v30, 6, v30')
                A.i('v_and_b32 v29, 31, v29'); A.i('v_lshlrev_b32 v29, 1, v29'); A.i('v_mul_u32_u24 v28, 384, v28'); A.i('v_add3_u32 v28, v28, v29, v30')
                r = 32 + 8*p + 4*hb + 2*jj
                A.i(f'ds_read_b64_tr_b16 v[{r}:{r+1}], v28')
    A.i('s_waitcnt lgkmcnt(0)')
    for p in range(3):
        for hb in range(2):
            A.i(f's_add_u32 s46, s45, {p*20*2048 + hb*1024}')
            A.i(f'buffer_store_dwordx4 {vr(32+8*p+4*hb)}, v1, s[8:11], s46 offen')
    A.i('s_waitcnt vmcnt(0)')

def role_fill(A, nwg):
    per = WS_HAND_SIZE // nwg
    assert per % 32768 == 0, per
    hand_base(A, 24)
    A.i(f's_mul_i32 s23, s40, {per}'); A.i('s_add_u32 s23, s23, s24')
    A.i(f's_mov_b32 s25, {per // 4096 // 8}')
    A.i('s_cmp_eq_u32 s40, 0'); A.i(f's_cselect_b32 s26, {MEM_STRIDE}, 0'); A.i('s_add_u32 s23, s23, s26')
    A.i('s_cselect_b32 s26, 1, 0'); A.i('s_sub_u32 s25, s25, s26')
    A.i('v_lshlrev_b32 v1, 4, v0')
    for r in range(4): A.i(f'v_mov_b32 v{4+r}, -1')
    for j in range(per // 4096):
        A.i('buffer_store_dwordx4 v[4:7], v1, s[8:11], s23 offen sc1')
        A.i('s_add_u32 s23, s23, 4096')
    A.i('s_waitcnt vmcnt(0)')

def role_wfrag(A, sc=''):
    setup_lane(A)
    lab = A.new('wf_down'); end = A.new('wf_end')
    A.i('s_cmp_lt_u32 s40, 160'); A.i(f's_cbranch_scc0 {lab}')
    A.i('s_cmp_ge_u32 s40, 80'); A.i('s_cselect_b32 s43, 1, 0'); A.i('s_mul_i32 s23, s43, 80'); A.i('s_sub_u32 s41, s40, s23')
    A.i('s_mul_i32 s42, s41, 6554'); A.i('s_lshr_b32 s42, s42, 16'); A.i('s_mul_i32 s23, s42, 10'); A.i('s_sub_u32 s41, s41, s23')
    A.i(f's_load_dwordx2 s[6:7], s[0:1], {KA["wg"]}'); A.i(f's_load_dwordx2 s[18:19], s[0:1], {KA["wu"]}')
    setup_dma192(A, 3072)
    A.i('s_waitcnt lgkmcnt(0)')
    A.i('s_cmp_eq_u32 s43, 0'); A.i('s_cselect_b32 s6, s6, s18'); A.i('s_cselect_b32 s7, s7, s19')
    srd(A, 28, 6, 640*3072)
    A.i(f's_mul_i32 s44, s41, {64*3072}'); A.i('s_mul_i32 s23, s42, 384'); A.i('s_add_u32 s44, s44, s23')
    A.i('s_mul_i32 s23, s16, 6144')
    for j in range(6):
        A.i(f's_add_u32 m0, s23, {j*1024}'); A.i('s_nop 0')
        A.i(f'buffer_load_dwordx4 v{vD192+j}, s[28:31], s44 offen lds')
    A.i('s_mul_i32 s45, s42, 12'); A.i('s_add_u32 s45, s45, s43'); A.i('s_mul_i32 s45, s45, 40'); A.i('s_lshl_b32 s23, s41, 2'); A.i('s_add_u32 s45, s45, s23')
    A.i('s_add_u32 s45, s45, s16'); A.i('s_lshl_b32 s45, s45, 10'); A.i(f's_add_u32 s45, s45, {WS_WGF}')
    A.i(f's_mul_i32 s23, s16, {16*384}'); A.i(f'v_add_u32 v28, s23, v{vRdE}'); A.i(f'v_add_u32 v29, s23, v{vRdO}')
    A.i('s_waitcnt vmcnt(0)'); A.i('s_barrier')
    for t in range(6):
        A.i(f'ds_read_b64_tr_b16 v[{32+4*t}:{33+4*t}], v{28 + (t & 1)} offset:{t*64}')
        A.i(f'ds_read_b64_tr_b16 v[{34+4*t}:{35+4*t}], v{28 + (t & 1)} offset:{t*64 + 8*384}')
    A.i('s_waitcnt lgkmcnt(0)')
    for t in range(6):
        A.i(f'buffer_store_dwordx4 {vr(32+4*t)}, v{vL16}, s[8:11], s45 offen{sc}')
        A.i(f's_add_u32 s45, s45, {80*1024}')
    A.i(f's_branch {end}')
    A.label(lab)
    A.i('s_sub_u32 s41, s40, 160'); A.i('s_mul_i32 s42, s41, 2731'); A.i('s_lshr_b32 s42, s42, 16'); A.i('s_mul_i32 s23, s42, 24'); A.i('s_sub_u32 s41, s41, s23')
    A.i(f's_load_dwordx2 s[6:7], s[0:1], {KA["wd"]}')
    setup_dma160(A, 1280)
    A.i('s_waitcnt lgkmcnt(0)')
    srd(A, 28, 6, 1536*1280)
    A.i(f's_mul_i32 s44, s41, {64*1280}'); A.i('s_mul_i32 s23, s42, 320'); A.i('s_add_u32 s44, s44, s23')
    A.i('s_mul_i32 s23, s16, 5120')
    for j in range(5):
        A.i(f's_add_u32 m0, s23, {j*1024}'); A.i('s_nop 0')
        A.i(f'buffer_load_dwordx4 v{vD160+j}, s[28:31], s44 offen lds')
    A.i('s_mul_i32 s45, s42, 480'); A.i('s_lshl_b32 s23, s41, 2'); A.i('s_add_u32 s45, s45, s23'); A.i('s_add_u32 s45, s45, s16')
    A.i('s_lshl_b32 s45, s45, 10'); A.i(f's_add_u32 s45, s45, {WS_WDF}')
    A.i(f's_mul_i32 s23, s16, {16*320}'); A.i(f'v_add_u32 v28, s23, v{vRd5}')
    A.i('s_waitcnt vmcnt(0)'); A.i('s_barrier')
    for t in range(5):
        A.i(f'ds_read_b64_tr_b16 v[{32+4*t}:{33+4*t}], v28 offset:{t*64}')
        A.i(f'ds_read_b64_tr_b16 v[{34+4*t}:{35+4*t}], v28 offset:{t*64 + 8*320}')
    A.i('s_waitcnt lgkmcnt(0)')
    for t in range(5):
        A.i(f'buffer_store_dwordx4 {vr(32+4*t)}, v{vL16}, s[8:11], s45 offen{sc}')
        A.i(f's_add_u32 s45, s45, {96*1024}')
    A.label(end)
    A.i('s_waitcnt vmcnt(0)')

def role_zero(A):
    A.i(f's_mul_i32 s23, s40, {WS_FLAGS_SIZE//4}'); A.i(f's_add_u32 s23, s23, {WS_FLAGS}')
    A.i('v_lshlrev_b32 v1, 4, v0')
    for r in range(4): A.i(f'v_mov_b32 v{4+r}, 0')
    for j in range(WS_FLAGS_SIZE // 4 // 4096):
        A.i('buffer_store_dwordx4 v[4:7], v1, s[8:11], s23 offen sc1')
        A.i('s_add_u32 s23, s23, 4096')
    A.i('s_waitcnt vmcnt(0)')

def role_mem0(A):
    A.i(f's_load_dwordx2 s[6:7], s[0:1], {KA["mem0"]}')
    A.i('s_waitcnt lgkmcnt(0)')
    srd(A, 12, 6, 10240)
    hand_base(A, 24)
    A.i('s_add_u32 s25, s24, 8192')
    for j in range(3):
        A.i(f'v_add_u32 v2, {256*j}, v0')
        A.i('v_lshrrev_b32 v3, 3, v2'); A.i('v_and_b32 v4, 7, v2')
        A.i('v_mul_u32_u24 v5, 1280, v4'); A.i('v_lshlrev_b32 v6, 4, v3'); A.i('v_add_u32 v5, v5, v6')
        A.i('v_lshlrev_b32 v6, 4, v2')
        A.i('v_lshrrev_b32 v7, 13, v6'); A.i('v_lshlrev_b32 v7, 14, v7'); A.i('v_and_b32 v6, 0x1fff, v6'); A.i('v_add_u32 v6, v6, v7')
        A.i('v_cmp_gt_u32 vcc, 640, v2'); A.i('v_mov_b32 v7, 0x80000000'); A.i('s_nop 0')
        A.i('v_cndmask_b32 v6, v7, v6, vcc'); A.i('v_cndmask_b32 v5, v7, v5, vcc')
        A.i('buffer_load_dwordx4 v[8:11], v5, s[12:15], 0 offen')
        A.i('s_waitcnt vmcnt(0)')
        for r in range(4): A.i(f'v_min_u32 v{8+r}, 0xfffffffe, v{8+r}')
        A.i('buffer_store_dwordx4 v[8:11], v6, s[8:11], s24 offen sc1')
        A.i('buffer_store_dwordx4 v[8:11], v6, s[8:11], s25 offen sc1')
        A.i('s_waitcnt vmcnt(0)')

def role_calib(A):
    lab = A.new('cal_skip')
    A.i('s_getreg_b32 s50, hwreg(HW_REG_XCC_ID)'); A.i('s_and_b32 s50, s50, 15')
    A.i('s_cmp_eq_u32 s50, 0'); A.i(f's_cbranch_scc0 {lab}')
    A.i('s_cmp_lt_u32 s16, 3'); A.i(f's_cbranch_scc0 {lab}')
    hand_base(A, 24)
    A.i('s_lshl_b32 s25, s16, 21'); A.i('s_add_u32 s24, s24, s25'); A.i(f's_add_u32 s24, s24, {65536 + 49152 + 4096}')
    A.i('s_mov_b64 exec, 1')
    A.i('v_mov_b32 v2, 0'); A.i('v_mov_b32 v3, 8192')
    A.i('s_mov_b32 s40, -1'); A.i('s_mov_b32 s41, -1')
    for rep in range(6):
        for par in range(2):
            A.i('v_mov_b32 v4, 0')
            A.i('s_memtime s[42:43]'); A.i('s_waitcnt lgkmcnt(0)')
            A.i(f'buffer_atomic_add v4, v{2+par}, s[8:11], s24 offen sc0')
            A.i('s_waitcnt vmcnt(0)')
            A.i('s_memtime s[44:45]'); A.i('s_waitcnt lgkmcnt(0)')
            A.i('s_sub_u32 s44, s44, s42')
            if rep > 0: A.i(f's_min_u32 s{40+par}, s{40+par}, s44')
    A.i('s_cmp_lt_u32 s41, s40'); A.i('s_cselect_b32 s46, 8192, 0')
    A.i('v_mov_b32 v4, s46'); A.i('s_lshl_b32 s25, s16, 2'); A.i('v_mov_b32 v5, s25')
    A.i(f's_mov_b32 s26, {WS_TAB}')
    A.i('buffer_store_dword v4, v5, s[8:11], s26 offen')
    A.i('s_waitcnt vmcnt(0)')
    A.i('s_mov_b64 exec, -1')
    A.label(lab)

def role_ln(A, src_srd_setup, src_soff, shift_idx, scale_idx, dst_ws, sc='', ssrd=12, wait_mod=False, dep=None):
    src_srd_setup()
    A.i('v_and_b32 v2, 63, v0'); A.i('v_lshrrev_b32 v3, 4, v2'); A.i('v_and_b32 v4, 15, v2')
    A.i('s_lshl_b32 s23, s40, 4'); A.i('s_lshl_b32 s24, s16, 2'); A.i('s_add_u32 s23, s23, s24')
    A.i('v_add_u32 v5, s23, v3')
    A.i('v_mul_u32_u24 v6, 1280, v5'); A.i('v_lshlrev_b32 v7, 4, v4'); A.i('v_add_u32 v6, v6, v7')
    X = 16
    def x_loads():
        for j in range(5):
            A.i(f'buffer_load_dwordx4 {vr(X+4*j)}, v6, s[{ssrd}:{ssrd+3}], {src_soff} offen offset:{256*j}{sc}')
    if dep is None: x_loads()
    if wait_mod:
        lab = A.new('lnw')
        A.i(f's_load_dwordx2 s[6:7], s[0:1], {KA["dbg"]}'); A.i('s_waitcnt lgkmcnt(0)'); srd(A, 28, 6, 256)
        A.i('v_mov_b32 v8, 0'); A.i('s_mov_b32 s22, 0')
        A.label(lab)
        A.i('buffer_load_dword v9, v8, s[28:31], 0 offen sc1'); A.i('s_add_u32 s22, s22, 1'); A.i('s_waitcnt vmcnt(0)')
        A.i('v_readfirstlane_b32 s23, v9'); A.i('s_cmp_gt_u32 s22, 0x100000'); A.i(f's_cbranch_scc1 {lab}_x')
        A.i('s_cmp_ge_u32 s23, 60'); A.i(f's_cbranch_scc0 {lab}')
        A.label(f'{lab}_x')
        for j in range(5): pass
    A.i('v_lshlrev_b32 v7, 5, v4')
    SC, SH = 40, 80
    A.i(f's_mov_b32 s25, {WS_MOD + scale_idx*2560}'); A.i(f's_mov_b32 s26, {WS_MOD + shift_idx*2560}')
    for j in range(5):
        msc = ' sc1' if wait_mod else ''
        A.i(f'buffer_load_dwordx4 {vr(SC+8*j)}, v7, s[8:11], s25 offen offset:{512*j}{msc}')
        A.i(f'buffer_load_dwordx4 {vr(SC+8*j+4)}, v7, s[8:11], s25 offen offset:{512*j+16}{msc}')
        A.i(f'buffer_load_dwordx4 {vr(SH+8*j)}, v7, s[8:11], s26 offen offset:{512*j}{msc}')
        A.i(f'buffer_load_dwordx4 {vr(SH+8*j+4)}, v7, s[8:11], s26 offen offset:{512*j+16}{msc}')
    if dep is not None:
        dep()
        x_loads()
    F = 128
    A.i('s_waitcnt vmcnt(20)' if dep is None else 's_waitcnt vmcnt(0)')
    for j in range(20):
        A.i(f'v_lshlrev_b32 v{F+2*j}, 16, v{X+j}'); A.i(f'v_and_b32 v{F+2*j+1}, 0xffff0000, v{X+j}')
    def rowsum(x, t):
        for ctl in ('quad_perm:[1,0,3,2]', 'quad_perm:[2,3,0,1]', 'row_half_mirror', 'row_mirror'):
            A.i('s_nop 1'); A.i(f'v_add_f32_dpp v{x}, v{x}, v{x} {ctl} row_mask:0xf bank_mask:0xf')
    A.i(f'v_add_f32 v8, v{F}, v{F+1}')
    for j in range(2, 40): A.i(f'v_add_f32 v8, v8, v{F+j}')
    rowsum(8, 9)
    A.i(f'v_mul_f32 v8, {fbits(1.0/640):#x}, v8')
    A.i('v_mov_b32 v9, 0')
    for j in range(40):
        A.i(f'v_sub_f32 v10, v{F+j}, v8'); A.i('v_fmac_f32 v9, v10, v10')
    rowsum(9, 10)
    A.i(f'v_mul_f32 v9, {fbits(1.0/640):#x}, v9')
    rnd_bf16(A, 8); rnd_bf16(A, 9)
    A.i(f'v_add_f32 v9, {fbits(1e-5):#x}, v9'); rnd_bf16(A, 9)
    A.i('v_sqrt_f32 v9, v9'); A.i('s_nop 0'); rnd_bf16(A, 9)
    A.i('v_rcp_f32 v9, v9'); A.i('s_nop 0')
    A.i('s_waitcnt vmcnt(0)')
    for j in range(0, 40, 2):
        a, b = F+j, F+j+1
        A.i(f'v_sub_f32 v{a}, v{a}, v8'); A.i(f'v_sub_f32 v{b}, v{b}, v8')
        A.i(f'v_cvt_pk_bf16_f32 v10, v{a}, v{b}'); A.i(f'v_lshlrev_b32 v{a}, 16, v10'); A.i(f'v_and_b32 v{b}, 0xffff0000, v10')
        A.i(f'v_mul_f32 v{a}, v{a}, v9'); A.i(f'v_mul_f32 v{b}, v{b}, v9')
        A.i(f'v_cvt_pk_bf16_f32 v10, v{a}, v{b}'); A.i(f'v_lshlrev_b32 v{a}, 16, v10'); A.i(f'v_and_b32 v{b}, 0xffff0000, v10')
        sa, sb = SC+j, SC+j+1
        A.i(f'v_add_f32 v{sa}, 1.0, v{sa}'); A.i(f'v_add_f32 v{sb}, 1.0, v{sb}')
        A.i(f'v_cvt_pk_bf16_f32 v10, v{sa}, v{sb}'); A.i(f'v_lshlrev_b32 v{sa}, 16, v10'); A.i(f'v_and_b32 v{sb}, 0xffff0000, v10')
        A.i(f'v_mul_f32 v{a}, v{a}, v{sa}'); A.i(f'v_mul_f32 v{b}, v{b}, v{sb}')
        A.i(f'v_cvt_pk_bf16_f32 v10, v{a}, v{b}'); A.i(f'v_lshlrev_b32 v{a}, 16, v10'); A.i(f'v_and_b32 v{b}, 0xffff0000, v10')
        A.i(f'v_add_f32 v{a}, v{a}, v{SH+j}'); A.i(f'v_add_f32 v{b}, v{b}, v{SH+j+1}')
        A.i(f'v_cvt_pk_bf16_f32 v{X + j//2}, v{a}, v{b}')
    A.i('v_lshrrev_b32 v8, 5, v5'); A.i(f'v_mul_u32_u24 v8, {40*1024}, v8')
    A.i('v_and_b32 v9, 31, v5'); A.i('v_lshlrev_b32 v9, 4, v9'); A.i('v_add_u32 v8, v8, v9')
    A.i('v_lshrrev_b32 v9, 1, v4'); A.i('v_lshlrev_b32 v9, 10, v9'); A.i('v_add_u32 v8, v8, v9')
    A.i('v_and_b32 v9, 1, v4'); A.i('v_lshlrev_b32 v9, 3, v9'); A.i('v_add_u32 v8, v8, v9')
    A.i(f's_mov_b32 s25, {dst_ws}')
    for j in range(5):
        A.i(f'buffer_store_dwordx2 v[{X+4*j}:{X+4*j+1}], v8, s[8:11], s25 offen{sc}')
        A.i(f'buffer_store_dwordx2 v[{X+4*j+2}:{X+4*j+3}], v8, s[8:11], s25 offen offset:512{sc}')
        A.i('s_add_u32 s25, s25, 8192')
    A.i('s_waitcnt vmcnt(0)')

def prolog(A, name, ngrid):
    kernel_header(A, name)
    A.i(f's_load_dwordx2 s[4:5], s[0:1], {KA["ws"]}')
    A.i(f's_cmp_ge_u32 s2, {ngrid}')
    A.i(f's_cbranch_scc1 {name}_exit')
    A.i('v_lshrrev_b32 v1, 6, v0')
    A.i('s_waitcnt lgkmcnt(0)')
    srd(A, 8, 4, WS_SIZE)
    A.i('v_readfirstlane_b32 s16, v1')
    A.i('s_nop 3')
    ts_stamp(A, 0 if name.startswith('prep') else 2)

NFILL = 192
PREP_GRID = 64 + NFILL + 640 + 256
def gen_prep(name='prep_kernel'):
    A = Em()
    prolog(A, name, PREP_GRID)
    A.i('s_cmp_lt_u32 s2, 60'); A.i(f's_cbranch_scc0 {name}_a')
    A.i('s_mov_b32 s40, s2'); role_mod(A); A.i('s_endpgm')
    A.label(f'{name}_a')
    A.i('s_cmp_lt_u32 s2, 64'); A.i(f's_cbranch_scc0 {name}_b')
    A.i('s_sub_u32 s40, s2, 60'); role_zero(A); A.i('s_endpgm')
    A.label(f'{name}_b')
    A.i(f's_cmp_lt_u32 s2, {64+NFILL}'); A.i(f's_cbranch_scc0 {name}_c')
    A.i('s_sub_u32 s40, s2, 64'); role_fill(A, NFILL); A.i('s_endpgm')
    A.label(f'{name}_c')
    A.i(f's_cmp_lt_u32 s2, {64+NFILL+640}'); A.i(f's_cbranch_scc1 {name}_d')
    A.i(f's_sub_u32 s40, s2, {64+NFILL+640}'); role_wfrag(A); A.i('s_endpgm')
    A.label(f'{name}_d')
    A.i(f's_sub_u32 s40, s2, {64+NFILL}'); role_wqk(A)
    A.label(f'{name}_exit')
    A.i('s_endpgm')
    return A.text(), kernel_desc(name, 136, 136)

def gen_prep2(name='prep_kernel'):
    import gemm
    A = Em()
    prolog(A, name, 256)
    A.i('s_cmp_lt_u32 s2, 160'); A.i(f's_cbranch_scc1 {name}_b')
    A.i('s_cmp_lt_u32 s2, 220'); A.i(f's_cbranch_scc0 {name}_z')
    A.i('s_sub_u32 s40, s2, 160'); role_mod(A); A.i('s_endpgm')
    A.label(f'{name}_z')
    A.i('s_cmp_lt_u32 s2, 224'); A.i(f's_cbranch_scc0 {name}_f')
    A.i('s_sub_u32 s40, s2, 220'); role_zero(A); A.i('s_endpgm')
    A.label(f'{name}_f')
    A.i('s_sub_u32 s40, s2, 224'); role_fill(A, 32); A.i('s_endpgm')
    A.label(f'{name}_b')
    gemm.setup_lane(A)
    A.i('s_and_b32 s41, s2, 31'); A.i('s_lshr_b32 s40, s2, 5')
    gemm.task_b(A)
    ts_stamp(A, 1)
    A.label(f'{name}_exit')
    A.i('s_endpgm')
    return A.text(), kernel_desc(name, 512, 256)

def role_warm(A):
    A.i('s_lshr_b32 s41, s40, 5'); A.i('s_lshl_b32 s41, s41, 3'); A.i(f's_add_u32 s41, s41, {KA["wq"]}')
    A.i('s_load_dwordx2 s[6:7], s[0:1], s41'); A.i('s_waitcnt lgkmcnt(0)')
    srd(A, 12, 6, 640*12288)
    A.i('s_and_b32 s23, s40, 31'); A.i('s_mul_i32 s23, s23, 245760')
    A.i('v_lshlrev_b32 v1, 4, v0')
    for j in range(60):
        A.i(f'buffer_load_dwordx4 {vr(8 + 4*(j % 30))}, v1, s[12:15], s23 offen')
        A.i('s_add_u32 s23, s23, 4096')
        if j == 29: A.i('s_waitcnt vmcnt(15)')
    A.i('s_waitcnt vmcnt(0)')

PRE_GRID = 60 + 4 + 32 + 1 + 128 + 128
def gen_pre0(name='prep_kernel'):
    A = Em()
    prolog(A, name, PRE_GRID)
    A.i('s_cmp_lt_u32 s2, 60'); A.i(f's_cbranch_scc0 {name}_z')
    A.i('s_mov_b32 s40, s2'); role_mod(A, True); A.i('s_endpgm')
    A.label(f'{name}_z')
    A.i('s_cmp_lt_u32 s2, 64'); A.i(f's_cbranch_scc0 {name}_f')
    A.i('s_sub_u32 s40, s2, 60'); role_zero(A); A.i('s_endpgm')
    A.label(f'{name}_f')
    A.i('s_cmp_lt_u32 s2, 96'); A.i(f's_cbranch_scc0 {name}_m')
    A.i('s_sub_u32 s40, s2, 64'); role_fill(A, 32); A.i('s_endpgm')
    A.label(f'{name}_m')
    A.i('s_cmp_eq_u32 s2, 96'); A.i(f's_cbranch_scc0 {name}_l')
    role_mem0(A); A.i('s_endpgm')
    A.label(f'{name}_l')
    A.i('s_cmp_lt_u32 s2, 225'); A.i(f's_cbranch_scc1 {name}_l2')
    A.i('s_sub_u32 s40, s2, 225'); role_warm(A); A.i('s_endpgm')
    A.label(f'{name}_l2')
    A.i('s_sub_u32 s40, s2, 97')
    def su():
        A.i(f's_load_dwordx2 s[6:7], s[0:1], {KA["x"]}'); A.i('s_waitcnt lgkmcnt(0)'); srd(A, 12, 6, 2048*1280)
    role_ln(A, su, '0', 0, 1, WS_H, wait_mod=True)
    ts_stamp(A, 3)
    A.label(f'{name}_exit')
    A.i('s_endpgm')
    return A.text(), kernel_desc(name, 176, 176)

PRE3_GRID = 257 + 128
def gen_pre3(name='prep_kernel'):
    import gemm
    A = Em()
    prolog(A, name, PRE3_GRID)
    A.i('s_cmp_lt_u32 s2, 60'); A.i(f's_cbranch_scc0 {name}_b0')
    A.i('s_mov_b32 s40, s2'); role_mod(A, True); A.i('s_endpgm')
    A.label(f'{name}_b0')
    A.i('s_cmp_lt_u32 s2, 220'); A.i(f's_cbranch_scc1 {name}_b')
    A.i('s_cmp_lt_u32 s2, 224'); A.i(f's_cbranch_scc0 {name}_f')
    A.i('s_sub_u32 s40, s2, 220'); role_zero(A); A.i('s_endpgm')
    A.label(f'{name}_f')
    A.i('s_cmp_lt_u32 s2, 256'); A.i(f's_cbranch_scc0 {name}_m')
    A.i('s_sub_u32 s40, s2, 224'); role_fill(A, 32); A.i('s_endpgm')
    A.label(f'{name}_m')
    A.i('s_cmp_eq_u32 s2, 256'); A.i(f's_cbranch_scc0 {name}_l')
    role_mem0(A); A.i('s_endpgm')
    A.label(f'{name}_l')
    A.i('s_sub_u32 s40, s2, 257')
    def su():
        A.i(f's_load_dwordx2 s[6:7], s[0:1], {KA["x"]}'); A.i('s_waitcnt lgkmcnt(0)'); srd(A, 12, 6, 2048*1280)
    role_ln(A, su, '0', 0, 1, WS_H, wait_mod=True)
    ts_stamp(A, 3)
    A.i('s_endpgm')
    A.label(f'{name}_b')
    gemm.set_ring(6)
    gemm.setup_lane(A)
    A.i('s_sub_u32 s23, s2, 60'); A.i('s_and_b32 s41, s23, 31'); A.i('s_lshr_b32 s40, s23, 5')
    gemm.task_b(A)
    gemm.set_ring(4)
    ts_stamp(A, 1)
    A.label(f'{name}_exit')
    A.i('s_endpgm')
    return A.text(), kernel_desc(name, 512, 256)

PRE4_GRID = 60 + 320 + 4 + 32 + 1 + 128
def gen_pre4(name='prep_kernel'):
    import gemm
    A = Em()
    prolog(A, name, PRE4_GRID)
    A.i('s_cmp_lt_u32 s2, 60'); A.i(f's_cbranch_scc0 {name}_l')
    A.i('s_mov_b32 s40, s2'); role_mod(A, True); A.i('s_endpgm')
    A.label(f'{name}_l')
    A.i('s_cmp_lt_u32 s2, 188'); A.i(f's_cbranch_scc0 {name}_z')
    A.i('s_sub_u32 s40, s2, 60')
    def su():
        A.i(f's_load_dwordx2 s[6:7], s[0:1], {KA["x"]}'); A.i('s_waitcnt lgkmcnt(0)'); srd(A, 12, 6, 2048*1280)
    role_ln(A, su, '0', 0, 1, WS_H, wait_mod=True)
    ts_stamp(A, 3)
    A.i('s_endpgm')
    A.label(f'{name}_z')
    A.i('s_cmp_lt_u32 s2, 192'); A.i(f's_cbranch_scc0 {name}_f')
    A.i('s_sub_u32 s40, s2, 188'); role_zero(A); A.i('s_endpgm')
    A.label(f'{name}_f')
    A.i('s_cmp_lt_u32 s2, 224'); A.i(f's_cbranch_scc0 {name}_m')
    A.i('s_sub_u32 s40, s2, 192'); role_fill(A, 32); A.i('s_endpgm')
    A.label(f'{name}_m')
    A.i('s_cmp_eq_u32 s2, 224'); A.i(f's_cbranch_scc0 {name}_b')
    role_mem0(A); A.i('s_endpgm')
    A.label(f'{name}_b')
    gemm.set_ring(4, 20480)
    gemm.setup_lane(A)
    A.i('s_sub_u32 s23, s2, 225'); A.i('s_and_b32 s41, s23, 31'); A.i('s_lshr_b32 s40, s23, 5')
    A.i('s_cmp_ge_u32 s40, 5'); A.i('s_cselect_b32 s39, 1, 0'); A.i('s_mul_i32 s23, s39, 5'); A.i('s_sub_u32 s40, s40, s23')
    gemm.task_b_half(A)
    gemm.set_ring(4)
    ts_stamp(A, 1)
    A.label(f'{name}_exit')
    A.i('s_endpgm')
    return A.text(), kernel_desc(name, 224, 176)

LN1_GRID = 128 + 1 + 8
def gen_ln(name, first):
    A = Em()
    prolog(A, name, LN1_GRID if first else 128)
    A.i('s_mov_b32 s40, s2')
    if first:
        A.i('s_cmp_lt_u32 s2, 128'); A.i(f's_cbranch_scc1 {name}_ln')
        A.i('s_cmp_eq_u32 s2, 128'); A.i(f's_cbranch_scc0 {name}_cal')
        role_mem0(A); A.i('s_endpgm')
        A.label(f'{name}_cal')
        role_calib(A); A.i('s_endpgm')
        A.label(f'{name}_ln')
    if first:
        def su():
            A.i(f's_load_dwordx2 s[6:7], s[0:1], {KA["x"]}'); A.i('s_waitcnt lgkmcnt(0)'); srd(A, 12, 6, 2048*1280)
        role_ln(A, su, '0', 0, 1, WS_H)
        ts_stamp(A, 3)
    else:
        def su():
            for r in range(4): A.i(f's_mov_b32 s{12+r}, s{8+r}')
            A.i(f's_mov_b32 s27, {WS_X1}')
        role_ln(A, su, 's27', 3, 4, WS_H2)
    A.label(f'{name}_exit')
    A.i('s_endpgm')
    return A.text(), kernel_desc(name, 176, 176)

if __name__ == '__main__':
    parts = [gen_prep(), gen_ln('ln1_kernel', True), gen_ln('ln2_kernel', False)]
    print(f'; @launch kernel=prep_kernel grid=({PREP_GRID},1,1) block=(256,1,1) lds=24576')
    print('.amdgcn_target "amdgcn-amd-amdhsa--gfx950"')
    for t, d in parts: print(t)
    for t, d in parts: print(d)
```

```python
from common import *
from rec import Em, LG, SPIN_MAX, KN
import gemm, post, small, fast
from gemm import *

SRD_WQ, SRD_WK, SRD_WV, SRD_WO = 68, 72, 76, 80
W_NSLOT = 6
LDS_BC = W_NSLOT*SLOT
vNEXT = 5
Q_WORD = 128

def signal_add(A, off_sgpr):
    lab = A.new('sig')
    A.i('s_cmp_eq_u32 s16, 0'); A.i(f's_cbranch_scc0 {lab}')
    A.i('s_mov_b64 exec, 1'); A.i('v_mov_b32 v22, 1'); A.i('v_mov_b32 v23, 0')
    A.i(f'buffer_atomic_add v22, v23, s[8:11], s{off_sgpr} offen')
    A.i('s_mov_b64 exec, -1')
    A.label(lab)

def kq_store_tile(vm, D, t, soff, o, addr=21):
    ga, gb = o, o+4
    L = [f'v_cvt_pk_bf16_f32 v{ga}, v{D}, v{D+1}', f'v_cvt_pk_bf16_f32 v{ga+1}, v{D+2}, v{D+3}',
         f'v_cvt_pk_bf16_f32 v{ga+2}, v{D+8}, v{D+9}', f'v_cvt_pk_bf16_f32 v{ga+3}, v{D+10}, v{D+11}',
         f'v_cvt_pk_bf16_f32 v{gb}, v{D+4}, v{D+5}', f'v_cvt_pk_bf16_f32 v{gb+1}, v{D+6}, v{D+7}',
         f'v_cvt_pk_bf16_f32 v{gb+2}, v{D+12}, v{D+13}', f'v_cvt_pk_bf16_f32 v{gb+3}, v{D+14}, v{D+15}']
    if t == 4: L.append(f's_add_u32 s{soff}, s{soff}, 4096')
    L.append(lambda: vm.issue(f'buffer_store_dwordx4 {vr(ga)}, v{addr}, s[8:11], s{soff} offen offset:{(t%4)*1024} sc1'))
    L.append(lambda: vm.issue(f'buffer_store_dwordx4 {vr(gb)}, v{addr}, s[8:11], s{soff} offen offset:{(t%4)*1024+512} sc1'))
    return L

def task_kq2(A, tail):
    ACT, FR, ACCK, ACCQ, TMP = 0, 160, 32, 128, 224
    A.i('s_mul_i32 s42, s41, 384'); A.i('s_mov_b32 s46, s42')
    A.i('s_lshl_b32 s43, s40, 2'); A.i('s_add_u32 s43, s43, s16')
    A.i(f's_mul_i32 s44, s43, {40*1024}'); A.i(f's_add_u32 s44, s44, {WS_H}')
    A.i('v_and_b32 v22, 63, v0'); A.i('v_lshrrev_b32 v23, 4, v22'); A.i('v_and_b32 v23, 1, v23'); A.i('v_mul_u32_u24 v23, 6144, v23')
    A.i('v_lshrrev_b32 v24, 5, v22'); A.i('v_lshlrev_b32 v24, 4, v24'); A.i('v_and_b32 v25, 15, v22'); A.i('v_add_u32 v24, v24, v25')
    A.i('v_lshlrev_b32 v24, 4, v24'); A.i('v_add_u32 v21, v23, v24')
    A.i('s_lshl_b32 s45, s43, 5'); A.i('s_add_u32 s45, s45, s41'); A.i('s_mul_i32 s45, s45, 12288')
    A.i(f's_add_u32 s47, s45, {WS_QT}'); A.i(f's_add_u32 s45, s45, {WS_KT}')
    vm = VM(A)
    stages = [Stage(192, SRD_WK, 42, 64*12288) for _ in range(10)] + [Stage(192, SRD_WQ, 46, 64*12288) for _ in range(10)]
    e = Engine(A, vm, stages, FR)
    e.prologue_parts = act_parts(A, vm, ACT, 40, 44)
    steps = pass192_steps(0, ACCK, ACT, vm, True) + pass192_steps(10, ACCQ, ACT, vm, False)
    def qk():
        for t in range(6): e.side.extend(kq_store_tile(vm, ACCK+16*t, t, 45, TMP + 8*(t & 1)))
    steps[42]['pre'] = qk
    e.run(steps)
    tail()
    e.flush_side()
    A.i('s_nop 7')
    for t in range(6): e.side.extend(kq_store_tile(vm, ACCQ+16*t, t, 47, TMP + 8*(t & 1)))
    e.flush_side()
    vm.wait_all()
    A.i('s_lshl_b32 s48, s40, 5'); A.i('s_add_u32 s48, s48, s41'); A.i('s_lshl_b32 s48, s48, 7'); A.i(f's_add_u32 s48, s48, {FL_KQ}')

def task_vvo2(A, tail):
    ACT, FR = 0, 160
    VACC, VOP, ACC0, ACC1, TMP = 32, 128, 32, 176, 112
    A.i('s_mul_i32 s42, s41, 384')
    A.i(f's_mul_i32 s46, s41, {192*1280}')
    A.i('s_lshl_b32 s43, s40, 2'); A.i('s_add_u32 s43, s43, s16')
    A.i(f's_mul_i32 s44, s43, {40*1024}'); A.i(f's_add_u32 s44, s44, {WS_H}')
    vm = VM(A)
    stages = [Stage(192, SRD_WV, 42, 64*12288) for _ in range(10)] + wo_stages(SRD_WO, 46)
    e = Engine(A, vm, stages, FR)
    e.prologue_parts = act_parts(A, vm, ACT, 40, 44)
    steps = pass192_steps(0, VACC, ACT, vm, True)
    def conv():
        A.i('s_nop 7'); A.i('s_nop 7')
        for t in range(6):
            for a in range(2):
                for r in range(4):
                    s = VACC + 16*t + 8*a + 2*r
                    A.i(f'v_cvt_pk_bf16_f32 v{VOP + 4*(2*t+a) + r}, v{s}, v{s+1}')
        A.i('s_nop 1')
    steps[-1]['post'] = conv
    A.i('v_and_b32 v22, 63, v0'); A.i('v_and_b32 v23, 31, v22'); A.i('v_lshrrev_b32 v24, 3, v23'); A.i('v_lshlrev_b32 v24, 14, v24')
    A.i('v_lshrrev_b32 v25, 5, v22'); A.i('v_lshlrev_b32 v25, 8, v25'); A.i('v_and_b32 v23, 7, v23'); A.i('v_lshlrev_b32 v23, 4, v23')
    A.i('v_add3_u32 v21, v23, v24, v25')
    A.i(f's_mul_i32 s47, s43, {80*16384}'); A.i('s_lshr_b32 s23, s41, 1'); A.i('s_lshl_b32 s23, s23, 10'); A.i('s_add_u32 s47, s47, s23')
    A.i('s_and_b32 s23, s41, 1'); A.i('s_lshl_b32 s23, s23, 7'); A.i('s_add_u32 s47, s47, s23'); A.i(f's_add_u32 s47, s47, {WS_VOT}')
    def store_tile(cc, t, D):
        o = TMP + 8*(t & 1)
        L = []
        for q in range(4):
            L.append(f'v_cvt_pk_bf16_f32 v{o+2*q}, v{D+4*q}, v{D+4*q+1}')
            L.append(f'v_cvt_pk_bf16_f32 v{o+2*q+1}, v{D+4*q+2}, v{D+4*q+3}')
        L.append(f's_add_u32 s48, s47, {(cc*20 + t*4)*16384}')
        L.append('s_nop 0')
        for b in (0, 4):
            L.append(f'v_permlane32_swap_b32 v{o+b}, v{o+b+2}')
            L.append(f'v_permlane32_swap_b32 v{o+b+1}, v{o+b+3}')
        L.append(lambda: vm.issue(f'buffer_store_dwordx4 {vr(o)}, v21, s[8:11], s48 offen sc1'))
        L.append(lambda: vm.issue(f'buffer_store_dwordx4 {vr(o+4)}, v21, s[8:11], s48 offen offset:512 sc1'))
        return L
    steps += vo_pass(A, e, vm, 10, VOP, (ACC0, ACC1), store_tile)
    e.run(steps)
    tail()
    A.i('s_nop 7'); A.i('s_nop 7')
    for t in range(5):
        e.side.extend(store_tile(3, t, ACC1 + 16*t))
    e.flush_side()
    vm.wait_all()
    A.i('s_lshl_b32 s48, s40, 7'); A.i(f's_add_u32 s48, s48, {FL_VVO}')

def task_head(A, tail):
    ACT, FR = 0, 160
    VACC, VOP, ACC0, ACC1, TMP = 32, 128, 32, 176, 112
    ACCK, ACCQ, TMPK = 32, 128, 224
    A.i('s_mul_i32 s42, s41, 384'); A.i('s_mov_b32 s49, s42'); A.i('s_mov_b32 s50, s42')
    A.i(f's_mul_i32 s46, s41, {192*1280}')
    A.i('s_lshl_b32 s43, s40, 2'); A.i('s_add_u32 s43, s43, s16')
    A.i(f's_mul_i32 s44, s43, {40*1024}'); A.i(f's_add_u32 s44, s44, {WS_H}')
    vm = VM(A)
    stages = ([Stage(192, SRD_WV, 42, 64*12288) for _ in range(10)] + wo_stages(SRD_WO, 46) +
              [Stage(192, SRD_WK, 49, 64*12288) for _ in range(10)] + [Stage(192, SRD_WQ, 50, 64*12288) for _ in range(10)])
    e = Engine(A, vm, stages, FR)
    e.prologue_parts = act_parts(A, vm, ACT, 40, 44)
    steps = pass192_steps(0, VACC, ACT, vm, True)
    def conv():
        A.i('s_nop 7'); A.i('s_nop 7')
        for t in range(6):
            for a in range(2):
                for r in range(4):
                    s = VACC + 16*t + 8*a + 2*r
                    A.i(f'v_cvt_pk_bf16_f32 v{VOP + 4*(2*t+a) + r}, v{s}, v{s+1}')
        A.i('s_nop 1')
    steps[-1]['post'] = conv
    A.i('v_and_b32 v22, 63, v0'); A.i('v_and_b32 v23, 31, v22'); A.i('v_lshrrev_b32 v24, 3, v23'); A.i('v_lshlrev_b32 v24, 14, v24')
    A.i('v_lshrrev_b32 v25, 5, v22'); A.i('v_lshlrev_b32 v25, 8, v25'); A.i('v_and_b32 v23, 7, v23'); A.i('v_lshlrev_b32 v23, 4, v23')
    A.i('v_add3_u32 v21, v23, v24, v25')
    A.i('v_lshrrev_b32 v23, 4, v22'); A.i('v_and_b32 v23, 1, v23'); A.i('v_mul_u32_u24 v23, 6144, v23')
    A.i('v_lshrrev_b32 v24, 5, v22'); A.i('v_lshlrev_b32 v24, 4, v24'); A.i('v_and_b32 v25, 15, v22'); A.i('v_add_u32 v24, v24, v25')
    A.i('v_lshlrev_b32 v24, 4, v24'); A.i('v_add_u32 v30, v23, v24')
    A.i(f's_mul_i32 s47, s43, {80*16384}'); A.i('s_lshr_b32 s23, s41, 1'); A.i('s_lshl_b32 s23, s23, 10'); A.i('s_add_u32 s47, s47, s23')
    A.i('s_and_b32 s23, s41, 1'); A.i('s_lshl_b32 s23, s23, 7'); A.i('s_add_u32 s47, s47, s23'); A.i(f's_add_u32 s47, s47, {WS_VOT}')
    A.i('s_lshl_b32 s45, s43, 5'); A.i('s_add_u32 s45, s45, s41'); A.i('s_mul_i32 s45, s45, 12288')
    A.i(f's_add_u32 s51, s45, {WS_QT}'); A.i(f's_add_u32 s45, s45, {WS_KT}')
    def store_tile(cc, t, D, tmp=TMP):
        o = tmp + 8*(t & 1)
        L = []
        for q in range(4):
            L.append(f'v_cvt_pk_bf16_f32 v{o+2*q}, v{D+4*q}, v{D+4*q+1}')
            L.append(f'v_cvt_pk_bf16_f32 v{o+2*q+1}, v{D+4*q+2}, v{D+4*q+3}')
        L.append(f's_add_u32 s48, s47, {(cc*20 + t*4)*16384}')
        L.append('s_nop 0')
        for b in (0, 4):
            L.append(f'v_permlane32_swap_b32 v{o+b}, v{o+b+2}')
            L.append(f'v_permlane32_swap_b32 v{o+b+1}, v{o+b+3}')
        L.append(lambda: vm.issue(f'buffer_store_dwordx4 {vr(o)}, v21, s[8:11], s48 offen sc1'))
        L.append(lambda: vm.issue(f'buffer_store_dwordx4 {vr(o+4)}, v21, s[8:11], s48 offen offset:512 sc1'))
        return L
    steps += vo_pass(A, e, vm, 10, VOP, (ACC0, ACC1), store_tile)
    ks_ = pass192_steps(22, ACCK, ACT, vm, False)
    def last_vo():
        for t in range(5): e.side.extend(store_tile(3, t, ACC1 + 16*t, VOP))
    ks_[1]['pre'] = last_vo
    qs_ = pass192_steps(32, ACCQ, ACT, vm, False)
    def kq_tiles(acc, soff):
        for t in range(6):
            L = kq_store_tile(vm, acc+16*t, t, soff, TMPK + 8*(t & 1), addr=30)
            e.side.extend(L)
    qs_[0]['pre'] = lambda: e.flush_side()
    qs_[2]['pre'] = lambda: kq_tiles(ACCK, 45)
    steps += ks_ + qs_
    e.run(steps)
    tail()
    e.flush_side()
    A.i('s_nop 7')
    kq_tiles(ACCQ, 51)
    e.flush_side()
    vm.wait_all()
    A.i('s_lshl_b32 s48, s40, 7'); A.i(f's_add_u32 s48, s48, {FL_VVO}')
    A.i('s_lshl_b32 s49, s40, 5'); A.i('s_add_u32 s49, s49, s41'); A.i('s_lshl_b32 s49, s49, 7'); A.i(f's_add_u32 s49, s49, {FL_KQ}')

def wait_dep(A, off_sgpr, target, backoff=12):
    l0, l1 = A.new('dep'), A.new('dep')
    A.i('s_cmp_eq_u32 s16, 0'); A.i(f's_cbranch_scc0 {l1}')
    A.i('s_mov_b32 s22, 0'); A.i('v_mov_b32 v22, 0')
    A.label(l0)
    A.i(f'buffer_load_dword v23, v22, s[8:11], s{off_sgpr} offen sc1')
    A.i('s_add_u32 s22, s22, 1'); A.i(f's_cmp_gt_u32 s22, {SPIN_MAX//8}'); A.i(f's_cbranch_scc1 {l1}')
    A.i('s_waitcnt vmcnt(0)'); A.i('v_readfirstlane_b32 s23, v23'); A.i('s_nop 3')
    A.i(f's_cmp_ge_u32 s23, {target}'); A.i(f's_cbranch_scc1 {l1}')
    A.i(f's_sleep {backoff}'); A.i(f's_branch {l0}')
    A.label(l1)
    A.i('s_barrier')

def wait_words(A, off_sgpr, n, backoff=12):
    l0, l1 = A.new('dw'), A.new('dw')
    A.i('s_cmp_eq_u32 s16, 0'); A.i(f's_cbranch_scc0 {l1}')
    A.i('s_mov_b32 s22, 0')
    A.i('v_and_b32 v22, 63, v0'); A.i('v_min_u32 v24, %d, v22' % (min(n, 64)-1)); A.i('v_lshlrev_b32 v24, 2, v24')
    if n > 64:
        A.i('v_add_u32 v25, 64, v22'); A.i(f'v_min_u32 v25, {n-1}, v25'); A.i('v_lshlrev_b32 v25, 2, v25')
    A.label(l0)
    A.i(f'buffer_load_dword v23, v24, s[8:11], s{off_sgpr} offen sc1')
    if n > 64: A.i(f'buffer_load_dword v26, v25, s[8:11], s{off_sgpr} offen sc1')
    A.i('s_add_u32 s22, s22, 1'); A.i(f's_cmp_gt_u32 s22, {SPIN_MAX//8}'); A.i(f's_cbranch_scc1 {l1}')
    A.i('s_waitcnt vmcnt(0)')
    if n > 64: A.i('v_min_u32 v23, v23, v26')
    A.i('v_cmp_eq_u32 vcc, 0, v23'); A.i(f's_cbranch_vccz {l1}')
    A.i(f's_sleep {backoff}'); A.i(f's_branch {l0}')
    A.label(l1)
    A.i('s_barrier')

SRD_WG, SRD_WU, SRD_WD, SRD_X, SRD_OUT = 68, 72, 76, 80, 84
NENG = 12
KEYS = (-2, 0, 1.5, 3)
NBACK = 8
def post_table():
    TA, T = [], []
    for r in range(NENG):
        for i in range(20): TA.append((0 << 16) | (r << 8) | i)
    def e(ty, a, n):
        for i in range(n): T.append((ty << 16) | (a << 8) | i)
    for i in range(256): T.append((8 << 16) | i)
    ST = ((1, 4), (2, 8), (3, 4))
    for ty, n in ST:
        for r in range(NBACK): e(ty, r, n)
    for d in range(NBACK, NENG + 2):
        for back in (2, 1, 0):
            r = d - back
            if NBACK <= r < NENG: e(ST[back][0], r, ST[back][1])
    s0 = 4*NENG
    FS = ((4, 10), (5, 2), (6, 24), (7, 10))
    items = []
    for ty_i, (ty, n) in enumerate(FS):
        for r in range(s0, 64): items.append((r + KEYS[ty_i], -ty_i, ty, r, n))
    for _, _, ty, r, n in sorted(items): e(ty, r, n)
    global NPA
    NPA = len(TA)
    return TA + T
POST_T = post_table()
NPOST = len(POST_T)

def gen_post(A, fetch, publish, log_end):
    A.label('P_phase')
    for reg, key, nb in ((SRD_WG, 'wg', 640*3072), (SRD_WU, 'wu', 640*3072), (SRD_WD, 'wd', 1536*1280), (SRD_X, 'x', 2048*1280), (SRD_OUT, 'out', 2048*1280)):
        A.i(f's_load_dwordx2 s[6:7], s[0:1], {KA[key]}'); A.i('s_waitcnt lgkmcnt(0)'); srd(A, reg, 6, nb)
    A.i(f's_load_dwordx2 s[6:7], s[0:1], {KA["dbg"]}'); A.i('s_waitcnt lgkmcnt(0)'); srd(A, 12, 6, 256)
    A.i('s_mov_b32 s54, 0')
    A.label('P_refetch')
    fetch(); A.i('s_waitcnt vmcnt(0)'); publish()
    A.i('s_barrier')
    A.label('P_loop')
    A.i(f'v_mov_b32 v22, {LDS_BC}'); A.i('ds_read_b32 v23, v22'); A.i('s_waitcnt lgkmcnt(0)'); A.i('v_readfirstlane_b32 s60, v23'); A.i('s_nop 3')
    A.i('s_barrier')
    A.i('s_cmp_eq_u32 s58, 4'); A.i('s_cbranch_scc0 P_qb')
    A.i(f's_cmp_ge_u32 s60, {NPA}'); A.i('s_cbranch_scc0 P_go')
    A.i('s_mov_b32 s58, 5'); A.i('s_branch P_refetch')
    A.label('P_qb')
    A.i(f's_add_u32 s60, s60, {NPA}')
    A.i(f's_cmp_ge_u32 s60, {NPOST}'); A.i('s_cbranch_scc0 P_go')
    ts_stamp(A, 5)
    A.i('s_waitcnt vmcnt(0)'); A.i('s_endpgm')
    A.label('P_go')
    A.i('s_getpc_b64 s[92:93]')
    A.label('P_pc')
    A.i('s_add_u32 s92, s92, P_table-P_pc'); A.i('s_addc_u32 s93, s93, 0')
    A.i('s_lshl_b32 s23, s60, 2'); A.i('s_load_dword s57, s[92:93], s23'); A.i('s_waitcnt lgkmcnt(0)')
    A.i('s_lshr_b32 s56, s57, 16'); A.i('s_lshr_b32 s40, s57, 8'); A.i('s_and_b32 s40, s40, 255'); A.i('s_and_b32 s41, s57, 255')
    if KN['log']: A.i('s_memrealtime s[62:63]'); A.i('s_waitcnt lgkmcnt(0)')
    for ty, lab in ((8, 'P_wf'), (7, 'P_f2f'), (6, 'P_f1f'), (5, 'P_lnf'), (4, 'P_t2f'), (3, 'P_f2'), (2, 'P_f1'), (1, 'P_ln')):
        A.i(f's_cmp_eq_u32 s56, {ty}'); A.i(f's_cbranch_scc1 {lab}')
    A.i('s_mul_i32 s24, s41, 13108'); A.i('s_lshr_b32 s24, s24, 16')
    A.i('s_mul_i32 s25, s24, 5'); A.i('s_sub_u32 s41, s41, s25')
    A.i('s_mov_b32 s55, s40'); A.i('s_lshl_b32 s40, s40, 2'); A.i('s_add_u32 s40, s40, s24')
    def wait_seg(bo=12, regs=(48, 49)):
        r0, r1 = regs
        l5, l6 = A.new('ws'), A.new('ws')
        A.i('s_cmp_ge_u32 s40, 62'); A.i(f's_cbranch_scc1 {l5}')
        A.i(f's_add_u32 s{r0}, s40, 1'); A.i(f's_lshl_b32 s{r0}, s{r0}, 7'); A.i(f's_add_u32 s{r0}, s{r0}, {FL_PT}')
        wait_words(A, r0, 32, bo)
        A.i(f's_branch {l6}')
        A.label(l5)
        A.i(f's_mov_b32 s{r0}, {FL_PT + 63*128}'); A.i(f's_mov_b32 s{r1}, {FL_VM + 63*512}')
        wait_words(A, r0, 32, 2); wait_words(A, r1, 80, 2)
        A.label(l6)
    wait_seg()
    post.task_t2(A, sc=' sc1', xsrd=SRD_X, tail=fetch)
    A.i('s_lshl_b32 s48, s55, 7'); A.i(f's_add_u32 s48, s48, {FL_T2}')
    A.i('s_branch P_end')
    A.label('P_ln')
    A.i('s_mov_b32 s55, s40')
    A.i('s_lshl_b32 s48, s40, 7'); A.i(f's_add_u32 s48, s48, {FL_T2}')
    wait_dep(A, 48, 20)
    A.i('s_lshl_b32 s40, s40, 2'); A.i('s_add_u32 s40, s40, s41'); A.i('s_lshl_b32 s40, s40, 1')
    A.i(f's_mov_b32 s27, {WS_X1}')
    for it in range(2):
        small.role_ln(A, lambda: None, 's27', 3, 4, WS_H2, sc=' sc1', ssrd=8)
        if it == 0: A.i('s_add_u32 s40, s40, 1')
    fetch()
    A.i('s_waitcnt vmcnt(0)')
    A.i('s_lshl_b32 s48, s55, 7'); A.i(f's_add_u32 s48, s48, {FL_LN}')
    A.i('s_branch P_end')
    A.label('P_f1')
    A.i('s_lshl_b32 s48, s40, 7'); A.i(f's_add_u32 s48, s48, {FL_LN}')
    wait_dep(A, 48, 4)
    setup_lane(A)
    post.task_ffn1(A, sc=' sc1', srds=(SRD_WG, SRD_WU), tail=fetch)
    A.i('s_lshl_b32 s48, s40, 7'); A.i(f's_add_u32 s48, s48, {FL_F1}')
    A.i('s_branch P_end')
    A.label('P_f2')
    A.i('s_lshl_b32 s48, s40, 7'); A.i(f's_add_u32 s48, s48, {FL_F1}')
    wait_dep(A, 48, 8)
    setup_lane(A)
    post.task_ffn2(A, sc=' sc1', srds=(SRD_WD, SRD_OUT), tail=fetch)
    A.i('s_mov_b32 s48, -1')
    A.i('s_branch P_end')
    A.label('P_t2f')
    fast.task_t2f(A, SRD_X, fetch, lambda: wait_seg(4, (52, 53)))
    A.i('s_lshl_b32 s48, s40, 7'); A.i(f's_add_u32 s48, s48, {FL_T2S}')
    A.i('s_branch P_end')
    A.label('P_lnf')
    A.i('s_mov_b32 s55, s40')
    A.i('s_lshl_b32 s48, s40, 7'); A.i(f's_add_u32 s48, s48, {FL_T2S}')
    A.i('s_lshl_b32 s40, s40, 1'); A.i('s_add_u32 s40, s40, s41')
    A.i(f's_mov_b32 s27, {WS_X1}')
    small.role_ln(A, lambda: None, 's27', 3, 4, WS_H2, sc=' sc1', ssrd=8, dep=lambda: wait_dep(A, 48, 10, 2))
    fetch()
    A.i('s_waitcnt vmcnt(0)')
    A.i('s_lshl_b32 s48, s55, 7'); A.i(f's_add_u32 s48, s48, {FL_LNS - 48*128}')
    A.i('s_branch P_end')
    A.label('P_wf')
    A.i('s_mov_b32 s40, s41')
    small.role_wfrag(A, ' sc1')
    fetch(); A.i('s_waitcnt vmcnt(0)')
    A.i(f's_mov_b32 s48, {FL_WF}')
    A.i('s_branch P_end')
    def wf_ready():
        lab = A.new('wfok')
        A.i('s_cmp_eq_u32 s54, 1'); A.i(f's_cbranch_scc1 {lab}')
        A.i(f's_mov_b32 s48, {FL_WF}'); wait_dep(A, 48, 256, 8); A.i('s_mov_b32 s54, 1')
        A.label(lab)
    A.label('P_f1f')
    wf_ready()
    A.i('s_lshl_b32 s55, s40, 7'); A.i(f's_add_u32 s55, s55, {FL_LNS - 48*128}')
    fast.task_f1f(A, fetch, lambda: wait_dep(A, 55, 2, 2))
    A.i('s_lshl_b32 s48, s40, 7'); A.i(f's_add_u32 s48, s48, {FL_F1S - 48*128}')
    A.i('s_branch P_end')
    A.label('P_f2f')
    wf_ready()
    A.i('s_lshl_b32 s55, s40, 7'); A.i(f's_add_u32 s55, s55, {FL_F1S - 48*128}')
    fast.task_f2f(A, SRD_OUT, fetch, lambda: wait_dep(A, 55, 24, 2))
    A.i('s_mov_b32 s48, -1')
    A.label('P_end')
    publish()
    A.i('s_barrier')
    lab = A.new('P_nosig')
    A.i('s_cmp_eq_u32 s48, -1'); A.i(f's_cbranch_scc1 {lab}')
    signal_add(A, 48)
    A.label(lab)
    log_end(4*QLEN)
    A.i('s_branch P_loop')
    A.L.append('.p2align 2')
    A.L.append('.type P_table,@object')
    A.label('P_table')
    for i in range(0, NPOST, 16):
        A.L.append('.long ' + ','.join(str(x) for x in POST_T[i:i+16]))
    A.L.append(f'.size P_table, {4*NPOST}')

NSPLIT = 256
QLEN = NSPLIT + (16 - NSPLIT//16)*8
def gen_worker(A):
    gemm.set_ring(W_NSLOT)
    A.label('W_role')
    if KN['post'] and KN.get('spareA', True):
        A.i('s_getreg_b32 s58, hwreg(HW_REG_XCC_ID)'); A.i('s_and_b32 s58, s58, 7'); A.i('s_cmp_lt_u32 s58, 4'); A.i('s_cbranch_scc0 W_pre')
        A.label('W_serveA')
        lab = A.new('W_reg')
        A.i('s_cmp_eq_u32 s16, 0'); A.i(f's_cbranch_scc0 {lab}')
        A.i('s_mov_b64 exec, 1'); A.i('v_mov_b32 v22, 1'); A.i('v_mov_b32 v23, 104')
        A.i('buffer_atomic_add v22, v23, s[12:15], 0 offen'); A.i('s_waitcnt vmcnt(0)'); A.i('s_mov_b64 exec, -1')
        A.label(lab)
        A.i('s_mov_b32 s58, 4')
        A.i('s_getpc_b64 s[92:93]')
        A.label('W_pc')
        A.i('s_add_u32 s92, s92, P_phase-W_pc'); A.i('s_addc_u32 s93, s93, 0'); A.i('s_setpc_b64 s[92:93]')
        A.label('W_pre')
    if KN.get('nospare'):
        A.i('s_getreg_b32 s58, hwreg(HW_REG_XCC_ID)'); A.i('s_and_b32 s58, s58, 15'); A.i('s_cmp_lt_u32 s58, 4'); A.i('s_cbranch_scc0 W_go0')
        A.i('s_endpgm')
        A.label('W_go0')
    for reg, key, nb in ((SRD_WQ, 'wq', 640*12288), (SRD_WK, 'wk', 640*12288), (SRD_WV, 'wv', 640*12288), (SRD_WO, 'wo', 6144*1280)):
        A.i(f's_load_dwordx2 s[6:7], s[0:1], {KA[key]}'); A.i('s_waitcnt lgkmcnt(0)'); srd(A, reg, 6, nb)
    A.i(f's_load_dwordx2 s[6:7], s[0:1], {KA["dbg"]}'); A.i('s_waitcnt lgkmcnt(0)'); srd(A, 12, 6, 256)
    setup_lane(A); setup_dma192(A, 12288); setup_dma160(A, 1280)
    A.i('s_getreg_b32 s58, hwreg(HW_REG_XCC_ID)'); A.i('s_and_b32 s58, s58, 3')
    A.i('s_mov_b32 s59, 0')
    def fetch():
        lab = A.new('W_f')
        A.i('s_cmp_eq_u32 s16, 0'); A.i(f's_cbranch_scc0 {lab}')
        A.i('s_lshl_b32 s23, s58, 2'); A.i(f's_add_u32 s23, s23, {Q_WORD}')
        A.i('s_mov_b64 exec, 1'); A.i(f'v_mov_b32 v{vNEXT}, 1'); A.i('v_mov_b32 v22, s23')
        A.i(f'buffer_atomic_add v{vNEXT}, v22, s[12:15], 0 offen sc0')
        A.i('s_mov_b64 exec, -1')
        A.label(lab)
    def publish():
        lab = A.new('W_p')
        A.i('s_cmp_eq_u32 s16, 0'); A.i(f's_cbranch_scc0 {lab}')
        A.i('s_mov_b64 exec, 1'); A.i(f'v_mov_b32 v22, {LDS_BC}'); A.i(f'ds_write_b32 v22, v{vNEXT}'); A.i('s_waitcnt lgkmcnt(0)')
        A.i('s_mov_b64 exec, -1')
        A.label(lab)
    A.label('W_refetch')
    fetch(); A.i('s_waitcnt vmcnt(0)'); publish()
    A.i('s_barrier')
    A.label('W_loop')
    A.i(f'v_mov_b32 v22, {LDS_BC}'); A.i('ds_read_b32 v23, v22'); A.i('s_waitcnt lgkmcnt(0)'); A.i('v_readfirstlane_b32 s60, v23'); A.i('s_nop 3')
    A.i('s_barrier')
    A.i(f's_cmp_ge_u32 s60, {QLEN}'); A.i('s_cbranch_scc0 W_have')
    A.i('s_add_u32 s59, s59, 1'); A.i('s_cmp_ge_u32 s59, 4'); A.i('s_cbranch_scc1 W_done')
    A.i('s_add_u32 s58, s58, 1'); A.i('s_and_b32 s58, s58, 3'); A.i('s_branch W_refetch')
    A.label('W_have')
    A.i('s_mov_b32 s61, s58')
    if KN['log']: A.i('s_memrealtime s[62:63]'); A.i('s_waitcnt lgkmcnt(0)')
    if NSPLIT < 256: A.i(f's_cmp_lt_u32 s60, {NSPLIT}'); A.i('s_cbranch_scc0 W_head')
    A.i('s_and_b32 s40, s60, 1'); A.i('s_lshr_b32 s23, s60, 5'); A.i('s_lshl_b32 s23, s23, 1'); A.i('s_add_u32 s40, s40, s23')
    A.i('s_lshr_b32 s41, s60, 2'); A.i('s_and_b32 s41, s41, 7'); A.i('s_lshl_b32 s23, s61, 3'); A.i('s_add_u32 s41, s41, s23')
    A.i('s_bitcmp1_b32 s60, 1'); A.i('s_cbranch_scc1 W_kq')
    task_vvo2(A, fetch)
    A.i('s_mov_b32 s49, -1')
    A.i('s_branch W_end')
    A.label('W_kq')
    task_kq2(A, fetch)
    A.i('s_mov_b32 s49, s48'); A.i('s_mov_b32 s48, -1')
    if NSPLIT < 256:
        A.i('s_branch W_end')
        A.label('W_head')
        A.i(f's_sub_u32 s23, s60, {NSPLIT}')
        A.i('s_lshr_b32 s40, s23, 5'); A.i('s_lshl_b32 s40, s40, 2'); A.i('s_and_b32 s24, s23, 3'); A.i('s_add_u32 s40, s40, s24'); A.i(f's_add_u32 s40, s40, {NSPLIT//16}')
        A.i('s_lshr_b32 s41, s23, 2'); A.i('s_and_b32 s41, s41, 7')
        A.i('s_lshl_b32 s23, s61, 3'); A.i('s_add_u32 s41, s41, s23')
        task_head(A, fetch)
    A.label('W_end')
    if TS['on']:
        lab = A.new('ts1'); A.i('s_cmp_lt_u32 s60, 32'); A.i(f's_cbranch_scc0 {lab}'); ts_stamp(A, 9, 22); A.label(lab)
    publish()
    A.i('s_barrier')
    for r in (48, 49):
        lab = A.new('W_nosig')
        A.i(f's_cmp_eq_u32 s{r}, -1'); A.i(f's_cbranch_scc1 {lab}')
        signal_add(A, r)
        A.label(lab)
    def log_end(base, mulq=False):
        if not KN['log']: return
        A.i('s_memrealtime s[64:65]'); A.i('s_waitcnt lgkmcnt(0)')
        A.i('s_getreg_b32 s66, hwreg(HW_REG_XCC_ID)')
        A.i('s_lshl_b32 s66, s66, 16'); A.i('s_lshl_b32 s23, s40, 8'); A.i('s_or_b32 s66, s66, s23'); A.i('s_or_b32 s66, s66, s41')
        A.i('v_mov_b32 v24, s62'); A.i('v_mov_b32 v25, s64'); A.i('v_mov_b32 v26, s66'); A.i('v_mov_b32 v27, s60'); A.i('v_mov_b32 v23, 0')
        if mulq: A.i(f's_mul_i32 s23, s61, {QLEN}'); A.i('s_add_u32 s23, s23, s60')
        else: A.i(f's_add_u32 s23, s60, {base}')
        A.i('s_lshl_b32 s23, s23, 4'); A.i(f's_add_u32 s23, s23, {WS_LOG + 0x30000}')
        A.i('s_mov_b64 exec, 1'); A.i('buffer_store_dwordx4 v[24:27], v23, s[8:11], s23 offen'); A.i('s_mov_b64 exec, -1')
    log_end(0, True)
    A.i('s_branch W_loop')
    A.label('W_done')
    if KN['post'] and KN.get('spareA', True):
        lab = A.new('W_cnt')
        A.i('s_cmp_eq_u32 s16, 0'); A.i(f's_cbranch_scc0 {lab}')
        A.i('v_mov_b32 v22, 104'); A.i('buffer_load_dword v23, v22, s[12:15], 0 offen sc1'); A.i('s_waitcnt vmcnt(0)')
        A.i(f'v_mov_b32 v22, {LDS_BC + 16}'); A.i('ds_write_b32 v22, v23'); A.i('s_waitcnt lgkmcnt(0)')
        A.label(lab)
        A.i('s_barrier')
        A.i(f'v_mov_b32 v22, {LDS_BC + 16}'); A.i('ds_read_b32 v23, v22'); A.i('s_waitcnt lgkmcnt(0)')
        A.i('v_readfirstlane_b32 s23, v23'); A.i('s_nop 3'); A.i('s_cmp_lt_u32 s23, 4'); A.i('s_cbranch_scc0 W_toB')
        A.i('s_getpc_b64 s[92:93]')
        A.label('W_pc2')
        A.i('s_sub_u32 s92, s92, W_pc2-W_serveA'); A.i('s_subb_u32 s93, s93, 0'); A.i('s_setpc_b64 s[92:93]')
        A.label('W_toB')
    A.i('s_mov_b32 s58, 5')
    if KN['post']: gen_post(A, fetch, publish, log_end)
    else: A.i('s_waitcnt vmcnt(0)'); A.i('s_endpgm')
    gemm.set_ring(4)
```

```python
S_TOK, DM, NH, DH, NSEG, SEG, MM, FF = 2048, 640, 32, 192, 64, 32, 8, 1536

KA = dict(x=0, mem0=8, wq=16, wk=24, wv=32, wo=40, seglen=48, bx=56, wg=64, wu=72, wd=80, c=88, wmod=96, out=104, dbg=112, ws=120)

WS_TAB   = 0x0000000
WS_MOD   = 0x0001000
WS_FLAGS = 0x0020000
WS_FLAGS_SIZE = 0x20000
FL_KQ  = WS_FLAGS
FL_VVO = WS_FLAGS + 0x10000
FL_PT  = WS_FLAGS + 0x18000
FL_VM  = WS_FLAGS + 0x11000
FL_T2S = WS_FLAGS + 0x13000
FL_LNS = WS_FLAGS + 0x17000
FL_F1S = WS_FLAGS + 0x17800
FL_CAL = WS_FLAGS + 0x16d00
FL_B   = WS_FLAGS + 0x16c00
FL_WF  = WS_FLAGS + 0x16f00
FL_T2  = WS_FLAGS + 0x15000
FL_LN  = WS_FLAGS + 0x15800
FL_F1  = WS_FLAGS + 0x16000
WS_HAND  = 0x0200000
WS_HAND_SIZE = 0x600000
MEM_STRIDE = 32768
P_STRIDE   = 65536
HB_MEM = 0
HB_P   = 0x200000
WS_H     = 0x0A00000
WS_X1    = 0x0D00000
WS_LOG   = 0x0F80000
WS_H2    = 0x1000000
WS_HM    = 0x1300000
WS_PTOK  = 0x1900000
WS_WQK   = 0x1E00000
WS_BW    = 0x2D00000
WS_KT    = 0x4600000
WS_QT    = 0x5E00000
WS_VOM   = 0x7600000
WS_VOT   = 0x8A00000
WS_WGF   = 0xDA00000
WS_WDF   = 0xDE00000
WS_SIZE  = 0x10000000
assert WS_VOT + 64*80*16384 <= WS_SIZE

BT_SQ, BT_BQ, BT_MOD, BT_INIT, BT_BDONE, BT_LQ, BT_LN = 0, 128, 256, 384, 512, 640, 1024
BT_SIZE = 4096
DB_BOOT, DB_CAL = 108, 224
N_INIT = 4 + 32 + 1

def hand_base(A, dst, ptr_lo=4):
    f = A.i if hasattr(A, 'i') else A
    f(f's_sub_u32 s{dst}, 0, s{ptr_lo}')
    f(f's_and_b32 s{dst}, s{dst}, 0x1fffff')
    f(f's_add_u32 s{dst}, s{dst}, {WS_HAND}')

class Asm:
    def __init__(self):
        self.L = []
        self.uid = 0
    def __call__(self, s):
        for line in s.split('\n'):
            line = line.rstrip()
            if line.strip():
                self.L.append(line if line.endswith(':') and not line.startswith(' ') else '  ' + line.strip())
    def label(self, n):
        self.L.append(f'{n}:')
    def c(self, s):
        self.L.append(f'  ; {s}')
    def new(self, p='L'):
        self.uid += 1
        return f'{p}_{self.uid}'
    def text(self):
        return '\n'.join(self.L) + '\n'

def vr(b, n=4):
    return f'v[{b}:{b+n-1}]' if n > 1 else f'v{b}'
def ar(b, n=4):
    return f'a[{b}:{b+n-1}]' if n > 1 else f'a{b}'
def sr(b, n=2):
    return f's[{b}:{b+n-1}]' if n > 1 else f's{b}'

class Lgkm:
    def __init__(self, asm):
        self.asm = asm; self.q = []
    def issue(self, text, tag):
        self.asm(text); self.q.append(tag)
        assert len(self.q) <= 15, f'too many LDS ops in flight: {self.q}'
    def wait(self, tag):
        if tag not in self.q: return
        i = max(j for j, t in enumerate(self.q) if t == tag)
        n = len(self.q) - 1 - i
        self.asm(f's_waitcnt lgkmcnt({n})')
        self.q = self.q[i+1:]
    def wait_all(self):
        self.asm('s_waitcnt lgkmcnt(0)'); self.q = []

TS = dict(on=False)
def ts_stamp(A, slot, vtmp=2):
    if not TS['on']: return
    f = A.i if hasattr(A, 'i') else A
    f('s_memrealtime s[98:99]'); f('s_waitcnt lgkmcnt(0)'); f(f'v_mov_b32 v{vtmp}, s98')
    f('s_lshl_b32 s97, s2, 2'); f(f's_add_u32 s97, s97, {0xF80000 + 0x70000 + slot*4096}')
    f(f'buffer_store_dword v{vtmp}, off, s[8:11], s97'); f('s_waitcnt vmcnt(0)')

def kernel_header(A, name):
    A.L.append('.text')
    A.L.append(f'.globl {name}')
    A.L.append('.p2align 8')
    A.L.append(f'.type {name},@function')
    A.L.append(f'{name}:')

def kernel_desc(name, vgpr, accum, sgpr=100):
    return f'''.section .rodata,"a"
.p2align 6
.amdhsa_kernel {name}
  .amdhsa_next_free_vgpr {vgpr}
  .amdhsa_next_free_sgpr {sgpr}
  .amdhsa_accum_offset {accum}
  .amdhsa_group_segment_fixed_size 0
  .amdhsa_kernarg_size 128
  .amdhsa_user_sgpr_count 2
  .amdhsa_user_sgpr_kernarg_segment_ptr 1
  .amdhsa_system_sgpr_workgroup_id_x 1
  .amdhsa_float_denorm_mode_32 3
  .amdhsa_float_denorm_mode_16_64 3
.end_amdhsa_kernel
'''

def srd(A, dst, ptr, nbytes):
    A(f's_mov_b32 s{dst}, s{ptr}')
    A(f's_and_b32 s{dst+1}, s{ptr+1}, 0xffff')
    A(f's_mov_b32 s{dst+2}, {nbytes:#x}')
    A(f's_mov_b32 s{dst+3}, 0x20000')
```

```python
from common import *
from rec import Em, LG

NSLOT, DEPTH, SLOT = 4, 3, 24576
def set_ring(n, slot=24576):
    global NSLOT, DEPTH, SLOT
    NSLOT, DEPTH, SLOT = n, n-1, slot

OPT = dict(spread=True, nodma=False, dma_t=(1, 4))
SW, SW5 = 90, 91
def setup_sw(A):
    A.i(f's_mul_i32 s{SW}, s16, 6144'); A.i(f's_mul_i32 s{SW5}, s16, 5120')

class VM:
    def __init__(self, A): self.A = A; self.q = []
    def issue(self, text, tag=None):
        self.A.i(text); self.q.append(tag)
    def wait(self, tag):
        if tag not in self.q: return
        k = max(j for j, t in enumerate(self.q) if t == tag)
        n = len(self.q) - 1 - k
        self.A.i(f's_waitcnt vmcnt({min(n, 63)})')
        self.q = self.q[k+1:] if n <= 63 else self.q[-63:]
    def wait_all(self):
        self.A.i('s_waitcnt vmcnt(0)'); self.q = []

vL16, vRdE, vRdO, vRd5 = 1, 2, 3, 4
vCur = 6
vD192, vD160 = 10, 16
vT = 22

def setup_lane(A):
    setup_sw(A)
    A.i('v_and_b32 v22, 63, v0')
    A.i(f'v_lshlrev_b32 v{vL16}, 4, v22')
    A.i('v_lshrrev_b32 v23, 5, v22'); A.i('v_lshlrev_b32 v23, 2, v23')
    A.i('v_and_b32 v24, 15, v22'); A.i('v_lshrrev_b32 v25, 2, v24'); A.i('v_add_u32 v23, v23, v25')
    A.i('v_lshrrev_b32 v25, 4, v22'); A.i('v_and_b32 v25, 1, v25'); A.i('v_lshlrev_b32 v25, 5, v25')
    A.i('v_and_b32 v26, 3, v24'); A.i('v_lshlrev_b32 v26, 3, v26'); A.i('v_add_u32 v25, v25, v26')
    A.i('v_mul_u32_u24 v26, 384, v23'); A.i('v_add_u32 v26, v26, v25')
    A.i('v_lshrrev_b32 v27, 1, v23'); A.i('v_and_b32 v27, 1, v27'); A.i('v_lshlrev_b32 v27, 6, v27')
    A.i(f'v_add_u32 v{vRdE}, v26, v27'); A.i(f'v_sub_u32 v{vRdO}, v26, v27')
    A.i('v_mul_u32_u24 v26, 320, v23'); A.i(f'v_add_u32 v{vRd5}, v26, v25')

def setup_dma192(A, pitch):
    A.i('v_and_b32 v22, 63, v0')
    for j in range(6):
        A.i(f's_mul_i32 s23, s16, 384'); A.i(f's_add_u32 s23, s23, {64*j}')
        A.i('v_add_u32 v23, s23, v22')
        A.i('v_mul_u32_u24 v24, 2731, v23'); A.i('v_lshrrev_b32 v24, 16, v24')
        A.i('v_mul_u32_u24 v25, 24, v24'); A.i('v_sub_u32 v25, v23, v25')
        A.i('v_lshrrev_b32 v26, 1, v24'); A.i('v_and_b32 v26, 1, v26'); A.i('v_lshlrev_b32 v26, 2, v26')
        A.i('v_xor_b32 v25, v25, v26'); A.i('v_lshlrev_b32 v25, 4, v25')
        A.i(f'v_mul_u32_u24 v24, {pitch}, v24'); A.i(f'v_add_u32 v{vD192+j}, v24, v25')

def setup_dma160(A, pitch):
    A.i('v_and_b32 v22, 63, v0')
    for j in range(5):
        A.i(f's_mul_i32 s23, s16, 320'); A.i(f's_add_u32 s23, s23, {64*j}')
        A.i('v_add_u32 v23, s23, v22')
        A.i('v_mul_u32_u24 v24, 3277, v23'); A.i('v_lshrrev_b32 v24, 16, v24')
        A.i('v_mul_u32_u24 v25, 20, v24'); A.i('v_sub_u32 v25, v23, v25'); A.i('v_lshlrev_b32 v25, 4, v25')
        A.i(f'v_mul_u32_u24 v24, {pitch}, v24'); A.i(f'v_add_u32 v{vD160+j}, v24, v25')

class Stage:
    def __init__(self, kind, srd, soff, add):
        self.kind, self.srd, self.soff, self.add = kind, srd, soff, add

class Engine:
    def __init__(self, A, vm, stages, fragbase, ldsbase=0):
        self.A, self.vm, self.stages, self.fb, self.lb = A, vm, stages, fragbase, ldsbase
        self.lg = LG(A)
        self.side = []
        self.dmaq = []
        self.side_rate = 2
    def dma(self, i, spread=False):
        if i >= len(self.stages): return
        A, st = self.A, self.stages[i]
        if OPT['nodma'] and i >= DEPTH: return
        if spread and OPT['spread']:
            n = 6 if st.kind == 192 else 5
            vb = vD192 if st.kind == 192 else vD160
            slot = self.lb + (i % NSLOT)*SLOT
            for j in range(n):
                def one(j=j):
                    A.i(f's_add_u32 m0, s{SW}, {slot + j*1024}' if st.kind == 192 else f's_add_u32 m0, s{SW5}, {slot + j*1024}')
                    A.i('s_nop 0')
                    self.vm.issue(f'buffer_load_dwordx4 v{vb+j}, s[{st.srd}:{st.srd+3}], s{st.soff} offen lds', f'st{i}')
                    if j == n-1 and st.add: A.i(f's_add_u32 s{st.soff}, s{st.soff}, {st.add}')
                self.dmaq.append(one)
            return
        n = 6 if st.kind == 192 else 5
        vb = vD192 if st.kind == 192 else vD160
        slot = self.lb + (i % NSLOT)*SLOT
        A.i(f's_mul_i32 s23, s16, {n*1024}')
        for j in range(n):
            A.i(f's_add_u32 m0, s23, {slot + j*1024}')
            if j == 0: A.i('s_nop 0')
            else: A.i(f's_nop 0')
            self.vm.issue(f'buffer_load_dwordx4 v{vb+j}, s[{st.srd}:{st.srd+3}], s{st.soff} offen lds', f'st{i}')
        if st.add: A.i(f's_add_u32 s{st.soff}, s{st.soff}, {st.add}')
    def set_bases(self, i):
        if i >= len(self.stages): return
        A, st = self.A, self.stages[i]
        slot = self.lb + (i % NSLOT)*SLOT
        p = vCur + 2*(i & 1)
        if st.kind == 192:
            A.i(f'v_add_u32 v{p}, {slot}, v{vRdE}'); A.i(f'v_add_u32 v{p+1}, {slot}, v{vRdO}')
        else:
            A.i(f'v_add_u32 v{p}, {slot}, v{vRd5}')
    def frag(self, j, t): return self.fb + (j & 1)*24 + 4*t
    def read(self, j, step, t):
        i, ksl = step['stage'], step['ksl']
        st = self.stages[i]; p = vCur + 2*(i & 1); f = self.frag(j, t)
        if st.kind == 192:
            base = p + (t & 1); pitch = 384
        else:
            base = p; pitch = 320
        o = 16*ksl*pitch + t*64
        self.lg.issue(f'ds_read_b64_tr_b16 a[{f}:{f+1}], v{base} offset:{o}', f'f{j}_{t}a')
        self.lg.issue(f'ds_read_b64_tr_b16 a[{f+2}:{f+3}], v{base} offset:{o + 8*pitch}', f'f{j}_{t}')
    def pop_side(self, n):
        while n > 0 and self.side:
            s = self.side.pop(0)
            if callable(s): s()
            else: self.A.i(s)
            n -= 1
    def flush_side(self): self.pop_side(10**9)
    def run(self, steps):
        A = self.A
        parts = getattr(self, 'prologue_parts', None)
        for i in range(DEPTH):
            self.dma(i)
            if parts and i < len(parts): parts[i]()
        if parts:
            for p in parts[DEPTH:]: p()
        self.prologue_hook() if hasattr(self, 'prologue_hook') else None
        self.vm.wait('st0'); A.i('s_barrier')
        if getattr(self, 'after_first_barrier', None): self.after_first_barrier()
        self.set_bases(0)
        for t in range(steps[0]['nt']): self.read(0, steps[0], t)
        for j, s in enumerate(steps):
            nxt = steps[j+1] if j+1 < len(steps) else None
            if s.get('pre'): s['pre']()
            if s['ksl'] == 2:
                i = s['stage']
                if i+1 < len(self.stages):
                    while self.dmaq: self.dmaq.pop(0)()
                    self.vm.wait(f'st{i+1}'); A.i('s_barrier')
                    self.dma(i + DEPTH, spread=True)
                    self.set_bases(i+1)
            for t in range(max(s['nt'], nxt['nt'] if nxt else 0)):
                if t < s['nt']:
                    self.lg.wait(f'f{j}_{t}')
                    A.i(s['mfma'](t, f'a[{self.frag(j,t)}:{self.frag(j,t)+3}]'))
                if nxt and t < nxt['nt']: self.read(j+1, nxt, t)
                if self.dmaq and t in OPT['dma_t']: self.dmaq.pop(0)()
                self.pop_side(self.side_rate)
            if s.get('post'): s['post']()
        while self.dmaq: self.dmaq.pop(0)()

MF = 'v_mfma_f32_32x32x16_bf16'

def load_act(A, vm, areg, nks, soff, sc=''):
    for ks in range(nks):
        if ks and ks % 4 == 0: A.i(f's_add_u32 s{soff}, s{soff}, 4096')
        vm.issue(f'buffer_load_dwordx4 a[{areg+4*ks}:{areg+4*ks+3}], v{vL16}, s[8:11], s{soff} offen offset:{(ks%4)*1024}{sc}', f'act{ks}')

def act_parts(A, vm, areg, nks, soff, sc=''):
    def grp(g):
        def f():
            for ks in range(4*g, min(4*g+4, nks)):
                if ks and ks % 4 == 0: A.i(f's_add_u32 s{soff}, s{soff}, 4096')
                vm.issue(f'buffer_load_dwordx4 a[{areg+4*ks}:{areg+4*ks+3}], v{vL16}, s[8:11], s{soff} offen offset:{(ks%4)*1024}{sc}', f'act{ks}')
        return f
    return [grp(g) for g in range((nks+3)//4)]

def pass192_steps(stage0, acc, act, vm, first_pass):
    steps = []
    for ks in range(40):
        def mf(t, fr, ks=ks):
            c = '0' if ks == 0 else vr(acc+16*t, 16)
            return f'{MF} {vr(acc+16*t,16)}, {fr}, a[{act+4*ks}:{act+4*ks+3}], {c}'
        st = dict(stage=stage0 + ks//4, ksl=ks % 4, nt=6, mfma=mf)
        if first_pass: st['pre'] = (lambda ks=ks: vm.wait(f'act{ks}'))
        steps.append(st)
    return steps

def task_kq(A, w_ka, out_ws):
    ACT, FR, ACC = 0, 160, 32
    A.i(f's_load_dwordx2 s[6:7], s[0:1], {w_ka}')
    setup_dma192(A, 12288)
    A.i('s_waitcnt lgkmcnt(0)')
    srd(A, 12, 6, 640*12288)
    A.i('s_mul_i32 s42, s41, 384')
    A.i('s_lshl_b32 s43, s40, 2'); A.i('s_add_u32 s43, s43, s16')
    A.i(f's_mul_i32 s44, s43, {40*1024}'); A.i(f's_add_u32 s44, s44, {WS_H}')
    vm = VM(A)
    stages = [Stage(192, 12, 42, 64*12288) for _ in range(10)]
    e = Engine(A, vm, stages, FR)
    e.prologue_hook = lambda: load_act(A, vm, ACT, 40, 44)
    e.run(pass192_steps(0, ACC, ACT, vm, True))
    A.i('v_and_b32 v22, 63, v0'); A.i('v_lshrrev_b32 v23, 4, v22'); A.i('v_and_b32 v23, 1, v23'); A.i('v_mul_u32_u24 v23, 6144, v23')
    A.i('v_lshrrev_b32 v24, 5, v22'); A.i('v_lshlrev_b32 v24, 4, v24'); A.i('v_and_b32 v25, 15, v22'); A.i('v_add_u32 v24, v24, v25')
    A.i('v_lshlrev_b32 v24, 4, v24'); A.i('v_add_u32 v23, v23, v24')
    A.i('s_lshl_b32 s45, s43, 5'); A.i('s_add_u32 s45, s45, s41'); A.i('s_mul_i32 s45, s45, 12288'); A.i(f's_add_u32 s45, s45, {out_ws}')
    A.i('s_nop 7')
    for t in range(6):
        D = ACC + 16*t
        o = 24 + (t & 1)*0
        ga, gb = 24, 28
        A.i(f'v_cvt_pk_bf16_f32 v{ga}, v{D}, v{D+1}'); A.i(f'v_cvt_pk_bf16_f32 v{ga+1}, v{D+2}, v{D+3}')
        A.i(f'v_cvt_pk_bf16_f32 v{ga+2}, v{D+8}, v{D+9}'); A.i(f'v_cvt_pk_bf16_f32 v{ga+3}, v{D+10}, v{D+11}')
        A.i(f'v_cvt_pk_bf16_f32 v{gb}, v{D+4}, v{D+5}'); A.i(f'v_cvt_pk_bf16_f32 v{gb+1}, v{D+6}, v{D+7}')
        A.i(f'v_cvt_pk_bf16_f32 v{gb+2}, v{D+12}, v{D+13}'); A.i(f'v_cvt_pk_bf16_f32 v{gb+3}, v{D+14}, v{D+15}')
        if t == 4: A.i('s_add_u32 s45, s45, 4096')
        vm.issue(f'buffer_store_dwordx4 {vr(ga)}, v23, s[8:11], s45 offen offset:{(t%4)*1024}')
        vm.issue(f'buffer_store_dwordx4 {vr(gb)}, v23, s[8:11], s45 offen offset:{(t%4)*1024+512}')
        A.i('s_nop 1')
    vm.wait_all()

def vo_pass(A, e, vm, stage0, VOP, ACCS, store_tile):
    steps = []
    for cc in range(4):
        acc = ACCS[cc & 1]
        for ks in range(12):
            def mf(t, fr, ks=ks, acc=acc):
                c = '0' if ks == 0 else vr(acc+16*t, 16)
                return f'{MF} {vr(acc+16*t,16)}, {vr(VOP+4*ks)}, {fr}, {c}'
            st = dict(stage=stage0 + cc*3 + ks//4, ksl=ks % 4, nt=5, mfma=mf)
            if ks == 1 and cc > 0:
                def pre(cc=cc):
                    for t in range(5): e.side.extend(store_tile(cc-1, t, ACCS[(cc-1) & 1] + 16*t))
                st['pre'] = pre
            if ks == 11:
                st['post'] = (lambda: e.flush_side())
            steps.append(st)
    return steps

def wo_stages(srd_, soff):
    st = []
    for cc in range(4):
        for i in range(3):
            add = 64*1280 if i < 2 else (320 - 128*1280)
            st.append(Stage(160, srd_, soff, add))
    return st

def task_vvo(A):
    ACT, FR = 0, 160
    VACC, VOP, ACC0, ACC1, TMP = 32, 128, 32, 176, 112
    A.i(f's_load_dwordx2 s[6:7], s[0:1], {KA["wv"]}')
    A.i(f's_load_dwordx2 s[18:19], s[0:1], {KA["wo"]}')
    setup_dma192(A, 12288); setup_dma160(A, 1280)
    A.i('s_waitcnt lgkmcnt(0)')
    srd(A, 12, 6, 640*12288); srd(A, 28, 18, 6144*1280)
    A.i('s_mul_i32 s42, s41, 384')
    A.i(f's_mul_i32 s46, s41, {192*1280}')
    A.i('s_lshl_b32 s43, s40, 2'); A.i('s_add_u32 s43, s43, s16')
    A.i(f's_mul_i32 s44, s43, {40*1024}'); A.i(f's_add_u32 s44, s44, {WS_H}')
    vm = VM(A)
    stages = [Stage(192, 12, 42, 64*12288) for _ in range(10)] + wo_stages(28, 46)
    e = Engine(A, vm, stages, FR)
    e.prologue_hook = lambda: load_act(A, vm, ACT, 40, 44)
    steps = pass192_steps(0, VACC, ACT, vm, True)
    def conv():
        A.i('s_nop 7'); A.i('s_nop 7')
        for t in range(6):
            for a in range(2):
                for r in range(4):
                    s = VACC + 16*t + 8*a + 2*r
                    A.i(f'v_cvt_pk_bf16_f32 v{VOP + 4*(2*t+a) + r}, v{s}, v{s+1}')
        A.i('s_nop 1')
    steps[-1]['post'] = conv
    A.i('v_and_b32 v22, 63, v0'); A.i('v_and_b32 v23, 31, v22'); A.i('v_lshrrev_b32 v24, 3, v23'); A.i('v_lshlrev_b32 v24, 14, v24')
    A.i('v_lshrrev_b32 v25, 5, v22'); A.i('v_lshlrev_b32 v25, 8, v25'); A.i('v_and_b32 v23, 7, v23'); A.i('v_lshlrev_b32 v23, 4, v23')
    A.i('v_add3_u32 v21, v23, v24, v25')
    A.i(f's_mul_i32 s47, s43, {80*16384}'); A.i('s_lshr_b32 s23, s41, 1'); A.i('s_lshl_b32 s23, s23, 10'); A.i('s_add_u32 s47, s47, s23')
    A.i('s_and_b32 s23, s41, 1'); A.i('s_lshl_b32 s23, s23, 7'); A.i('s_add_u32 s47, s47, s23'); A.i(f's_add_u32 s47, s47, {WS_VOT}')
    def store_tile(cc, t, D):
        o = TMP + 8*(t & 1)
        L = []
        for q in range(4):
            L.append(f'v_cvt_pk_bf16_f32 v{o+2*q}, v{D+4*q}, v{D+4*q+1}')
            L.append(f'v_cvt_pk_bf16_f32 v{o+2*q+1}, v{D+4*q+2}, v{D+4*q+3}')
        L.append(f's_add_u32 s48, s47, {(cc*20 + t*4)*16384}')
        L.append('s_nop 0')
        for b in (0, 4):
            L.append(f'v_permlane32_swap_b32 v{o+b}, v{o+b+2}')
            L.append(f'v_permlane32_swap_b32 v{o+b+1}, v{o+b+3}')
        L.append(lambda: vm.issue(f'buffer_store_dwordx4 {vr(o)}, v21, s[8:11], s48 offen'))
        L.append(lambda: vm.issue(f'buffer_store_dwordx4 {vr(o+4)}, v21, s[8:11], s48 offen offset:512'))
        return L
    steps += vo_pass(A, e, vm, 10, VOP, (ACC0, ACC1), store_tile)
    e.run(steps)
    A.i('s_nop 7'); A.i('s_nop 7')
    for t in range(5):
        e.side.extend(store_tile(3, t, ACC1 + 16*t))
    e.flush_side()
    vm.wait_all()

def task_b(A, wv_srd=12, wo_srd=28, sc=''):
    FR = 160
    VOP, ACC0, ACC1, TMP = 128, 32, 176, 112
    A.i(f's_load_dwordx2 s[6:7], s[0:1], {KA["wv"]}')
    A.i(f's_load_dwordx2 s[56:57], s[0:1], {KA["wo"]}')
    setup_dma160(A, 1280)
    A.i('s_waitcnt lgkmcnt(0)')
    srd(A, wv_srd, 6, 640*12288); srd(A, wo_srd, 56, 6144*1280)
    A.i(f's_mul_i32 s46, s41, {192*1280}')
    vm = VM(A)
    A.i('v_and_b32 v22, 63, v0'); A.i('v_and_b32 v23, 31, v22'); A.i('v_mul_u32_u24 v23, 12288, v23')
    A.i('v_lshrrev_b32 v24, 5, v22'); A.i('v_lshlrev_b32 v24, 4, v24'); A.i('v_add_u32 v23, v23, v24')
    A.i('s_lshl_b32 s43, s40, 2'); A.i('s_add_u32 s43, s43, s16')
    A.i(f's_mul_i32 s44, s43, {32*12288}'); A.i('s_mul_i32 s23, s41, 384'); A.i('s_add_u32 s44, s44, s23')
    e = Engine(A, vm, wo_stages(wo_srd, 46), FR)
    def hook():
        for ks in range(12):
            vm.issue(f'buffer_load_dwordx4 {vr(VOP+4*ks)}, v23, s[{wv_srd}:{wv_srd+3}], s44 offen offset:{32*ks}', f'act{ks}')
        vm.wait('act11')
        for ks in range(12):
            r = VOP + 4*ks
            A.i(f'v_permlane32_swap_b32 v{r}, v{r+2}'); A.i(f'v_permlane32_swap_b32 v{r+1}, v{r+3}')
        A.i('s_nop 1')
    e.prologue_hook = hook
    A.i('v_and_b32 v25, 31, v22'); A.i('v_lshrrev_b32 v26, 3, v25'); A.i('s_mov_b32 s23, 327680'); A.i('v_mul_lo_u32 v26, v26, s23')
    A.i('v_lshrrev_b32 v27, 5, v22'); A.i('v_lshlrev_b32 v27, 4, v27'); A.i('v_and_b32 v25, 7, v25'); A.i('v_add_u32 v25, v25, v27')
    A.i('s_lshr_b32 s23, s41, 2'); A.i('s_and_b32 s23, s23, 1'); A.i('s_lshl_b32 s23, s23, 3')
    A.i('v_add_u32 v25, s23, v25'); A.i('v_lshlrev_b32 v25, 4, v25'); A.i('v_add_u32 v21, v25, v26')
    A.i('s_lshr_b32 s47, s41, 3'); A.i('s_mul_i32 s47, s47, 81920'); A.i('s_and_b32 s23, s41, 3'); A.i('s_mul_i32 s23, s23, 20480'); A.i('s_add_u32 s47, s47, s23')
    A.i('s_lshl_b32 s23, s43, 10'); A.i('s_add_u32 s47, s47, s23'); A.i(f's_add_u32 s47, s47, {WS_BW}')
    def store_tile(cc, t, D):
        o = TMP + 8*(t & 1)
        L = []
        for g in range(2):
            b = D + 8*g
            L.append(f'v_cvt_pk_bf16_f32 v{o+4*g}, v{b}, v{b+1}')
            L.append(f'v_cvt_pk_bf16_f32 v{o+4*g+1}, v{b+4}, v{b+5}')
            L.append(f'v_cvt_pk_bf16_f32 v{o+4*g+2}, v{b+2}, v{b+3}')
            L.append(f'v_cvt_pk_bf16_f32 v{o+4*g+3}, v{b+6}, v{b+7}')
        L.append(f's_add_u32 s48, s47, {(cc*20 + t*4)*327680}')
        L.append(lambda: vm.issue(f'buffer_store_dwordx4 {vr(o)}, v21, s[8:11], s48 offen{sc}'))
        L.append(lambda: vm.issue(f'buffer_store_dwordx4 {vr(o+4)}, v21, s[8:11], s48 offen offset:512{sc}'))
        return L
    steps = vo_pass(A, e, vm, 0, VOP, (ACC0, ACC1), store_tile)
    e.run(steps)
    A.i('s_nop 7'); A.i('s_nop 7')
    for t in range(5):
        e.side.extend(store_tile(3, t, ACC1 + 16*t))
    e.flush_side()
    vm.wait_all()

def task_b_half(A, wv_srd=12, sc=''):
    FR = 0
    VOP, ACC, TMP = 128, 32, 112
    A.i(f's_load_dwordx2 s[6:7], s[0:1], {KA["wv"]}')
    A.i(f's_load_dwordx2 s[56:57], s[0:1], {KA["wo"]}')
    setup_dma160(A, 1280)
    A.i('s_waitcnt lgkmcnt(0)')
    srd(A, wv_srd, 6, 640*12288); srd(A, 28, 56, 6144*1280)
    A.i(f's_mul_i32 s46, s41, {192*1280}'); A.i('s_mul_i32 s23, s83, 640'); A.i('s_add_u32 s46, s46, s23')
    vm = VM(A)
    A.i('v_and_b32 v22, 63, v0'); A.i('v_and_b32 v23, 31, v22'); A.i('v_mul_u32_u24 v23, 12288, v23')
    A.i('v_lshrrev_b32 v24, 5, v22'); A.i('v_lshlrev_b32 v24, 4, v24'); A.i('v_add_u32 v23, v23, v24')
    A.i('s_lshl_b32 s43, s40, 2'); A.i('s_add_u32 s43, s43, s16')
    A.i(f's_mul_i32 s44, s43, {32*12288}'); A.i('s_mul_i32 s23, s41, 384'); A.i('s_add_u32 s44, s44, s23')
    for ks in range(12):
        vm.issue(f'buffer_load_dwordx4 {vr(VOP+4*ks)}, v23, s[{wv_srd}:{wv_srd+3}], s44 offen offset:{32*ks}', f'act{ks}')
    e = Engine(A, vm, wo_stages(28, 46)[:6], FR)
    def hook():
        vm.wait('act11')
        for ks in range(12):
            r = VOP + 4*ks
            A.i(f'v_permlane32_swap_b32 v{r}, v{r+2}'); A.i(f'v_permlane32_swap_b32 v{r+1}, v{r+3}')
        A.i('s_nop 1')
    e.prologue_hook = hook
    A.i('v_and_b32 v25, 31, v22'); A.i('v_lshrrev_b32 v26, 3, v25'); A.i('s_mov_b32 s23, 327680'); A.i('v_mul_lo_u32 v26, v26, s23')
    A.i('v_lshrrev_b32 v27, 5, v22'); A.i('v_lshlrev_b32 v27, 4, v27'); A.i('v_and_b32 v25, 7, v25'); A.i('v_add_u32 v25, v25, v27')
    A.i('s_lshr_b32 s23, s41, 2'); A.i('s_and_b32 s23, s23, 1'); A.i('s_lshl_b32 s23, s23, 3')
    A.i('v_add_u32 v25, s23, v25'); A.i('v_lshlrev_b32 v25, 4, v25'); A.i('v_add_u32 v21, v25, v26')
    A.i('s_lshr_b32 s47, s41, 3'); A.i('s_mul_i32 s47, s47, 81920'); A.i('s_and_b32 s23, s41, 3'); A.i('s_mul_i32 s23, s23, 20480'); A.i('s_add_u32 s47, s47, s23')
    A.i('s_lshl_b32 s23, s43, 10'); A.i('s_add_u32 s47, s47, s23'); A.i(f's_add_u32 s47, s47, {WS_BW}')
    A.i(f's_mul_i32 s23, s83, {40*327680}'); A.i('s_add_u32 s47, s47, s23')
    def store_chunk(cc):
        A.i('s_nop 7'); A.i('s_nop 7')
        for t in range(5):
            D = ACC + 16*t; o = TMP + 8*(t & 1)
            for g in range(2):
                b = D + 8*g
                A.i(f'v_cvt_pk_bf16_f32 v{o+4*g}, v{b}, v{b+1}'); A.i(f'v_cvt_pk_bf16_f32 v{o+4*g+1}, v{b+4}, v{b+5}')
                A.i(f'v_cvt_pk_bf16_f32 v{o+4*g+2}, v{b+2}, v{b+3}'); A.i(f'v_cvt_pk_bf16_f32 v{o+4*g+3}, v{b+6}, v{b+7}')
            A.i(f's_add_u32 s48, s47, {(cc*20 + t*4)*327680}')
            if OPT.get('bnostore'): continue
            vm.issue(f'buffer_store_dwordx4 {vr(o)}, v21, s[8:11], s48 offen' + sc)
            vm.issue(f'buffer_store_dwordx4 {vr(o+4)}, v21, s[8:11], s48 offen offset:512' + sc)
    steps = []
    for cc in range(2):
        for ks in range(12):
            def mf(t, fr, ks=ks):
                c = '0' if ks == 0 else vr(ACC+16*t, 16)
                return f'{MF} {vr(ACC+16*t,16)}, {vr(VOP+4*ks)}, {fr}, {c}'
            st = dict(stage=cc*3 + ks//4, ksl=ks % 4, nt=5, mfma=mf)
            if ks == 11: st['post'] = (lambda cc=cc: store_chunk(cc))
            steps.append(st)
    e.run(steps)
    vm.wait_all()

def kernel_prolog(A, name, ngrid):
    kernel_header(A, name)
    A.i(f's_load_dwordx2 s[4:5], s[0:1], {KA["ws"]}')
    A.i(f's_cmp_ge_u32 s2, {ngrid}')
    A.i(f's_cbranch_scc1 {name}_exit')
    A.i('v_lshrrev_b32 v1, 6, v0')
    A.i('s_waitcnt lgkmcnt(0)')
    srd(A, 8, 4, WS_SIZE)
    A.i('v_readfirstlane_b32 s16, v1')

def gen_pre(name='pre_kernel'):
    A = Em()
    kernel_prolog(A, name, 1536)
    setup_lane(A)
    A.i('s_and_b32 s41, s2, 31'); A.i('s_lshr_b32 s40, s2, 5'); A.i('s_and_b32 s40, s40, 15')
    A.i('s_cmp_lt_u32 s2, 512'); A.i(f's_cbranch_scc0 {name}_kq')
    task_vvo(A)
    A.i('s_endpgm')
    A.label(f'{name}_kq')
    A.i('s_cmp_lt_u32 s2, 1024'); A.i(f's_cbranch_scc0 {name}_q')
    task_kq(A, KA['wk'], WS_KT)
    A.i('s_endpgm')
    A.label(f'{name}_q')
    task_kq(A, KA['wq'], WS_QT)
    A.label(f'{name}_exit')
    A.i('s_endpgm')
    return A.text(), kernel_desc(name, 512, 256)

def gen_bw(name='bw_kernel', calib=True):
    import small
    A = Em()
    kernel_prolog(A, name, 169)
    A.i('s_nop 3')
    A.i('s_cmp_lt_u32 s2, 160'); A.i(f's_cbranch_scc1 {name}_b')
    A.i('s_cmp_eq_u32 s2, 160'); A.i(f's_cbranch_scc0 {name}_c')
    small.role_mem0(A)
    A.i('s_endpgm')
    A.label(f'{name}_c')
    if calib: small.role_calib(A)
    A.i('s_endpgm')
    A.label(f'{name}_b')
    setup_lane(A)
    A.i('s_and_b32 s41, s2, 31'); A.i('s_lshr_b32 s40, s2, 5')
    task_b(A)
    A.label(f'{name}_exit')
    A.i('s_endpgm')
    return A.text(), kernel_desc(name, 512, 256)

if __name__ == '__main__':
    t, d = gen_pre(); t2, d2 = gen_bw()
    print('; @launch kernel=pre_kernel grid=(1536,1,1) block=(256,1,1) lds=98304')
    print('; @launch kernel=bw_kernel grid=(160,1,1) block=(256,1,1) lds=98304')
    print('.amdgcn_target "amdgcn-amd-amdhsa--gfx950"')
    print(t); print(t2); print(d); print(d2)
```

```python
from common import *
NS, NC = 32, 80
FL_DB = WS_FLAGS + 0x16800
KN = dict(unified=True, late=False, lateC=False, adapt=False, up=2, down=3, loS=1, hiS=12, loC=4, hiC=18, gl='sc1', bmain=False, join=True, db=True, dbS=6, dbC=12, dbCm=8, ring_at=0, preS=0, dC0=0, preC=0, log=False, flags=True, post=True)
SPIN_MAX = 0x400000
LOG2E = 1.4426950408889634
import struct
def fbits(x): return struct.unpack('<I', struct.pack('<f', x))[0]
class Em(Asm):
    def __init__(self):
        super().__init__(); self.n = 0; self.marks = {}
    def i(self, s):
        for line in s.split('\n'):
            if line.strip():
                self(line)
                t = line.strip()
                if t.startswith('s_nop'): self.n += int(t.split()[1]) + 1
                elif not t.endswith(':') and not t.startswith(';'): self.n += 1
    def mark(self, k): self.marks[k] = self.n
    def need(self, k, d):
        if k not in self.marks: return
        have = self.n - self.marks[k]
        if have < d:
            r = d - have
            while r > 0:
                q = min(r, 16); self.i(f's_nop {q-1}'); r -= q
class LG(Lgkm):
    def issue(self, text, tag):
        self.asm.i(text); self.q.append(tag)
        assert len(self.q) <= 15, f'too many LDS ops in flight: {self.q}'
    def wait(self, tag):
        if tag not in self.q: return
        k = max(j for j, t in enumerate(self.q) if t == tag)
        self.asm.i(f's_waitcnt lgkmcnt({len(self.q)-1-k})'); self.q = self.q[k+1:]
    def wait_all(self):
        self.asm.i('s_waitcnt lgkmcnt(0)'); self.q = []
def remap(A, v, tmp):
    A.i(f'v_lshrrev_b32 v{tmp}, 13, v{v}')
    A.i(f'v_lshlrev_b32 v{tmp}, 14, v{tmp}')
    A.i(f'v_and_b32 v{v}, 0x1fff, v{v}')
    A.i(f'v_add_u32 v{v}, v{v}, v{tmp}')
S_WRES, S_KQ, S_MEM, S_X = 0, 98304, 147456, 157696
C_MEM, C_RED = 0, 16384
def gather_mem(A, lbl, fail, gv, lv0, lv2, t0):
    A.i('s_mov_b32 s22, 0')
    A.label(lbl)
    for j in range(3):
        A.i(f'buffer_load_dwordx4 {vr(t0+4*j)}, v{gv+j}, s[8:11], s18 offen {KN["gl"]}')
    A.i('s_add_u32 s22, s22, 1')
    A.i(f's_cmp_gt_u32 s22, {SPIN_MAX}')
    A.i(f's_cbranch_scc1 {fail}')
    x, y = t0+12, t0+13
    A.i('s_waitcnt vmcnt(2)')
    A.i(f'ds_write_b128 v{lv0}, {vr(t0)}')
    A.i(f'v_max3_u32 v{x}, v{t0}, v{t0+1}, v{t0+2}')
    A.i('s_waitcnt vmcnt(1)')
    A.i(f'ds_write_b128 v{lv0}, {vr(t0+4)} offset:4096')
    A.i(f'v_max3_u32 v{y}, v{t0+3}, v{t0+4}, v{t0+5}')
    A.i(f'v_max3_u32 v{x}, v{t0+6}, v{t0+7}, v{x}')
    A.i('s_waitcnt vmcnt(0)')
    A.i(f'ds_write_b128 v{lv2}, {vr(t0+8)}')
    A.i(f'v_max3_u32 v{y}, v{t0+8}, v{t0+9}, v{y}')
    A.i(f'v_max3_u32 v{x}, v{t0+10}, v{t0+11}, v{x}')
    A.i(f'v_max_u32 v{x}, v{x}, v{y}')
    A.i(f'v_cmp_eq_u32 vcc, -1, v{x}')
    A.i(f's_cbranch_vccnz {lbl}')
    A.i('s_waitcnt lgkmcnt(0)')
    A.i('s_barrier')

def setup_gather_addrs(A, gv, lv0, lv2, ldsbase, tmp):
    A.i(f'v_lshlrev_b32 v{gv}, 4, v0')
    A.i(f'v_add_u32 v{gv+1}, 4096, v{gv}')
    A.i(f'v_add_u32 v{gv+2}, 16384, v{gv}')
    A.i(f'v_add_u32 v{lv0}, {ldsbase}, v{gv}')
    A.i(f'v_add_u32 v{lv2}, {ldsbase+8192}, v{gv}')
    A.i('v_cmp_gt_u32 vcc, 128, v0')
    A.i('s_nop 1')
    A.i(f'v_cndmask_b32 v{gv+2}, v{gv}, v{gv+2}, vcc')
    A.i(f'v_cndmask_b32 v{lv2}, v{lv0}, v{lv2}, vcc')
def poll_flag(A, off_sgpr, target, vtmp, fail='R_fail', backoff=0):
    lab = A.new('pf')
    A.i('s_mov_b32 s22, 0'); A.i(f'v_mov_b32 v{vtmp}, 0')
    A.label(lab)
    A.i(f'buffer_load_dword v{vtmp+1}, v{vtmp}, s[8:11], s{off_sgpr} offen sc1')
    A.i('s_add_u32 s22, s22, 1'); A.i(f's_cmp_gt_u32 s22, {SPIN_MAX}'); A.i(f's_cbranch_scc1 {fail}')
    A.i('s_waitcnt vmcnt(0)'); A.i(f'v_readfirstlane_b32 s23, v{vtmp+1}'); A.i('s_nop 3')
    if backoff:
        l2 = A.new('pf')
        A.i(f's_cmp_ge_u32 s23, {target}'); A.i(f's_cbranch_scc1 {l2}'); A.i(f's_sleep {backoff}'); A.i(f's_branch {lab}'); A.label(l2)
    else:
        A.i(f's_cmp_ge_u32 s23, {target}'); A.i(f's_cbranch_scc0 {lab}')

def signal(A, base, shift, seg_sgpr, slot_sgpr, v):
    A.i(f's_lshl_b32 s23, s{seg_sgpr}, {shift}'); A.i(f's_add_u32 s23, s23, {base}')
    A.i('s_mov_b64 exec, 1'); A.i(f'v_mov_b32 v{v}, 1'); A.i(f'v_mov_b32 v{v+1}, s{slot_sgpr}'); A.i(f'v_lshlrev_b32 v{v+1}, 2, v{v+1}')
    A.i(f'buffer_store_dword v{v}, v{v+1}, s[8:11], s23 offen sc1')
    A.i('s_mov_b64 exec, -1')

def adapt(A, areg, creg, lo, hi):
    if not (KN['db'] and KN['adapt']): return
    l1, l2 = A.new('ad'), A.new('ad')
    A.i('s_cmp_gt_u32 s22, 1'); A.i(f's_cbranch_scc0 {l1}')
    A.i(f's_add_u32 s{areg}, s{areg}, {KN["up"]}'); A.i(f's_min_u32 s{areg}, s{areg}, {hi}'); A.i(f's_mov_b32 s{creg}, 0'); A.i(f's_branch {l2}')
    A.label(l1)
    A.i(f's_add_u32 s{creg}, s{creg}, 1'); A.i(f's_cmp_ge_u32 s{creg}, {KN["down"]}'); A.i(f's_cbranch_scc0 {l2}')
    A.i(f's_mov_b32 s{creg}, 0'); A.i(f's_sub_u32 s{areg}, s{areg}, 1'); A.i(f's_max_u32 s{areg}, s{areg}, {lo}')
    A.label(l2)

def db_wait(A, vaddr, vdata, off_sgpr, tag_sgpr, extra_sleep=0, areg=None):
    if not KN['db']: return
    l0, l1 = A.new('db'), A.new('db')
    A.i('s_cmp_eq_u32 s76, 0'); A.i(f's_cbranch_scc1 {l1}')
    A.i('s_mov_b32 s22, 0')
    A.label(l0)
    A.i(f'buffer_load_dword v{vdata}, v{vaddr}, s[8:11], s{off_sgpr} offen sc1')
    A.i('s_add_u32 s22, s22, 1'); A.i('s_cmp_gt_u32 s22, 256'); A.i(f's_cbranch_scc1 {l1}')
    A.i('s_waitcnt vmcnt(0)')
    A.i(f'v_cmp_gt_u32 vcc, s{tag_sgpr}, v{vdata}')
    A.i(f's_cbranch_vccnz {l0}')
    if areg is None: sleep(A, extra_sleep)
    else:
        l2 = A.new('db')
        A.i(f's_mov_b32 s86, s{areg}')
        A.label(l2)
        A.i('s_sleep 1'); A.i('s_sub_u32 s86, s86, 1'); A.i('s_cmp_gt_i32 s86, 0'); A.i(f's_cbranch_scc1 {l2}')
    A.label(l1)

def db_ring(A, vtmp, off_sgpr, tag_sgpr):
    if not KN['db']: return
    A.i('s_mov_b64 exec, 1'); A.i(f'v_mov_b32 v{vtmp}, s{tag_sgpr}')
    A.i(f'buffer_store_dword v{vtmp}, off, s[8:11], s{off_sgpr}')
    A.i('s_mov_b64 exec, -1')

def ws_wait(A, off, target, v, backoff=4, srd_=8):
    lab, l2 = A.new('dw'), A.new('dw')
    A.i('s_cmp_eq_u32 s16, 0'); A.i(f's_cbranch_scc0 {l2}')
    A.i('s_mov_b32 s22, 0'); A.i(f'v_mov_b32 v{v}, {off}')
    A.label(lab)
    A.i(f'buffer_load_dword v{v+1}, v{v}, s[{srd_}:{srd_+3}], 0 offen sc1')
    A.i('s_add_u32 s22, s22, 1'); A.i(f's_cmp_gt_u32 s22, {SPIN_MAX//4}'); A.i(f's_cbranch_scc1 {l2}')
    A.i('s_waitcnt vmcnt(0)'); A.i(f'v_readfirstlane_b32 s23, v{v+1}'); A.i('s_nop 3')
    A.i(f's_cmp_ge_u32 s23, {target}'); A.i(f's_cbranch_scc1 {l2}'); A.i(f's_sleep {backoff}'); A.i(f's_branch {lab}')
    A.label(l2)
    A.i('s_barrier')

def boot_wait(A, v): ws_wait(A, DB_BOOT, 1, v, 2, 12)

def boot_clear(A):
    lab = A.new('bc')
    A.i('s_cmp_eq_u32 s3, 0'); A.i(f's_cbranch_scc0 {lab}')
    A.i('v_lshlrev_b32 v2, 4, v0')
    for r in range(4): A.i(f'v_mov_b32 v{4+r}, 0')
    A.i('buffer_store_dwordx4 v[4:7], v2, s[8:11], 0 offen sc1'); A.i('s_waitcnt vmcnt(0)'); A.i('s_barrier')
    A.i('v_mov_b32 v2, 1'); A.i(f'v_mov_b32 v3, {DB_BOOT}'); A.i('s_mov_b64 exec, 1')
    A.i('buffer_store_dword v2, v3, s[12:15], 0 offen sc1'); A.i('s_waitcnt vmcnt(0)'); A.i('s_mov_b64 exec, -1')
    A.label(lab)

def ws_add(A, off, v):
    lab = A.new('da')
    A.i('s_cmp_eq_u32 s16, 0'); A.i(f's_cbranch_scc0 {lab}')
    A.i('s_mov_b64 exec, 1'); A.i(f'v_mov_b32 v{v}, 1'); A.i(f'v_mov_b32 v{v+1}, {off}')
    A.i(f'buffer_atomic_add v{v}, v{v+1}, s[8:11], 0 offen'); A.i('s_mov_b64 exec, -1')
    A.label(lab)

def ws_take(A, off, dst):
    lab = A.new('dt')
    A.i('s_barrier')
    A.i('s_cmp_eq_u32 s16, 0'); A.i(f's_cbranch_scc0 {lab}')
    A.i('s_mov_b64 exec, 1'); A.i('v_mov_b32 v22, 1'); A.i(f'v_mov_b32 v23, {off}')
    A.i('buffer_atomic_add v22, v23, s[8:11], 0 offen sc0'); A.i('s_waitcnt vmcnt(0)')
    A.i('v_mov_b32 v23, 163836'); A.i('ds_write_b32 v23, v22'); A.i('s_waitcnt lgkmcnt(0)'); A.i('s_mov_b64 exec, -1')
    A.label(lab)
    A.i('s_barrier')
    A.i('v_mov_b32 v23, 163836'); A.i('ds_read_b32 v22, v23'); A.i('s_waitcnt lgkmcnt(0)'); A.i(f'v_readfirstlane_b32 s{dst}, v22'); A.i('s_nop 3')

def b_tasks(A, limit, tag):
    import gemm
    gemm.set_ring(4, 20480)
    boot_wait(A, 22)
    gemm.setup_lane(A)
    A.i('s_mov_b32 s85, 0')
    A.label(f'B_loop{tag}')
    ws_take(A, BT_BQ, 84)
    A.i('s_cmp_ge_u32 s84, 320'); A.i(f's_cbranch_scc1 B_end{tag}')
    A.i('s_and_b32 s41, s84, 31'); A.i('s_lshr_b32 s40, s84, 5')
    A.i('s_cmp_ge_u32 s40, 5'); A.i('s_cselect_b32 s83, 1, 0'); A.i('s_mul_i32 s23, s83, 5'); A.i('s_sub_u32 s40, s40, s23')
    gemm.task_b_half(A, wv_srd=36, sc=' sc1')
    A.i('s_barrier')
    ws_add(A, BT_BDONE, 22)
    A.i('s_add_u32 s85, s85, 1')
    if limit: A.i(f's_cmp_lt_u32 s85, {limit}'); A.i(f's_cbranch_scc1 B_loop{tag}')
    else: A.i(f's_branch B_loop{tag}')
    A.label(f'B_end{tag}')
    gemm.set_ring(4)

def read_parity(A, v):
    lab = A.new('par')
    A.i(f'v_mov_b32 v{v}, {DB_CAL}'); A.i('s_mov_b32 s22, 0')
    A.label(lab)
    A.i(f'buffer_load_dwordx4 v[{v+2}:{v+5}], v{v}, s[12:15], 0 offen sc1')
    A.i('s_add_u32 s22, s22, 1'); A.i(f's_cmp_gt_u32 s22, {SPIN_MAX}'); A.i('s_cbranch_scc1 R_fail')
    A.i('s_waitcnt vmcnt(0)')
    A.i(f'v_and_b32 v{v+1}, v{v+2}, v{v+3}'); A.i(f'v_and_b32 v{v+1}, v{v+1}, v{v+4}'); A.i('s_nop 0')
    A.i(f'v_readfirstlane_b32 s79, v{v+1}'); A.i(f'v_readfirstlane_b32 s44, v{v+2}'); A.i(f'v_readfirstlane_b32 s45, v{v+3}'); A.i(f'v_readfirstlane_b32 s46, v{v+4}')
    A.i('s_nop 3'); A.i('s_bitcmp1_b32 s79, 16'); A.i(f's_cbranch_scc0 {lab}')
    A.i('s_and_b32 s44, s44, 8192'); A.i('s_and_b32 s45, s45, 8192'); A.i('s_and_b32 s46, s46, 8192')
    hand_base(A, 18)
    A.i(f's_add_u32 s19, s18, {HB_P}'); A.i('s_add_u32 s19, s19, s45')
    A.i('s_add_u32 s18, s18, s44')
    A.i('s_sub_u32 s33, s46, s45')

def probe_parity(A):
    lab = A.new('cal')
    A.i('s_cmp_eq_u32 s3, 0'); A.i(f's_cbranch_scc0 {lab}')
    A.i('s_cmp_lt_u32 s16, 3'); A.i(f's_cbranch_scc0 {lab}')
    hand_base(A, 24)
    A.i('s_lshl_b32 s25, s16, 21'); A.i('s_add_u32 s24, s24, s25'); A.i(f's_add_u32 s24, s24, {65536 + 49152 + 4096}')
    A.i('s_mov_b64 exec, 1')
    A.i('v_mov_b32 v2, 0'); A.i('v_mov_b32 v3, 8192')
    A.i('s_mov_b32 s40, -1'); A.i('s_mov_b32 s41, -1')
    for rep in range(5):
        for par in range(2):
            A.i('v_mov_b32 v4, 0')
            A.i('s_memtime s[42:43]'); A.i('s_waitcnt lgkmcnt(0)')
            A.i(f'buffer_atomic_add v4, v{2+par}, s[8:11], s24 offen sc0')
            A.i('s_waitcnt vmcnt(0)')
            A.i('s_memtime s[48:49]'); A.i('s_waitcnt lgkmcnt(0)')
            A.i('s_sub_u32 s48, s48, s42')
            if rep > 0: A.i(f's_min_u32 s{40+par}, s{40+par}, s48')
    A.i('s_cmp_lt_u32 s41, s40'); A.i('s_cselect_b32 s46, 8192, 0'); A.i('s_or_b32 s46, s46, 0x10000')
    A.i('v_mov_b32 v4, s46'); A.i('s_lshl_b32 s25, s16, 2'); A.i(f's_add_u32 s25, s25, {DB_CAL}'); A.i('v_mov_b32 v5, s25')
    A.i('buffer_store_dword v4, v5, s[12:15], 0 offen sc1')
    A.i('s_waitcnt vmcnt(0)')
    A.i('s_mov_b64 exec, -1')
    A.label(lab)

def advance(A):
    A.i(f's_add_u32 s18, s18, {MEM_STRIDE}'); A.i(f's_add_u32 s19, s19, {P_STRIDE}')
    A.i('s_add_u32 s17, s17, 1')
    A.i('s_cmp_eq_u32 s17, 32'); A.i('s_cselect_b32 s23, s33, 0'); A.i('s_add_u32 s19, s19, s23')
def sleep(A, n):
    while n > 0:
        k = min(n, 100); A.i(f's_sleep {k}'); n -= k
def stamp(A, acc):
    if KN['log']:
        A.i(('s_memtime' if KN.get('clk') else 's_memrealtime') + ' s[34:35]'); A.i('s_waitcnt lgkmcnt(0)')
        A.i('s_sub_u32 s67, s34, s66'); A.i(f's_add_u32 s{acc}, s{acc}, s67'); A.i('s_mov_b32 s66, s34')
def ev(A, k, v):
    if KN.get('ev'):
        A.i('s_memrealtime s[34:35]'); A.i('s_waitcnt lgkmcnt(0)')
        A.i(f'v_mov_b32 v{v}, s34')
        A.i('s_lshl_b32 s67, s17, 5'); A.i('s_add_u32 s67, s67, s81')
        A.i(f'buffer_store_dword v{v}, off, s[8:11], s67 offset:{4*k}')

def xlane_reduce(A, op, x, t):
    A.i(f'v_mov_b32 v{t}, v{x}')
    A.i('s_nop 1')
    A.i(f'v_permlane16_swap_b32 v{x}, v{t}')
    A.i(f'{op} v{x}, v{x}, v{t}')
    A.i(f'v_mov_b32 v{t}, v{x}')
    A.i('s_nop 1')
    A.i(f'v_permlane32_swap_b32 v{x}, v{t}')
    A.i(f'{op} v{x}, v{x}, v{t}')
def s_wloc(tt, kk):
    lds = {(0,2):0,(1,4):1,(0,6):2,(1,8):3}
    key = (tt & 1, kk)
    if key in lds: return ('l', (tt >> 1)*4 + lds[key])
    idx = 0
    for t in range(6):
        for k in range(10):
            if (t & 1, k) in lds: continue
            if (t, k) == (tt, kk):
                return ('a', idx*8) if idx < 32 else ('v', 128 + (idx-32)*8)
            idx += 1
def gen_S(A, nsteps):
    vL16, vG, vLm0, vLm2, vAr, vWr, vXw, vB, vXk, vKt, vPu, vP0, vIdx = 1, 2, 5, 6, 7, 8, 9, 10, 11, 12, 13, 14, 15
    RA, RST, RACC, RAIN, RD3, RSC, RSEL, RCI = 16, 56, 72, 96, 100, 104, 116, 120
    T0, T1, T2, VNINF = 124, 125, 126, 127
    A.label('S_role')
    A.c('---- score role setup; s3 = head')
    if KN['unified']:
        if KN.get('sB', 1): b_tasks(A, KN.get('sB', 1), 'S')
        else: boot_wait(A, 22)
    A.c('weights of this head: row-major tiles -> sparse-MFMA dense operands')
    WD, WA, WT = 2, 112, 16
    A.i(f's_load_dwordx2 s[6:7], s[0:1], {KA["wq"]}'); A.i(f's_load_dwordx2 s[40:41], s[0:1], {KA["wk"]}')
    A.i('v_and_b32 v22, 63, v0')
    for j in range(6):
        A.i(f's_mul_i32 s23, s16, 384'); A.i(f's_add_u32 s23, s23, {64*j}')
        A.i('v_add_u32 v23, s23, v22')
        A.i('v_mul_u32_u24 v24, 2731, v23'); A.i('v_lshrrev_b32 v24, 16, v24')
        A.i('v_mul_u32_u24 v25, 24, v24'); A.i('v_sub_u32 v25, v23, v25')
        A.i('v_lshrrev_b32 v26, 1, v24'); A.i('v_and_b32 v26, 1, v26'); A.i('v_lshlrev_b32 v26, 2, v26')
        A.i('v_xor_b32 v25, v25, v26'); A.i('v_lshlrev_b32 v25, 4, v25')
        A.i('v_mul_u32_u24 v24, 12288, v24'); A.i(f'v_add_u32 v{WD+j}, v24, v25')
    A.i('v_lshrrev_b32 v23, 4, v22'); A.i('v_and_b32 v24, 15, v22')
    A.i('v_lshrrev_b32 v25, 1, v23'); A.i('v_lshlrev_b32 v25, 4, v25'); A.i('v_and_b32 v26, 1, v23'); A.i('v_lshlrev_b32 v26, 2, v26'); A.i('v_add_u32 v25, v25, v26')
    A.i('v_lshrrev_b32 v26, 2, v24')
    A.i('v_and_b32 v27, 1, v26'); A.i('v_lshrrev_b32 v26, 1, v26'); A.i('v_lshlrev_b32 v26, 3, v26'); A.i('v_add3_u32 v25, v25, v26, v27')
    A.i('v_and_b32 v24, 3, v24'); A.i('v_lshlrev_b32 v24, 2, v24'); A.i('s_mul_i32 s23, s16, 48'); A.i('v_add_u32 v24, s23, v24')
    for p in range(3):
        for hb in range(2):
            for jj in range(2):
                A.i(f'v_add_u32 v28, {32*hb + 2*jj}, v25'); A.i(f'v_add_u32 v29, {16*p}, v24')
                A.i('v_lshrrev_b32 v30, 1, v28'); A.i('v_and_b32 v30, 1, v30'); A.i('v_lshrrev_b32 v31, 5, v29'); A.i('v_xor_b32 v30, v30, v31'); A.i('v_lshlrev_b32 v30, 6, v30')
                A.i('v_and_b32 v29, 31, v29'); A.i('v_lshlrev_b32 v29, 1, v29'); A.i('v_mul_u32_u24 v28, 384, v28'); A.i(f'v_add3_u32 v{WA+4*p+2*hb+jj}, v28, v29, v30')
    A.i('s_waitcnt lgkmcnt(0)')
    srd(A, 28, 6, 640*12288); srd(A, 44, 40, 640*12288)
    A.i('s_mul_i32 s42, s3, 384'); A.i('s_mov_b32 s43, s42'); A.i('s_mul_i32 s52, s16, 6144')
    tiles = [(kk, mt) for kk in range(10) for mt in range(2)]
    NB = 6
    def tile_dma(i):
        kk, mt = tiles[i]
        for j in range(6):
            A.i(f's_add_u32 m0, s52, {(i % NB)*24576 + j*1024}'); A.i('s_nop 0')
            A.i(f'buffer_load_dwordx4 v{WD+j}, s[{44 if mt else 28}:{47 if mt else 31}], s{43 if mt else 42} offen lds')
        A.i(f's_add_u32 s{43 if mt else 42}, s{43 if mt else 42}, {64*12288}')
    for i in range(NB-1): tile_dma(i)
    for i, (kk, mt) in enumerate(tiles):
        A.i(f's_waitcnt vmcnt({6*min(NB-2, 19-i)})'); A.i('s_barrier')
        if i + NB-1 < 20: tile_dma(i + NB-1)
        buf = (i % NB)*24576
        for p in range(3):
            kind, r = s_wloc(2*p+mt, kk)
            for hb in range(2):
                for jj in range(2):
                    if kind == 'l': dst = f'v[{WT + r*8 + 4*hb + 2*jj}:{WT + r*8 + 4*hb + 2*jj + 1}]'
                    else: dst = f'{kind}[{r + 4*hb + 2*jj}:{r + 4*hb + 2*jj + 1}]'
                    base = WA + 4*p + 2*hb + jj
                    if buf < 65536: A.i(f'ds_read_b64_tr_b16 {dst}, v{base} offset:{buf}')
                    else:
                        A.i(f'v_add_u32 v1, {buf}, v{base}'); A.i(f'ds_read_b64_tr_b16 {dst}, v1')
        A.i('s_waitcnt lgkmcnt(0)')
    A.i('s_barrier')
    A.i('v_and_b32 v1, 63, v0'); A.i('v_lshlrev_b32 v1, 4, v1'); A.i('s_mul_i32 s23, s16, 24576'); A.i('v_add_u32 v1, s23, v1')
    for slot in range(12):
        for hb in range(2):
            A.i(f'ds_write_b128 v1, {vr(WT + slot*8 + 4*hb)} offset:{S_WRES + slot*2048 + hb*1024}')
        if slot % 4 == 3: A.i('s_waitcnt lgkmcnt(0)')
    A.i('s_barrier')
    A.i('v_and_b32 v16, 63, v0')
    A.i(f'v_lshlrev_b32 v{vL16}, 4, v16')
    setup_gather_addrs(A, vG, vLm0, vLm2, S_MEM, 17)
    A.i(f'v_add_u32 v{vAr}, {S_MEM}, v{vL16}')
    A.i(f's_mul_i32 s23, s16, 24576')
    A.i(f'v_add_u32 v{vWr}, s23, v{vL16}')
    A.i('v_and_b32 v17, 15, v16'); A.i('v_lshrrev_b32 v18, 4, v16'); A.i('v_and_b32 v19, 7, v16')
    A.i('s_mul_i32 s23, s16, 3')
    A.i('s_lshr_b32 s24, s23, 1'); A.i('s_lshl_b32 s24, s24, 10'); A.i('s_and_b32 s25, s23, 1'); A.i('s_lshl_b32 s25, s25, 3')
    A.i('s_add_u32 s24, s24, s25'); A.i(f's_add_u32 s24, s24, {S_X}')
    A.i(f'v_add_u32 v{vXw}, s24, v{vL16}')
    A.i('s_and_b32 s25, s16, 1')
    A.i('s_cmp_eq_u32 s25, 0')
    A.i('s_cselect_b32 s40, 8, 1016')
    A.i('s_mov_b32 s41, 1024')
    A.i(f'v_lshlrev_b32 v20, 4, v18'); A.i('v_add_u32 v20, v20, v19')
    A.i(f'v_lshlrev_b32 v20, 4, v20')
    A.i(f'v_add_u32 v{vXk}, {S_X+128}, v20')
    A.i(f'v_add_u32 v{vB}, {S_X}, v20')
    A.i('s_cmp_eq_u32 s16, 0')
    lab = A.new('S_notq')
    A.i(f's_cbranch_scc1 {lab}')
    A.i('s_sub_u32 s23, s16, 2'); A.i('s_mul_i32 s23, s23, 6144'); A.i(f's_add_u32 s23, s23, {S_KQ+12288}')
    A.i(f'v_add_u32 v{vB}, s23, v{vL16}')
    A.label(lab)
    A.i(f'v_add_u32 v{vKt}, {S_KQ}, v{vL16}')
    A.i('s_mov_b32 s36, 24576')
    A.i('v_and_b32 v20, 8, v16'); A.i('v_cmp_eq_u32 vcc, 0, v20')
    A.i(f'v_mov_b32 v{vIdx}, 0xeeee'); A.i('v_mov_b32 v21, 0x4444'); A.i('s_nop 0')
    A.i(f'v_cndmask_b32 v{vIdx}, v{vIdx}, v21, vcc')
    A.i('v_lshlrev_b32 v20, 2, v18'); A.i('v_and_b32 v20, 7, v20')
    A.i('v_sub_u32 v21, v17, v20')
    A.i('v_subrev_u32 v22, 8, v21')
    ONE = 0x3f80
    for r in range(4):
        src = 21 if r < 2 else 22
        e0 = (r & 1)*2
        A.i(f'v_cmp_eq_u32 vcc, {e0}, v{src}'); A.i('v_mov_b32 v23, 0'); A.i(f'v_mov_b32 v24, {ONE:#x}')
        A.i('v_cndmask_b32 v25, v23, v24, vcc')
        A.i(f'v_cmp_eq_u32 vcc, {e0+1}, v{src}'); A.i(f'v_mov_b32 v24, {ONE<<16:#x}'); A.i('s_nop 0')
        A.i('v_cndmask_b32 v26, v23, v24, vcc')
        A.i(f'v_or_b32 v{RSEL+r}, v25, v26')
    A.i(f'v_mov_b32 v{VNINF}, 0xff800000')
    A.i('v_cmp_gt_u32 vcc, 32, v16'); A.i('s_nop 3'); A.i('s_mov_b64 s[42:43], vcc')
    A.i('v_and_b32 v20, 8, v16'); A.i('v_cmp_eq_u32 vcc, 0, v20'); A.i('s_nop 3'); A.i('s_and_b64 s[44:45], vcc, s[42:43]')
    A.i('s_cmp_eq_u32 s16, 0'); A.i('s_cselect_b64 s[42:43], s[44:45], s[42:43]')
    A.i('v_mov_b32 v23, 0'); A.i('s_nop 1')
    for r in range(4): A.i(f'v_cndmask_b32 v{RCI+r}, v{VNINF}, v23, s[42:43]')
    A.i('s_mov_b32 s26, 0xff00ff00'); A.i('s_mov_b32 s27, 0xff00ff00')
    A.i('v_lshlrev_b32 v20, 2, v18')
    for r in range(4):
        A.i(f'v_add_u32 v21, {r}, v20'); A.i('v_cmp_le_u32 vcc, v21, v17'); A.i('s_nop 3'); A.i('s_mov_b64 s[44:45], vcc')
        A.i('s_cmp_eq_u32 s16, 2')
        A.i(f's_cselect_b64 s[{48+2*r}:{49+2*r}], s[44:45], -1')
        A.i(f's_cselect_b64 s[{56+2*r}:{57+2*r}], 0, s[44:45]')
    A.i('s_mul_i32 s23, s3, 640')
    A.i('v_lshrrev_b32 v20, 3, v16'); A.i('v_and_b32 v20, 1, v20'); A.i('v_lshlrev_b32 v20, 1, v20')
    A.i('v_lshrrev_b32 v21, 1, v18'); A.i('v_add3_u32 v20, v20, v21, 1')
    A.i('v_lshlrev_b32 v20, 7, v20'); A.i('v_lshlrev_b32 v21, 4, v19'); A.i('v_add_u32 v20, v20, v21')
    A.i('v_and_b32 v21, 1, v18'); A.i('v_lshlrev_b32 v21, 3, v21')
    A.i(f'v_add3_u32 v{vPu}, v20, v21, s23')
    remap(A, vPu, 22)
    A.i('v_lshlrev_b32 v20, 4, v19'); A.i('v_lshlrev_b32 v21, 3, v18'); A.i(f'v_add3_u32 v{vP0}, v20, v21, s23')
    remap(A, vP0, 22)
    A.i('v_cmp_gt_u32 vcc, 32, v16'); A.i('s_nop 3'); A.i('s_mov_b64 s[44:45], vcc')
    A.i('v_and_b32 v20, 8, v16'); A.i('v_cmp_eq_u32 vcc, 0, v20'); A.i('s_nop 3'); A.i('s_and_b64 s[44:45], vcc, s[44:45]')
    A.i('v_mov_b32 v22, 0x80000000'); A.i('s_nop 0')
    A.i(f'v_cndmask_b32 v{vP0}, v22, v{vP0}, s[44:45]')
    lab = A.new('S_tokoff')
    A.i('s_cmp_lt_u32 s16, 2'); A.i(f's_cbranch_scc1 {lab}')
    A.i('s_sub_u32 s23, s16, 2'); A.i('s_lshl_b32 s23, s23, 4')
    A.i('v_add_u32 v20, s23, v17')
    A.i('v_lshrrev_b32 v21, 1, v18'); A.i('v_lshlrev_b32 v21, 5, v21'); A.i('v_add_u32 v21, v21, v20'); A.i('v_lshlrev_b32 v21, 4, v21')
    A.i('v_and_b32 v22, 1, v18'); A.i('v_lshlrev_b32 v22, 3, v22')
    A.i(f'v_add_u32 v{vPu}, v21, v22')
    A.i('v_lshlrev_b32 v21, 4, v20'); A.i('v_lshlrev_b32 v22, 3, v18'); A.i('v_add_u32 v21, v21, v22')
    A.i(f'v_add_u32 v{vP0}, 2048, v21')
    A.i('v_cmp_gt_u32 vcc, 32, v16'); A.i('v_mov_b32 v22, 0x80000000'); A.i('s_nop 0')
    A.i(f'v_cndmask_b32 v{vP0}, v22, v{vP0}, vcc')
    A.label(lab)
    ts_stamp(A, 7, 16)
    A.i(f's_mul_i32 s20, s3, 12288'); A.i(f's_add_u32 s21, s20, {WS_QT}'); A.i(f's_add_u32 s20, s20, {WS_KT}')
    A.i(f's_mul_i32 s37, s3, 2560'); A.i(f's_add_u32 s37, s37, {WS_PTOK}')
    A.i(f's_mov_b32 s38, {S_KQ}')
    def kq_dma():
        for which, so in ((0, 's20'), (1, 's21')):
            for blk in range(3):
                A.i(f's_add_u32 m0, s38, {which*12288 + blk*4096}')
                A.i(f's_add_u32 s23, {so}, {blk*4096}')
                for q in range(4):
                    A.i(f'buffer_load_dwordx4 v{vL16}, s[8:11], s23 offen offset:{q*1024} sc1 lds')
    if KN['unified']: ws_wait(A, BT_INIT, N_INIT, T0)
    A.i(f's_lshl_b32 s65, s3, 7'); A.i(f's_add_u32 s65, s65, {FL_KQ}')
    lab = A.new('S_nodma0')
    A.i('s_cmp_eq_u32 s16, 1'); A.i(f's_cbranch_scc0 {lab}')
    if KN['flags']: poll_flag(A, 65, 1, T0, backoff=4)
    kq_dma()
    A.label(lab)
    A.i(f's_add_u32 s20, s20, {32*12288}'); A.i(f's_add_u32 s21, s21, {32*12288}')
    A.i(f's_add_u32 s38, s38, s36')
    for r in range(24): A.i(f'v_mov_b32 v{RACC+r}, 0')
    A.i(f's_mov_b32 s24, {fbits(DH**-0.5*LOG2E):#x}')
    A.i('s_waitcnt vmcnt(0)')
    A.i('s_barrier')
    A.i('s_lshr_b32 s77, s3, 3'); A.i('s_lshl_b32 s77, s77, 8'); A.i(f's_add_u32 s77, s77, {FL_DB}')
    A.i('s_add_u32 s78, s77, 128')
    A.i('s_and_b32 s23, s3, 7'); A.i('s_lshl_b32 s23, s23, 2'); A.i('s_add_u32 s77, s77, s23')
    A.i('v_and_b32 v0, 63, v0'); A.i('v_min_u32 v0, 19, v0'); A.i('v_lshlrev_b32 v0, 2, v0')
    A.i('s_mov_b32 s25, s24')
    A.i(f's_mov_b32 s82, {WS_FLAGS + 0x16e00}')
    A.i('s_lshl_b32 s83, s3, 2'); A.i(f's_add_u32 s83, s83, {FL_PT}')
    placement_ok(A, RA)
    A.i(f's_mov_b32 s87, {KN["dbS"]}'); A.i('s_mov_b32 s88, 0')
    read_parity(A, RA)
    if KN['log']: A.i(('s_memtime' if KN.get('clk') else 's_memrealtime') + ' s[34:35]'); A.i('s_waitcnt lgkmcnt(0)'); A.i('s_mov_b32 s66, s34')
    A.label('S_loop')
    db_wait(A, 0, RA+14, 78, 17, KN['dbS'], 87 if KN['adapt'] else None)
    ev(A, 0, T2)
    sleep(A, KN['preS'])
    gather_mem(A, 'S_poll', 'R_fail', vG, vLm0, vLm2, RA)
    if KN['adapt']: A.i('s_mov_b32 s94, s22')
    if KN['log']: A.i('s_add_u32 s72, s72, s22')
    stamp(A, 68)
    ev(A, 1, T2)
    lg = LG(A)
    Areg = lambda kk: RA + 4*kk
    for kk in range(10):
        lg.issue(f'ds_read_b128 {vr(Areg(kk))}, v{vAr} offset:{kk*1024}', f'A{kk}')
    def wread(slot, half):
        st = RST + 8*(slot & 1) + 4*half
        lg.issue(f'ds_read_b128 {vr(st)}, v{vWr} offset:{slot*2048 + half*1024}', f'W{slot}' if half else f'W{slot}a')
    wread(0, 0); wread(0, 1)
    ktreg = lambda j: Areg(j) if j < 10 else RST + 4*(j-10)
    def kt_issue(j):
        T, kq = j & 1, j >> 1
        lg.issue(f'ds_read_b128 {vr(ktreg(j))}, v{vKt} offset:{(T*6+kq)*1024}', f'K{j}')
    def T_cvt1(p, r):
        src = RACC + 8*p + (0 if r < 2 else 4) + 2*(r & 1)
        A.need(f'acc{p}', 8)
        A.i(f'v_cvt_pk_bf16_f32 v{RAIN+r}, v{src}, v{src+1}'); A.mark('ain')
    def T_mfma(p):
        A.need('ain', 2)
        A.i(f'v_mfma_f32_16x16x32_bf16 {vr(RD3)}, {vr(RAIN)}, {vr(RSEL)}, 0'); A.mark('d3')
    def T_cvt2(p, h):
        A.need('d3', 8)
        A.i(f'v_cvt_pk_bf16_f32 v{T0+h}, v{RD3+2*h}, v{RD3+2*h+1}')
    def T_addr(p): A.i(f'v_add_u32 v{T2}, s{39+p}, v{vXw}')
    def T_write(p):
        lg.issue(f'ds_write_b64 v{vXw if p == 0 else T2}, v[{T0}:{T0+1}]', f'X{p}')
    def extras(p):
        ex = {}
        def put(pos, f):
            while pos in ex: pos += 1
            ex[pos] = f
        b = 4*p
        put(0, lambda: wread(b+1, 0)); put(1, lambda: wread(b+1, 1))
        put(5, lambda: wread(b+2, 0)); put(6, lambda: wread(b+2, 1))
        put(10, lambda: wread(b+3, 0)); put(13, lambda: wread(b+3, 1))
        if p < 2:
            put(14, lambda: wread(b+4, 0)); put(15, lambda: wread(b+4, 1))
        if p > 0:
            q = p-1
            put(4, lambda: T_cvt1(q, 0)); put(7, lambda: T_cvt1(q, 1)); put(8, lambda: T_cvt1(q, 2)); put(9, lambda: T_cvt1(q, 3))
            put(12, lambda: T_mfma(q))
            if q > 0: put(2, lambda: T_addr(q))
            put(17, lambda: T_cvt2(q, 0)); put(18, lambda: T_cvt2(q, 1))
        return ex
    for p in range(3):
        ex = extras(p)
        for pos in range(20):
            kk, isk = pos >> 1, pos & 1
            tt = 2*p + isk
            kind, r = s_wloc(tt, kk)
            if p == 0 and isk == 0 and kk in (0, 2, 5): lg.wait(f'A{ {0:1, 2:4, 5:9}[kk] }')
            if p == 2 and pos == 0: T_write(0)
            if kind == 'l':
                lg.wait(f'W{r}')
                breg = vr(RST + 8*(r & 1), 8)
            else:
                breg = (ar if kind == 'a' else vr)(r, 8)
            A.i(f'v_smfmac_f32_16x16x64_bf16 {vr(RACC+4*tt)}, {vr(Areg(kk))}, {breg}, v{vIdx}')
            if pos == 19: A.mark(f'acc{p}')
            if pos in ex: ex[pos]()
            if p == 2:
                if pos >= 2 and pos % 2 == 0: kt_issue(pos//2 - 1)
                if pos == 15: kt_issue(10)
                if pos == 17: kt_issue(11)
    T_write(1)
    kt_issue(9)
    for r in range(4): T_cvt1(2, r)
    T_addr(2)
    T_mfma(2)
    T_cvt2(2, 0); T_cvt2(2, 1)
    T_write(2)
    lg.wait_all()
    A.i('s_barrier')
    stamp(A, 69)
    ev(A, 2, T2)
    D0, D1, D2 = RSC, RSC+4, RSC+8
    xb = lambda b: RACC + 8*b
    def scores():
        lg = LG(A)
        def x_issue(kq):
            b = kq % 3
            lg.issue(f'ds_read_b128 {vr(xb(b))}, v{vB} offset:{kq*1024}', f'B{kq}')
            lg.issue(f'ds_read_b128 {vr(xb(b)+4)}, v{vXk} offset:{kq*1024}', f'Xk{kq}')
        for kq in range(3): x_issue(kq)
        for kq in range(6):
            b = kq % 3
            lg.wait(f'B{kq}')
            c0 = vr(RCI) if kq == 0 else vr(D0)
            c1 = '0' if kq == 0 else vr(D1)
            c2 = '0' if kq == 0 else vr(D2)
            A.i(f'v_mfma_f32_16x16x32_bf16 {vr(D1)}, {vr(ktreg(2*kq))}, {vr(xb(b))}, {c1}')
            A.i(f'v_mfma_f32_16x16x32_bf16 {vr(D2)}, {vr(ktreg(2*kq+1))}, {vr(xb(b))}, {c2}')
            lg.wait(f'Xk{kq}')
            A.i(f'v_mfma_f32_16x16x32_bf16 {vr(D0)}, {vr(xb(b)+4)}, {vr(xb(b))}, {c0}')
            if kq < 3: x_issue(kq+3)
        A.mark('sc')
    A.i('s_cmp_eq_u32 s16, 0')
    A.i('s_cbranch_scc0 S_notw0')
    A.c('memory queries')
    scores()
    U = RACC
    ML, MG, TT, F, SM = RAIN, RAIN+1, RAIN+2, RAIN+3, RD3
    E = RACC+8
    A.need('sc', 8)
    for r in range(4): A.i(f'v_cndmask_b32 v{U+r}, v{D1+r}, v{D2+r}, s[26:27]')
    A.i(f'v_max3_f32 v{ML}, v{D0}, v{D0+1}, v{D0+2}')
    A.i(f'v_max3_f32 v{TT}, v{U}, v{U+1}, v{U+2}')
    A.i(f'v_max3_f32 v{ML}, v{ML}, v{D0+3}, v{U+3}')
    A.i(f'v_max_f32 v{ML}, v{ML}, v{TT}')
    A.i(f'v_mul_f32 v{ML}, s24, v{ML}')
    def pkfma(d, sreg): A.i(f'v_pk_fma_f32 v[{d}:{d+1}], v[{sreg}:{sreg+1}], s[24:25], v[{ML}:{ML+1}] op_sel_hi:[1,1,0] neg_lo:[0,0,1] neg_hi:[0,0,1]')
    pkfma(E, U); pkfma(E+2, U+2)
    A.i(f'v_max_f32_dpp v{MG}, v{ML}, v{ML} row_ror:8 row_mask:0xf bank_mask:0xf')
    A.i(f'v_mov_b32 v{TT}, v{MG}')
    pkfma(E+4, D0); pkfma(E+6, D0+2)
    A.i(f'v_permlane16_swap_b32 v{MG}, v{TT}')
    A.i(f'v_exp_f32 v{E}, v{E}')
    A.i(f'v_max_f32 v{MG}, v{MG}, v{TT}')
    A.i(f'v_exp_f32 v{E+1}, v{E+1}')
    A.i(f'v_mov_b32 v{TT}, v{MG}')
    A.i(f'v_exp_f32 v{E+2}, v{E+2}'); A.i(f'v_exp_f32 v{E+3}, v{E+3}')
    A.i(f'v_permlane32_swap_b32 v{MG}, v{TT}')
    A.i(f'v_exp_f32 v{E+4}, v{E+4}')
    A.i(f'v_max_f32 v{MG}, v{MG}, v{TT}')
    A.i(f'v_exp_f32 v{E+5}, v{E+5}')
    A.i(f'v_sub_f32 v{F}, v{ML}, v{MG}')
    A.i(f'v_exp_f32 v{E+6}, v{E+6}'); A.i(f'v_exp_f32 v{E+7}, v{E+7}')
    A.i(f'v_exp_f32 v{F}, v{F}')
    A.i(f'v_pk_add_f32 v[{SM}:{SM+1}], v[{E}:{E+1}], v[{E+2}:{E+3}]')
    A.i(f'v_pk_add_f32 v[{SM+2}:{SM+3}], v[{E+4}:{E+5}], v[{E+6}:{E+7}]')
    A.i(f'v_pk_add_f32 v[{SM}:{SM+1}], v[{SM}:{SM+1}], v[{SM+2}:{SM+3}]')
    A.i(f'v_add_f32 v{SM}, v{SM}, v{SM+1}')
    A.i(f'v_mul_f32 v{SM}, v{SM}, v{F}')
    A.i('s_nop 1')
    A.i(f'v_add_f32_dpp v{SM}, v{SM}, v{SM} row_ror:8 row_mask:0xf bank_mask:0xf')
    xlane_reduce(A, 'v_add_f32', SM, TT)
    A.i(f'v_rcp_f32 v{SM}, v{SM}')
    A.i('s_nop 0')
    A.i(f'v_mul_f32 v{F}, v{F}, v{SM}')
    for j in range(0, 4, 2): A.i(f'v_pk_mul_f32 v[{E+j}:{E+j+1}], v[{E+j}:{E+j+1}], v[{F-1}:{F}] op_sel:[0,1] op_sel_hi:[1,1]')
    A.i(f'v_cvt_pk_bf16_f32 v{U}, v{E}, v{E+1}'); A.i(f'v_cvt_pk_bf16_f32 v{U+1}, v{E+2}, v{E+3}')
    A.i(f'buffer_store_dwordx2 v[{U}:{U+1}], v{vPu}, s[8:11], s19 offen sc1')
    for j in range(4, 8, 2): A.i(f'v_pk_mul_f32 v[{E+j}:{E+j+1}], v[{E+j}:{E+j+1}], v[{F-1}:{F}] op_sel:[0,1] op_sel_hi:[1,1]')
    A.i(f'v_cvt_pk_bf16_f32 v{U+2}, v{E+4}, v{E+5}'); A.i(f'v_cvt_pk_bf16_f32 v{U+3}, v{E+6}, v{E+7}')
    A.i(f'buffer_store_dwordx2 v[{U+2}:{U+3}], v{vP0}, s[8:11], s19 offen sc1')
    if KN['late']:
        A.i('s_add_u32 s79, s17, 1'); db_ring(A, T0, 77, 79)
    A.i('s_branch S_end')
    A.label('S_notw0')
    A.i('s_cmp_eq_u32 s16, 1')
    A.i('s_cbranch_scc1 S_wave1')
    if KN['post']:
        lab = A.new('S_nopt')
        A.i('s_cmp_eq_u32 s16, 3'); A.i(f's_cbranch_scc0 {lab}')
        A.i('s_mov_b64 exec, 1')
        A.i(f'buffer_store_dword v{vIdx}, off, s[8:11], s82 sc1')
        A.i('s_mov_b64 exec, -1')
        A.i('s_mov_b32 s82, s83'); A.i('s_add_u32 s83, s83, 128')
        A.label(lab)
    scores()
    MX, SM = RAIN, RAIN+2
    TT = RAIN+1
    A.i('s_nop 7')
    for r in range(4):
        A.i(f'v_cndmask_b32 v{D1+r}, v{VNINF}, v{D1+r}, s[{48+2*r}:{49+2*r}]')
        A.i(f'v_cndmask_b32 v{D2+r}, v{VNINF}, v{D2+r}, s[{56+2*r}:{57+2*r}]')
    A.i(f'v_max3_f32 v{MX}, v{D0}, v{D0+1}, v{D0+2}')
    A.i(f'v_max3_f32 v{TT}, v{D1}, v{D1+1}, v{D1+2}')
    A.i(f'v_max3_f32 v{MX}, v{MX}, v{D0+3}, v{D1+3}')
    A.i(f'v_max3_f32 v{TT}, v{TT}, v{D2}, v{D2+1}')
    A.i(f'v_max3_f32 v{MX}, v{MX}, v{D2+2}, v{D2+3}')
    A.i(f'v_max_f32 v{MX}, v{MX}, v{TT}')
    xlane_reduce(A, 'v_max_f32', MX, TT)
    A.i(f'v_mul_f32 v{MX}, s24, v{MX}')
    E = RACC
    for j in range(12): A.i(f'v_fma_f32 v{E+j}, v{D0+j}, s24, -v{MX}')
    for j in range(12): A.i(f'v_exp_f32 v{E+j}, v{E+j}')
    A.i(f'v_add_f32 v{SM}, v{E}, v{E+1}')
    for j in range(2, 12): A.i(f'v_add_f32 v{SM}, v{SM}, v{E+j}')
    xlane_reduce(A, 'v_add_f32', SM, TT)
    A.i(f'v_rcp_f32 v{SM}, v{SM}')
    A.i('s_nop 0')
    for j in range(12): A.i(f'v_mul_f32 v{E+j}, v{E+j}, v{SM}')
    O = RACC+12
    for j in range(6): A.i(f'v_cvt_pk_bf16_f32 v{O+j}, v{E+2*j}, v{E+2*j+1}')
    A.i(f'buffer_store_dwordx2 v[{O}:{O+1}], v{vP0}, s[8:11], s37 offen sc1')
    A.i(f'buffer_store_dwordx2 v[{O+2}:{O+3}], v{vPu}, s[8:11], s37 offen sc1')
    A.i(f'buffer_store_dwordx2 v[{O+4}:{O+5}], v{vPu}, s[8:11], s37 offen offset:1024 sc1')
    A.i('s_branch S_end')
    A.label('S_wave1')
    sleep(A, KN['ring_at'])
    if not KN['late']:
        A.i('s_add_u32 s79, s17, 1')
        db_ring(A, T0, 77, 79)
    A.i(f's_cmp_ge_u32 s17, {nsteps-1}')
    A.i('s_cbranch_scc1 S_end')
    if KN['flags']:
        lab = A.new('S_noflag')
        A.i('s_add_u32 s23, s17, 1'); A.i('s_and_b32 s23, s23, 3'); A.i('s_cmp_eq_u32 s23, 0'); A.i(f's_cbranch_scc0 {lab}')
        A.i(f's_add_u32 s65, s65, {32*128}')
        poll_flag(A, 65, 1, T0)
        A.label(lab)
    kq_dma()
    A.label('S_end')
    stamp(A, 70)
    ev(A, 3, T2)
    if KN['adapt']:
        A.i('s_mov_b32 s22, s94'); adapt(A, 87, 88, KN['loS'], KN['hiS'])
    A.i('s_nop 1')
    for r in range(24): A.i(f'v_mov_b32 v{RACC+r}, 0')
    A.i(f'v_add_u32 v{vKt}, s36, v{vKt}')
    A.i('s_cmp_eq_u32 s16, 0'); A.i('s_cselect_b32 s23, 0, s36')
    A.i(f'v_add_u32 v{vB}, s23, v{vB}')
    A.i('s_sub_u32 s38, s38, s36')
    A.i('s_sub_u32 s36, 0, s36')
    A.i(f's_add_u32 s20, s20, {32*12288}'); A.i(f's_add_u32 s21, s21, {32*12288}')
    A.i(f's_add_u32 s37, s37, {32*2560}')
    advance(A)
    A.i(f's_cmp_lt_u32 s17, {nsteps}')
    A.i('s_cbranch_scc1 S_loop')
    if KN['post']:
        A.i('s_waitcnt vmcnt(0)'); A.i('s_barrier')
        A.i('s_cmp_eq_u32 s16, 1'); A.i('s_cbranch_scc0 R_done')
        A.i(f's_mov_b32 s79, {nsteps-1}'); signal(A, FL_PT, 7, 79, 3, T0)
    A.i('s_branch R_done')
def gen_C(A, nsteps):
    vL16, vG, vLm0, vLm2, vAr, vIdx, vPg, vRw, vRr1, vRr2, vPub = 1, 2, 5, 6, 7, 8, 9, 14, 15, 16, 17
    RA, RD, RVM, RVT, RP, RO, RT = 20, 60, 76, 80, 112, 132, 136
    wreg = lambda j: (ar, j*8) if j < 32 else (vr, 192 + (j-32)*8)
    A.label('C_role')
    A.c('---- column-owner role setup; s3-NS = column block')
    A.i(f's_sub_u32 s3, s3, {NS}')
    if KN['unified']: boot_clear(A)
    probe_parity(A)
    if KN['unified']:
        b_tasks(A, None, 'C')
        ws_wait(A, BT_BDONE, 320, RT, 8)
        ts_stamp(A, 2, 22)
    A.i(f'v_and_b32 v{RT}, 63, v0')
    A.i(f'v_lshlrev_b32 v{vL16}, 4, v{RT}')
    setup_gather_addrs(A, vG, vLm0, vLm2, C_MEM, RT+1)
    A.i(f'v_add_u32 v{vAr}, {C_MEM}, v{vL16}')
    L, G, M, HF = RT, RT+1, RT+2, RT+3
    A.i(f'v_lshrrev_b32 v{G}, 4, v{L}'); A.i(f'v_and_b32 v{M}, 7, v{L}')
    A.i(f'v_lshrrev_b32 v{HF}, 3, v{L}'); A.i(f'v_and_b32 v{HF}, 1, v{HF}')
    A.i(f'v_cmp_eq_u32 vcc, 0, v{HF}')
    A.i(f'v_mov_b32 v{vIdx}, 0xeeee'); A.i(f'v_mov_b32 v{RT+4}, 0x4444'); A.i('s_nop 0')
    A.i(f'v_cndmask_b32 v{vIdx}, v{vIdx}, v{RT+4}, vcc')
    A.i('s_lshl_b32 s23, s16, 3')
    for u in range(4):
        A.i(f'v_add_u32 v{RT+4}, s23, v{HF}'); A.i(f'v_add_u32 v{RT+4}, {2*u}, v{RT+4}')
        A.i(f'v_mul_u32_u24 v{RT+4}, 640, v{RT+4}')
        A.i(f'v_add_u32 v{RT+5}, 1, v{G}'); A.i(f'v_lshlrev_b32 v{RT+5}, 7, v{RT+5}')
        A.i(f'v_lshlrev_b32 v{RT+6}, 4, v{M}')
        A.i(f'v_add3_u32 v{vPg+u}, v{RT+4}, v{RT+5}, v{RT+6}')
        remap(A, vPg+u, RT+4)
    A.i(f'v_lshlrev_b32 v{RT+4}, 2, v{HF}'); A.i(f'v_add3_u32 v{RT+4}, v{RT+4}, v{G}, s23')
    A.i(f'v_mul_u32_u24 v{RT+4}, 640, v{RT+4}'); A.i(f'v_lshlrev_b32 v{RT+6}, 4, v{M}')
    A.i(f'v_add_u32 v{vPg+4}, v{RT+4}, v{RT+6}')
    remap(A, vPg+4, RT+4)
    A.i('s_lshl_b32 s23, s16, 10'); A.i(f's_add_u32 s23, s23, {C_RED}')
    A.i(f'v_add_u32 v{vRw}, s23, v{vL16}')
    A.i(f'v_lshlrev_b32 v{RT+4}, 10, v{G}')
    A.i(f'v_lshlrev_b32 v{RT+5}, 4, v{HF}'); A.i(f'v_add_u32 v{RT+5}, v{RT+5}, v{M}'); A.i(f'v_lshlrev_b32 v{RT+5}, 4, v{RT+5}')
    A.i(f'v_add_u32 v{RT+4}, v{RT+4}, v{RT+5}')
    A.i(f'v_add_u32 v{vRr1}, {C_RED}, v{RT+4}')
    A.i(f'v_add_u32 v{vRr2}, {C_RED + (2*16+8)*16}, v{RT+4}')
    A.i('s_lshl_b32 s23, s3, 7')
    A.i(f'v_lshlrev_b32 v{RT+4}, 4, v{M}'); A.i(f'v_lshlrev_b32 v{RT+5}, 3, v{HF}'); A.i(f'v_add_u32 v{RT+4}, v{RT+4}, v{RT+5}')
    A.i(f'v_lshrrev_b32 v{RT+5}, 1, v{G}'); A.i(f'v_lshlrev_b32 v{RT+5}, 2, v{RT+5}')
    A.i(f'v_add3_u32 v{vPub}, v{RT+4}, v{RT+5}, s23')
    remap(A, vPub, RT+4)
    A.i(f'v_add_u32 v{vPub}, {MEM_STRIDE}, v{vPub}')
    A.i(f'v_and_b32 v{RT+4}, 1, v{G}'); A.i(f'v_cmp_eq_u32 vcc, 0, v{RT+4}')
    A.i(f'v_mov_b32 v{RT+5}, 0x80000000'); A.i('s_nop 0')
    A.i(f'v_cndmask_b32 v{vPub}, v{RT+5}, v{vPub}, vcc')
    A.i(f's_mul_i32 s23, s3, 327680'); A.i('s_mul_i32 s24, s16, 81920'); A.i('s_add_u32 s23, s23, s24'); A.i(f's_add_u32 s23, s23, {WS_BW}')
    for j in range(40):
        f, r = wreg(j)
        A.i(f'buffer_load_dwordx4 {f(r)}, v{vL16}, s[8:11], s23 offen sc1')
        A.i(f'buffer_load_dwordx4 {f(r+4)}, v{vL16}, s[8:11], s23 offen offset:1024 sc1')
        A.i('s_add_u32 s23, s23, 2048')
        if j % 8 == 7: A.i('s_waitcnt vmcnt(32)')
    A.i('s_waitcnt vmcnt(0)')
    ts_stamp(A, 8, RT)
    A.i('s_mul_i32 s20, s3, 16384'); A.i('s_lshl_b32 s23, s16, 12'); A.i('s_add_u32 s20, s20, s23'); A.i(f's_add_u32 s20, s20, {WS_VOT}')
    A.i('s_mul_i32 s21, s3, 4096'); A.i('s_lshl_b32 s23, s16, 10'); A.i('s_add_u32 s21, s21, s23'); A.i(f's_add_u32 s21, s21, {WS_VOM}')
    def vt_load(buf):
        for u in range(4):
            A.i(f'buffer_load_dwordx4 {vr(RVT+16*buf+4*u)}, v{vL16}, s[8:11], s20 offen offset:{u*1024} sc1')
        A.i(f's_add_u32 s20, s20, {80*16384}')
    if KN['unified']: ws_wait(A, BT_INIT, N_INIT, RT)
    A.i(f's_mov_b32 s65, {FL_VVO}')
    if KN['flags']: poll_flag(A, 65, 32, RT, backoff=4)
    vt_load(0)
    A.i('s_waitcnt vmcnt(0)')
    A.i('s_mul_i32 s77, s3, 3277'); A.i('s_lshr_b32 s77, s77, 16')
    A.i('s_mul_i32 s23, s77, 20'); A.i('s_sub_u32 s79, s3, s23')
    A.i('s_lshl_b32 s77, s77, 8'); A.i(f's_add_u32 s78, s77, {FL_DB}')
    A.i('s_add_u32 s80, s78, 128')
    A.i('s_lshl_b32 s79, s79, 2'); A.i('s_add_u32 s77, s80, s79')
    vDS, vDC = 18, 19
    A.i(f'v_and_b32 v{vDS}, 63, v0'); A.i(f'v_min_u32 v{vDC}, 19, v{vDS}'); A.i(f'v_lshlrev_b32 v{vDC}, 2, v{vDC}')
    A.i(f'v_min_u32 v{vDS}, 7, v{vDS}'); A.i(f'v_lshlrev_b32 v{vDS}, 2, v{vDS}')
    placement_ok(A, RT)
    A.i(f's_mov_b32 s87, {KN["dbC"]}'); A.i('s_mov_b32 s88, 0')
    read_parity(A, RT)
    if KN['log']: A.i(('s_memtime' if KN.get('clk') else 's_memrealtime') + ' s[34:35]'); A.i('s_waitcnt lgkmcnt(0)'); A.i('s_mov_b32 s66, s34')

    def body(buf, tagp):
        db_wait(A, vDC, RT, 80, 17, KN['dbCm'])
        ev(A, 0, RT+3)
        sleep(A, KN['dC0'])
        gather_mem(A, f'C_poll{tagp}', 'R_fail', vG, vLm0, vLm2, RP)
        if KN['log']: A.i('s_add_u32 s72, s72, s22')
        stamp(A, 68)
        ev(A, 1, RT+3)
        lg = LG(A)
        for kk in range(10):
            lg.issue(f'ds_read_b128 {vr(RA+4*kk)}, v{vAr} offset:{kk*1024}', f'A{kk}')
        lab = A.new('C_novt')
        A.i(f's_cmp_ge_u32 s17, {nsteps-1}'); A.i(f's_cbranch_scc1 {lab}')
        if KN['flags']:
            l2 = A.new('C_noflag')
            A.i('s_add_u32 s23, s17, 1'); A.i('s_and_b32 s23, s23, 3'); A.i('s_cmp_eq_u32 s23, 0'); A.i(f's_cbranch_scc0 {l2}')
            A.i('s_add_u32 s65, s65, 128')
            poll_flag(A, 65, 32, RT)
            A.label(l2)
        if KN.get('vtlat'): A.i('s_memrealtime s[86:87]'); A.i('s_waitcnt lgkmcnt(0)')
        vt_load(buf ^ 1)
        if KN.get('vtlat'):
            A.i('s_waitcnt vmcnt(0)'); A.i('s_memrealtime s[88:89]'); A.i('s_waitcnt lgkmcnt(0)'); A.i('s_sub_u32 s88, s88, s86')
            A.i('s_mov_b32 m0, s17'); A.i('s_nop 0'); A.i('v_writelane_b32 v151, s88, m0')
        A.label(lab)
        for r in range(16): A.i(f'v_mov_b32 v{RD+r}, 0')
        A.i('s_nop 1')
        for kk in range(10):
            lg.wait(f'A{kk}')
            for t in range(4):
                f, r = wreg(t*10 + kk)
                A.i(f'v_smfmac_f32_16x16x64_bf16 {vr(RD+4*t)}, {vr(RA+4*kk)}, {f(r,8)}, v{vIdx}')
        A.i('s_nop 7')
        for i in range(4):
            A.i(f'v_permlane32_swap_b32 v{RD+i}, v{RD+8+i}')
            A.i(f'v_permlane32_swap_b32 v{RD+4+i}, v{RD+12+i}')
        for i in range(4):
            A.i(f'v_add_f32 v{RD+i}, v{RD+i}, v{RD+8+i}')
            A.i(f'v_add_f32 v{RD+4+i}, v{RD+4+i}, v{RD+12+i}')
        A.i(f'v_cvt_pk_bf16_f32 v{RVM}, v{RD}, v{RD+1}'); A.i(f'v_cvt_pk_bf16_f32 v{RVM+1}, v{RD+2}, v{RD+3}')
        A.i(f'v_cvt_pk_bf16_f32 v{RVM+2}, v{RD+4}, v{RD+5}'); A.i(f'v_cvt_pk_bf16_f32 v{RVM+3}, v{RD+6}, v{RD+7}')
        A.i('s_nop 1')
        A.i(f'v_permlane16_swap_b32 v{RVM}, v{RVM+2}')
        A.i(f'v_permlane16_swap_b32 v{RVM+1}, v{RVM+3}')
        A.i(f's_cmp_ge_u32 s17, {nsteps-1}'); A.i('s_cbranch_scc1 C_last')
        stamp(A, 69)
        ev(A, 2, RT+3)
        A.i('s_add_u32 s79, s17, 1')
        db_wait(A, vDS, RT, 78, 79, KN['dbC'], 87 if KN['adapt'] else None)
        ev(A, 3, RT+3)
        sleep(A, KN['preC'])
        A.i('s_mov_b32 s22, 0')
        A.i(f'v_mov_b32 v{RT+2}, s79')
        lbl = f'C_pp{tagp}'
        A.label(lbl)
        for u in range(5):
            A.i(f'buffer_load_dwordx4 {vr(RP+4*u)}, v{vPg+u}, s[8:11], s19 offen {KN["gl"]}')
        A.i('s_add_u32 s22, s22, 1'); A.i(f's_cmp_gt_u32 s22, {SPIN_MAX}'); A.i('s_cbranch_scc1 R_fail')
        x, y = RT, RT+1
        for u in range(5):
            A.i(f's_waitcnt vmcnt({4-u})')
            a_op = vr(RVT+16*buf+4*u) if u < 4 else vr(RVM)
            cc = '0' if u == 0 else vr(RO)
            A.i(f'v_mfma_f32_16x16x32_bf16 {vr(RO)}, {a_op}, {vr(RP+4*u)}, {cc}')
            p = RP+4*u
            if u == 0:
                A.i(f'v_max3_u32 v{x}, v{p}, v{p+1}, v{p+2}'); A.i(f'v_mov_b32 v{y}, v{p+3}')
            else:
                A.i(f'v_max3_u32 v{x}, v{p}, v{p+1}, v{x}'); A.i(f'v_max3_u32 v{y}, v{p+2}, v{p+3}, v{y}')
        A.mark('ro')
        A.i(f'v_max_u32 v{x}, v{x}, v{y}')
        A.i(f'v_cmp_eq_u32 vcc, -1, v{x}')
        A.i(f's_cbranch_vccnz {lbl}')
        if KN['log']: A.i('s_add_u32 s73, s73, s22')
        stamp(A, 70)
        ev(A, 4, RT+3)
        A.need('ro', 8)
        A.i(f'ds_write_b128 v{vRw}, {vr(RO)}')
        lab = A.new('C_nopub'); lab2 = A.new('C_join')
        A.i('s_cmp_eq_u32 s16, 0'); A.i(f's_cbranch_scc0 {lab}')
        if KN['db'] and not KN['lateC']:
            A.i('s_mov_b64 exec, 1'); A.i(f'buffer_store_dword v{RT+2}, off, s[8:11], s77'); A.i('s_mov_b64 exec, -1')
        A.i('s_waitcnt lgkmcnt(0)')
        A.i('s_barrier')
        R1, R2 = RT+4, RT+8
        A.i(f'ds_read_b128 {vr(R1)}, v{vRr1}'); A.i(f'ds_read_b128 {vr(R2)}, v{vRr2}')
        A.i('s_waitcnt lgkmcnt(0)')
        A.i(f'v_pk_add_f32 v[{R1}:{R1+1}], v[{R1}:{R1+1}], v[{R2}:{R2+1}]'); A.i(f'v_pk_add_f32 v[{R1+2}:{R1+3}], v[{R1+2}:{R1+3}], v[{R2+2}:{R2+3}]')
        A.i('s_nop 1')
        A.i(f'v_permlane32_swap_b32 v{R1}, v{R1+2}')
        A.i(f'v_permlane32_swap_b32 v{R1+1}, v{R1+3}')
        A.i(f'v_pk_add_f32 v[{R1}:{R1+1}], v[{R1}:{R1+1}], v[{R1+2}:{R1+3}]')
        A.i(f'v_mov_b32 v{R2}, v{R1}'); A.i(f'v_mov_b32 v{R2+1}, v{R1+1}')
        A.i('s_nop 0')
        A.i(f'v_permlane16_swap_b32 v{R1}, v{R2}')
        A.i(f'v_permlane16_swap_b32 v{R1+1}, v{R2+1}')
        A.i(f'v_pk_add_f32 v[{R1}:{R1+1}], v[{R1}:{R1+1}], v[{R2}:{R2+1}]')
        A.i(f'v_cvt_pk_bf16_f32 v{R1}, v{R1}, v{R1+1}')
        A.i(f'buffer_store_dword v{R1}, v{vPub}, s[8:11], s18 offen sc1')
        if KN['db'] and KN['lateC']:
            A.i('s_mov_b64 exec, 1'); A.i(f'buffer_store_dword v{RT+2}, off, s[8:11], s77'); A.i('s_mov_b64 exec, -1')
        A.i(f's_branch {lab2}')
        A.label(lab)
        A.i('s_waitcnt lgkmcnt(0)')
        A.i('s_barrier')
        A.label(lab2)
        adapt(A, 87, 88, KN['loC'], KN['hiC'])
        A.i(f'buffer_store_dwordx4 {vr(RVM)}, v{vL16}, s[8:11], s21 offen sc1')
        A.i(f's_add_u32 s21, s21, {80*4096}')
        stamp(A, 71)
        ev(A, 5, RT+3)
        if KN['log'] or KN.get('lite'):
            if not KN['log']: A.i('s_memrealtime s[34:35]'); A.i('s_waitcnt lgkmcnt(0)')
            A.i('s_mov_b32 m0, s17'); A.i('s_nop 0'); A.i('v_writelane_b32 v150, s34, m0')
            if KN.get('lite'):
                A.i('v_writelane_b32 v151, s22, m0')
                A.i('s_memtime s[34:35]'); A.i('s_waitcnt lgkmcnt(0)'); A.i('v_writelane_b32 v152, s34, m0')
        advance(A)
    A.label('C_loop')
    body(0, 'a')
    body(1, 'b')
    A.i('s_branch C_loop')
    A.label('C_last')
    A.i('s_nop 1')
    A.i(f'buffer_store_dwordx4 {vr(RVM)}, v{vL16}, s[8:11], s21 offen sc1')
    if KN['post']:
        A.i('s_waitcnt vmcnt(0)'); A.i('s_barrier')
        A.i('s_cmp_eq_u32 s16, 1'); A.i('s_cbranch_scc0 R_done')
        signal(A, FL_VM, 9, 17, 3, RT)
    A.i('s_branch R_done')
def placement_ok(A, v):
    l0, l1 = A.new('pl'), A.new('pl')
    A.i('s_mov_b32 s76, 0'); A.i('s_mov_b32 s22, 0')
    A.i(f'v_mov_b32 v{v}, 0')
    A.label(l0)
    A.i(f'buffer_load_dwordx4 v[{v+2}:{v+5}], v{v}, s[12:15], 0 offen sc1')
    A.i(f'buffer_load_dword v{v+1}, v{v}, s[12:15], 0 offen offset:96 sc1')
    A.i('s_waitcnt vmcnt(0)')
    A.i(f'v_min_u32 v{v+2}, v{v+2}, v{v+3}'); A.i(f'v_min3_u32 v{v+2}, v{v+2}, v{v+4}, v{v+5}'); A.i('s_nop 0')
    A.i(f'v_readfirstlane_b32 s23, v{v+2}'); A.i(f'v_readfirstlane_b32 s79, v{v+1}')
    A.i('s_add_u32 s22, s22, 1'); A.i('s_cmp_gt_u32 s22, 0x400'); A.i(f's_cbranch_scc1 {l1}')
    A.i('s_cmp_ge_u32 s23, 28'); A.i(f's_cbranch_scc0 {l0}')
    A.i('s_cmp_eq_u32 s79, 0'); A.i('s_cselect_b32 s76, 1, 0')
    A.label(l1)

NGRID = 256
def assign_role(A, ngrid):
    A.i(f's_load_dwordx2 s[6:7], s[0:1], {KA["dbg"]}')
    A.i('s_getreg_b32 s50, hwreg(HW_REG_XCC_ID)'); A.i('s_and_b32 s50, s50, 7')
    A.i('s_waitcnt lgkmcnt(0)')
    srd(A, 12, 6, 256)
    A.i('s_mov_b32 s3, -1')
    A.i('s_cmp_eq_u32 s16, 0'); A.i('s_cbranch_scc0 R_role_wait')
    A.i('s_mov_b64 exec, 1')
    def atomic(op, val, off):
        A.i(f'v_mov_b32 v2, {val}'); A.i(f'v_mov_b32 v3, {off}')
        A.i(f'buffer_atomic_{op} v2, v3, s[12:15], 0 offen sc0')
        A.i('s_waitcnt vmcnt(0)'); A.i('v_readfirstlane_b32 s51, v2'); A.i('s_nop 3')
    def claim():
        A.i('s_lshr_b32 s53, s52, 5'); A.i('s_lshl_b32 s53, s53, 2'); A.i('s_add_u32 s53, s53, 64')
        A.i('s_and_b32 s54, s52, 31'); A.i('s_lshl_b32 s54, 1, s54')
        atomic('or', 's54', 's53')
        A.i('s_and_b32 s51, s51, s54'); A.i('s_cmp_eq_u32 s51, 0'); A.i('s_cselect_b32 s3, s52, s3')
    A.i('s_lshl_b32 s52, s50, 2'); atomic('add', '1', 's52')
    A.i('s_cmp_lt_u32 s50, 4'); A.i('s_cbranch_scc0 R_role_free')
    A.i('s_cmp_lt_u32 s51, 8'); A.i('s_cbranch_scc0 R_role_c')
    A.i('s_lshl_b32 s52, s50, 3'); A.i('s_add_u32 s52, s52, s51'); A.i('s_branch R_role_try')
    A.label('R_role_c')
    A.i('s_cmp_lt_u32 s51, 28'); A.i('s_cbranch_scc0 R_role_free')
    A.i('s_mul_i32 s52, s50, 20'); A.i('s_add_u32 s52, s52, s51'); A.i('s_add_u32 s52, s52, 24')
    A.label('R_role_try')
    claim()
    A.i('s_cmp_lt_i32 s3, 0'); A.i('s_cbranch_scc0 R_role_pub')
    A.label('R_role_free')
    A.i('s_mov_b32 s22, 0'); A.i('v_mov_b32 v3, 0')
    A.label('R_role_spin')
    A.i('buffer_load_dwordx4 v[4:7], v3, s[12:15], 0 offen sc1'); A.i('buffer_load_dwordx4 v[8:11], v3, s[12:15], 0 offen offset:16 sc1')
    A.i('s_waitcnt vmcnt(0)')
    A.i('v_min_u32 v2, v4, v5'); A.i('v_min3_u32 v2, v2, v6, v7')
    A.i('v_add3_u32 v4, v4, v5, v6'); A.i('v_add3_u32 v8, v8, v9, v10'); A.i('v_add3_u32 v4, v4, v7, v8'); A.i('v_add_u32 v4, v4, v11'); A.i('s_nop 0')
    A.i('v_readfirstlane_b32 s51, v2'); A.i('v_readfirstlane_b32 s52, v4'); A.i('s_nop 3')
    A.i('s_cmp_ge_u32 s51, 28'); A.i('s_cbranch_scc1 R_role_pub')
    A.i(f's_cmp_ge_u32 s52, {ngrid}'); A.i('s_cbranch_scc1 R_role_scan')
    A.i('s_sleep 4'); A.i('s_add_u32 s22, s22, 1'); A.i('s_cmp_lt_u32 s22, 0x4000'); A.i('s_cbranch_scc1 R_role_spin')
    A.label('R_role_scan')
    for k in range(4):
        lab, nx = f'R_scan{k}', f'R_scan{k}_n'
        valid = 0xffffffff if k < 3 else 0xffff
        A.label(lab)
        atomic('add', '0', str(64 + 4*k))
        A.i('s_not_b32 s51, s51'); A.i(f's_and_b32 s51, s51, {valid:#x}'); A.i('s_cmp_eq_u32 s51, 0'); A.i(f's_cbranch_scc1 {nx}')
        A.i('s_ff1_i32_b32 s55, s51'); A.i(f's_add_u32 s55, s55, {32*k}')
        atomic('add', '1', '96')
        A.i('s_mov_b32 s52, s55')
        claim()
        A.i('s_cmp_lt_i32 s3, 0'); A.i('s_cbranch_scc0 R_role_pub'); A.i(f's_branch {lab}')
        A.label(nx)
    A.label('R_role_pub')
    A.i('v_mov_b32 v2, s3'); A.i('v_mov_b32 v3, 0'); A.i('ds_write_b32 v3, v2'); A.i('s_waitcnt lgkmcnt(0)')
    A.i('s_mov_b64 exec, -1')
    A.label('R_role_wait')
    A.i('s_barrier')
    A.i('v_mov_b32 v3, 0'); A.i('ds_read_b32 v2, v3'); A.i('s_waitcnt lgkmcnt(0)'); A.i('v_readfirstlane_b32 s3, v2'); A.i('s_nop 3')
    A.i('s_barrier')

def gen_rec(name='rec_kernel', nsteps=NSEG, ngrid=256, workers=None):
    A = Em()
    kernel_header(A, name)
    A.i(f's_load_dwordx2 s[4:5], s[0:1], {KA["ws"]}')
    A.i(f's_cmp_ge_u32 s2, {ngrid}')
    A.i('s_cbranch_scc1 R_exit')
    A.i('v_lshrrev_b32 v1, 6, v0')
    A.i('s_waitcnt lgkmcnt(0)')
    srd(A, 8, 4, WS_SIZE)
    A.i('v_readfirstlane_b32 s16, v1')
    ts_stamp(A, 4)
    assign_role(A, ngrid)
    ts_stamp(A, 6)
    A.i(f's_cmp_lt_u32 s3, {NS+NC}'); A.i('s_cbranch_scc0 W_role' if workers else 's_cbranch_scc0 R_exit')
    A.i('s_mov_b32 s17, 0')
    if KN.get('ev'):
        A.i('s_lshl_b32 s81, s3, 2'); A.i('s_add_u32 s81, s81, s16'); A.i('s_lshl_b32 s81, s81, 11'); A.i(f's_add_u32 s81, s81, {0xE000000}')
    if KN.get('lite'): A.i('s_mov_b32 s64, s3')
    if KN['log']:
        A.i('s_mov_b32 s64, s3')
        for r in range(68, 76): A.i(f's_mov_b32 s{r}, 0')
    A.i(f's_cmp_lt_u32 s3, {NS}')
    A.i('s_cbranch_scc0 C_role')
    gen_S(A, nsteps)
    gen_C(A, nsteps)
    A.label('R_fail')
    A.label('R_done')
    if KN.get('lite'):
        A.i('s_mov_b64 exec, -1'); A.i('v_mbcnt_lo_u32_b32 v1, -1, 0'); A.i('v_mbcnt_hi_u32_b32 v1, -1, v1'); A.i('v_lshlrev_b32 v1, 2, v1')
        A.i('s_lshl_b32 s23, s64, 2'); A.i('s_add_u32 s23, s23, s16'); A.i('s_lshl_b32 s23, s23, 8'); A.i(f's_add_u32 s23, s23, {WS_LOG + 0x10000}')
        A.i('buffer_store_dword v150, v1, s[8:11], s23 offen'); A.i(f's_add_u32 s23, s23, {0x30000}'); A.i('buffer_store_dword v151, v1, s[8:11], s23 offen')
        lab = A.new('lt'); A.i('s_cmp_eq_u32 s16, 0'); A.i(f's_cbranch_scc0 {lab}')
        A.i('s_lshl_b32 s23, s64, 8'); A.i(f's_add_u32 s23, s23, {WS_LOG + 0x5C000}'); A.i('buffer_store_dword v152, v1, s[8:11], s23 offen')
        A.label(lab)
    if KN['log']:
        A.i('s_lshl_b32 s23, s64, 2'); A.i('s_add_u32 s23, s23, s16'); A.i('s_lshl_b32 s23, s23, 5'); A.i(f's_add_u32 s23, s23, {WS_LOG}')
        A.i('s_mov_b64 exec, 1'); A.i('v_mov_b32 v1, 0')
        for r in range(8): A.i(f'v_mov_b32 v{2+r}, s{68+r}')
        A.i('buffer_store_dwordx4 v[2:5], v1, s[8:11], s23 offen'); A.i('buffer_store_dwordx4 v[6:9], v1, s[8:11], s23 offen offset:16')
        A.i('s_mov_b64 exec, -1'); A.i('v_and_b32 v1, 63, v0'); A.i('v_lshlrev_b32 v1, 2, v1')
        A.i('s_lshl_b32 s23, s64, 2'); A.i('s_add_u32 s23, s23, s16'); A.i('s_lshl_b32 s23, s23, 8'); A.i(f's_add_u32 s23, s23, {WS_LOG + 0x10000}')
        A.i('buffer_store_dword v150, v1, s[8:11], s23 offen')
        if KN.get('vtlat'):
            A.i(f's_add_u32 s23, s23, {0x50000}'); A.i('buffer_store_dword v151, v1, s[8:11], s23 offen')
    A.label('R_wexit')
    A.i('s_waitcnt vmcnt(0)')
    if workers and KN['post'] and KN['join']:
        A.i('s_mov_b64 exec, -1'); A.i('s_barrier')
        A.i('v_mbcnt_lo_u32_b32 v0, -1, 0'); A.i('v_mbcnt_hi_u32_b32 v0, -1, v0'); A.i('s_lshl_b32 s23, s16, 6'); A.i('v_add_u32 v0, s23, v0')
        A.i('s_mov_b32 s58, 5')
        A.i('s_getpc_b64 s[92:93]')
        A.label('R_pc')
        A.i('s_add_u32 s92, s92, P_phase-R_pc'); A.i('s_addc_u32 s93, s93, 0')
        A.i('s_setpc_b64 s[92:93]')
    A.label('R_exit')
    A.i('s_endpgm')
    if workers: workers(A)
    return A.text(), kernel_desc(name, 512, 256)
if __name__ == '__main__':
    t, d = gen_rec()
    print('; @launch kernel=rec_kernel grid=(112,1,1) block=(256,1,1) lds=163840')
    print('.amdgcn_target "amdgcn-amd-amdhsa--gfx950"')
    print(t); print(d)
```

```python
from common import *
from rec import Em, fbits, LOG2E
from gemm import setup_dma192, setup_dma160, setup_lane, vD192, vD160, vRdE, vRdO, vRd5, vL16

def rnd_bf16(A, v, tmp=None):
    A.i(f'v_cvt_pk_bf16_f32 v{v}, v{v}, v{v}')
    A.i(f'v_lshlrev_b32 v{v}, 16, v{v}')

def role_mod(A, signal=False, inmain=False):
    A.i(f's_load_dwordx2 s[6:7], s[0:1], {KA["c"]}')
    A.i(f's_load_dwordx2 s[18:19], s[0:1], {KA["wmod"]}')
    A.i('v_and_b32 v2, 63, v0')
    A.i('v_lshrrev_b32 v3, 3, v2')
    A.i('v_and_b32 v4, 7, v2')
    A.i('s_waitcnt lgkmcnt(0)')
    srd(A, 36, 6, 1280); srd(A, 28, 18, 640*7680)
    A.i('s_mul_i32 s23, s16, 160'); A.i('v_add_u32 v5, s23, v3')
    A.i('s_mov_b32 s24, 7680'); A.i('v_mul_lo_u32 v6, v5, s24'); A.i('v_lshlrev_b32 v7, 4, v4'); A.i('v_add_u32 v6, v6, v7')
    A.i('s_lshl_b32 s25, s40, 7')
    A.i('v_lshlrev_b32 v5, 1, v5')
    W, C = 32, 112
    for j in range(20):
        A.i(f'buffer_load_dwordx4 {vr(W+4*j)}, v6, s[28:31], s25 offen')
        A.i(f'buffer_load_ushort v{C+j}, v5, s[36:39], 0 offen offset:{16*j}')
        A.i(f's_add_u32 s25, s25, {8*7680}')
    ACC = 8
    for r in range(8): A.i(f'v_mov_b32 v{ACC+r}, 0')
    A.i(f's_mov_b32 s26, {fbits(-LOG2E):#x}')
    for j in range(20):
        A.i(f's_waitcnt vmcnt({2*(19-j)})')
        c = C + j
        A.i(f'v_lshlrev_b32 v{c}, 16, v{c}')
        A.i(f'v_mul_f32 v16, s26, v{c}'); A.i('v_exp_f32 v16, v16'); A.i('s_nop 0'); A.i('v_add_f32 v16, 1.0, v16'); A.i('v_rcp_f32 v16, v16'); A.i('s_nop 0')
        A.i(f'v_mul_f32 v16, v16, v{c}')
        rnd_bf16(A, 16)
        for d in range(4):
            w = W + 4*j + d
            A.i(f'v_lshlrev_b32 v17, 16, v{w}'); A.i(f'v_and_b32 v18, 0xffff0000, v{w}')
            A.i(f'v_fmac_f32 v{ACC+2*d}, v16, v17'); A.i(f'v_fmac_f32 v{ACC+2*d+1}, v16, v18')
    for r in range(8):
        x = ACC + r
        A.i('s_nop 1')
        A.i(f'v_add_f32_dpp v{x}, v{x}, v{x} row_ror:8 row_mask:0xf bank_mask:0xf')
        A.i(f'v_mov_b32 v16, v{x}'); A.i('s_nop 1'); A.i(f'v_permlane16_swap_b32 v{x}, v16'); A.i(f'v_add_f32 v{x}, v{x}, v16')
        A.i(f'v_mov_b32 v16, v{x}'); A.i('s_nop 1'); A.i(f'v_permlane32_swap_b32 v{x}, v16'); A.i(f'v_add_f32 v{x}, v{x}, v16')
    A.i('v_lshlrev_b32 v16, 5, v4'); A.i('s_lshl_b32 s23, s16, 8'); A.i('v_add_u32 v16, s23, v16')
    A.i('s_mov_b64 exec, 0xff')
    A.i(f'ds_write_b128 v16, {vr(ACC)}'); A.i(f'ds_write_b128 v16, {vr(ACC+4)} offset:16')
    A.i('s_mov_b64 exec, -1')
    A.i('s_waitcnt lgkmcnt(0)'); A.i('s_barrier')
    A.i('v_lshlrev_b32 v16, 2, v2')
    for w in range(4): A.i(f'ds_read_b32 v{20+w}, v16 offset:{256*w}')
    A.i('s_waitcnt lgkmcnt(0)')
    A.i('v_add_f32 v20, v20, v21'); A.i('v_add_f32 v22, v22, v23'); A.i('v_add_f32 v20, v20, v22')
    rnd_bf16(A, 20)
    A.i('s_lshl_b32 s23, s40, 8'); A.i(f's_add_u32 s23, s23, {WS_MOD}')
    lab = A.new('mod_skip')
    A.i('s_cmp_eq_u32 s16, 0'); A.i(f's_cbranch_scc0 {lab}')
    A.i('buffer_store_dword v20, v16, s[8:11], s23 offen sc1')
    A.i('s_waitcnt vmcnt(0)')
    if signal:
        if not inmain:
            A.i(f's_load_dwordx2 s[6:7], s[0:1], {KA["dbg"]}'); A.i('s_waitcnt lgkmcnt(0)'); srd(A, 12, 6, 256)
        A.i('s_mov_b64 exec, 1'); A.i('v_mov_b32 v2, 1'); A.i(f'v_mov_b32 v3, {BT_MOD if inmain else 0}')
        A.i('buffer_atomic_add v2, v3, s[8:11], 0 offen' if inmain else 'buffer_atomic_add v2, v3, s[12:15], 0 offen'); A.i('s_waitcnt vmcnt(0)'); A.i('s_mov_b64 exec, -1')
    A.label(lab)

def role_wqk(A):
    A.i('s_mov_b32 s23, 0xcccd'); A.i('s_mul_i32 s41, s40, s23'); A.i('s_lshr_b32 s41, s41, 20')
    A.i('s_mul_i32 s23, s41, 20'); A.i('s_sub_u32 s42, s40, s23')
    A.i('s_cmp_ge_u32 s42, 10'); A.i('s_cselect_b32 s43, 1, 0')
    A.i('s_mul_i32 s23, s43, 10'); A.i('s_sub_u32 s42, s42, s23')
    A.i(f's_load_dwordx2 s[6:7], s[0:1], {KA["wq"]}'); A.i(f's_load_dwordx2 s[18:19], s[0:1], {KA["wk"]}')
    setup_dma192(A, 12288)
    A.i('s_waitcnt lgkmcnt(0)')
    A.i('s_cmp_eq_u32 s43, 0'); A.i('s_cselect_b32 s6, s6, s18'); A.i('s_cselect_b32 s7, s7, s19')
    srd(A, 12, 6, 640*12288)
    A.i(f's_mul_i32 s44, s42, {64*12288}'); A.i('s_mul_i32 s23, s41, 384'); A.i('s_add_u32 s44, s44, s23')
    A.i('s_mul_i32 s23, s16, 6144')
    for j in range(6):
        A.i(f's_add_u32 m0, s23, {j*1024}'); A.i('s_nop 0')
        A.i(f'buffer_load_dwordx4 v{vD192+j}, s[12:15], s44 offen lds')
    A.i('v_and_b32 v22, 63, v0'); A.i('v_lshrrev_b32 v23, 4, v22'); A.i('v_and_b32 v24, 15, v22')
    A.i('v_lshrrev_b32 v25, 1, v23'); A.i('v_lshlrev_b32 v25, 4, v25'); A.i('v_and_b32 v26, 1, v23'); A.i('v_lshlrev_b32 v26, 2, v26'); A.i('v_add_u32 v25, v25, v26')
    A.i('v_lshrrev_b32 v26, 2, v24')
    A.i('v_and_b32 v27, 1, v26'); A.i('v_lshrrev_b32 v26, 1, v26'); A.i('v_lshlrev_b32 v26, 3, v26'); A.i('v_add3_u32 v25, v25, v26, v27')
    A.i('v_and_b32 v24, 3, v24'); A.i('v_lshlrev_b32 v24, 2, v24'); A.i('s_mul_i32 s23, s16, 48'); A.i('v_add_u32 v24, s23, v24')
    A.i(f'v_lshlrev_b32 v1, 4, v22')
    A.i('s_mul_i32 s45, s41, 491520'); A.i('s_mul_i32 s23, s16, 122880'); A.i('s_add_u32 s45, s45, s23')
    A.i('s_mul_i32 s23, s43, 10'); A.i('s_add_u32 s23, s23, s42'); A.i('s_lshl_b32 s23, s23, 11'); A.i('s_add_u32 s45, s45, s23'); A.i(f's_add_u32 s45, s45, {WS_WQK}')
    A.i('s_waitcnt vmcnt(0)'); A.i('s_barrier')
    for p in range(3):
        for hb in range(2):
            for jj in range(2):
                A.i(f'v_add_u32 v28, {32*hb + 2*jj}, v25'); A.i(f'v_add_u32 v29, {16*p}, v24')
                A.i('v_lshrrev_b32 v30, 1, v28'); A.i('v_and_b32 v30, 1, v30'); A.i('v_lshrrev_b32 v31, 5, v29'); A.i('v_xor_b32 v30, v30, v31'); A.i('v_lshlrev_b32 v30, 6, v30')
                A.i('v_and_b32 v29, 31, v29'); A.i('v_lshlrev_b32 v29, 1, v29'); A.i('v_mul_u32_u24 v28, 384, v28'); A.i('v_add3_u32 v28, v28, v29, v30')
                r = 32 + 8*p + 4*hb + 2*jj
                A.i(f'ds_read_b64_tr_b16 v[{r}:{r+1}], v28')
    A.i('s_waitcnt lgkmcnt(0)')
    for p in range(3):
        for hb in range(2):
            A.i(f's_add_u32 s46, s45, {p*20*2048 + hb*1024}')
            A.i(f'buffer_store_dwordx4 {vr(32+8*p+4*hb)}, v1, s[8:11], s46 offen')
    A.i('s_waitcnt vmcnt(0)')

def role_fill(A, nwg):
    per = WS_HAND_SIZE // nwg
    assert per % 32768 == 0, per
    hand_base(A, 24)
    A.i(f's_mul_i32 s23, s40, {per}'); A.i('s_add_u32 s23, s23, s24')
    A.i(f's_mov_b32 s25, {per // 4096 // 8}')
    A.i('s_cmp_eq_u32 s40, 0'); A.i(f's_cselect_b32 s26, {MEM_STRIDE}, 0'); A.i('s_add_u32 s23, s23, s26')
    A.i('s_cselect_b32 s26, 1, 0'); A.i('s_sub_u32 s25, s25, s26')
    A.i('v_lshlrev_b32 v1, 4, v0')
    for r in range(4): A.i(f'v_mov_b32 v{4+r}, -1')
    for j in range(per // 4096):
        A.i('buffer_store_dwordx4 v[4:7], v1, s[8:11], s23 offen sc1')
        A.i('s_add_u32 s23, s23, 4096')
    A.i('s_waitcnt vmcnt(0)')

def role_wfrag(A, sc=''):
    setup_lane(A)
    lab = A.new('wf_down'); end = A.new('wf_end')
    A.i('s_cmp_lt_u32 s40, 160'); A.i(f's_cbranch_scc0 {lab}')
    A.i('s_cmp_ge_u32 s40, 80'); A.i('s_cselect_b32 s43, 1, 0'); A.i('s_mul_i32 s23, s43, 80'); A.i('s_sub_u32 s41, s40, s23')
    A.i('s_mul_i32 s42, s41, 6554'); A.i('s_lshr_b32 s42, s42, 16'); A.i('s_mul_i32 s23, s42, 10'); A.i('s_sub_u32 s41, s41, s23')
    A.i(f's_load_dwordx2 s[6:7], s[0:1], {KA["wg"]}'); A.i(f's_load_dwordx2 s[18:19], s[0:1], {KA["wu"]}')
    setup_dma192(A, 3072)
    A.i('s_waitcnt lgkmcnt(0)')
    A.i('s_cmp_eq_u32 s43, 0'); A.i('s_cselect_b32 s6, s6, s18'); A.i('s_cselect_b32 s7, s7, s19')
    srd(A, 28, 6, 640*3072)
    A.i(f's_mul_i32 s44, s41, {64*3072}'); A.i('s_mul_i32 s23, s42, 384'); A.i('s_add_u32 s44, s44, s23')
    A.i('s_mul_i32 s23, s16, 6144')
    for j in range(6):
        A.i(f's_add_u32 m0, s23, {j*1024}'); A.i('s_nop 0')
        A.i(f'buffer_load_dwordx4 v{vD192+j}, s[28:31], s44 offen lds')
    A.i('s_mul_i32 s45, s42, 12'); A.i('s_add_u32 s45, s45, s43'); A.i('s_mul_i32 s45, s45, 40'); A.i('s_lshl_b32 s23, s41, 2'); A.i('s_add_u32 s45, s45, s23')
    A.i('s_add_u32 s45, s45, s16'); A.i('s_lshl_b32 s45, s45, 10'); A.i(f's_add_u32 s45, s45, {WS_WGF}')
    A.i(f's_mul_i32 s23, s16, {16*384}'); A.i(f'v_add_u32 v28, s23, v{vRdE}'); A.i(f'v_add_u32 v29, s23, v{vRdO}')
    A.i('s_waitcnt vmcnt(0)'); A.i('s_barrier')
    for t in range(6):
        A.i(f'ds_read_b64_tr_b16 v[{32+4*t}:{33+4*t}], v{28 + (t & 1)} offset:{t*64}')
        A.i(f'ds_read_b64_tr_b16 v[{34+4*t}:{35+4*t}], v{28 + (t & 1)} offset:{t*64 + 8*384}')
    A.i('s_waitcnt lgkmcnt(0)')
    for t in range(6):
        A.i(f'buffer_store_dwordx4 {vr(32+4*t)}, v{vL16}, s[8:11], s45 offen{sc}')
        A.i(f's_add_u32 s45, s45, {80*1024}')
    A.i(f's_branch {end}')
    A.label(lab)
    A.i('s_sub_u32 s41, s40, 160'); A.i('s_mul_i32 s42, s41, 2731'); A.i('s_lshr_b32 s42, s42, 16'); A.i('s_mul_i32 s23, s42, 24'); A.i('s_sub_u32 s41, s41, s23')
    A.i(f's_load_dwordx2 s[6:7], s[0:1], {KA["wd"]}')
    setup_dma160(A, 1280)
    A.i('s_waitcnt lgkmcnt(0)')
    srd(A, 28, 6, 1536*1280)
    A.i(f's_mul_i32 s44, s41, {64*1280}'); A.i('s_mul_i32 s23, s42, 320'); A.i('s_add_u32 s44, s44, s23')
    A.i('s_mul_i32 s23, s16, 5120')
    for j in range(5):
        A.i(f's_add_u32 m0, s23, {j*1024}'); A.i('s_nop 0')
        A.i(f'buffer_load_dwordx4 v{vD160+j}, s[28:31], s44 offen lds')
    A.i('s_mul_i32 s45, s42, 480'); A.i('s_lshl_b32 s23, s41, 2'); A.i('s_add_u32 s45, s45, s23'); A.i('s_add_u32 s45, s45, s16')
    A.i('s_lshl_b32 s45, s45, 10'); A.i(f's_add_u32 s45, s45, {WS_WDF}')
    A.i(f's_mul_i32 s23, s16, {16*320}'); A.i(f'v_add_u32 v28, s23, v{vRd5}')
    A.i('s_waitcnt vmcnt(0)'); A.i('s_barrier')
    for t in range(5):
        A.i(f'ds_read_b64_tr_b16 v[{32+4*t}:{33+4*t}], v28 offset:{t*64}')
        A.i(f'ds_read_b64_tr_b16 v[{34+4*t}:{35+4*t}], v28 offset:{t*64 + 8*320}')
    A.i('s_waitcnt lgkmcnt(0)')
    for t in range(5):
        A.i(f'buffer_store_dwordx4 {vr(32+4*t)}, v{vL16}, s[8:11], s45 offen{sc}')
        A.i(f's_add_u32 s45, s45, {96*1024}')
    A.label(end)
    A.i('s_waitcnt vmcnt(0)')

def role_zero(A):
    A.i(f's_mul_i32 s23, s40, {WS_FLAGS_SIZE//4}'); A.i(f's_add_u32 s23, s23, {WS_FLAGS}')
    A.i('v_lshlrev_b32 v1, 4, v0')
    for r in range(4): A.i(f'v_mov_b32 v{4+r}, 0')
    for j in range(WS_FLAGS_SIZE // 4 // 4096):
        A.i('buffer_store_dwordx4 v[4:7], v1, s[8:11], s23 offen sc1')
        A.i('s_add_u32 s23, s23, 4096')
    A.i('s_waitcnt vmcnt(0)')

def role_mem0(A):
    A.i(f's_load_dwordx2 s[6:7], s[0:1], {KA["mem0"]}')
    A.i('s_waitcnt lgkmcnt(0)')
    srd(A, 36, 6, 10240)
    hand_base(A, 24)
    A.i('s_add_u32 s25, s24, 8192')
    for j in range(3):
        A.i(f'v_add_u32 v2, {256*j}, v0')
        A.i('v_lshrrev_b32 v3, 3, v2'); A.i('v_and_b32 v4, 7, v2')
        A.i('v_mul_u32_u24 v5, 1280, v4'); A.i('v_lshlrev_b32 v6, 4, v3'); A.i('v_add_u32 v5, v5, v6')
        A.i('v_lshlrev_b32 v6, 4, v2')
        A.i('v_lshrrev_b32 v7, 13, v6'); A.i('v_lshlrev_b32 v7, 14, v7'); A.i('v_and_b32 v6, 0x1fff, v6'); A.i('v_add_u32 v6, v6, v7')
        A.i('v_cmp_gt_u32 vcc, 640, v2'); A.i('v_mov_b32 v7, 0x80000000'); A.i('s_nop 0')
        A.i('v_cndmask_b32 v6, v7, v6, vcc'); A.i('v_cndmask_b32 v5, v7, v5, vcc')
        A.i('buffer_load_dwordx4 v[8:11], v5, s[36:39], 0 offen')
        A.i('s_waitcnt vmcnt(0)')
        for r in range(4): A.i(f'v_min_u32 v{8+r}, 0xfffffffe, v{8+r}')
        A.i('buffer_store_dwordx4 v[8:11], v6, s[8:11], s24 offen sc1')
        A.i('buffer_store_dwordx4 v[8:11], v6, s[8:11], s25 offen sc1')
        A.i('s_waitcnt vmcnt(0)')

def role_calib(A):
    lab = A.new('cal_skip')
    A.i('s_getreg_b32 s50, hwreg(HW_REG_XCC_ID)'); A.i('s_and_b32 s50, s50, 15')
    A.i('s_cmp_eq_u32 s50, 0'); A.i(f's_cbranch_scc0 {lab}')
    A.i('s_cmp_lt_u32 s16, 3'); A.i(f's_cbranch_scc0 {lab}')
    hand_base(A, 24)
    A.i('s_lshl_b32 s25, s16, 21'); A.i('s_add_u32 s24, s24, s25'); A.i(f's_add_u32 s24, s24, {65536 + 49152 + 4096}')
    A.i('s_mov_b64 exec, 1')
    A.i('v_mov_b32 v2, 0'); A.i('v_mov_b32 v3, 8192')
    A.i('s_mov_b32 s40, -1'); A.i('s_mov_b32 s41, -1')
    for rep in range(6):
        for par in range(2):
            A.i('v_mov_b32 v4, 0')
            A.i('s_memtime s[42:43]'); A.i('s_waitcnt lgkmcnt(0)')
            A.i(f'buffer_atomic_add v4, v{2+par}, s[8:11], s24 offen sc0')
            A.i('s_waitcnt vmcnt(0)')
            A.i('s_memtime s[44:45]'); A.i('s_waitcnt lgkmcnt(0)')
            A.i('s_sub_u32 s44, s44, s42')
            if rep > 0: A.i(f's_min_u32 s{40+par}, s{40+par}, s44')
    A.i('s_cmp_lt_u32 s41, s40'); A.i('s_cselect_b32 s46, 8192, 0')
    A.i('v_mov_b32 v4, s46'); A.i('s_lshl_b32 s25, s16, 2'); A.i('v_mov_b32 v5, s25')
    A.i(f's_mov_b32 s26, {WS_TAB}')
    A.i('buffer_store_dword v4, v5, s[8:11], s26 offen')
    A.i('s_waitcnt vmcnt(0)')
    A.i('s_mov_b64 exec, -1')
    A.label(lab)

def role_ln(A, src_srd_setup, src_soff, shift_idx, scale_idx, dst_ws, sc='', ssrd=12, wait_mod=False, dep=None):
    src_srd_setup()
    A.i('v_and_b32 v2, 63, v0'); A.i('v_lshrrev_b32 v3, 4, v2'); A.i('v_and_b32 v4, 15, v2')
    A.i('s_lshl_b32 s23, s40, 4'); A.i('s_lshl_b32 s24, s16, 2'); A.i('s_add_u32 s23, s23, s24')
    A.i('v_add_u32 v5, s23, v3')
    A.i('v_mul_u32_u24 v6, 1280, v5'); A.i('v_lshlrev_b32 v7, 4, v4'); A.i('v_add_u32 v6, v6, v7')
    X = 16
    def x_loads():
        for j in range(5):
            A.i(f'buffer_load_dwordx4 {vr(X+4*j)}, v6, s[{ssrd}:{ssrd+3}], {src_soff} offen offset:{256*j}{sc}')
    if dep is None: x_loads()
    if wait_mod:
        lab = A.new('lnw')
        if wait_mod == 'main':
            A.i('s_cmp_eq_u32 s16, 0'); A.i(f's_cbranch_scc0 {lab}_x')
            dsrd = 8; A.i(f'v_mov_b32 v8, {BT_MOD}')
        else:
            dsrd = 28; A.i(f's_load_dwordx2 s[6:7], s[0:1], {KA["dbg"]}'); A.i('s_waitcnt lgkmcnt(0)'); srd(A, 28, 6, 256); A.i('v_mov_b32 v8, 0')
        A.i('s_mov_b32 s22, 0')
        A.label(lab)
        A.i(f'buffer_load_dword v9, v8, s[{dsrd}:{dsrd+3}], 0 offen sc1'); A.i('s_add_u32 s22, s22, 1'); A.i('s_waitcnt vmcnt(0)')
        A.i('v_readfirstlane_b32 s23, v9'); A.i('s_cmp_gt_u32 s22, 0x100000'); A.i(f's_cbranch_scc1 {lab}_x')
        A.i('s_cmp_ge_u32 s23, 60'); A.i(f's_cbranch_scc1 {lab}_x'); A.i('s_sleep 4'); A.i(f's_branch {lab}')
        A.label(f'{lab}_x')
        if wait_mod == 'main': A.i('s_barrier')
        for j in range(5): pass
    A.i('v_lshlrev_b32 v7, 5, v4')
    SC, SH = 40, 80
    A.i(f's_mov_b32 s25, {WS_MOD + scale_idx*2560}'); A.i(f's_mov_b32 s26, {WS_MOD + shift_idx*2560}')
    for j in range(5):
        msc = ' sc1' if wait_mod else ''
        A.i(f'buffer_load_dwordx4 {vr(SC+8*j)}, v7, s[8:11], s25 offen offset:{512*j}{msc}')
        A.i(f'buffer_load_dwordx4 {vr(SC+8*j+4)}, v7, s[8:11], s25 offen offset:{512*j+16}{msc}')
        A.i(f'buffer_load_dwordx4 {vr(SH+8*j)}, v7, s[8:11], s26 offen offset:{512*j}{msc}')
        A.i(f'buffer_load_dwordx4 {vr(SH+8*j+4)}, v7, s[8:11], s26 offen offset:{512*j+16}{msc}')
    if dep is not None:
        dep()
        x_loads()
    F = 128
    A.i('s_waitcnt vmcnt(20)' if dep is None else 's_waitcnt vmcnt(0)')
    for j in range(20):
        A.i(f'v_lshlrev_b32 v{F+2*j}, 16, v{X+j}'); A.i(f'v_and_b32 v{F+2*j+1}, 0xffff0000, v{X+j}')
    def rowsum(x, t):
        for ctl in ('quad_perm:[1,0,3,2]', 'quad_perm:[2,3,0,1]', 'row_half_mirror', 'row_mirror'):
            A.i('s_nop 1'); A.i(f'v_add_f32_dpp v{x}, v{x}, v{x} {ctl} row_mask:0xf bank_mask:0xf')
    A.i(f'v_add_f32 v8, v{F}, v{F+1}')
    for j in range(2, 40): A.i(f'v_add_f32 v8, v8, v{F+j}')
    rowsum(8, 9)
    A.i(f'v_mul_f32 v8, {fbits(1.0/640):#x}, v8')
    A.i('v_mov_b32 v9, 0')
    for j in range(40):
        A.i(f'v_sub_f32 v10, v{F+j}, v8'); A.i('v_fmac_f32 v9, v10, v10')
    rowsum(9, 10)
    A.i(f'v_mul_f32 v9, {fbits(1.0/640):#x}, v9')
    rnd_bf16(A, 8); rnd_bf16(A, 9)
    A.i(f'v_add_f32 v9, {fbits(1e-5):#x}, v9'); rnd_bf16(A, 9)
    A.i('v_sqrt_f32 v9, v9'); A.i('s_nop 0'); rnd_bf16(A, 9)
    A.i('v_rcp_f32 v9, v9'); A.i('s_nop 0')
    A.i('s_waitcnt vmcnt(0)')
    for j in range(0, 40, 2):
        a, b = F+j, F+j+1
        A.i(f'v_sub_f32 v{a}, v{a}, v8'); A.i(f'v_sub_f32 v{b}, v{b}, v8')
        A.i(f'v_cvt_pk_bf16_f32 v10, v{a}, v{b}'); A.i(f'v_lshlrev_b32 v{a}, 16, v10'); A.i(f'v_and_b32 v{b}, 0xffff0000, v10')
        A.i(f'v_mul_f32 v{a}, v{a}, v9'); A.i(f'v_mul_f32 v{b}, v{b}, v9')
        A.i(f'v_cvt_pk_bf16_f32 v10, v{a}, v{b}'); A.i(f'v_lshlrev_b32 v{a}, 16, v10'); A.i(f'v_and_b32 v{b}, 0xffff0000, v10')
        sa, sb = SC+j, SC+j+1
        A.i(f'v_add_f32 v{sa}, 1.0, v{sa}'); A.i(f'v_add_f32 v{sb}, 1.0, v{sb}')
        A.i(f'v_cvt_pk_bf16_f32 v10, v{sa}, v{sb}'); A.i(f'v_lshlrev_b32 v{sa}, 16, v10'); A.i(f'v_and_b32 v{sb}, 0xffff0000, v10')
        A.i(f'v_mul_f32 v{a}, v{a}, v{sa}'); A.i(f'v_mul_f32 v{b}, v{b}, v{sb}')
        A.i(f'v_cvt_pk_bf16_f32 v10, v{a}, v{b}'); A.i(f'v_lshlrev_b32 v{a}, 16, v10'); A.i(f'v_and_b32 v{b}, 0xffff0000, v10')
        A.i(f'v_add_f32 v{a}, v{a}, v{SH+j}'); A.i(f'v_add_f32 v{b}, v{b}, v{SH+j+1}')
        A.i(f'v_cvt_pk_bf16_f32 v{X + j//2}, v{a}, v{b}')
    A.i('v_lshrrev_b32 v8, 5, v5'); A.i(f'v_mul_u32_u24 v8, {40*1024}, v8')
    A.i('v_and_b32 v9, 31, v5'); A.i('v_lshlrev_b32 v9, 4, v9'); A.i('v_add_u32 v8, v8, v9')
    A.i('v_lshrrev_b32 v9, 1, v4'); A.i('v_lshlrev_b32 v9, 10, v9'); A.i('v_add_u32 v8, v8, v9')
    A.i('v_and_b32 v9, 1, v4'); A.i('v_lshlrev_b32 v9, 3, v9'); A.i('v_add_u32 v8, v8, v9')
    A.i(f's_mov_b32 s25, {dst_ws}')
    for j in range(5):
        A.i(f'buffer_store_dwordx2 v[{X+4*j}:{X+4*j+1}], v8, s[8:11], s25 offen{sc}')
        A.i(f'buffer_store_dwordx2 v[{X+4*j+2}:{X+4*j+3}], v8, s[8:11], s25 offen offset:512{sc}')
        A.i('s_add_u32 s25, s25, 8192')
    A.i('s_waitcnt vmcnt(0)')

def prolog(A, name, ngrid):
    kernel_header(A, name)
    A.i(f's_load_dwordx2 s[4:5], s[0:1], {KA["ws"]}')
    A.i(f's_cmp_ge_u32 s2, {ngrid}')
    A.i(f's_cbranch_scc1 {name}_exit')
    A.i('v_lshrrev_b32 v1, 6, v0')
    A.i('s_waitcnt lgkmcnt(0)')
    srd(A, 8, 4, WS_SIZE)
    A.i('v_readfirstlane_b32 s16, v1')
    A.i('s_nop 3')
    ts_stamp(A, 0 if name.startswith('prep') else 2)

NFILL = 192
PREP_GRID = 64 + NFILL + 640 + 256
def gen_prep(name='prep_kernel'):
    A = Em()
    prolog(A, name, PREP_GRID)
    A.i('s_cmp_lt_u32 s2, 60'); A.i(f's_cbranch_scc0 {name}_a')
    A.i('s_mov_b32 s40, s2'); role_mod(A); A.i('s_endpgm')
    A.label(f'{name}_a')
    A.i('s_cmp_lt_u32 s2, 64'); A.i(f's_cbranch_scc0 {name}_b')
    A.i('s_sub_u32 s40, s2, 60'); role_zero(A); A.i('s_endpgm')
    A.label(f'{name}_b')
    A.i(f's_cmp_lt_u32 s2, {64+NFILL}'); A.i(f's_cbranch_scc0 {name}_c')
    A.i('s_sub_u32 s40, s2, 64'); role_fill(A, NFILL); A.i('s_endpgm')
    A.label(f'{name}_c')
    A.i(f's_cmp_lt_u32 s2, {64+NFILL+640}'); A.i(f's_cbranch_scc1 {name}_d')
    A.i(f's_sub_u32 s40, s2, {64+NFILL+640}'); role_wfrag(A); A.i('s_endpgm')
    A.label(f'{name}_d')
    A.i(f's_sub_u32 s40, s2, {64+NFILL}'); role_wqk(A)
    A.label(f'{name}_exit')
    A.i('s_endpgm')
    return A.text(), kernel_desc(name, 136, 136)

def gen_prep2(name='prep_kernel'):
    import gemm
    A = Em()
    prolog(A, name, 256)
    A.i('s_cmp_lt_u32 s2, 160'); A.i(f's_cbranch_scc1 {name}_b')
    A.i('s_cmp_lt_u32 s2, 220'); A.i(f's_cbranch_scc0 {name}_z')
    A.i('s_sub_u32 s40, s2, 160'); role_mod(A); A.i('s_endpgm')
    A.label(f'{name}_z')
    A.i('s_cmp_lt_u32 s2, 224'); A.i(f's_cbranch_scc0 {name}_f')
    A.i('s_sub_u32 s40, s2, 220'); role_zero(A); A.i('s_endpgm')
    A.label(f'{name}_f')
    A.i('s_sub_u32 s40, s2, 224'); role_fill(A, 32); A.i('s_endpgm')
    A.label(f'{name}_b')
    gemm.setup_lane(A)
    A.i('s_and_b32 s41, s2, 31'); A.i('s_lshr_b32 s40, s2, 5')
    gemm.task_b(A)
    ts_stamp(A, 1)
    A.label(f'{name}_exit')
    A.i('s_endpgm')
    return A.text(), kernel_desc(name, 512, 256)

def role_warm(A):
    A.i('s_lshr_b32 s41, s40, 5'); A.i('s_lshl_b32 s41, s41, 3'); A.i(f's_add_u32 s41, s41, {KA["wq"]}')
    A.i('s_load_dwordx2 s[6:7], s[0:1], s41'); A.i('s_waitcnt lgkmcnt(0)')
    srd(A, 12, 6, 640*12288)
    A.i('s_and_b32 s23, s40, 31'); A.i('s_mul_i32 s23, s23, 245760')
    A.i('v_lshlrev_b32 v1, 4, v0')
    for j in range(60):
        A.i(f'buffer_load_dwordx4 {vr(8 + 4*(j % 30))}, v1, s[12:15], s23 offen')
        A.i('s_add_u32 s23, s23, 4096')
        if j == 29: A.i('s_waitcnt vmcnt(15)')
    A.i('s_waitcnt vmcnt(0)')

PRE_GRID = 60 + 4 + 32 + 1 + 128 + 128
def gen_pre0(name='prep_kernel'):
    A = Em()
    prolog(A, name, PRE_GRID)
    A.i('s_cmp_lt_u32 s2, 60'); A.i(f's_cbranch_scc0 {name}_z')
    A.i('s_mov_b32 s40, s2'); role_mod(A, True); A.i('s_endpgm')
    A.label(f'{name}_z')
    A.i('s_cmp_lt_u32 s2, 64'); A.i(f's_cbranch_scc0 {name}_f')
    A.i('s_sub_u32 s40, s2, 60'); role_zero(A); A.i('s_endpgm')
    A.label(f'{name}_f')
    A.i('s_cmp_lt_u32 s2, 96'); A.i(f's_cbranch_scc0 {name}_m')
    A.i('s_sub_u32 s40, s2, 64'); role_fill(A, 32); A.i('s_endpgm')
    A.label(f'{name}_m')
    A.i('s_cmp_eq_u32 s2, 96'); A.i(f's_cbranch_scc0 {name}_l')
    role_mem0(A); A.i('s_endpgm')
    A.label(f'{name}_l')
    A.i('s_cmp_lt_u32 s2, 225'); A.i(f's_cbranch_scc1 {name}_l2')
    A.i('s_sub_u32 s40, s2, 225'); role_warm(A); A.i('s_endpgm')
    A.label(f'{name}_l2')
    A.i('s_sub_u32 s40, s2, 97')
    def su():
        A.i(f's_load_dwordx2 s[6:7], s[0:1], {KA["x"]}'); A.i('s_waitcnt lgkmcnt(0)'); srd(A, 12, 6, 2048*1280)
    role_ln(A, su, '0', 0, 1, WS_H, wait_mod=True)
    ts_stamp(A, 3)
    A.label(f'{name}_exit')
    A.i('s_endpgm')
    return A.text(), kernel_desc(name, 176, 176)

PRE3_GRID = 257 + 128
def gen_pre3(name='prep_kernel'):
    import gemm
    A = Em()
    prolog(A, name, PRE3_GRID)
    A.i('s_cmp_lt_u32 s2, 60'); A.i(f's_cbranch_scc0 {name}_b0')
    A.i('s_mov_b32 s40, s2'); role_mod(A, True); A.i('s_endpgm')
    A.label(f'{name}_b0')
    A.i('s_cmp_lt_u32 s2, 220'); A.i(f's_cbranch_scc1 {name}_b')
    A.i('s_cmp_lt_u32 s2, 224'); A.i(f's_cbranch_scc0 {name}_f')
    A.i('s_sub_u32 s40, s2, 220'); role_zero(A); A.i('s_endpgm')
    A.label(f'{name}_f')
    A.i('s_cmp_lt_u32 s2, 256'); A.i(f's_cbranch_scc0 {name}_m')
    A.i('s_sub_u32 s40, s2, 224'); role_fill(A, 32); A.i('s_endpgm')
    A.label(f'{name}_m')
    A.i('s_cmp_eq_u32 s2, 256'); A.i(f's_cbranch_scc0 {name}_l')
    role_mem0(A); A.i('s_endpgm')
    A.label(f'{name}_l')
    A.i('s_sub_u32 s40, s2, 257')
    def su():
        A.i(f's_load_dwordx2 s[6:7], s[0:1], {KA["x"]}'); A.i('s_waitcnt lgkmcnt(0)'); srd(A, 12, 6, 2048*1280)
    role_ln(A, su, '0', 0, 1, WS_H, wait_mod=True)
    ts_stamp(A, 3)
    A.i('s_endpgm')
    A.label(f'{name}_b')
    gemm.set_ring(6)
    gemm.setup_lane(A)
    A.i('s_sub_u32 s23, s2, 60'); A.i('s_and_b32 s41, s23, 31'); A.i('s_lshr_b32 s40, s23, 5')
    gemm.task_b(A)
    gemm.set_ring(4)
    ts_stamp(A, 1)
    A.label(f'{name}_exit')
    A.i('s_endpgm')
    return A.text(), kernel_desc(name, 512, 256)

PRE4_GRID = 60 + 320 + 4 + 32 + 1 + 128
def gen_pre4(name='prep_kernel'):
    import gemm
    A = Em()
    prolog(A, name, PRE4_GRID)
    A.i('s_cmp_lt_u32 s2, 60'); A.i(f's_cbranch_scc0 {name}_l')
    A.i('s_mov_b32 s40, s2'); role_mod(A, True); A.i('s_endpgm')
    A.label(f'{name}_l')
    A.i('s_cmp_lt_u32 s2, 188'); A.i(f's_cbranch_scc0 {name}_z')
    A.i('s_sub_u32 s40, s2, 60')
    def su():
        A.i(f's_load_dwordx2 s[6:7], s[0:1], {KA["x"]}'); A.i('s_waitcnt lgkmcnt(0)'); srd(A, 12, 6, 2048*1280)
    role_ln(A, su, '0', 0, 1, WS_H, wait_mod=True)
    ts_stamp(A, 3)
    A.i('s_endpgm')
    A.label(f'{name}_z')
    A.i('s_cmp_lt_u32 s2, 192'); A.i(f's_cbranch_scc0 {name}_f')
    A.i('s_sub_u32 s40, s2, 188'); role_zero(A); A.i('s_endpgm')
    A.label(f'{name}_f')
    A.i('s_cmp_lt_u32 s2, 224'); A.i(f's_cbranch_scc0 {name}_m')
    A.i('s_sub_u32 s40, s2, 192'); role_fill(A, 32); A.i('s_endpgm')
    A.label(f'{name}_m')
    A.i('s_cmp_eq_u32 s2, 224'); A.i(f's_cbranch_scc0 {name}_b')
    role_mem0(A); A.i('s_endpgm')
    A.label(f'{name}_b')
    gemm.set_ring(4, 20480)
    gemm.setup_lane(A)
    A.i('s_sub_u32 s23, s2, 225'); A.i('s_and_b32 s41, s23, 31'); A.i('s_lshr_b32 s40, s23, 5')
    A.i('s_cmp_ge_u32 s40, 5'); A.i('s_cselect_b32 s83, 1, 0'); A.i('s_mul_i32 s23, s83, 5'); A.i('s_sub_u32 s40, s40, s23')
    gemm.task_b_half(A)
    gemm.set_ring(4)
    ts_stamp(A, 1)
    A.label(f'{name}_exit')
    A.i('s_endpgm')
    return A.text(), kernel_desc(name, 224, 176)

LN1_GRID = 128 + 1 + 8
def gen_ln(name, first):
    A = Em()
    prolog(A, name, LN1_GRID if first else 128)
    A.i('s_mov_b32 s40, s2')
    if first:
        A.i('s_cmp_lt_u32 s2, 128'); A.i(f's_cbranch_scc1 {name}_ln')
        A.i('s_cmp_eq_u32 s2, 128'); A.i(f's_cbranch_scc0 {name}_cal')
        role_mem0(A); A.i('s_endpgm')
        A.label(f'{name}_cal')
        role_calib(A); A.i('s_endpgm')
        A.label(f'{name}_ln')
    if first:
        def su():
            A.i(f's_load_dwordx2 s[6:7], s[0:1], {KA["x"]}'); A.i('s_waitcnt lgkmcnt(0)'); srd(A, 12, 6, 2048*1280)
        role_ln(A, su, '0', 0, 1, WS_H)
        ts_stamp(A, 3)
    else:
        def su():
            for r in range(4): A.i(f's_mov_b32 s{12+r}, s{8+r}')
            A.i(f's_mov_b32 s27, {WS_X1}')
        role_ln(A, su, 's27', 3, 4, WS_H2)
    A.label(f'{name}_exit')
    A.i('s_endpgm')
    return A.text(), kernel_desc(name, 176, 176)

if __name__ == '__main__':
    parts = [gen_prep(), gen_ln('ln1_kernel', True), gen_ln('ln2_kernel', False)]
    print(f'; @launch kernel=prep_kernel grid=({PREP_GRID},1,1) block=(256,1,1) lds=24576')
    print('.amdgcn_target "amdgcn-amd-amdhsa--gfx950"')
    for t, d in parts: print(t)
    for t, d in parts: print(d)
```

```python
from common import *
from rec import Em, LG, SPIN_MAX, KN, ws_wait, ws_add, ws_take, boot_wait, b_tasks
import gemm, post, small, fast
from gemm import *

SRD_WQ, SRD_WK, SRD_WV, SRD_WO = 68, 72, 76, 80
W_NSLOT = 6
LDS_BC = W_NSLOT*SLOT
vNEXT = 5
Q_WORD = 128

def signal_add(A, off_sgpr):
    lab = A.new('sig')
    A.i('s_cmp_eq_u32 s16, 0'); A.i(f's_cbranch_scc0 {lab}')
    A.i('s_mov_b64 exec, 1'); A.i('v_mov_b32 v22, 1'); A.i('v_mov_b32 v23, 0')
    A.i(f'buffer_atomic_add v22, v23, s[8:11], s{off_sgpr} offen')
    A.i('s_mov_b64 exec, -1')
    A.label(lab)

def kq_store_tile(vm, D, t, soff, o, addr=21):
    ga, gb = o, o+4
    L = [f'v_cvt_pk_bf16_f32 v{ga}, v{D}, v{D+1}', f'v_cvt_pk_bf16_f32 v{ga+1}, v{D+2}, v{D+3}',
         f'v_cvt_pk_bf16_f32 v{ga+2}, v{D+8}, v{D+9}', f'v_cvt_pk_bf16_f32 v{ga+3}, v{D+10}, v{D+11}',
         f'v_cvt_pk_bf16_f32 v{gb}, v{D+4}, v{D+5}', f'v_cvt_pk_bf16_f32 v{gb+1}, v{D+6}, v{D+7}',
         f'v_cvt_pk_bf16_f32 v{gb+2}, v{D+12}, v{D+13}', f'v_cvt_pk_bf16_f32 v{gb+3}, v{D+14}, v{D+15}']
    if t == 4: L.append(f's_add_u32 s{soff}, s{soff}, 4096')
    L.append(lambda: vm.issue(f'buffer_store_dwordx4 {vr(ga)}, v{addr}, s[8:11], s{soff} offen offset:{(t%4)*1024} sc1'))
    L.append(lambda: vm.issue(f'buffer_store_dwordx4 {vr(gb)}, v{addr}, s[8:11], s{soff} offen offset:{(t%4)*1024+512} sc1'))
    return L

def task_kq2(A, tail):
    ACT, FR, ACCK, ACCQ, TMP = 0, 160, 32, 128, 224
    A.i('s_mul_i32 s42, s41, 384'); A.i('s_mov_b32 s46, s42')
    A.i('s_lshl_b32 s43, s40, 2'); A.i('s_add_u32 s43, s43, s16')
    A.i(f's_mul_i32 s44, s43, {40*1024}'); A.i(f's_add_u32 s44, s44, {WS_H}')
    A.i('v_and_b32 v22, 63, v0'); A.i('v_lshrrev_b32 v23, 4, v22'); A.i('v_and_b32 v23, 1, v23'); A.i('v_mul_u32_u24 v23, 6144, v23')
    A.i('v_lshrrev_b32 v24, 5, v22'); A.i('v_lshlrev_b32 v24, 4, v24'); A.i('v_and_b32 v25, 15, v22'); A.i('v_add_u32 v24, v24, v25')
    A.i('v_lshlrev_b32 v24, 4, v24'); A.i('v_add_u32 v21, v23, v24')
    A.i('s_lshl_b32 s45, s43, 5'); A.i('s_add_u32 s45, s45, s41'); A.i('s_mul_i32 s45, s45, 12288')
    A.i(f's_add_u32 s47, s45, {WS_QT}'); A.i(f's_add_u32 s45, s45, {WS_KT}')
    vm = VM(A)
    stages = [Stage(192, SRD_WK, 42, 64*12288) for _ in range(10)] + [Stage(192, SRD_WQ, 46, 64*12288) for _ in range(10)]
    e = Engine(A, vm, stages, FR)
    e.prologue_parts = act_parts(A, vm, ACT, 40, 44, ' sc1' if KN['unified'] else '')
    steps = pass192_steps(0, ACCK, ACT, vm, True) + pass192_steps(10, ACCQ, ACT, vm, False)
    def qk():
        for t in range(6): e.side.extend(kq_store_tile(vm, ACCK+16*t, t, 45, TMP + 8*(t & 1)))
    steps[42]['pre'] = qk
    e.run(steps)
    tail()
    e.flush_side()
    A.i('s_nop 7')
    for t in range(6): e.side.extend(kq_store_tile(vm, ACCQ+16*t, t, 47, TMP + 8*(t & 1)))
    e.flush_side()
    vm.wait_all()
    A.i('s_lshl_b32 s48, s40, 5'); A.i('s_add_u32 s48, s48, s41'); A.i('s_lshl_b32 s48, s48, 7'); A.i(f's_add_u32 s48, s48, {FL_KQ}')

def task_vvo2(A, tail):
    ACT, FR = 0, 160
    VACC, VOP, ACC0, ACC1, TMP = 32, 128, 32, 176, 112
    A.i('s_mul_i32 s42, s41, 384')
    A.i(f's_mul_i32 s46, s41, {192*1280}')
    A.i('s_lshl_b32 s43, s40, 2'); A.i('s_add_u32 s43, s43, s16')
    A.i(f's_mul_i32 s44, s43, {40*1024}'); A.i(f's_add_u32 s44, s44, {WS_H}')
    vm = VM(A)
    stages = [Stage(192, SRD_WV, 42, 64*12288) for _ in range(10)] + wo_stages(SRD_WO, 46)
    e = Engine(A, vm, stages, FR)
    e.prologue_parts = act_parts(A, vm, ACT, 40, 44, ' sc1' if KN['unified'] else '')
    steps = pass192_steps(0, VACC, ACT, vm, True)
    def conv():
        A.i('s_nop 7'); A.i('s_nop 7')
        for t in range(6):
            for a in range(2):
                for r in range(4):
                    s = VACC + 16*t + 8*a + 2*r
                    A.i(f'v_cvt_pk_bf16_f32 v{VOP + 4*(2*t+a) + r}, v{s}, v{s+1}')
        A.i('s_nop 1')
    steps[-1]['post'] = conv
    A.i('v_and_b32 v22, 63, v0'); A.i('v_and_b32 v23, 31, v22'); A.i('v_lshrrev_b32 v24, 3, v23'); A.i('v_lshlrev_b32 v24, 14, v24')
    A.i('v_lshrrev_b32 v25, 5, v22'); A.i('v_lshlrev_b32 v25, 8, v25'); A.i('v_and_b32 v23, 7, v23'); A.i('v_lshlrev_b32 v23, 4, v23')
    A.i('v_add3_u32 v21, v23, v24, v25')
    A.i(f's_mul_i32 s47, s43, {80*16384}'); A.i('s_lshr_b32 s23, s41, 1'); A.i('s_lshl_b32 s23, s23, 10'); A.i('s_add_u32 s47, s47, s23')
    A.i('s_and_b32 s23, s41, 1'); A.i('s_lshl_b32 s23, s23, 7'); A.i('s_add_u32 s47, s47, s23'); A.i(f's_add_u32 s47, s47, {WS_VOT}')
    def store_tile(cc, t, D):
        o = TMP + 8*(t & 1)
        L = []
        for q in range(4):
            L.append(f'v_cvt_pk_bf16_f32 v{o+2*q}, v{D+4*q}, v{D+4*q+1}')
            L.append(f'v_cvt_pk_bf16_f32 v{o+2*q+1}, v{D+4*q+2}, v{D+4*q+3}')
        L.append(f's_add_u32 s48, s47, {(cc*20 + t*4)*16384}')
        L.append('s_nop 0')
        for b in (0, 4):
            L.append(f'v_permlane32_swap_b32 v{o+b}, v{o+b+2}')
            L.append(f'v_permlane32_swap_b32 v{o+b+1}, v{o+b+3}')
        L.append(lambda: vm.issue(f'buffer_store_dwordx4 {vr(o)}, v21, s[8:11], s48 offen sc1'))
        L.append(lambda: vm.issue(f'buffer_store_dwordx4 {vr(o+4)}, v21, s[8:11], s48 offen offset:512 sc1'))
        return L
    steps += vo_pass(A, e, vm, 10, VOP, (ACC0, ACC1), store_tile)
    e.run(steps)
    tail()
    A.i('s_nop 7'); A.i('s_nop 7')
    for t in range(5):
        e.side.extend(store_tile(3, t, ACC1 + 16*t))
    e.flush_side()
    vm.wait_all()
    A.i('s_lshl_b32 s48, s40, 7'); A.i(f's_add_u32 s48, s48, {FL_VVO}')

def task_head(A, tail):
    ACT, FR = 0, 160
    VACC, VOP, ACC0, ACC1, TMP = 32, 128, 32, 176, 112
    ACCK, ACCQ, TMPK = 32, 128, 224
    A.i('s_mul_i32 s42, s41, 384'); A.i('s_mov_b32 s49, s42'); A.i('s_mov_b32 s50, s42')
    A.i(f's_mul_i32 s46, s41, {192*1280}')
    A.i('s_lshl_b32 s43, s40, 2'); A.i('s_add_u32 s43, s43, s16')
    A.i(f's_mul_i32 s44, s43, {40*1024}'); A.i(f's_add_u32 s44, s44, {WS_H}')
    vm = VM(A)
    stages = ([Stage(192, SRD_WV, 42, 64*12288) for _ in range(10)] + wo_stages(SRD_WO, 46) +
              [Stage(192, SRD_WK, 49, 64*12288) for _ in range(10)] + [Stage(192, SRD_WQ, 50, 64*12288) for _ in range(10)])
    e = Engine(A, vm, stages, FR)
    e.prologue_parts = act_parts(A, vm, ACT, 40, 44, ' sc1' if KN['unified'] else '')
    steps = pass192_steps(0, VACC, ACT, vm, True)
    def conv():
        A.i('s_nop 7'); A.i('s_nop 7')
        for t in range(6):
            for a in range(2):
                for r in range(4):
                    s = VACC + 16*t + 8*a + 2*r
                    A.i(f'v_cvt_pk_bf16_f32 v{VOP + 4*(2*t+a) + r}, v{s}, v{s+1}')
        A.i('s_nop 1')
    steps[-1]['post'] = conv
    A.i('v_and_b32 v22, 63, v0'); A.i('v_and_b32 v23, 31, v22'); A.i('v_lshrrev_b32 v24, 3, v23'); A.i('v_lshlrev_b32 v24, 14, v24')
    A.i('v_lshrrev_b32 v25, 5, v22'); A.i('v_lshlrev_b32 v25, 8, v25'); A.i('v_and_b32 v23, 7, v23'); A.i('v_lshlrev_b32 v23, 4, v23')
    A.i('v_add3_u32 v21, v23, v24, v25')
    A.i('v_lshrrev_b32 v23, 4, v22'); A.i('v_and_b32 v23, 1, v23'); A.i('v_mul_u32_u24 v23, 6144, v23')
    A.i('v_lshrrev_b32 v24, 5, v22'); A.i('v_lshlrev_b32 v24, 4, v24'); A.i('v_and_b32 v25, 15, v22'); A.i('v_add_u32 v24, v24, v25')
    A.i('v_lshlrev_b32 v24, 4, v24'); A.i('v_add_u32 v30, v23, v24')
    A.i(f's_mul_i32 s47, s43, {80*16384}'); A.i('s_lshr_b32 s23, s41, 1'); A.i('s_lshl_b32 s23, s23, 10'); A.i('s_add_u32 s47, s47, s23')
    A.i('s_and_b32 s23, s41, 1'); A.i('s_lshl_b32 s23, s23, 7'); A.i('s_add_u32 s47, s47, s23'); A.i(f's_add_u32 s47, s47, {WS_VOT}')
    A.i('s_lshl_b32 s45, s43, 5'); A.i('s_add_u32 s45, s45, s41'); A.i('s_mul_i32 s45, s45, 12288')
    A.i(f's_add_u32 s51, s45, {WS_QT}'); A.i(f's_add_u32 s45, s45, {WS_KT}')
    def store_tile(cc, t, D, tmp=TMP):
        o = tmp + 8*(t & 1)
        L = []
        for q in range(4):
            L.append(f'v_cvt_pk_bf16_f32 v{o+2*q}, v{D+4*q}, v{D+4*q+1}')
            L.append(f'v_cvt_pk_bf16_f32 v{o+2*q+1}, v{D+4*q+2}, v{D+4*q+3}')
        L.append(f's_add_u32 s48, s47, {(cc*20 + t*4)*16384}')
        L.append('s_nop 0')
        for b in (0, 4):
            L.append(f'v_permlane32_swap_b32 v{o+b}, v{o+b+2}')
            L.append(f'v_permlane32_swap_b32 v{o+b+1}, v{o+b+3}')
        L.append(lambda: vm.issue(f'buffer_store_dwordx4 {vr(o)}, v21, s[8:11], s48 offen sc1'))
        L.append(lambda: vm.issue(f'buffer_store_dwordx4 {vr(o+4)}, v21, s[8:11], s48 offen offset:512 sc1'))
        return L
    steps += vo_pass(A, e, vm, 10, VOP, (ACC0, ACC1), store_tile)
    ks_ = pass192_steps(22, ACCK, ACT, vm, False)
    def last_vo():
        for t in range(5): e.side.extend(store_tile(3, t, ACC1 + 16*t, VOP))
    ks_[1]['pre'] = last_vo
    qs_ = pass192_steps(32, ACCQ, ACT, vm, False)
    def kq_tiles(acc, soff):
        for t in range(6):
            L = kq_store_tile(vm, acc+16*t, t, soff, TMPK + 8*(t & 1), addr=30)
            e.side.extend(L)
    qs_[0]['pre'] = lambda: e.flush_side()
    qs_[2]['pre'] = lambda: kq_tiles(ACCK, 45)
    steps += ks_ + qs_
    e.run(steps)
    tail()
    e.flush_side()
    A.i('s_nop 7')
    kq_tiles(ACCQ, 51)
    e.flush_side()
    vm.wait_all()
    A.i('s_lshl_b32 s48, s40, 7'); A.i(f's_add_u32 s48, s48, {FL_VVO}')
    A.i('s_lshl_b32 s49, s40, 5'); A.i('s_add_u32 s49, s49, s41'); A.i('s_lshl_b32 s49, s49, 7'); A.i(f's_add_u32 s49, s49, {FL_KQ}')

def wait_dep(A, off_sgpr, target, backoff=12):
    l0, l1 = A.new('dep'), A.new('dep')
    A.i('s_cmp_eq_u32 s16, 0'); A.i(f's_cbranch_scc0 {l1}')
    A.i('s_mov_b32 s22, 0'); A.i('v_mov_b32 v22, 0')
    A.label(l0)
    A.i(f'buffer_load_dword v23, v22, s[8:11], s{off_sgpr} offen sc1')
    A.i('s_add_u32 s22, s22, 1'); A.i(f's_cmp_gt_u32 s22, {SPIN_MAX//8}'); A.i(f's_cbranch_scc1 {l1}')
    A.i('s_waitcnt vmcnt(0)'); A.i('v_readfirstlane_b32 s23, v23'); A.i('s_nop 3')
    A.i(f's_cmp_ge_u32 s23, {target}'); A.i(f's_cbranch_scc1 {l1}')
    A.i(f's_sleep {backoff}'); A.i(f's_branch {l0}')
    A.label(l1)
    A.i('s_barrier')

def wait_words(A, off_sgpr, n, backoff=12):
    l0, l1 = A.new('dw'), A.new('dw')
    A.i('s_cmp_eq_u32 s16, 0'); A.i(f's_cbranch_scc0 {l1}')
    A.i('s_mov_b32 s22, 0')
    A.i('v_and_b32 v22, 63, v0'); A.i('v_min_u32 v24, %d, v22' % (min(n, 64)-1)); A.i('v_lshlrev_b32 v24, 2, v24')
    if n > 64:
        A.i('v_add_u32 v25, 64, v22'); A.i(f'v_min_u32 v25, {n-1}, v25'); A.i('v_lshlrev_b32 v25, 2, v25')
    A.label(l0)
    A.i(f'buffer_load_dword v23, v24, s[8:11], s{off_sgpr} offen sc1')
    if n > 64: A.i(f'buffer_load_dword v26, v25, s[8:11], s{off_sgpr} offen sc1')
    A.i('s_add_u32 s22, s22, 1'); A.i(f's_cmp_gt_u32 s22, {SPIN_MAX//8}'); A.i(f's_cbranch_scc1 {l1}')
    A.i('s_waitcnt vmcnt(0)')
    if n > 64: A.i('v_min_u32 v23, v23, v26')
    A.i('v_cmp_eq_u32 vcc, 0, v23'); A.i(f's_cbranch_vccz {l1}')
    A.i(f's_sleep {backoff}'); A.i(f's_branch {l0}')
    A.label(l1)
    A.i('s_barrier')

SRD_WG, SRD_WU, SRD_WD, SRD_X, SRD_OUT = 68, 72, 76, 80, 84
NENG = 12
KEYS = (-2, 0, 1.5, 3)
NBACK = 8
def post_table():
    TA, T = [], []
    for r in range(NENG):
        for i in range(20): TA.append((0 << 16) | (r << 8) | i)
    def e(ty, a, n):
        for i in range(n): T.append((ty << 16) | (a << 8) | i)
    for i in range(256): T.append((8 << 16) | i)
    ST = ((1, 4), (2, 8), (3, 4))
    for ty, n in ST:
        for r in range(NBACK): e(ty, r, n)
    for d in range(NBACK, NENG + 2):
        for back in (2, 1, 0):
            r = d - back
            if NBACK <= r < NENG: e(ST[back][0], r, ST[back][1])
    s0 = 4*NENG
    FS = ((4, 10), (5, 2), (6, 24), (7, 10))
    items = []
    for ty_i, (ty, n) in enumerate(FS):
        for r in range(s0, 64): items.append((r + KEYS[ty_i], -ty_i, ty, r, n))
    for _, _, ty, r, n in sorted(items): e(ty, r, n)
    global NPA
    NPA = len(TA)
    return TA + T
POST_T = post_table()
NPOST = len(POST_T)

def gen_post(A, fetch, publish, log_end):
    A.label('P_phase')
    for reg, key, nb in ((SRD_WG, 'wg', 640*3072), (SRD_WU, 'wu', 640*3072), (SRD_WD, 'wd', 1536*1280), (SRD_X, 'x', 2048*1280), (SRD_OUT, 'out', 2048*1280)):
        A.i(f's_load_dwordx2 s[6:7], s[0:1], {KA[key]}'); A.i('s_waitcnt lgkmcnt(0)'); srd(A, reg, 6, nb)
    A.i(f's_load_dwordx2 s[6:7], s[0:1], {KA["dbg"]}'); A.i('s_waitcnt lgkmcnt(0)'); srd(A, 12, 6, 256)
    A.i('s_mov_b32 s54, 0'); A.i('s_mov_b32 s95, -1')
    A.label('P_refetch')
    fetch(); A.i('s_waitcnt vmcnt(0)'); publish()
    A.i('s_barrier')
    A.label('P_loop')
    A.i(f'v_mov_b32 v22, {LDS_BC}'); A.i('ds_read_b32 v23, v22'); A.i('s_waitcnt lgkmcnt(0)'); A.i('v_readfirstlane_b32 s60, v23'); A.i('s_nop 3')
    A.i('s_barrier')
    A.i('s_cmp_eq_u32 s58, 4'); A.i('s_cbranch_scc0 P_qb')
    A.i(f's_cmp_ge_u32 s60, {NPA}'); A.i('s_cbranch_scc0 P_go')
    A.i('s_mov_b32 s58, 5'); A.i('s_branch P_refetch')
    A.label('P_qb')
    A.i(f's_add_u32 s60, s60, {NPA}')
    A.i(f's_cmp_ge_u32 s60, {NPOST}'); A.i('s_cbranch_scc0 P_go')
    ts_stamp(A, 5)
    A.i('s_waitcnt vmcnt(0)'); A.i('s_endpgm')
    A.label('P_go')
    A.i('s_getpc_b64 s[92:93]')
    A.label('P_pc')
    A.i('s_add_u32 s92, s92, P_table-P_pc'); A.i('s_addc_u32 s93, s93, 0')
    A.i('s_lshl_b32 s23, s60, 2'); A.i('s_load_dword s57, s[92:93], s23'); A.i('s_waitcnt lgkmcnt(0)')
    A.i('s_lshr_b32 s56, s57, 16'); A.i('s_lshr_b32 s40, s57, 8'); A.i('s_and_b32 s40, s40, 255'); A.i('s_and_b32 s41, s57, 255')
    if KN['log']: A.i('s_memrealtime s[62:63]'); A.i('s_waitcnt lgkmcnt(0)')
    for ty, lab in ((8, 'P_wf'), (7, 'P_f2f'), (6, 'P_f1f'), (5, 'P_lnf'), (4, 'P_t2f'), (3, 'P_f2'), (2, 'P_f1'), (1, 'P_ln')):
        A.i(f's_cmp_eq_u32 s56, {ty}'); A.i(f's_cbranch_scc1 {lab}')
    A.i('s_mul_i32 s24, s41, 13108'); A.i('s_lshr_b32 s24, s24, 16')
    A.i('s_mul_i32 s25, s24, 5'); A.i('s_sub_u32 s41, s41, s25')
    A.i('s_mov_b32 s55, s40'); A.i('s_lshl_b32 s40, s40, 2'); A.i('s_add_u32 s40, s40, s24')
    def wait_seg(bo=12, regs=(48, 49)):
        r0, r1 = regs
        l5, l6 = A.new('ws'), A.new('ws')
        A.i('s_cmp_ge_u32 s40, 62'); A.i(f's_cbranch_scc1 {l5}')
        A.i(f's_add_u32 s{r0}, s40, 1'); A.i(f's_lshl_b32 s{r0}, s{r0}, 7'); A.i(f's_add_u32 s{r0}, s{r0}, {FL_PT}')
        wait_words(A, r0, 32, bo)
        A.i(f's_branch {l6}')
        A.label(l5)
        A.i(f's_mov_b32 s{r0}, {FL_PT + 63*128}'); A.i(f's_mov_b32 s{r1}, {FL_VM + 63*512}')
        wait_words(A, r0, 32, 2); wait_words(A, r1, 80, 2)
        A.label(l6)
    wait_seg(KN.get('boA', 40))
    post.task_t2(A, sc=' sc1', xsrd=SRD_X, tail=fetch)
    A.i('s_lshl_b32 s48, s55, 7'); A.i(f's_add_u32 s48, s48, {FL_T2}')
    A.i('s_branch P_end')
    A.label('P_ln')
    A.i('s_mov_b32 s55, s40')
    A.i('s_lshl_b32 s48, s40, 7'); A.i(f's_add_u32 s48, s48, {FL_T2}')
    wait_dep(A, 48, 20)
    A.i('s_lshl_b32 s40, s40, 2'); A.i('s_add_u32 s40, s40, s41'); A.i('s_lshl_b32 s40, s40, 1')
    A.i(f's_mov_b32 s27, {WS_X1}')
    for it in range(2):
        small.role_ln(A, lambda: None, 's27', 3, 4, WS_H2, sc=' sc1', ssrd=8)
        if it == 0: A.i('s_add_u32 s40, s40, 1')
    fetch()
    A.i('s_waitcnt vmcnt(0)')
    A.i('s_lshl_b32 s48, s55, 7'); A.i(f's_add_u32 s48, s48, {FL_LN}')
    A.i('s_branch P_end')
    A.label('P_f1')
    A.i('s_lshl_b32 s48, s40, 7'); A.i(f's_add_u32 s48, s48, {FL_LN}')
    wait_dep(A, 48, 4)
    setup_lane(A)
    post.task_ffn1(A, sc=' sc1', srds=(SRD_WG, SRD_WU), tail=fetch)
    A.i('s_lshl_b32 s48, s40, 7'); A.i(f's_add_u32 s48, s48, {FL_F1}')
    A.i('s_branch P_end')
    A.label('P_f2')
    A.i('s_lshl_b32 s48, s40, 7'); A.i(f's_add_u32 s48, s48, {FL_F1}')
    wait_dep(A, 48, 8)
    setup_lane(A)
    post.task_ffn2(A, sc=' sc1', srds=(SRD_WD, SRD_OUT), tail=fetch)
    A.i('s_mov_b32 s48, -1')
    A.i('s_branch P_end')
    A.label('P_t2f')
    lab = A.new('vvok')
    A.i('s_lshr_b32 s55, s40, 2'); A.i('s_cmp_eq_u32 s55, s95'); A.i(f's_cbranch_scc1 {lab}')
    A.i('s_lshl_b32 s48, s55, 7'); A.i(f's_add_u32 s48, s48, {FL_VVO}'); wait_dep(A, 48, 32, 4); A.i('s_mov_b32 s95, s55')
    A.label(lab)
    fast.task_t2f(A, SRD_X, fetch, lambda: wait_seg(KN.get('boF', 8), (52, 53)))
    A.i('s_lshl_b32 s48, s40, 7'); A.i(f's_add_u32 s48, s48, {FL_T2S}')
    A.i('s_branch P_end')
    A.label('P_lnf')
    A.i('s_mov_b32 s55, s40')
    A.i('s_lshl_b32 s48, s40, 7'); A.i(f's_add_u32 s48, s48, {FL_T2S}')
    A.i('s_lshl_b32 s40, s40, 1'); A.i('s_add_u32 s40, s40, s41')
    A.i(f's_mov_b32 s27, {WS_X1}')
    small.role_ln(A, lambda: None, 's27', 3, 4, WS_H2, sc=' sc1', ssrd=8, dep=lambda: wait_dep(A, 48, 10, 2))
    fetch()
    A.i('s_waitcnt vmcnt(0)')
    A.i('s_lshl_b32 s48, s55, 7'); A.i(f's_add_u32 s48, s48, {FL_LNS - 48*128}')
    A.i('s_branch P_end')
    A.label('P_wf')
    A.i('s_mov_b32 s40, s41')
    small.role_wfrag(A, ' sc1')
    fetch(); A.i('s_waitcnt vmcnt(0)')
    A.i(f's_mov_b32 s48, {FL_WF}')
    A.i('s_branch P_end')
    def wf_ready():
        lab = A.new('wfok')
        A.i('s_cmp_eq_u32 s54, 1'); A.i(f's_cbranch_scc1 {lab}')
        A.i(f's_mov_b32 s48, {FL_WF}'); wait_dep(A, 48, 256, 8); A.i('s_mov_b32 s54, 1')
        A.label(lab)
    A.label('P_f1f')
    wf_ready()
    A.i('s_lshl_b32 s55, s40, 7'); A.i(f's_add_u32 s55, s55, {FL_LNS - 48*128}')
    fast.task_f1f(A, fetch, lambda: wait_dep(A, 55, 2, 2))
    A.i('s_lshl_b32 s48, s40, 7'); A.i(f's_add_u32 s48, s48, {FL_F1S - 48*128}')
    A.i('s_branch P_end')
    A.label('P_f2f')
    wf_ready()
    A.i('s_lshl_b32 s55, s40, 7'); A.i(f's_add_u32 s55, s55, {FL_F1S - 48*128}')
    fast.task_f2f(A, SRD_OUT, fetch, lambda: wait_dep(A, 55, 24, 2))
    A.i('s_mov_b32 s48, -1')
    A.label('P_end')
    publish()
    A.i('s_barrier')
    lab = A.new('P_nosig')
    A.i('s_cmp_eq_u32 s48, -1'); A.i(f's_cbranch_scc1 {lab}')
    signal_add(A, 48)
    A.label(lab)
    log_end(4*QLEN)
    A.i('s_branch P_loop')
    A.L.append('.p2align 2')
    A.L.append('.type P_table,@object')
    A.label('P_table')
    for i in range(0, NPOST, 16):
        A.L.append('.long ' + ','.join(str(x) for x in POST_T[i:i+16]))
    A.L.append(f'.size P_table, {4*NPOST}')

NSPLIT = 256
QLEN = NSPLIT + (16 - NSPLIT//16)*8
def gen_startup(A):
    A.i('s_getreg_b32 s58, hwreg(HW_REG_XCC_ID)'); A.i('s_and_b32 s58, s58, 7'); A.i('s_cmp_lt_u32 s58, 4'); A.i('s_cbranch_scc0 U_boot')
    b_tasks(A, None, 'W')
    A.label('U_more')
    ws_take(A, BT_SQ, 84)
    A.i('s_cmp_lt_u32 s84, 97'); A.i('s_cbranch_scc0 U_ln')
    A.i('s_mov_b32 s82, 0'); A.i('s_branch U_do')
    A.label('U_boot')
    boot_wait(A, 22)
    ws_take(A, BT_SQ, 84)
    A.i('s_mov_b32 s82, 1')
    A.label('U_do')
    A.i('s_cmp_lt_u32 s84, 60'); A.i('s_cbranch_scc0 U_a')
    A.i('s_mov_b32 s40, s84'); small.role_mod(A, True, inmain=True); A.i('s_branch U_more')
    A.label('U_a')
    A.i('s_cmp_lt_u32 s84, 64'); A.i('s_cbranch_scc0 U_b')
    A.i('s_sub_u32 s40, s84, 60'); small.role_zero(A); A.i('s_branch U_init')
    A.label('U_b')
    A.i('s_cmp_lt_u32 s84, 96'); A.i('s_cbranch_scc0 U_c')
    A.i('s_sub_u32 s40, s84, 64'); small.role_fill(A, 32); A.i('s_branch U_init')
    A.label('U_c')
    A.i('s_cmp_eq_u32 s84, 96'); A.i('s_cbranch_scc0 U_bt')
    small.role_mem0(A)
    A.label('U_init')
    A.i('s_barrier'); ws_add(A, BT_INIT, 22)
    A.label('U_bt')
    A.i('s_cmp_eq_u32 s82, 1'); A.i('s_cbranch_scc0 U_more')
    b_tasks(A, KN.get('wB', 1), 'X')
    A.i('s_branch U_more')
    A.label('U_ln')
    ws_take(A, BT_LQ, 84)
    A.i('s_cmp_lt_u32 s84, 128'); A.i('s_cbranch_scc0 U_done')
    A.i('s_mov_b32 s40, s84')
    def su():
        A.i(f's_load_dwordx2 s[6:7], s[0:1], {KA["x"]}'); A.i('s_waitcnt lgkmcnt(0)'); srd(A, 36, 6, 2048*1280)
    small.role_ln(A, su, '0', 0, 1, WS_H, sc=' sc1', ssrd=36, wait_mod='main')
    A.i('s_barrier')
    lab = A.new('U_sig')
    A.i('s_cmp_eq_u32 s16, 0'); A.i(f's_cbranch_scc0 {lab}')
    A.i('s_lshr_b32 s23, s40, 3'); A.i('s_lshl_b32 s23, s23, 7'); A.i(f's_add_u32 s23, s23, {BT_LN}')
    A.i('s_mov_b64 exec, 1'); A.i('v_mov_b32 v22, 1'); A.i('v_mov_b32 v23, s23')
    A.i('buffer_atomic_add v22, v23, s[8:11], 0 offen'); A.i('s_mov_b64 exec, -1')
    A.label(lab)
    A.i('s_branch U_ln')
    A.label('U_done')
    ts_stamp(A, 1, 22)
    ws_wait(A, BT_INIT, N_INIT, 22)
    ts_stamp(A, 3, 22)
    A.i('s_mov_b32 s96, -1')

def ln_ready(A):
    if not KN['unified']: return
    lab, l0, l1 = A.new('lnr'), A.new('lnr'), A.new('lnr')
    A.i('s_cmp_eq_u32 s40, s96'); A.i(f's_cbranch_scc1 {lab}')
    A.i('s_cmp_eq_u32 s16, 0'); A.i(f's_cbranch_scc0 {l1}')
    A.i('s_lshl_b32 s25, s40, 7'); A.i(f's_add_u32 s25, s25, {BT_LN}'); A.i('v_mov_b32 v22, s25'); A.i('s_mov_b32 s22, 0')
    A.label(l0)
    A.i('buffer_load_dword v23, v22, s[8:11], 0 offen sc1')
    A.i('s_add_u32 s22, s22, 1'); A.i(f's_cmp_gt_u32 s22, {SPIN_MAX//4}'); A.i(f's_cbranch_scc1 {l1}')
    A.i('s_waitcnt vmcnt(0)'); A.i('v_readfirstlane_b32 s23, v23'); A.i('s_nop 3')
    A.i('s_cmp_ge_u32 s23, 8'); A.i(f's_cbranch_scc1 {l1}'); A.i('s_sleep 3'); A.i(f's_branch {l0}')
    A.label(l1)
    A.i('s_barrier')
    A.i('s_mov_b32 s96, s40')
    A.label(lab)

def gen_worker(A):
    gemm.set_ring(W_NSLOT)
    A.label('W_role')
    if KN['unified']: gen_startup(A)
    if KN['post'] and KN.get('spareA', True):
        A.i('s_getreg_b32 s58, hwreg(HW_REG_XCC_ID)'); A.i('s_and_b32 s58, s58, 7'); A.i('s_cmp_lt_u32 s58, 4'); A.i('s_cbranch_scc0 W_pre')
        A.label('W_serveA')
        lab = A.new('W_reg')
        A.i('s_cmp_eq_u32 s16, 0'); A.i(f's_cbranch_scc0 {lab}')
        A.i('s_mov_b64 exec, 1'); A.i('v_mov_b32 v22, 1'); A.i('v_mov_b32 v23, 104')
        A.i('buffer_atomic_add v22, v23, s[12:15], 0 offen'); A.i('s_waitcnt vmcnt(0)'); A.i('s_mov_b64 exec, -1')
        A.label(lab)
        A.i('s_mov_b32 s58, 4')
        A.i('s_getpc_b64 s[92:93]')
        A.label('W_pc')
        A.i('s_add_u32 s92, s92, P_phase-W_pc'); A.i('s_addc_u32 s93, s93, 0'); A.i('s_setpc_b64 s[92:93]')
        A.label('W_pre')
    if KN.get('nospare'):
        A.i('s_getreg_b32 s58, hwreg(HW_REG_XCC_ID)'); A.i('s_and_b32 s58, s58, 15'); A.i('s_cmp_lt_u32 s58, 4'); A.i('s_cbranch_scc0 W_go0')
        A.i('s_endpgm')
        A.label('W_go0')
    for reg, key, nb in ((SRD_WQ, 'wq', 640*12288), (SRD_WK, 'wk', 640*12288), (SRD_WV, 'wv', 640*12288), (SRD_WO, 'wo', 6144*1280)):
        A.i(f's_load_dwordx2 s[6:7], s[0:1], {KA[key]}'); A.i('s_waitcnt lgkmcnt(0)'); srd(A, reg, 6, nb)
    A.i(f's_load_dwordx2 s[6:7], s[0:1], {KA["dbg"]}'); A.i('s_waitcnt lgkmcnt(0)'); srd(A, 12, 6, 256)
    setup_lane(A); setup_dma192(A, 12288); setup_dma160(A, 1280)
    A.i('s_getreg_b32 s58, hwreg(HW_REG_XCC_ID)'); A.i('s_and_b32 s58, s58, 3')
    A.i('s_mov_b32 s59, 0')
    def fetch():
        lab = A.new('W_f')
        A.i('s_cmp_eq_u32 s16, 0'); A.i(f's_cbranch_scc0 {lab}')
        A.i('s_lshl_b32 s23, s58, 2'); A.i(f's_add_u32 s23, s23, {Q_WORD}')
        A.i('s_mov_b64 exec, 1'); A.i(f'v_mov_b32 v{vNEXT}, 1'); A.i('v_mov_b32 v22, s23')
        A.i(f'buffer_atomic_add v{vNEXT}, v22, s[12:15], 0 offen sc0')
        A.i('s_mov_b64 exec, -1')
        A.label(lab)
    def publish():
        lab = A.new('W_p')
        A.i('s_cmp_eq_u32 s16, 0'); A.i(f's_cbranch_scc0 {lab}')
        A.i('s_mov_b64 exec, 1'); A.i(f'v_mov_b32 v22, {LDS_BC}'); A.i(f'ds_write_b32 v22, v{vNEXT}'); A.i('s_waitcnt lgkmcnt(0)')
        A.i('s_mov_b64 exec, -1')
        A.label(lab)
    A.label('W_refetch')
    fetch(); A.i('s_waitcnt vmcnt(0)'); publish()
    A.i('s_barrier')
    A.label('W_loop')
    A.i(f'v_mov_b32 v22, {LDS_BC}'); A.i('ds_read_b32 v23, v22'); A.i('s_waitcnt lgkmcnt(0)'); A.i('v_readfirstlane_b32 s60, v23'); A.i('s_nop 3')
    A.i('s_barrier')
    A.i(f's_cmp_ge_u32 s60, {QLEN}'); A.i('s_cbranch_scc0 W_have')
    A.i('s_add_u32 s59, s59, 1'); A.i('s_cmp_ge_u32 s59, 4'); A.i('s_cbranch_scc1 W_done')
    A.i('s_add_u32 s58, s58, 1'); A.i('s_and_b32 s58, s58, 3'); A.i('s_branch W_refetch')
    A.label('W_have')
    A.i('s_mov_b32 s61, s58')
    if KN['log']: A.i('s_memrealtime s[62:63]'); A.i('s_waitcnt lgkmcnt(0)')
    if NSPLIT < 256: A.i(f's_cmp_lt_u32 s60, {NSPLIT}'); A.i('s_cbranch_scc0 W_head')
    A.i('s_and_b32 s40, s60, 1'); A.i('s_lshr_b32 s23, s60, 5'); A.i('s_lshl_b32 s23, s23, 1'); A.i('s_add_u32 s40, s40, s23')
    A.i('s_lshr_b32 s41, s60, 2'); A.i('s_and_b32 s41, s41, 7'); A.i('s_lshl_b32 s23, s61, 3'); A.i('s_add_u32 s41, s41, s23')
    ln_ready(A)
    A.i('s_bitcmp1_b32 s60, 1'); A.i('s_cbranch_scc1 W_kq')
    task_vvo2(A, fetch)
    A.i('s_mov_b32 s49, -1')
    A.i('s_branch W_end')
    A.label('W_kq')
    task_kq2(A, fetch)
    A.i('s_mov_b32 s49, s48'); A.i('s_mov_b32 s48, -1')
    if NSPLIT < 256:
        A.i('s_branch W_end')
        A.label('W_head')
        A.i(f's_sub_u32 s23, s60, {NSPLIT}')
        A.i('s_lshr_b32 s40, s23, 5'); A.i('s_lshl_b32 s40, s40, 2'); A.i('s_and_b32 s24, s23, 3'); A.i('s_add_u32 s40, s40, s24'); A.i(f's_add_u32 s40, s40, {NSPLIT//16}')
        A.i('s_lshr_b32 s41, s23, 2'); A.i('s_and_b32 s41, s41, 7')
        A.i('s_lshl_b32 s23, s61, 3'); A.i('s_add_u32 s41, s41, s23')
        task_head(A, fetch)
    A.label('W_end')
    if TS['on']:
        lab = A.new('ts1'); A.i('s_cmp_lt_u32 s60, 32'); A.i(f's_cbranch_scc0 {lab}'); ts_stamp(A, 9, 22); A.label(lab)
    publish()
    A.i('s_barrier')
    for r in (48, 49):
        lab = A.new('W_nosig')
        A.i(f's_cmp_eq_u32 s{r}, -1'); A.i(f's_cbranch_scc1 {lab}')
        signal_add(A, r)
        A.label(lab)
    def log_end(base, mulq=False):
        if not KN['log']: return
        A.i('s_memrealtime s[64:65]'); A.i('s_waitcnt lgkmcnt(0)')
        A.i('s_getreg_b32 s66, hwreg(HW_REG_XCC_ID)')
        A.i('s_lshl_b32 s66, s66, 16'); A.i('s_lshl_b32 s23, s40, 8'); A.i('s_or_b32 s66, s66, s23'); A.i('s_or_b32 s66, s66, s41')
        A.i('v_mov_b32 v24, s62'); A.i('v_mov_b32 v25, s64'); A.i('v_mov_b32 v26, s66'); A.i('v_mov_b32 v27, s60'); A.i('v_mov_b32 v23, 0')
        if mulq: A.i(f's_mul_i32 s23, s61, {QLEN}'); A.i('s_add_u32 s23, s23, s60')
        else: A.i(f's_add_u32 s23, s60, {base}')
        A.i('s_lshl_b32 s23, s23, 4'); A.i(f's_add_u32 s23, s23, {WS_LOG + 0x30000}')
        A.i('s_mov_b64 exec, 1'); A.i('buffer_store_dwordx4 v[24:27], v23, s[8:11], s23 offen'); A.i('s_mov_b64 exec, -1')
    log_end(0, True)
    A.i('s_branch W_loop')
    A.label('W_done')
    if KN['post'] and KN.get('spareA', True):
        lab = A.new('W_cnt')
        A.i('s_cmp_eq_u32 s16, 0'); A.i(f's_cbranch_scc0 {lab}')
        A.i('v_mov_b32 v22, 104'); A.i('buffer_load_dword v23, v22, s[12:15], 0 offen sc1'); A.i('s_waitcnt vmcnt(0)')
        A.i(f'v_mov_b32 v22, {LDS_BC + 16}'); A.i('ds_write_b32 v22, v23'); A.i('s_waitcnt lgkmcnt(0)')
        A.label(lab)
        A.i('s_barrier')
        A.i(f'v_mov_b32 v22, {LDS_BC + 16}'); A.i('ds_read_b32 v23, v22'); A.i('s_waitcnt lgkmcnt(0)')
        A.i('v_readfirstlane_b32 s23, v23'); A.i('s_nop 3'); A.i('s_cmp_lt_u32 s23, 4'); A.i('s_cbranch_scc0 W_toB')
        A.i('s_getpc_b64 s[92:93]')
        A.label('W_pc2')
        A.i('s_sub_u32 s92, s92, W_pc2-W_serveA'); A.i('s_subb_u32 s93, s93, 0'); A.i('s_setpc_b64 s[92:93]')
        A.label('W_toB')
    A.i('s_mov_b32 s58, 5')
    if KN['post']: gen_post(A, fetch, publish, log_end)
    else: A.i('s_waitcnt vmcnt(0)'); A.i('s_endpgm')
    gemm.set_ring(4)
```

```python
from common import *
from rec import Em, LG
from gemm import VM, MF
from post import unpack

ACC = 32
def reduce_quads(A, nt):
    A.i('v_and_b32 v22, 63, v0'); A.i('v_lshlrev_b32 v22, 4, v22')
    A.i('s_lshl_b32 s23, s16, 12'); A.i('v_add_u32 v23, s23, v22')
    A.i('s_lshl_b32 s23, s16, 10'); A.i('v_add_u32 v24, s23, v22')
    A.i('s_nop 7')
    for t in range(nt):
        for q in range(4):
            A.i(f'ds_write_b128 v23, {vr(ACC+16*t+4*q)} offset:{t*16384 + q*1024}')
    A.i('s_waitcnt lgkmcnt(0)'); A.i('s_barrier')
    R = 128
    for t in range(nt):
        for w in range(4):
            A.i(f'ds_read_b128 {vr(R+16*t+4*w)}, v24 offset:{t*16384 + w*4096}')
        if t % 2 == 1 or t == nt-1: A.i('s_waitcnt lgkmcnt(0)')
    for t in range(nt):
        b = R + 16*t; o = ACC + 4*t
        for h in (0, 2):
            A.i(f'v_pk_add_f32 v[{b+h}:{b+h+1}], v[{b+h}:{b+h+1}], v[{b+4+h}:{b+5+h}]')
            A.i(f'v_pk_add_f32 v[{b+8+h}:{b+9+h}], v[{b+8+h}:{b+9+h}], v[{b+12+h}:{b+13+h}]')
            A.i(f'v_pk_add_f32 v[{o+h}:{o+h+1}], v[{b+h}:{b+h+1}], v[{b+8+h}:{b+9+h}]')

def residual_quad(A, vm, pre_loaded, dst_srd, dst_soff, dst_sc, nt):
    vm.wait(pre_loaded)
    for t in range(nt):
        G, R = 100+4*t, 108+2*t
        for h2 in range(2):
            a, b = ACC + 4*t + 2*h2, ACC + 4*t + 2*h2 + 1
            A.i(f'v_cvt_pk_bf16_f32 v26, v{a}, v{b}'); unpack(A, a, b, 26)
            A.i(f'v_mul_f32 v{a}, v{a}, v{G+2*h2}'); A.i(f'v_mul_f32 v{b}, v{b}, v{G+2*h2+1}')
            A.i(f'v_cvt_pk_bf16_f32 v26, v{a}, v{b}'); unpack(A, a, b, 26)
            unpack(A, 27, 28, R+h2)
            A.i(f'v_add_f32 v{a}, v{a}, v27'); A.i(f'v_add_f32 v{b}, v{b}, v28')
            A.i(f'v_cvt_pk_bf16_f32 v{R+h2}, v{a}, v{b}')
        vm.issue(f'buffer_store_dwordx2 v[{R}:{R+1}], v116, s[{dst_srd}:{dst_srd+3}], {dst_soff} offen offset:{64*t}{dst_sc}')

def residual_prefetch(A, vm, seg_sgpr, ct_sgpr, mod_idx, res_srd, res_soff, res_sc, nt):
    A.i('v_and_b32 v22, 63, v0'); A.i('v_and_b32 v23, 31, v22'); A.i(f's_lshl_b32 s23, s{seg_sgpr}, 5'); A.i('v_add_u32 v23, s23, v23'); A.i('v_mul_u32_u24 v23, 1280, v23')
    A.i('v_lshrrev_b32 v24, 5, v22')
    A.i(f's_mul_i32 s24, s{ct_sgpr}, {32*nt}'); A.i('s_lshl_b32 s23, s16, 3'); A.i('s_add_u32 s24, s24, s23')
    A.i('v_lshlrev_b32 v25, 2, v24'); A.i('v_add_u32 v25, s24, v25')
    A.i('v_lshlrev_b32 v26, 1, v25'); A.i('v_add_u32 v116, v23, v26')
    A.i('v_lshlrev_b32 v25, 2, v25')
    A.i(f's_mov_b32 s24, {WS_MOD + mod_idx*2560}')
    for t in range(nt):
        vm.issue(f'buffer_load_dwordx4 {vr(100+4*t)}, v25, s[8:11], s24 offen offset:{128*t}', 'res')
        vm.issue(f'buffer_load_dwordx2 v[{108+2*t}:{109+2*t}], v116, s[{res_srd}:{res_srd+3}], {res_soff} offen offset:{64*t}{res_sc}', 'res')

def task_t2f(A, xsrd, tail, dep):
    vm = VM(A)
    A.i('v_and_b32 v22, 63, v0'); A.i('v_lshlrev_b32 v1, 4, v22')
    A.i('v_and_b32 v23, 31, v22'); A.i('v_lshrrev_b32 v24, 3, v23'); A.i('v_and_b32 v23, 7, v23'); A.i('v_lshlrev_b32 v23, 4, v23')
    A.i('v_lshrrev_b32 v25, 5, v22'); A.i('v_lshlrev_b32 v26, 8, v25'); A.i('v_add_u32 v23, v23, v26')
    A.i('v_lshlrev_b32 v26, 14, v24'); A.i('v_add_u32 v2, v23, v26'); A.i('v_add_u32 v6, 65536, v2')
    A.i('v_lshlrev_b32 v26, 12, v24'); A.i('v_add_u32 v3, v23, v26'); A.i('v_add_u32 v7, 16384, v3')
    A.i('v_mul_u32_u24 v26, 2560, v25'); A.i('v_and_b32 v27, 31, v22'); A.i('v_lshlrev_b32 v27, 4, v27'); A.i('v_add_u32 v4, v26, v27'); A.i('v_add_u32 v4, 2048, v4')
    A.i('s_mul_i32 s44, s40, 80'); A.i('s_lshl_b32 s23, s41, 3'); A.i('s_add_u32 s44, s44, s23')
    A.i('s_lshl_b32 s45, s44, 12'); A.i('s_lshl_b32 s23, s16, 10'); A.i('s_add_u32 s45, s45, s23'); A.i(f's_add_u32 s45, s45, {WS_VOM}')
    A.i('s_lshl_b32 s44, s44, 14'); A.i('s_lshl_b32 s23, s16, 12'); A.i('s_add_u32 s44, s44, s23'); A.i(f's_add_u32 s44, s44, {WS_VOT}')
    A.i('s_lshl_b32 s46, s40, 5'); A.i('s_lshl_b32 s23, s16, 3'); A.i('s_add_u32 s46, s46, s23'); A.i('s_mul_i32 s46, s46, 2560'); A.i(f's_add_u32 s46, s46, {WS_PTOK}')
    A.i('s_mov_b32 s47, s46')
    for hh in range(8):
        for k in range(2):
            n = 2*hh + k; o = (hh >> 1)*1024 + k*512 + (hh & 1)*128
            vm.issue(f'buffer_load_dwordx4 {ar(12*n+4)}, v2, s[8:11], s44 offen offset:{o} sc1', 'vo')
            vm.issue(f'buffer_load_dwordx4 {ar(12*n+8)}, v6, s[8:11], s44 offen offset:{o} sc1', 'vo')
    residual_prefetch(A, vm, 40, 41, 2, xsrd, '0', '', 2)
    dep()
    vm.q = []
    pend = 32 + 4
    for hh in range(8):
        for k in range(2):
            n = 2*hh + k
            vm.issue(f'buffer_load_dwordx4 {ar(12*n)}, v1, s[8:11], s46 offen offset:{k*1024} sc1', f'k{n}')
        A.i('s_add_u32 s46, s46, 2560')
    for vv in range(4):
        n = 16 + vv; o = (vv & 1)*512 + (vv >> 1)*128
        vm.issue(f'buffer_load_dwordx4 {ar(12*n)}, v4, s[8:11], s47 offen sc1', f'k{n}')
        vm.issue(f'buffer_load_dwordx4 {ar(12*n+4)}, v3, s[8:11], s45 offen offset:{o} sc1', f'k{n}')
        vm.issue(f'buffer_load_dwordx4 {ar(12*n+8)}, v7, s[8:11], s45 offen offset:{o} sc1', f'k{n}')
        A.i('s_add_u32 s47, s47, 5120')
    for j in range(20):
        vm.wait(f'k{j}')
        for t in range(2):
            c = '0' if j == 0 else vr(ACC+16*t, 16)
            A.i(f'{MF} {vr(ACC+16*t,16)}, {ar(12*j+4+4*t)}, {ar(12*j)}, {c}')
    tail()
    A.i('s_nop 7')
    reduce_quads(A, 2)
    A.i(f's_mov_b32 s49, {WS_X1}')
    residual_quad(A, vm, 'res', 8, 's49', ' sc1', 2)
    vm.wait_all()

def task_f1f(A, tail, dep):
    vm = VM(A)
    A.i('v_and_b32 v22, 63, v0'); A.i('v_lshlrev_b32 v1, 4, v22')
    A.i('s_mul_i32 s44, s40, 40'); A.i('s_mul_i32 s23, s16, 10'); A.i('s_add_u32 s44, s44, s23'); A.i('s_lshl_b32 s44, s44, 10'); A.i(f's_add_u32 s44, s44, {WS_H2}')
    A.i('s_mul_i32 s45, s41, 160'); A.i('s_add_u32 s45, s45, s23'); A.i('s_lshl_b32 s45, s45, 10'); A.i(f's_add_u32 s45, s45, {WS_WGF}')
    import rec
    if rec.KN.get('ffake'): A.i(f's_mov_b32 s45, {WS_WGF}')
    for m in range(1, 4): A.i(f's_add_u32 s{45+m}, s45, {m*40*1024}')
    for j in range(10):
        if j and j % 4 == 0:
            for r in range(45, 49): A.i(f's_add_u32 s{r}, s{r}, 4096')
        for m in range(4):
            vm.issue(f'buffer_load_dwordx4 {ar(20*j+4+4*m)}, v1, s[8:11], s{45+m} offen offset:{(j%4)*1024}', 'w')
    dep()
    vm.q = []
    for j in range(10):
        if j and j % 4 == 0: A.i('s_add_u32 s44, s44, 4096')
        vm.issue(f'buffer_load_dwordx4 {ar(20*j)}, v1, s[8:11], s44 offen offset:{(j%4)*1024} sc1', f'k{j}')
    for j in range(10):
        vm.wait(f'k{j}')
        for m in range(4):
            c = '0' if j == 0 else vr(ACC+16*m, 16)
            A.i(f'{MF} {vr(ACC+16*m,16)}, {ar(20*j+4+4*m)}, {ar(20*j)}, {c}')
    tail()
    A.i('s_nop 7')
    reduce_quads(A, 4)
    A.i('s_mul_i32 s45, s40, 96'); A.i('s_lshl_b32 s23, s41, 2'); A.i('s_add_u32 s45, s45, s23'); A.i('s_lshr_b32 s23, s16, 1'); A.i('s_add_u32 s45, s45, s23')
    A.i('s_lshl_b32 s45, s45, 10'); A.i('s_and_b32 s23, s16, 1'); A.i('s_lshl_b32 s23, s23, 3'); A.i('s_add_u32 s45, s45, s23'); A.i(f's_add_u32 s45, s45, {WS_HM}')
    for f in range(2):
        g, u = ACC + 8*f, ACC + 8*f + 4
        for h2 in range(2):
            a, b = g + 2*h2, u + 2*h2
            A.i(f'v_cvt_pk_bf16_f32 v22, v{a}, v{a+1}'); unpack(A, a, a+1, 22)
            A.i(f'v_cvt_pk_bf16_f32 v22, v{b}, v{b+1}'); unpack(A, b, b+1, 22)
            A.i(f'v_mul_f32 v{a}, v{a}, v{b}'); A.i(f'v_mul_f32 v{a+1}, v{a+1}, v{b+1}')
            A.i(f'v_cvt_pk_bf16_f32 v{24+2*f+h2}, v{a}, v{a+1}')
        vm.issue(f'buffer_store_dwordx2 v[{24+2*f}:{25+2*f}], v1, s[8:11], s45 offen offset:{f*2048} sc1')
    vm.wait_all()

def task_f2f(A, out_srd, tail, dep):
    vm = VM(A)
    A.i('v_and_b32 v22, 63, v0'); A.i('v_lshlrev_b32 v1, 4, v22')
    A.i('s_mul_i32 s23, s16, 24')
    A.i('s_mul_i32 s44, s40, 96'); A.i('s_add_u32 s44, s44, s23'); A.i('s_lshl_b32 s44, s44, 10'); A.i(f's_add_u32 s44, s44, {WS_HM}')
    A.i('s_mul_i32 s45, s41, 192'); A.i('s_add_u32 s45, s45, s23'); A.i('s_lshl_b32 s45, s45, 10'); A.i(f's_add_u32 s45, s45, {WS_WDF}')
    import rec
    if rec.KN.get('ffake'): A.i(f's_mov_b32 s45, {WS_WDF}')
    A.i(f's_add_u32 s46, s45, {96*1024}')
    BV = 128
    for j in range(24):
        if j and j % 4 == 0: A.i('s_add_u32 s45, s45, 4096'); A.i('s_add_u32 s46, s46, 4096')
        vm.issue(f'buffer_load_dwordx4 {ar(8*j)}, v1, s[8:11], s45 offen offset:{(j%4)*1024}', 'w')
        vm.issue(f'buffer_load_dwordx4 {ar(8*j+4)}, v1, s[8:11], s46 offen offset:{(j%4)*1024}', 'w')
    dep()
    vm.q = []
    for j in range(24):
        if j and j % 4 == 0: A.i('s_add_u32 s44, s44, 4096')
        vm.issue(f'buffer_load_dwordx4 {vr(BV+4*j)}, v1, s[8:11], s44 offen offset:{(j%4)*1024} sc1', f'k{j}')
    A.i(f's_mov_b32 s49, {WS_X1}')
    residual_prefetch(A, vm, 40, 41, 5, 8, 's49', ' sc1', 2)
    for j in range(24):
        vm.wait(f'k{j}')
        for t in range(2):
            c = '0' if j == 0 else vr(ACC+16*t, 16)
            A.i(f'{MF} {vr(ACC+16*t,16)}, {ar(8*j+4*t)}, {vr(BV+4*j)}, {c}')
    tail()
    A.i('s_nop 7')
    reduce_quads(A, 2)
    residual_quad(A, vm, 'res', out_srd, '0', '', 2)
    vm.wait_all()
```

```python
from common import *
NS, NC = 32, 80
FL_DB = WS_FLAGS + 0x16800
KN = dict(unified=True, late=False, lateC=False, adapt=False, up=2, down=3, loS=1, hiS=12, loC=4, hiC=18, gl='sc1', bmain=False, join=True, db=True, dbS=4, dbC=10, dbCm=6, ring_at=0, preS=0, dC0=0, preC=0, log=False, flags=True, post=True)
SPIN_MAX = 0x400000
LOG2E = 1.4426950408889634
import struct
def fbits(x): return struct.unpack('<I', struct.pack('<f', x))[0]
class Em(Asm):
    def __init__(self):
        super().__init__(); self.n = 0; self.marks = {}
    def i(self, s):
        for line in s.split('\n'):
            if line.strip():
                self(line)
                t = line.strip()
                if t.startswith('s_nop'): self.n += int(t.split()[1]) + 1
                elif not t.endswith(':') and not t.startswith(';'): self.n += 1
    def mark(self, k): self.marks[k] = self.n
    def need(self, k, d):
        if k not in self.marks: return
        have = self.n - self.marks[k]
        if have < d:
            r = d - have
            while r > 0:
                q = min(r, 16); self.i(f's_nop {q-1}'); r -= q
class LG(Lgkm):
    def issue(self, text, tag):
        self.asm.i(text); self.q.append(tag)
        assert len(self.q) <= 15, f'too many LDS ops in flight: {self.q}'
    def wait(self, tag):
        if tag not in self.q: return
        k = max(j for j, t in enumerate(self.q) if t == tag)
        self.asm.i(f's_waitcnt lgkmcnt({len(self.q)-1-k})'); self.q = self.q[k+1:]
    def wait_all(self):
        self.asm.i('s_waitcnt lgkmcnt(0)'); self.q = []
def remap(A, v, tmp):
    A.i(f'v_lshrrev_b32 v{tmp}, 13, v{v}')
    A.i(f'v_lshlrev_b32 v{tmp}, 14, v{tmp}')
    A.i(f'v_and_b32 v{v}, 0x1fff, v{v}')
    A.i(f'v_add_u32 v{v}, v{v}, v{tmp}')
S_WRES, S_KQ, S_MEM, S_X = 0, 98304, 147456, 157696
C_MEM, C_RED = 0, 16384
def gather_mem(A, lbl, fail, gv, lv0, lv2, t0):
    A.i('s_mov_b32 s22, 0')
    A.label(lbl)
    for j in range(3):
        A.i(f'buffer_load_dwordx4 {vr(t0+4*j)}, v{gv+j}, s[8:11], s18 offen {KN["gl"]}')
    A.i('s_add_u32 s22, s22, 1')
    A.i(f's_cmp_gt_u32 s22, {SPIN_MAX}')
    A.i(f's_cbranch_scc1 {fail}')
    x, y = t0+12, t0+13
    A.i('s_waitcnt vmcnt(2)')
    A.i(f'ds_write_b128 v{lv0}, {vr(t0)}')
    A.i(f'v_max3_u32 v{x}, v{t0}, v{t0+1}, v{t0+2}')
    A.i('s_waitcnt vmcnt(1)')
    A.i(f'ds_write_b128 v{lv0}, {vr(t0+4)} offset:4096')
    A.i(f'v_max3_u32 v{y}, v{t0+3}, v{t0+4}, v{t0+5}')
    A.i(f'v_max3_u32 v{x}, v{t0+6}, v{t0+7}, v{x}')
    A.i('s_waitcnt vmcnt(0)')
    A.i(f'ds_write_b128 v{lv2}, {vr(t0+8)}')
    A.i(f'v_max3_u32 v{y}, v{t0+8}, v{t0+9}, v{y}')
    A.i(f'v_max3_u32 v{x}, v{t0+10}, v{t0+11}, v{x}')
    A.i(f'v_max_u32 v{x}, v{x}, v{y}')
    A.i(f'v_cmp_eq_u32 vcc, -1, v{x}')
    A.i(f's_cbranch_vccnz {lbl}')
    A.i('s_waitcnt lgkmcnt(0)')
    A.i('s_barrier')

def setup_gather_addrs(A, gv, lv0, lv2, ldsbase, tmp):
    A.i(f'v_lshlrev_b32 v{gv}, 4, v0')
    A.i(f'v_add_u32 v{gv+1}, 4096, v{gv}')
    A.i(f'v_add_u32 v{gv+2}, 16384, v{gv}')
    A.i(f'v_add_u32 v{lv0}, {ldsbase}, v{gv}')
    A.i(f'v_add_u32 v{lv2}, {ldsbase+8192}, v{gv}')
    A.i('v_cmp_gt_u32 vcc, 128, v0')
    A.i('s_nop 1')
    A.i(f'v_cndmask_b32 v{gv+2}, v{gv}, v{gv+2}, vcc')
    A.i(f'v_cndmask_b32 v{lv2}, v{lv0}, v{lv2}, vcc')
def poll_flag(A, off_sgpr, target, vtmp, fail='R_fail', backoff=0):
    lab = A.new('pf')
    A.i('s_mov_b32 s22, 0'); A.i(f'v_mov_b32 v{vtmp}, 0')
    A.label(lab)
    A.i(f'buffer_load_dword v{vtmp+1}, v{vtmp}, s[8:11], s{off_sgpr} offen sc1')
    A.i('s_add_u32 s22, s22, 1'); A.i(f's_cmp_gt_u32 s22, {SPIN_MAX}'); A.i(f's_cbranch_scc1 {fail}')
    A.i('s_waitcnt vmcnt(0)'); A.i(f'v_readfirstlane_b32 s23, v{vtmp+1}'); A.i('s_nop 3')
    if backoff:
        l2 = A.new('pf')
        A.i(f's_cmp_ge_u32 s23, {target}'); A.i(f's_cbranch_scc1 {l2}'); A.i(f's_sleep {backoff}'); A.i(f's_branch {lab}'); A.label(l2)
    else:
        A.i(f's_cmp_ge_u32 s23, {target}'); A.i(f's_cbranch_scc0 {lab}')

def signal(A, base, shift, seg_sgpr, slot_sgpr, v):
    if shift: A.i(f's_lshl_b32 s23, s{seg_sgpr}, {shift}'); A.i(f's_add_u32 s23, s23, {base}')
    else: A.i(f's_mov_b32 s23, {base}')
    A.i('s_mov_b64 exec, 1'); A.i(f'v_mov_b32 v{v}, 1'); A.i(f'v_mov_b32 v{v+1}, s{slot_sgpr}'); A.i(f'v_lshlrev_b32 v{v+1}, 2, v{v+1}')
    A.i(f'buffer_store_dword v{v}, v{v+1}, s[8:11], s23 offen sc1')
    A.i('s_mov_b64 exec, -1')

def adapt(A, areg, creg, lo, hi):
    if not (KN['db'] and KN['adapt']): return
    l1, l2 = A.new('ad'), A.new('ad')
    A.i('s_cmp_gt_u32 s22, 1'); A.i(f's_cbranch_scc0 {l1}')
    A.i(f's_add_u32 s{areg}, s{areg}, {KN["up"]}'); A.i(f's_min_u32 s{areg}, s{areg}, {hi}'); A.i(f's_mov_b32 s{creg}, 0'); A.i(f's_branch {l2}')
    A.label(l1)
    A.i(f's_add_u32 s{creg}, s{creg}, 1'); A.i(f's_cmp_ge_u32 s{creg}, {KN["down"]}'); A.i(f's_cbranch_scc0 {l2}')
    A.i(f's_mov_b32 s{creg}, 0'); A.i(f's_sub_u32 s{areg}, s{areg}, 1'); A.i(f's_max_u32 s{areg}, s{areg}, {lo}')
    A.label(l2)

def db_wait(A, vaddr, vdata, off_sgpr, tag_sgpr, extra_sleep=0, areg=None):
    if not KN['db']: return
    l0, l1 = A.new('db'), A.new('db')
    A.i('s_cmp_eq_u32 s76, 0'); A.i(f's_cbranch_scc1 {l1}')
    A.i('s_mov_b32 s22, 0')
    A.label(l0)
    A.i(f'buffer_load_dword v{vdata}, v{vaddr}, s[8:11], s{off_sgpr} offen sc1')
    A.i('s_add_u32 s22, s22, 1'); A.i('s_cmp_gt_u32 s22, 256'); A.i(f's_cbranch_scc1 {l1}')
    A.i('s_waitcnt vmcnt(0)')
    A.i(f'v_cmp_gt_u32 vcc, s{tag_sgpr}, v{vdata}')
    A.i(f's_cbranch_vccnz {l0}')
    if areg is None: sleep(A, extra_sleep)
    else:
        l2 = A.new('db')
        A.i(f's_mov_b32 s86, s{areg}')
        A.label(l2)
        A.i('s_sleep 1'); A.i('s_sub_u32 s86, s86, 1'); A.i('s_cmp_gt_i32 s86, 0'); A.i(f's_cbranch_scc1 {l2}')
    A.label(l1)

def db_ring(A, vtmp, off_sgpr, tag_sgpr):
    if not KN['db']: return
    A.i('s_mov_b64 exec, 1'); A.i(f'v_mov_b32 v{vtmp}, s{tag_sgpr}')
    A.i(f'buffer_store_dword v{vtmp}, off, s[8:11], s{off_sgpr}')
    A.i('s_mov_b64 exec, -1')

def ws_wait(A, off, target, v, backoff=4, srd_=8):
    lab, l2 = A.new('dw'), A.new('dw')
    A.i('s_cmp_eq_u32 s16, 0'); A.i(f's_cbranch_scc0 {l2}')
    A.i('s_mov_b32 s22, 0'); A.i(f'v_mov_b32 v{v}, {off}')
    A.label(lab)
    A.i(f'buffer_load_dword v{v+1}, v{v}, s[{srd_}:{srd_+3}], 0 offen sc1')
    A.i('s_add_u32 s22, s22, 1'); A.i(f's_cmp_gt_u32 s22, {SPIN_MAX//4}'); A.i(f's_cbranch_scc1 {l2}')
    A.i('s_waitcnt vmcnt(0)'); A.i(f'v_readfirstlane_b32 s23, v{v+1}'); A.i('s_nop 3')
    A.i(f's_cmp_ge_u32 s23, {target}'); A.i(f's_cbranch_scc1 {l2}'); A.i(f's_sleep {backoff}'); A.i(f's_branch {lab}')
    A.label(l2)
    A.i('s_barrier')

def boot_wait(A, v): ws_wait(A, DB_BOOT, 1, v, 2, 12)

def boot_clear(A):
    lab = A.new('bc')
    A.i('s_cmp_eq_u32 s3, 0'); A.i(f's_cbranch_scc0 {lab}')
    A.i('v_lshlrev_b32 v2, 4, v0')
    for r in range(4): A.i(f'v_mov_b32 v{4+r}, 0')
    A.i('buffer_store_dwordx4 v[4:7], v2, s[8:11], 0 offen sc1'); A.i('s_waitcnt vmcnt(0)'); A.i('s_barrier')
    A.i('v_mov_b32 v2, 1'); A.i(f'v_mov_b32 v3, {DB_BOOT}'); A.i('s_mov_b64 exec, 1')
    A.i('buffer_store_dword v2, v3, s[12:15], 0 offen sc1'); A.i('s_waitcnt vmcnt(0)'); A.i('s_mov_b64 exec, -1')
    A.label(lab)

def ws_add(A, off, v):
    lab = A.new('da')
    A.i('s_cmp_eq_u32 s16, 0'); A.i(f's_cbranch_scc0 {lab}')
    A.i('s_mov_b64 exec, 1'); A.i(f'v_mov_b32 v{v}, 1'); A.i(f'v_mov_b32 v{v+1}, {off}')
    A.i(f'buffer_atomic_add v{v}, v{v+1}, s[8:11], 0 offen'); A.i('s_mov_b64 exec, -1')
    A.label(lab)

def ws_take(A, off, dst):
    lab = A.new('dt')
    A.i('s_barrier')
    A.i('s_cmp_eq_u32 s16, 0'); A.i(f's_cbranch_scc0 {lab}')
    A.i('s_mov_b64 exec, 1'); A.i('v_mov_b32 v22, 1'); A.i(f'v_mov_b32 v23, {off}')
    A.i('buffer_atomic_add v22, v23, s[8:11], 0 offen sc0'); A.i('s_waitcnt vmcnt(0)')
    A.i('v_mov_b32 v23, 163836'); A.i('ds_write_b32 v23, v22'); A.i('s_waitcnt lgkmcnt(0)'); A.i('s_mov_b64 exec, -1')
    A.label(lab)
    A.i('s_barrier')
    A.i('v_mov_b32 v23, 163836'); A.i('ds_read_b32 v22, v23'); A.i('s_waitcnt lgkmcnt(0)'); A.i(f'v_readfirstlane_b32 s{dst}, v22'); A.i('s_nop 3')

def b_tasks(A, limit, tag):
    import gemm
    gemm.set_ring(4, 20480)
    boot_wait(A, 22)
    gemm.setup_lane(A)
    A.i('s_mov_b32 s85, 0')
    A.label(f'B_loop{tag}')
    ws_take(A, BT_BQ, 84)
    A.i('s_cmp_ge_u32 s84, 320'); A.i(f's_cbranch_scc1 B_end{tag}')
    A.i('s_and_b32 s41, s84, 31'); A.i('s_lshr_b32 s40, s84, 5')
    A.i('s_cmp_ge_u32 s40, 5'); A.i('s_cselect_b32 s83, 1, 0'); A.i('s_mul_i32 s23, s83, 5'); A.i('s_sub_u32 s40, s40, s23')
    gemm.task_b_half(A, wv_srd=36, sc=' sc1')
    A.i('s_barrier')
    ws_add(A, BT_BDONE, 22)
    A.i('s_add_u32 s85, s85, 1')
    if limit: A.i(f's_cmp_lt_u32 s85, {limit}'); A.i(f's_cbranch_scc1 B_loop{tag}')
    else: A.i(f's_branch B_loop{tag}')
    A.label(f'B_end{tag}')
    gemm.set_ring(4)

def read_parity(A, v):
    lab = A.new('par')
    A.i(f'v_mov_b32 v{v}, {DB_CAL}'); A.i('s_mov_b32 s22, 0')
    A.label(lab)
    A.i(f'buffer_load_dwordx4 v[{v+2}:{v+5}], v{v}, s[12:15], 0 offen sc1')
    A.i('s_add_u32 s22, s22, 1'); A.i(f's_cmp_gt_u32 s22, {SPIN_MAX}'); A.i('s_cbranch_scc1 R_fail')
    A.i('s_waitcnt vmcnt(0)')
    A.i(f'v_and_b32 v{v+1}, v{v+2}, v{v+3}'); A.i(f'v_and_b32 v{v+1}, v{v+1}, v{v+4}'); A.i('s_nop 0')
    A.i(f'v_readfirstlane_b32 s79, v{v+1}'); A.i(f'v_readfirstlane_b32 s44, v{v+2}'); A.i(f'v_readfirstlane_b32 s45, v{v+3}'); A.i(f'v_readfirstlane_b32 s46, v{v+4}')
    A.i('s_nop 3'); A.i('s_bitcmp1_b32 s79, 16'); A.i(f's_cbranch_scc0 {lab}')
    A.i('s_and_b32 s44, s44, 8192'); A.i('s_and_b32 s45, s45, 8192'); A.i('s_and_b32 s46, s46, 8192')
    hand_base(A, 18)
    A.i(f's_add_u32 s19, s18, {HB_P}'); A.i('s_add_u32 s19, s19, s45')
    A.i('s_add_u32 s18, s18, s44')
    A.i('s_sub_u32 s33, s46, s45')

def probe_parity(A):
    lab = A.new('cal')
    A.i('s_cmp_eq_u32 s3, 0'); A.i(f's_cbranch_scc0 {lab}')
    A.i('s_cmp_lt_u32 s16, 3'); A.i(f's_cbranch_scc0 {lab}')
    hand_base(A, 24)
    A.i('s_lshl_b32 s25, s16, 21'); A.i('s_add_u32 s24, s24, s25'); A.i(f's_add_u32 s24, s24, {65536 + 49152 + 4096}')
    A.i('s_mov_b64 exec, 1')
    A.i('v_mov_b32 v2, 0'); A.i('v_mov_b32 v3, 8192')
    A.i('s_mov_b32 s40, -1'); A.i('s_mov_b32 s41, -1')
    for rep in range(5):
        for par in range(2):
            A.i('v_mov_b32 v4, 0')
            A.i('s_memtime s[42:43]'); A.i('s_waitcnt lgkmcnt(0)')
            A.i(f'buffer_atomic_add v4, v{2+par}, s[8:11], s24 offen sc0')
            A.i('s_waitcnt vmcnt(0)')
            A.i('s_memtime s[48:49]'); A.i('s_waitcnt lgkmcnt(0)')
            A.i('s_sub_u32 s48, s48, s42')
            if rep > 0: A.i(f's_min_u32 s{40+par}, s{40+par}, s48')
    A.i('s_cmp_lt_u32 s41, s40'); A.i('s_cselect_b32 s46, 8192, 0'); A.i('s_or_b32 s46, s46, 0x10000')
    A.i('v_mov_b32 v4, s46'); A.i('s_lshl_b32 s25, s16, 2'); A.i(f's_add_u32 s25, s25, {DB_CAL}'); A.i('v_mov_b32 v5, s25')
    A.i('buffer_store_dword v4, v5, s[12:15], 0 offen sc1')
    A.i('s_waitcnt vmcnt(0)')
    A.i('s_mov_b64 exec, -1')
    A.label(lab)

def advance(A):
    A.i(f's_add_u32 s18, s18, {MEM_STRIDE}'); A.i(f's_add_u32 s19, s19, {P_STRIDE}')
    A.i('s_add_u32 s17, s17, 1')
    A.i('s_cmp_eq_u32 s17, 32'); A.i('s_cselect_b32 s23, s33, 0'); A.i('s_add_u32 s19, s19, s23')
def sleep(A, n):
    while n > 0:
        k = min(n, 100); A.i(f's_sleep {k}'); n -= k
def stamp(A, acc):
    if KN['log']:
        A.i(('s_memtime' if KN.get('clk') else 's_memrealtime') + ' s[34:35]'); A.i('s_waitcnt lgkmcnt(0)')
        A.i('s_sub_u32 s67, s34, s66'); A.i(f's_add_u32 s{acc}, s{acc}, s67'); A.i('s_mov_b32 s66, s34')
def ev(A, k, v):
    if KN.get('ev'):
        A.i('s_memrealtime s[34:35]'); A.i('s_waitcnt lgkmcnt(0)')
        A.i(f'v_mov_b32 v{v}, s34')
        A.i('s_lshl_b32 s67, s17, 5'); A.i('s_add_u32 s67, s67, s81')
        A.i(f'buffer_store_dword v{v}, off, s[8:11], s67 offset:{4*k}')

def xlane_reduce(A, op, x, t):
    A.i(f'v_mov_b32 v{t}, v{x}')
    A.i('s_nop 1')
    A.i(f'v_permlane16_swap_b32 v{x}, v{t}')
    A.i(f'{op} v{x}, v{x}, v{t}')
    A.i(f'v_mov_b32 v{t}, v{x}')
    A.i('s_nop 1')
    A.i(f'v_permlane32_swap_b32 v{x}, v{t}')
    A.i(f'{op} v{x}, v{x}, v{t}')
def s_wloc(tt, kk):
    lds = {(0,2):0,(1,4):1,(0,6):2,(1,8):3}
    key = (tt & 1, kk)
    if key in lds: return ('l', (tt >> 1)*4 + lds[key])
    idx = 0
    for t in range(6):
        for k in range(10):
            if (t & 1, k) in lds: continue
            if (t, k) == (tt, kk):
                return ('a', idx*8) if idx < 32 else ('v', 128 + (idx-32)*8)
            idx += 1
def gen_S(A, nsteps):
    vL16, vG, vLm0, vLm2, vAr, vWr, vXw, vB, vXk, vKt, vPu, vP0, vIdx = 1, 2, 5, 6, 7, 8, 9, 10, 11, 12, 13, 14, 15
    RA, RST, RACC, RAIN, RD3, RSC, RSEL, RCI = 16, 56, 72, 96, 100, 104, 116, 120
    T0, T1, T2, VNINF = 124, 125, 126, 127
    A.label('S_role')
    A.c('---- score role setup; s3 = head')
    if KN['unified']:
        if KN.get('sB', 1): b_tasks(A, KN.get('sB', 1), 'S')
        else: boot_wait(A, 22)
    A.c('weights of this head: row-major tiles -> sparse-MFMA dense operands')
    WD, WA, WT = 2, 112, 16
    A.i(f's_load_dwordx2 s[6:7], s[0:1], {KA["wq"]}'); A.i(f's_load_dwordx2 s[40:41], s[0:1], {KA["wk"]}')
    A.i('v_and_b32 v22, 63, v0')
    for j in range(6):
        A.i(f's_mul_i32 s23, s16, 384'); A.i(f's_add_u32 s23, s23, {64*j}')
        A.i('v_add_u32 v23, s23, v22')
        A.i('v_mul_u32_u24 v24, 2731, v23'); A.i('v_lshrrev_b32 v24, 16, v24')
        A.i('v_mul_u32_u24 v25, 24, v24'); A.i('v_sub_u32 v25, v23, v25')
        A.i('v_lshrrev_b32 v26, 1, v24'); A.i('v_and_b32 v26, 1, v26'); A.i('v_lshlrev_b32 v26, 2, v26')
        A.i('v_xor_b32 v25, v25, v26'); A.i('v_lshlrev_b32 v25, 4, v25')
        A.i('v_mul_u32_u24 v24, 12288, v24'); A.i(f'v_add_u32 v{WD+j}, v24, v25')
    A.i('v_lshrrev_b32 v23, 4, v22'); A.i('v_and_b32 v24, 15, v22')
    A.i('v_lshrrev_b32 v25, 1, v23'); A.i('v_lshlrev_b32 v25, 4, v25'); A.i('v_and_b32 v26, 1, v23'); A.i('v_lshlrev_b32 v26, 2, v26'); A.i('v_add_u32 v25, v25, v26')
    A.i('v_lshrrev_b32 v26, 2, v24')
    A.i('v_and_b32 v27, 1, v26'); A.i('v_lshrrev_b32 v26, 1, v26'); A.i('v_lshlrev_b32 v26, 3, v26'); A.i('v_add3_u32 v25, v25, v26, v27')
    A.i('v_and_b32 v24, 3, v24'); A.i('v_lshlrev_b32 v24, 2, v24'); A.i('s_mul_i32 s23, s16, 48'); A.i('v_add_u32 v24, s23, v24')
    for p in range(3):
        for hb in range(2):
            for jj in range(2):
                A.i(f'v_add_u32 v28, {32*hb + 2*jj}, v25'); A.i(f'v_add_u32 v29, {16*p}, v24')
                A.i('v_lshrrev_b32 v30, 1, v28'); A.i('v_and_b32 v30, 1, v30'); A.i('v_lshrrev_b32 v31, 5, v29'); A.i('v_xor_b32 v30, v30, v31'); A.i('v_lshlrev_b32 v30, 6, v30')
                A.i('v_and_b32 v29, 31, v29'); A.i('v_lshlrev_b32 v29, 1, v29'); A.i('v_mul_u32_u24 v28, 384, v28'); A.i(f'v_add3_u32 v{WA+4*p+2*hb+jj}, v28, v29, v30')
    A.i('s_waitcnt lgkmcnt(0)')
    srd(A, 28, 6, 640*12288); srd(A, 44, 40, 640*12288)
    A.i('s_mul_i32 s42, s3, 384'); A.i('s_mov_b32 s43, s42'); A.i('s_mul_i32 s52, s16, 6144')
    tiles = [(kk, mt) for kk in range(10) for mt in range(2)]
    NB = 6
    def tile_dma(i):
        kk, mt = tiles[i]
        for j in range(6):
            A.i(f's_add_u32 m0, s52, {(i % NB)*24576 + j*1024}'); A.i('s_nop 0')
            A.i(f'buffer_load_dwordx4 v{WD+j}, s[{44 if mt else 28}:{47 if mt else 31}], s{43 if mt else 42} offen lds')
        A.i(f's_add_u32 s{43 if mt else 42}, s{43 if mt else 42}, {64*12288}')
    for i in range(NB-1): tile_dma(i)
    for i, (kk, mt) in enumerate(tiles):
        A.i(f's_waitcnt vmcnt({6*min(NB-2, 19-i)})'); A.i('s_barrier')
        if i + NB-1 < 20: tile_dma(i + NB-1)
        buf = (i % NB)*24576
        for p in range(3):
            kind, r = s_wloc(2*p+mt, kk)
            for hb in range(2):
                for jj in range(2):
                    if kind == 'l': dst = f'v[{WT + r*8 + 4*hb + 2*jj}:{WT + r*8 + 4*hb + 2*jj + 1}]'
                    else: dst = f'{kind}[{r + 4*hb + 2*jj}:{r + 4*hb + 2*jj + 1}]'
                    base = WA + 4*p + 2*hb + jj
                    if buf < 65536: A.i(f'ds_read_b64_tr_b16 {dst}, v{base} offset:{buf}')
                    else:
                        A.i(f'v_add_u32 v1, {buf}, v{base}'); A.i(f'ds_read_b64_tr_b16 {dst}, v1')
        A.i('s_waitcnt lgkmcnt(0)')
    A.i('s_barrier')
    A.i('v_and_b32 v1, 63, v0'); A.i('v_lshlrev_b32 v1, 4, v1'); A.i('s_mul_i32 s23, s16, 24576'); A.i('v_add_u32 v1, s23, v1')
    for slot in range(12):
        for hb in range(2):
            A.i(f'ds_write_b128 v1, {vr(WT + slot*8 + 4*hb)} offset:{S_WRES + slot*2048 + hb*1024}')
        if slot % 4 == 3: A.i('s_waitcnt lgkmcnt(0)')
    A.i('s_barrier')
    A.i('v_and_b32 v16, 63, v0')
    A.i(f'v_lshlrev_b32 v{vL16}, 4, v16')
    setup_gather_addrs(A, vG, vLm0, vLm2, S_MEM, 17)
    A.i(f'v_add_u32 v{vAr}, {S_MEM}, v{vL16}')
    A.i(f's_mul_i32 s23, s16, 24576')
    A.i(f'v_add_u32 v{vWr}, s23, v{vL16}')
    A.i('v_and_b32 v17, 15, v16'); A.i('v_lshrrev_b32 v18, 4, v16'); A.i('v_and_b32 v19, 7, v16')
    A.i('s_mul_i32 s23, s16, 3')
    A.i('s_lshr_b32 s24, s23, 1'); A.i('s_lshl_b32 s24, s24, 10'); A.i('s_and_b32 s25, s23, 1'); A.i('s_lshl_b32 s25, s25, 3')
    A.i('s_add_u32 s24, s24, s25'); A.i(f's_add_u32 s24, s24, {S_X}')
    A.i(f'v_add_u32 v{vXw}, s24, v{vL16}')
    A.i('s_and_b32 s25, s16, 1')
    A.i('s_cmp_eq_u32 s25, 0')
    A.i('s_cselect_b32 s40, 8, 1016')
    A.i('s_mov_b32 s41, 1024')
    A.i(f'v_lshlrev_b32 v20, 4, v18'); A.i('v_add_u32 v20, v20, v19')
    A.i(f'v_lshlrev_b32 v20, 4, v20')
    A.i(f'v_add_u32 v{vXk}, {S_X+128}, v20')
    A.i(f'v_add_u32 v{vB}, {S_X}, v20')
    A.i('s_cmp_eq_u32 s16, 0')
    lab = A.new('S_notq')
    A.i(f's_cbranch_scc1 {lab}')
    A.i('s_sub_u32 s23, s16, 2'); A.i('s_mul_i32 s23, s23, 6144'); A.i(f's_add_u32 s23, s23, {S_KQ+12288}')
    A.i(f'v_add_u32 v{vB}, s23, v{vL16}')
    A.label(lab)
    A.i(f'v_add_u32 v{vKt}, {S_KQ}, v{vL16}')
    A.i('s_mov_b32 s36, 24576')
    A.i('v_and_b32 v20, 8, v16'); A.i('v_cmp_eq_u32 vcc, 0, v20')
    A.i(f'v_mov_b32 v{vIdx}, 0xeeee'); A.i('v_mov_b32 v21, 0x4444'); A.i('s_nop 0')
    A.i(f'v_cndmask_b32 v{vIdx}, v{vIdx}, v21, vcc')
    A.i('v_lshlrev_b32 v20, 2, v18'); A.i('v_and_b32 v20, 7, v20')
    A.i('v_sub_u32 v21, v17, v20')
    A.i('v_subrev_u32 v22, 8, v21')
    ONE = 0x3f80
    for r in range(4):
        src = 21 if r < 2 else 22
        e0 = (r & 1)*2
        A.i(f'v_cmp_eq_u32 vcc, {e0}, v{src}'); A.i('v_mov_b32 v23, 0'); A.i(f'v_mov_b32 v24, {ONE:#x}')
        A.i('v_cndmask_b32 v25, v23, v24, vcc')
        A.i(f'v_cmp_eq_u32 vcc, {e0+1}, v{src}'); A.i(f'v_mov_b32 v24, {ONE<<16:#x}'); A.i('s_nop 0')
        A.i('v_cndmask_b32 v26, v23, v24, vcc')
        A.i(f'v_or_b32 v{RSEL+r}, v25, v26')
    A.i(f'v_mov_b32 v{VNINF}, 0xff800000')
    A.i('v_cmp_gt_u32 vcc, 32, v16'); A.i('s_nop 3'); A.i('s_mov_b64 s[42:43], vcc')
    A.i('v_and_b32 v20, 8, v16'); A.i('v_cmp_eq_u32 vcc, 0, v20'); A.i('s_nop 3'); A.i('s_and_b64 s[44:45], vcc, s[42:43]')
    A.i('s_cmp_eq_u32 s16, 0'); A.i('s_cselect_b64 s[42:43], s[44:45], s[42:43]')
    A.i('v_mov_b32 v23, 0'); A.i('s_nop 1')
    for r in range(4): A.i(f'v_cndmask_b32 v{RCI+r}, v{VNINF}, v23, s[42:43]')
    A.i('s_mov_b32 s26, 0xff00ff00'); A.i('s_mov_b32 s27, 0xff00ff00')
    A.i('v_lshlrev_b32 v20, 2, v18')
    for r in range(4):
        A.i(f'v_add_u32 v21, {r}, v20'); A.i('v_cmp_le_u32 vcc, v21, v17'); A.i('s_nop 3'); A.i('s_mov_b64 s[44:45], vcc')
        A.i('s_cmp_eq_u32 s16, 2')
        A.i(f's_cselect_b64 s[{48+2*r}:{49+2*r}], s[44:45], -1')
        A.i(f's_cselect_b64 s[{56+2*r}:{57+2*r}], 0, s[44:45]')
    A.i('s_mul_i32 s23, s3, 640')
    A.i('v_lshrrev_b32 v20, 3, v16'); A.i('v_and_b32 v20, 1, v20'); A.i('v_lshlrev_b32 v20, 1, v20')
    A.i('v_lshrrev_b32 v21, 1, v18'); A.i('v_add3_u32 v20, v20, v21, 1')
    A.i('v_lshlrev_b32 v20, 7, v20'); A.i('v_lshlrev_b32 v21, 4, v19'); A.i('v_add_u32 v20, v20, v21')
    A.i('v_and_b32 v21, 1, v18'); A.i('v_lshlrev_b32 v21, 3, v21')
    A.i(f'v_add3_u32 v{vPu}, v20, v21, s23')
    remap(A, vPu, 22)
    A.i('v_lshlrev_b32 v20, 4, v19'); A.i('v_lshlrev_b32 v21, 3, v18'); A.i(f'v_add3_u32 v{vP0}, v20, v21, s23')
    remap(A, vP0, 22)
    A.i('v_cmp_gt_u32 vcc, 32, v16'); A.i('s_nop 3'); A.i('s_mov_b64 s[44:45], vcc')
    A.i('v_and_b32 v20, 8, v16'); A.i('v_cmp_eq_u32 vcc, 0, v20'); A.i('s_nop 3'); A.i('s_and_b64 s[44:45], vcc, s[44:45]')
    A.i('v_mov_b32 v22, 0x80000000'); A.i('s_nop 0')
    A.i(f'v_cndmask_b32 v{vP0}, v22, v{vP0}, s[44:45]')
    lab = A.new('S_tokoff')
    A.i('s_cmp_lt_u32 s16, 2'); A.i(f's_cbranch_scc1 {lab}')
    A.i('s_sub_u32 s23, s16, 2'); A.i('s_lshl_b32 s23, s23, 4')
    A.i('v_add_u32 v20, s23, v17')
    A.i('v_lshrrev_b32 v21, 1, v18'); A.i('v_lshlrev_b32 v21, 5, v21'); A.i('v_add_u32 v21, v21, v20'); A.i('v_lshlrev_b32 v21, 4, v21')
    A.i('v_and_b32 v22, 1, v18'); A.i('v_lshlrev_b32 v22, 3, v22')
    A.i(f'v_add_u32 v{vPu}, v21, v22')
    A.i('v_lshlrev_b32 v21, 4, v20'); A.i('v_lshlrev_b32 v22, 3, v18'); A.i('v_add_u32 v21, v21, v22')
    A.i(f'v_add_u32 v{vP0}, 2048, v21')
    A.i('v_cmp_gt_u32 vcc, 32, v16'); A.i('v_mov_b32 v22, 0x80000000'); A.i('s_nop 0')
    A.i(f'v_cndmask_b32 v{vP0}, v22, v{vP0}, vcc')
    A.label(lab)
    ts_stamp(A, 7, 16)
    A.i(f's_mul_i32 s20, s3, 12288'); A.i(f's_add_u32 s21, s20, {WS_QT}'); A.i(f's_add_u32 s20, s20, {WS_KT}')
    A.i(f's_mul_i32 s37, s3, 2560'); A.i(f's_add_u32 s37, s37, {WS_PTOK}')
    A.i(f's_mov_b32 s38, {S_KQ}')
    def kq_dma():
        for which, so in ((0, 's20'), (1, 's21')):
            for blk in range(3):
                A.i(f's_add_u32 m0, s38, {which*12288 + blk*4096}')
                A.i(f's_add_u32 s23, {so}, {blk*4096}')
                for q in range(4):
                    A.i(f'buffer_load_dwordx4 v{vL16}, s[8:11], s23 offen offset:{q*1024} sc1 lds')
    if KN['unified']: ws_wait(A, BT_INIT, N_INIT, T0)
    A.i(f's_lshl_b32 s65, s3, 7'); A.i(f's_add_u32 s65, s65, {FL_KQ}')
    lab = A.new('S_nodma0')
    A.i('s_cmp_eq_u32 s16, 1'); A.i(f's_cbranch_scc0 {lab}')
    if KN['flags']: poll_flag(A, 65, 1, T0, backoff=4)
    kq_dma()
    A.label(lab)
    A.i(f's_add_u32 s20, s20, {32*12288}'); A.i(f's_add_u32 s21, s21, {32*12288}')
    A.i(f's_add_u32 s38, s38, s36')
    for r in range(24): A.i(f'v_mov_b32 v{RACC+r}, 0')
    A.i(f'v_mov_b32 v{RSC}, 0')
    A.i(f's_mov_b32 s24, {fbits(DH**-0.5*LOG2E):#x}')
    A.i('s_waitcnt vmcnt(0)')
    A.i('s_barrier')
    A.i('s_lshr_b32 s77, s3, 3'); A.i('s_lshl_b32 s77, s77, 8'); A.i(f's_add_u32 s77, s77, {FL_DB}')
    A.i('s_add_u32 s78, s77, 128')
    A.i('s_and_b32 s23, s3, 7'); A.i('s_lshl_b32 s23, s23, 2'); A.i('s_add_u32 s77, s77, s23')
    A.i('v_and_b32 v0, 63, v0'); A.i('v_min_u32 v0, 19, v0'); A.i('v_lshlrev_b32 v0, 2, v0')
    A.i('s_mov_b32 s25, s24')
    A.i(f's_mov_b32 s82, {WS_FLAGS + 0x16e00}')
    A.i('s_lshr_b32 s83, s3, 3'); A.i('s_lshl_b32 s83, s83, 7'); A.i('s_and_b32 s23, s3, 7'); A.i('s_lshl_b32 s23, s23, 2'); A.i('s_add_u32 s83, s83, s23'); A.i(f's_add_u32 s83, s83, {FL_PT}')
    placement_ok(A, RA)
    A.i(f's_mov_b32 s87, {KN["dbS"]}'); A.i('s_mov_b32 s88, 0')
    read_parity(A, RA)
    if KN['log']: A.i(('s_memtime' if KN.get('clk') else 's_memrealtime') + ' s[34:35]'); A.i('s_waitcnt lgkmcnt(0)'); A.i('s_mov_b32 s66, s34')
    A.label('S_loop')
    db_wait(A, 0, RA+14, 78, 17, KN['dbS'], 87 if KN['adapt'] else None)
    ev(A, 0, T2)
    sleep(A, KN['preS'])
    gather_mem(A, 'S_poll', 'R_fail', vG, vLm0, vLm2, RA)
    if KN['adapt']: A.i('s_mov_b32 s94, s22')
    if KN['log']: A.i('s_add_u32 s72, s72, s22')
    stamp(A, 68)
    ev(A, 1, T2)
    lg = LG(A)
    Areg = lambda kk: RA + 4*kk
    for kk in range(10):
        lg.issue(f'ds_read_b128 {vr(Areg(kk))}, v{vAr} offset:{kk*1024}', f'A{kk}')
    def wread(slot, half):
        st = RST + 8*(slot & 1) + 4*half
        lg.issue(f'ds_read_b128 {vr(st)}, v{vWr} offset:{slot*2048 + half*1024}', f'W{slot}' if half else f'W{slot}a')
    wread(0, 0); wread(0, 1)
    ktreg = lambda j: Areg(j) if j < 10 else RST + 4*(j-10)
    def kt_issue(j):
        T, kq = j & 1, j >> 1
        lg.issue(f'ds_read_b128 {vr(ktreg(j))}, v{vKt} offset:{(T*6+kq)*1024}', f'K{j}')
    def T_cvt1(p, r):
        src = RACC + 8*p + (0 if r < 2 else 4) + 2*(r & 1)
        A.need(f'acc{p}', 8)
        A.i(f'v_cvt_pk_bf16_f32 v{RAIN+r}, v{src}, v{src+1}'); A.mark('ain')
    def T_mfma(p):
        A.need('ain', 2)
        A.i(f'v_mfma_f32_16x16x32_bf16 {vr(RD3)}, {vr(RAIN)}, {vr(RSEL)}, 0'); A.mark('d3')
    def T_cvt2(p, h):
        A.need('d3', 8)
        A.i(f'v_cvt_pk_bf16_f32 v{T0+h}, v{RD3+2*h}, v{RD3+2*h+1}')
    def T_addr(p): A.i(f'v_add_u32 v{T2}, s{39+p}, v{vXw}')
    def T_write(p):
        lg.issue(f'ds_write_b64 v{vXw if p == 0 else T2}, v[{T0}:{T0+1}]', f'X{p}')
    def extras(p):
        ex = {}
        def put(pos, f):
            while pos in ex: pos += 1
            ex[pos] = f
        b = 4*p
        put(0, lambda: wread(b+1, 0)); put(1, lambda: wread(b+1, 1))
        put(5, lambda: wread(b+2, 0)); put(6, lambda: wread(b+2, 1))
        put(10, lambda: wread(b+3, 0)); put(13, lambda: wread(b+3, 1))
        if p < 2:
            put(14, lambda: wread(b+4, 0)); put(15, lambda: wread(b+4, 1))
        if p > 0:
            q = p-1
            put(4, lambda: T_cvt1(q, 0)); put(7, lambda: T_cvt1(q, 1)); put(8, lambda: T_cvt1(q, 2)); put(9, lambda: T_cvt1(q, 3))
            put(12, lambda: T_mfma(q))
            if q > 0: put(2, lambda: T_addr(q))
            put(17, lambda: T_cvt2(q, 0)); put(18, lambda: T_cvt2(q, 1))
        return ex
    for p in range(3):
        ex = extras(p)
        for pos in range(20):
            kk, isk = pos >> 1, pos & 1
            tt = 2*p + isk
            kind, r = s_wloc(tt, kk)
            if p == 0 and isk == 0 and kk in (0, 2, 5): lg.wait(f'A{ {0:1, 2:4, 5:9}[kk] }')
            if p == 2 and pos == 0: T_write(0)
            if kind == 'l':
                lg.wait(f'W{r}')
                breg = vr(RST + 8*(r & 1), 8)
            else:
                breg = (ar if kind == 'a' else vr)(r, 8)
            A.i(f'v_smfmac_f32_16x16x64_bf16 {vr(RACC+4*tt)}, {vr(Areg(kk))}, {breg}, v{vIdx}')
            if pos == 19: A.mark(f'acc{p}')
            if pos in ex: ex[pos]()
            if p == 2:
                if pos >= 2 and pos % 2 == 0: kt_issue(pos//2 - 1)
                if pos == 15: kt_issue(10)
                if pos == 17: kt_issue(11)
    T_write(1)
    kt_issue(9)
    for r in range(4): T_cvt1(2, r)
    T_addr(2)
    T_mfma(2)
    T_cvt2(2, 0); T_cvt2(2, 1)
    T_write(2)
    lg.wait_all()
    A.i('s_barrier')
    stamp(A, 69)
    ev(A, 2, T2)
    D0, D1, D2 = RSC, RSC+4, RSC+8
    xb = lambda b: RACC + 8*b
    def scores():
        lg = LG(A)
        def x_issue(kq):
            b = kq % 3
            lg.issue(f'ds_read_b128 {vr(xb(b))}, v{vB} offset:{kq*1024}', f'B{kq}')
            lg.issue(f'ds_read_b128 {vr(xb(b)+4)}, v{vXk} offset:{kq*1024}', f'Xk{kq}')
        for kq in range(3): x_issue(kq)
        for kq in range(6):
            b = kq % 3
            lg.wait(f'B{kq}')
            c0 = vr(RCI) if kq == 0 else vr(D0)
            c1 = '0' if kq == 0 else vr(D1)
            c2 = '0' if kq == 0 else vr(D2)
            A.i(f'v_mfma_f32_16x16x32_bf16 {vr(D1)}, {vr(ktreg(2*kq))}, {vr(xb(b))}, {c1}')
            A.i(f'v_mfma_f32_16x16x32_bf16 {vr(D2)}, {vr(ktreg(2*kq+1))}, {vr(xb(b))}, {c2}')
            lg.wait(f'Xk{kq}')
            A.i(f'v_mfma_f32_16x16x32_bf16 {vr(D0)}, {vr(xb(b)+4)}, {vr(xb(b))}, {c0}')
            if kq < 3: x_issue(kq+3)
        A.mark('sc')
    A.i('s_cmp_eq_u32 s16, 0')
    A.i('s_cbranch_scc0 S_notw0')
    A.c('memory queries')
    scores()
    U = RACC
    ML, MG, TT, F, SM = RAIN, RAIN+1, RAIN+2, RAIN+3, RD3
    E = RACC+8
    A.need('sc', 8)
    for r in range(4): A.i(f'v_cndmask_b32 v{U+r}, v{D1+r}, v{D2+r}, s[26:27]')
    A.i(f'v_max3_f32 v{ML}, v{D0}, v{D0+1}, v{D0+2}')
    A.i(f'v_max3_f32 v{TT}, v{U}, v{U+1}, v{U+2}')
    A.i(f'v_max3_f32 v{ML}, v{ML}, v{D0+3}, v{U+3}')
    A.i(f'v_max_f32 v{ML}, v{ML}, v{TT}')
    A.i(f'v_mul_f32 v{ML}, s24, v{ML}')
    def pkfma(d, sreg): A.i(f'v_pk_fma_f32 v[{d}:{d+1}], v[{sreg}:{sreg+1}], s[24:25], v[{ML}:{ML+1}] op_sel_hi:[1,1,0] neg_lo:[0,0,1] neg_hi:[0,0,1]')
    pkfma(E, U); pkfma(E+2, U+2)
    A.i(f'v_max_f32_dpp v{MG}, v{ML}, v{ML} row_ror:8 row_mask:0xf bank_mask:0xf')
    A.i(f'v_mov_b32 v{TT}, v{MG}')
    pkfma(E+4, D0); pkfma(E+6, D0+2)
    A.i(f'v_permlane16_swap_b32 v{MG}, v{TT}')
    A.i(f'v_exp_f32 v{E}, v{E}')
    A.i(f'v_max_f32 v{MG}, v{MG}, v{TT}')
    A.i(f'v_exp_f32 v{E+1}, v{E+1}')
    A.i(f'v_mov_b32 v{TT}, v{MG}')
    A.i(f'v_exp_f32 v{E+2}, v{E+2}'); A.i(f'v_exp_f32 v{E+3}, v{E+3}')
    A.i(f'v_permlane32_swap_b32 v{MG}, v{TT}')
    A.i(f'v_exp_f32 v{E+4}, v{E+4}')
    A.i(f'v_max_f32 v{MG}, v{MG}, v{TT}')
    A.i(f'v_exp_f32 v{E+5}, v{E+5}')
    A.i(f'v_sub_f32 v{F}, v{ML}, v{MG}')
    A.i(f'v_exp_f32 v{E+6}, v{E+6}'); A.i(f'v_exp_f32 v{E+7}, v{E+7}')
    A.i(f'v_exp_f32 v{F}, v{F}')
    A.i(f'v_pk_add_f32 v[{SM}:{SM+1}], v[{E}:{E+1}], v[{E+2}:{E+3}]')
    A.i(f'v_pk_add_f32 v[{SM+2}:{SM+3}], v[{E+4}:{E+5}], v[{E+6}:{E+7}]')
    A.i(f'v_pk_add_f32 v[{SM}:{SM+1}], v[{SM}:{SM+1}], v[{SM+2}:{SM+3}]')
    A.i(f'v_add_f32 v{SM}, v{SM}, v{SM+1}')
    A.i(f'v_mul_f32 v{SM}, v{SM}, v{F}')
    A.i('s_nop 1')
    A.i(f'v_add_f32_dpp v{SM}, v{SM}, v{SM} row_ror:8 row_mask:0xf bank_mask:0xf')
    xlane_reduce(A, 'v_add_f32', SM, TT)
    A.i(f'v_rcp_f32 v{SM}, v{SM}')
    A.i('s_nop 0')
    A.i(f'v_mul_f32 v{F}, v{F}, v{SM}')
    for j in range(0, 4, 2): A.i(f'v_pk_mul_f32 v[{E+j}:{E+j+1}], v[{E+j}:{E+j+1}], v[{F-1}:{F}] op_sel:[0,1] op_sel_hi:[1,1]')
    A.i(f'v_cvt_pk_bf16_f32 v{U}, v{E}, v{E+1}'); A.i(f'v_cvt_pk_bf16_f32 v{U+1}, v{E+2}, v{E+3}')
    A.i(f'buffer_store_dwordx2 v[{U}:{U+1}], v{vPu}, s[8:11], s19 offen sc1')
    for j in range(4, 8, 2): A.i(f'v_pk_mul_f32 v[{E+j}:{E+j+1}], v[{E+j}:{E+j+1}], v[{F-1}:{F}] op_sel:[0,1] op_sel_hi:[1,1]')
    A.i(f'v_cvt_pk_bf16_f32 v{U+2}, v{E+4}, v{E+5}'); A.i(f'v_cvt_pk_bf16_f32 v{U+3}, v{E+6}, v{E+7}')
    A.i(f'buffer_store_dwordx2 v[{U+2}:{U+3}], v{vP0}, s[8:11], s19 offen sc1')
    if KN['late']:
        A.i('s_add_u32 s79, s17, 1'); db_ring(A, T0, 77, 79)
    A.i('s_branch S_end')
    A.label('S_notw0')
    A.i('s_cmp_eq_u32 s16, 1')
    A.i('s_cbranch_scc1 S_wave1')
    if KN['post']:
        lab = A.new('S_nopt')
        A.i('s_cmp_eq_u32 s16, 3'); A.i(f's_cbranch_scc0 {lab}')
        A.i('s_mov_b64 exec, 1')
        A.i(f'buffer_store_dword v{vIdx}, off, s[8:11], s82 sc1')
        A.i('s_mov_b64 exec, -1')
        A.i('s_mov_b32 s82, s83'); A.i('s_add_u32 s83, s83, 512')
        A.label(lab)
    scores()
    MX, SM = RAIN, RAIN+2
    TT = RAIN+1
    A.i('s_nop 7')
    for r in range(4):
        A.i(f'v_cndmask_b32 v{D1+r}, v{VNINF}, v{D1+r}, s[{48+2*r}:{49+2*r}]')
        A.i(f'v_cndmask_b32 v{D2+r}, v{VNINF}, v{D2+r}, s[{56+2*r}:{57+2*r}]')
    A.i(f'v_max3_f32 v{MX}, v{D0}, v{D0+1}, v{D0+2}')
    A.i(f'v_max3_f32 v{TT}, v{D1}, v{D1+1}, v{D1+2}')
    A.i(f'v_max3_f32 v{MX}, v{MX}, v{D0+3}, v{D1+3}')
    A.i(f'v_max3_f32 v{TT}, v{TT}, v{D2}, v{D2+1}')
    A.i(f'v_max3_f32 v{MX}, v{MX}, v{D2+2}, v{D2+3}')
    A.i(f'v_max_f32 v{MX}, v{MX}, v{TT}')
    xlane_reduce(A, 'v_max_f32', MX, TT)
    A.i(f'v_mul_f32 v{MX}, s24, v{MX}')
    E = RACC
    for j in range(12): A.i(f'v_fma_f32 v{E+j}, v{D0+j}, s24, -v{MX}')
    for j in range(12): A.i(f'v_exp_f32 v{E+j}, v{E+j}')
    A.i(f'v_add_f32 v{SM}, v{E}, v{E+1}')
    for j in range(2, 12): A.i(f'v_add_f32 v{SM}, v{SM}, v{E+j}')
    xlane_reduce(A, 'v_add_f32', SM, TT)
    A.i(f'v_rcp_f32 v{SM}, v{SM}')
    A.i('s_nop 0')
    for j in range(12): A.i(f'v_mul_f32 v{E+j}, v{E+j}, v{SM}')
    O = RACC+12
    for j in range(6): A.i(f'v_cvt_pk_bf16_f32 v{O+j}, v{E+2*j}, v{E+2*j+1}')
    A.i(f'buffer_store_dwordx2 v[{O}:{O+1}], v{vP0}, s[8:11], s37 offen sc1')
    A.i(f'buffer_store_dwordx2 v[{O+2}:{O+3}], v{vPu}, s[8:11], s37 offen sc1')
    A.i(f'buffer_store_dwordx2 v[{O+4}:{O+5}], v{vPu}, s[8:11], s37 offen offset:1024 sc1')
    A.i('s_branch S_end')
    A.label('S_wave1')
    sleep(A, KN['ring_at'])
    if not KN['late']:
        A.i('s_add_u32 s79, s17, 1')
        db_ring(A, T0, 77, 79)
    A.i(f's_cmp_ge_u32 s17, {nsteps-1}')
    A.i('s_cbranch_scc1 S_end')
    if KN['flags']:
        lab = A.new('S_noflag')
        A.i('s_add_u32 s23, s17, 1'); A.i('s_and_b32 s23, s23, 3'); A.i('s_cmp_eq_u32 s23, 0'); A.i(f's_cbranch_scc0 {lab}')
        A.i(f's_add_u32 s65, s65, {32*128}')
        A.i(f'v_readfirstlane_b32 s23, v{RSC}'); A.i('s_nop 3'); A.i('s_cmp_ge_u32 s23, 1'); A.i(f's_cbranch_scc1 {lab}')
        poll_flag(A, 65, 1, T0)
        A.label(lab)
    kq_dma()
    if KN['flags']:
        lab = A.new('S_nosample')
        A.i('s_add_u32 s23, s17, 2'); A.i('s_and_b32 s23, s23, 3'); A.i('s_cmp_eq_u32 s23, 0'); A.i(f's_cbranch_scc0 {lab}')
        A.i(f's_add_u32 s23, s65, {32*128}')
        A.i(f'buffer_load_dword v{RSC}, off, s[8:11], s23 sc1')
        A.label(lab)
    A.label('S_end')
    stamp(A, 70)
    ev(A, 3, T2)
    if KN['adapt']:
        A.i('s_mov_b32 s22, s94'); adapt(A, 87, 88, KN['loS'], KN['hiS'])
    A.i('s_nop 1')
    for r in range(24): A.i(f'v_mov_b32 v{RACC+r}, 0')
    A.i(f'v_add_u32 v{vKt}, s36, v{vKt}')
    A.i('s_cmp_eq_u32 s16, 0'); A.i('s_cselect_b32 s23, 0, s36')
    A.i(f'v_add_u32 v{vB}, s23, v{vB}')
    A.i('s_sub_u32 s38, s38, s36')
    A.i('s_sub_u32 s36, 0, s36')
    A.i(f's_add_u32 s20, s20, {32*12288}'); A.i(f's_add_u32 s21, s21, {32*12288}')
    A.i(f's_add_u32 s37, s37, {32*2560}')
    advance(A)
    A.i(f's_cmp_lt_u32 s17, {nsteps}')
    A.i('s_cbranch_scc1 S_loop')
    if KN['post']:
        A.i('s_waitcnt vmcnt(0)'); A.i('s_barrier')
        A.i('s_cmp_eq_u32 s16, 3'); A.i('s_cbranch_scc0 R_done')
        A.i('s_mov_b64 exec, 1'); A.i(f'buffer_store_dword v{vIdx}, off, s[8:11], s82 sc1'); A.i('s_mov_b64 exec, -1')
    A.i('s_branch R_done')
def gen_C(A, nsteps):
    vL16, vG, vLm0, vLm2, vAr, vIdx, vPg, vRw, vRr1, vRr2, vPub = 1, 2, 5, 6, 7, 8, 9, 14, 15, 16, 17
    FLG = 149
    RA, RD, RVM, RVT, RP, RO, RT = 20, 60, 76, 80, 112, 132, 136
    wreg = lambda j: (ar, j*8) if j < 32 else (vr, 192 + (j-32)*8)
    A.label('C_role')
    A.c('---- column-owner role setup; s3-NS = column block')
    A.i(f's_sub_u32 s3, s3, {NS}')
    if KN['unified']: boot_clear(A)
    probe_parity(A)
    if KN['unified']:
        b_tasks(A, None, 'C')
        ws_wait(A, BT_BDONE, 320, RT, 8)
        ts_stamp(A, 2, 22)
    A.i(f'v_and_b32 v{RT}, 63, v0')
    A.i(f'v_lshlrev_b32 v{vL16}, 4, v{RT}')
    setup_gather_addrs(A, vG, vLm0, vLm2, C_MEM, RT+1)
    A.i(f'v_add_u32 v{vAr}, {C_MEM}, v{vL16}')
    L, G, M, HF = RT, RT+1, RT+2, RT+3
    A.i(f'v_lshrrev_b32 v{G}, 4, v{L}'); A.i(f'v_and_b32 v{M}, 7, v{L}')
    A.i(f'v_lshrrev_b32 v{HF}, 3, v{L}'); A.i(f'v_and_b32 v{HF}, 1, v{HF}')
    A.i(f'v_cmp_eq_u32 vcc, 0, v{HF}')
    A.i(f'v_mov_b32 v{vIdx}, 0xeeee'); A.i(f'v_mov_b32 v{RT+4}, 0x4444'); A.i('s_nop 0')
    A.i(f'v_cndmask_b32 v{vIdx}, v{vIdx}, v{RT+4}, vcc')
    A.i('s_lshl_b32 s23, s16, 3')
    for u in range(4):
        A.i(f'v_add_u32 v{RT+4}, s23, v{HF}'); A.i(f'v_add_u32 v{RT+4}, {2*u}, v{RT+4}')
        A.i(f'v_mul_u32_u24 v{RT+4}, 640, v{RT+4}')
        A.i(f'v_add_u32 v{RT+5}, 1, v{G}'); A.i(f'v_lshlrev_b32 v{RT+5}, 7, v{RT+5}')
        A.i(f'v_lshlrev_b32 v{RT+6}, 4, v{M}')
        A.i(f'v_add3_u32 v{vPg+u}, v{RT+4}, v{RT+5}, v{RT+6}')
        remap(A, vPg+u, RT+4)
    A.i(f'v_lshlrev_b32 v{RT+4}, 2, v{HF}'); A.i(f'v_add3_u32 v{RT+4}, v{RT+4}, v{G}, s23')
    A.i(f'v_mul_u32_u24 v{RT+4}, 640, v{RT+4}'); A.i(f'v_lshlrev_b32 v{RT+6}, 4, v{M}')
    A.i(f'v_add_u32 v{vPg+4}, v{RT+4}, v{RT+6}')
    remap(A, vPg+4, RT+4)
    A.i('s_lshl_b32 s23, s16, 10'); A.i(f's_add_u32 s23, s23, {C_RED}')
    A.i(f'v_add_u32 v{vRw}, s23, v{vL16}')
    A.i(f'v_lshlrev_b32 v{RT+4}, 10, v{G}')
    A.i(f'v_lshlrev_b32 v{RT+5}, 4, v{HF}'); A.i(f'v_add_u32 v{RT+5}, v{RT+5}, v{M}'); A.i(f'v_lshlrev_b32 v{RT+5}, 4, v{RT+5}')
    A.i(f'v_add_u32 v{RT+4}, v{RT+4}, v{RT+5}')
    A.i(f'v_add_u32 v{vRr1}, {C_RED}, v{RT+4}')
    A.i(f'v_add_u32 v{vRr2}, {C_RED + (2*16+8)*16}, v{RT+4}')
    A.i('s_lshl_b32 s23, s3, 7')
    A.i(f'v_lshlrev_b32 v{RT+4}, 4, v{M}'); A.i(f'v_lshlrev_b32 v{RT+5}, 3, v{HF}'); A.i(f'v_add_u32 v{RT+4}, v{RT+4}, v{RT+5}')
    A.i(f'v_lshrrev_b32 v{RT+5}, 1, v{G}'); A.i(f'v_lshlrev_b32 v{RT+5}, 2, v{RT+5}')
    A.i(f'v_add3_u32 v{vPub}, v{RT+4}, v{RT+5}, s23')
    remap(A, vPub, RT+4)
    A.i(f'v_add_u32 v{vPub}, {MEM_STRIDE}, v{vPub}')
    A.i(f'v_and_b32 v{RT+4}, 1, v{G}'); A.i(f'v_cmp_eq_u32 vcc, 0, v{RT+4}')
    A.i(f'v_mov_b32 v{RT+5}, 0x80000000'); A.i('s_nop 0')
    A.i(f'v_cndmask_b32 v{vPub}, v{RT+5}, v{vPub}, vcc')
    A.i(f's_mul_i32 s23, s3, 327680'); A.i('s_mul_i32 s24, s16, 81920'); A.i('s_add_u32 s23, s23, s24'); A.i(f's_add_u32 s23, s23, {WS_BW}')
    for j in range(40):
        f, r = wreg(j)
        A.i(f'buffer_load_dwordx4 {f(r)}, v{vL16}, s[8:11], s23 offen sc1')
        A.i(f'buffer_load_dwordx4 {f(r+4)}, v{vL16}, s[8:11], s23 offen offset:1024 sc1')
        A.i('s_add_u32 s23, s23, 2048')
        if j % 8 == 7: A.i('s_waitcnt vmcnt(32)')
    A.i('s_waitcnt vmcnt(0)')
    ts_stamp(A, 8, RT)
    A.i('s_mul_i32 s20, s3, 16384'); A.i('s_lshl_b32 s23, s16, 12'); A.i('s_add_u32 s20, s20, s23'); A.i(f's_add_u32 s20, s20, {WS_VOT}')
    A.i('s_mul_i32 s21, s3, 4096'); A.i('s_lshl_b32 s23, s16, 10'); A.i('s_add_u32 s21, s21, s23'); A.i(f's_add_u32 s21, s21, {WS_VOM}')
    def vt_load(buf):
        for u in range(4):
            A.i(f'buffer_load_dwordx4 {vr(RVT+16*buf+4*u)}, v{vL16}, s[8:11], s20 offen offset:{u*1024} sc1')
        A.i(f's_add_u32 s20, s20, {80*16384}')
    if KN['unified']: ws_wait(A, BT_INIT, N_INIT, RT)
    A.i(f's_mov_b32 s65, {FL_VVO}')
    if KN['flags']: poll_flag(A, 65, 32, RT, backoff=4)
    A.i(f'v_mov_b32 v{FLG}, 0')
    vt_load(0)
    A.i('s_waitcnt vmcnt(0)')
    A.i('s_mul_i32 s77, s3, 3277'); A.i('s_lshr_b32 s77, s77, 16')
    A.i('s_mul_i32 s23, s77, 20'); A.i('s_sub_u32 s79, s3, s23')
    A.i('s_lshl_b32 s77, s77, 8'); A.i(f's_add_u32 s78, s77, {FL_DB}')
    A.i('s_add_u32 s80, s78, 128')
    A.i('s_lshl_b32 s79, s79, 2'); A.i('s_add_u32 s77, s80, s79')
    vDS, vDC = 18, 19
    A.i(f'v_and_b32 v{vDS}, 63, v0'); A.i(f'v_min_u32 v{vDC}, 19, v{vDS}'); A.i(f'v_lshlrev_b32 v{vDC}, 2, v{vDC}')
    A.i(f'v_min_u32 v{vDS}, 7, v{vDS}'); A.i(f'v_lshlrev_b32 v{vDS}, 2, v{vDS}')
    placement_ok(A, RT)
    A.i(f's_mov_b32 s87, {KN["dbC"]}'); A.i('s_mov_b32 s88, 0')
    read_parity(A, RT)
    if KN['log']: A.i(('s_memtime' if KN.get('clk') else 's_memrealtime') + ' s[34:35]'); A.i('s_waitcnt lgkmcnt(0)'); A.i('s_mov_b32 s66, s34')

    def body(buf, tagp):
        db_wait(A, vDC, RT, 80, 17, KN['dbCm'])
        ev(A, 0, RT+3)
        sleep(A, KN['dC0'])
        gather_mem(A, f'C_poll{tagp}', 'R_fail', vG, vLm0, vLm2, RP)
        if KN['log']: A.i('s_add_u32 s72, s72, s22')
        stamp(A, 68)
        ev(A, 1, RT+3)
        lg = LG(A)
        for kk in range(10):
            lg.issue(f'ds_read_b128 {vr(RA+4*kk)}, v{vAr} offset:{kk*1024}', f'A{kk}')
        lab = A.new('C_novt')
        A.i(f's_cmp_ge_u32 s17, {nsteps-1}'); A.i(f's_cbranch_scc1 {lab}')
        if KN['flags']:
            l2 = A.new('C_noflag')
            A.i('s_add_u32 s23, s17, 1'); A.i('s_and_b32 s23, s23, 3'); A.i('s_cmp_eq_u32 s23, 0'); A.i(f's_cbranch_scc0 {l2}')
            A.i('s_add_u32 s65, s65, 128')
            A.i(f'v_readfirstlane_b32 s23, v{FLG}'); A.i('s_nop 3'); A.i('s_cmp_ge_u32 s23, 32'); A.i(f's_cbranch_scc1 {l2}')
            poll_flag(A, 65, 32, RT)
            A.label(l2)
        if KN.get('vtlat'): A.i('s_memrealtime s[86:87]'); A.i('s_waitcnt lgkmcnt(0)')
        vt_load(buf ^ 1)
        if KN['flags']:
            l3 = A.new('C_nosample')
            A.i('s_add_u32 s23, s17, 2'); A.i('s_and_b32 s23, s23, 3'); A.i('s_cmp_eq_u32 s23, 0'); A.i(f's_cbranch_scc0 {l3}')
            A.i('s_add_u32 s23, s65, 128')
            A.i(f'buffer_load_dword v{FLG}, off, s[8:11], s23 sc1')
            A.label(l3)
        if KN.get('vtlat'):
            A.i('s_waitcnt vmcnt(0)'); A.i('s_memrealtime s[88:89]'); A.i('s_waitcnt lgkmcnt(0)'); A.i('s_sub_u32 s88, s88, s86')
            A.i('s_mov_b32 m0, s17'); A.i('s_nop 0'); A.i('v_writelane_b32 v151, s88, m0')
        A.label(lab)
        for r in range(16): A.i(f'v_mov_b32 v{RD+r}, 0')
        A.i('s_nop 1')
        for kk in range(10):
            lg.wait(f'A{kk}')
            for t in range(4):
                f, r = wreg(t*10 + kk)
                A.i(f'v_smfmac_f32_16x16x64_bf16 {vr(RD+4*t)}, {vr(RA+4*kk)}, {f(r,8)}, v{vIdx}')
        A.i('s_nop 7')
        for i in range(4):
            A.i(f'v_permlane32_swap_b32 v{RD+i}, v{RD+8+i}')
            A.i(f'v_permlane32_swap_b32 v{RD+4+i}, v{RD+12+i}')
        for i in range(4):
            A.i(f'v_add_f32 v{RD+i}, v{RD+i}, v{RD+8+i}')
            A.i(f'v_add_f32 v{RD+4+i}, v{RD+4+i}, v{RD+12+i}')
        A.i(f'v_cvt_pk_bf16_f32 v{RVM}, v{RD}, v{RD+1}'); A.i(f'v_cvt_pk_bf16_f32 v{RVM+1}, v{RD+2}, v{RD+3}')
        A.i(f'v_cvt_pk_bf16_f32 v{RVM+2}, v{RD+4}, v{RD+5}'); A.i(f'v_cvt_pk_bf16_f32 v{RVM+3}, v{RD+6}, v{RD+7}')
        A.i('s_nop 1')
        A.i(f'v_permlane16_swap_b32 v{RVM}, v{RVM+2}')
        A.i(f'v_permlane16_swap_b32 v{RVM+1}, v{RVM+3}')
        A.i(f's_cmp_ge_u32 s17, {nsteps-1}'); A.i('s_cbranch_scc1 C_last')
        stamp(A, 69)
        ev(A, 2, RT+3)
        A.i('s_add_u32 s79, s17, 1')
        db_wait(A, vDS, RT, 78, 79, KN['dbC'], 87 if KN['adapt'] else None)
        ev(A, 3, RT+3)
        sleep(A, KN['preC'])
        A.i('s_mov_b32 s22, 0')
        A.i(f'v_mov_b32 v{RT+2}, s79')
        lbl = f'C_pp{tagp}'
        A.label(lbl)
        for u in range(5):
            A.i(f'buffer_load_dwordx4 {vr(RP+4*u)}, v{vPg+u}, s[8:11], s19 offen {KN["gl"]}')
        A.i('s_add_u32 s22, s22, 1'); A.i(f's_cmp_gt_u32 s22, {SPIN_MAX}'); A.i('s_cbranch_scc1 R_fail')
        x, y = RT, RT+1
        for u in range(5):
            A.i(f's_waitcnt vmcnt({4-u})')
            a_op = vr(RVT+16*buf+4*u) if u < 4 else vr(RVM)
            cc = '0' if u == 0 else vr(RO)
            A.i(f'v_mfma_f32_16x16x32_bf16 {vr(RO)}, {a_op}, {vr(RP+4*u)}, {cc}')
            p = RP+4*u
            if u == 0:
                A.i(f'v_max3_u32 v{x}, v{p}, v{p+1}, v{p+2}'); A.i(f'v_mov_b32 v{y}, v{p+3}')
            else:
                A.i(f'v_max3_u32 v{x}, v{p}, v{p+1}, v{x}'); A.i(f'v_max3_u32 v{y}, v{p+2}, v{p+3}, v{y}')
        A.mark('ro')
        A.i(f'v_max_u32 v{x}, v{x}, v{y}')
        A.i(f'v_cmp_eq_u32 vcc, -1, v{x}')
        A.i(f's_cbranch_vccnz {lbl}')
        if KN['log']: A.i('s_add_u32 s73, s73, s22')
        stamp(A, 70)
        ev(A, 4, RT+3)
        A.need('ro', 8)
        A.i(f'ds_write_b128 v{vRw}, {vr(RO)}')
        lab = A.new('C_nopub'); lab2 = A.new('C_join')
        A.i('s_cmp_eq_u32 s16, 0'); A.i(f's_cbranch_scc0 {lab}')
        if KN['db'] and not KN['lateC']:
            A.i('s_mov_b64 exec, 1'); A.i(f'buffer_store_dword v{RT+2}, off, s[8:11], s77'); A.i('s_mov_b64 exec, -1')
        A.i('s_waitcnt lgkmcnt(0)')
        A.i('s_barrier')
        R1, R2 = RT+4, RT+8
        A.i(f'ds_read_b128 {vr(R1)}, v{vRr1}'); A.i(f'ds_read_b128 {vr(R2)}, v{vRr2}')
        A.i('s_waitcnt lgkmcnt(0)')
        A.i(f'v_pk_add_f32 v[{R1}:{R1+1}], v[{R1}:{R1+1}], v[{R2}:{R2+1}]'); A.i(f'v_pk_add_f32 v[{R1+2}:{R1+3}], v[{R1+2}:{R1+3}], v[{R2+2}:{R2+3}]')
        A.i('s_nop 1')
        A.i(f'v_permlane32_swap_b32 v{R1}, v{R1+2}')
        A.i(f'v_permlane32_swap_b32 v{R1+1}, v{R1+3}')
        A.i(f'v_pk_add_f32 v[{R1}:{R1+1}], v[{R1}:{R1+1}], v[{R1+2}:{R1+3}]')
        A.i(f'v_mov_b32 v{R2}, v{R1}'); A.i(f'v_mov_b32 v{R2+1}, v{R1+1}')
        A.i('s_nop 0')
        A.i(f'v_permlane16_swap_b32 v{R1}, v{R2}')
        A.i(f'v_permlane16_swap_b32 v{R1+1}, v{R2+1}')
        A.i(f'v_pk_add_f32 v[{R1}:{R1+1}], v[{R1}:{R1+1}], v[{R2}:{R2+1}]')
        A.i(f'v_cvt_pk_bf16_f32 v{R1}, v{R1}, v{R1+1}')
        A.i(f'buffer_store_dword v{R1}, v{vPub}, s[8:11], s18 offen sc1')
        if KN['db'] and KN['lateC']:
            A.i('s_mov_b64 exec, 1'); A.i(f'buffer_store_dword v{RT+2}, off, s[8:11], s77'); A.i('s_mov_b64 exec, -1')
        A.i(f's_branch {lab2}')
        A.label(lab)
        A.i('s_waitcnt lgkmcnt(0)')
        A.i('s_barrier')
        A.label(lab2)
        adapt(A, 87, 88, KN['loC'], KN['hiC'])
        A.i(f'buffer_store_dwordx4 {vr(RVM)}, v{vL16}, s[8:11], s21 offen sc1')
        A.i(f's_add_u32 s21, s21, {80*4096}')
        stamp(A, 71)
        ev(A, 5, RT+3)
        if KN['log'] or KN.get('lite'):
            if not KN['log']: A.i('s_memrealtime s[34:35]'); A.i('s_waitcnt lgkmcnt(0)')
            A.i('s_mov_b32 m0, s17'); A.i('s_nop 0'); A.i('v_writelane_b32 v150, s34, m0')
            if KN.get('lite'):
                A.i('v_writelane_b32 v151, s22, m0')
                A.i('s_memtime s[34:35]'); A.i('s_waitcnt lgkmcnt(0)'); A.i('v_writelane_b32 v152, s34, m0')
        advance(A)
    A.label('C_loop')
    body(0, 'a')
    body(1, 'b')
    A.i('s_branch C_loop')
    A.label('C_last')
    A.i('s_nop 1')
    A.i(f'buffer_store_dwordx4 {vr(RVM)}, v{vL16}, s[8:11], s21 offen sc1')
    if KN['post']:
        A.i('s_waitcnt vmcnt(0)'); A.i('s_barrier')
        A.i('s_cmp_eq_u32 s16, 1'); A.i('s_cbranch_scc0 R_done')
        signal(A, FL_VM, 0, 17, 3, RT)
    A.i('s_branch R_done')
def placement_ok(A, v):
    l0, l1 = A.new('pl'), A.new('pl')
    A.i('s_mov_b32 s76, 0'); A.i('s_mov_b32 s22, 0')
    A.i(f'v_mov_b32 v{v}, 0')
    A.label(l0)
    A.i(f'buffer_load_dwordx4 v[{v+2}:{v+5}], v{v}, s[12:15], 0 offen sc1')
    A.i(f'buffer_load_dword v{v+1}, v{v}, s[12:15], 0 offen offset:96 sc1')
    A.i('s_waitcnt vmcnt(0)')
    A.i(f'v_min_u32 v{v+2}, v{v+2}, v{v+3}'); A.i(f'v_min3_u32 v{v+2}, v{v+2}, v{v+4}, v{v+5}'); A.i('s_nop 0')
    A.i(f'v_readfirstlane_b32 s23, v{v+2}'); A.i(f'v_readfirstlane_b32 s79, v{v+1}')
    A.i('s_add_u32 s22, s22, 1'); A.i('s_cmp_gt_u32 s22, 0x400'); A.i(f's_cbranch_scc1 {l1}')
    A.i('s_cmp_ge_u32 s23, 28'); A.i(f's_cbranch_scc0 {l0}')
    A.i('s_cmp_eq_u32 s79, 0'); A.i('s_cselect_b32 s76, 1, 0')
    A.label(l1)

NGRID = 256
def assign_role(A, ngrid):
    A.i(f's_load_dwordx2 s[6:7], s[0:1], {KA["dbg"]}')
    A.i('s_getreg_b32 s50, hwreg(HW_REG_XCC_ID)'); A.i('s_and_b32 s50, s50, 7')
    A.i('s_waitcnt lgkmcnt(0)')
    srd(A, 12, 6, 256)
    A.i('s_mov_b32 s3, -1')
    A.i('s_cmp_eq_u32 s16, 0'); A.i('s_cbranch_scc0 R_role_wait')
    A.i('s_mov_b64 exec, 1')
    def atomic(op, val, off):
        A.i(f'v_mov_b32 v2, {val}'); A.i(f'v_mov_b32 v3, {off}')
        A.i(f'buffer_atomic_{op} v2, v3, s[12:15], 0 offen sc0')
        A.i('s_waitcnt vmcnt(0)'); A.i('v_readfirstlane_b32 s51, v2'); A.i('s_nop 3')
    def claim():
        A.i('s_lshr_b32 s53, s52, 5'); A.i('s_lshl_b32 s53, s53, 2'); A.i('s_add_u32 s53, s53, 64')
        A.i('s_and_b32 s54, s52, 31'); A.i('s_lshl_b32 s54, 1, s54')
        atomic('or', 's54', 's53')
        A.i('s_and_b32 s51, s51, s54'); A.i('s_cmp_eq_u32 s51, 0'); A.i('s_cselect_b32 s3, s52, s3')
    A.i('s_lshl_b32 s52, s50, 2'); atomic('add', '1', 's52')
    A.i('s_mov_b32 s81, s51')
    A.i('s_cmp_lt_u32 s50, 4'); A.i('s_cbranch_scc0 R_role_free')
    A.i('s_cmp_lt_u32 s51, 8'); A.i('s_cbranch_scc0 R_role_c')
    A.i('s_lshl_b32 s52, s50, 3'); A.i('s_add_u32 s52, s52, s51'); A.i('s_branch R_role_try')
    A.label('R_role_c')
    A.i('s_cmp_lt_u32 s51, 28'); A.i('s_cbranch_scc0 R_role_free')
    A.i('s_mul_i32 s52, s50, 20'); A.i('s_add_u32 s52, s52, s51'); A.i('s_add_u32 s52, s52, 24')
    A.label('R_role_try')
    claim()
    A.i('s_cmp_lt_i32 s3, 0'); A.i('s_cbranch_scc0 R_role_pub')
    A.label('R_role_free')
    A.i('s_mov_b32 s22, 0'); A.i('v_mov_b32 v3, 0')
    A.label('R_role_spin')
    A.i('buffer_load_dwordx4 v[4:7], v3, s[12:15], 0 offen sc1'); A.i('buffer_load_dwordx4 v[8:11], v3, s[12:15], 0 offen offset:16 sc1')
    A.i('s_waitcnt vmcnt(0)')
    A.i('v_min_u32 v2, v4, v5'); A.i('v_min3_u32 v2, v2, v6, v7')
    A.i('v_add3_u32 v4, v4, v5, v6'); A.i('v_add3_u32 v8, v8, v9, v10'); A.i('v_add3_u32 v4, v4, v7, v8'); A.i('v_add_u32 v4, v4, v11'); A.i('s_nop 0')
    A.i('v_readfirstlane_b32 s51, v2'); A.i('v_readfirstlane_b32 s52, v4'); A.i('s_nop 3')
    A.i('s_cmp_ge_u32 s51, 28'); A.i('s_cbranch_scc1 R_role_pub')
    A.i(f's_cmp_ge_u32 s52, {ngrid}'); A.i('s_cbranch_scc1 R_role_scan')
    A.i('s_sleep 4'); A.i('s_add_u32 s22, s22, 1'); A.i('s_cmp_lt_u32 s22, 0x4000'); A.i('s_cbranch_scc1 R_role_spin')
    A.label('R_role_scan')
    for k in range(4):
        lab, nx = f'R_scan{k}', f'R_scan{k}_n'
        valid = 0xffffffff if k < 3 else 0xffff
        A.label(lab)
        atomic('add', '0', str(64 + 4*k))
        A.i('s_not_b32 s51, s51'); A.i(f's_and_b32 s51, s51, {valid:#x}'); A.i('s_cmp_eq_u32 s51, 0'); A.i(f's_cbranch_scc1 {nx}')
        A.i('s_ff1_i32_b32 s55, s51'); A.i(f's_add_u32 s55, s55, {32*k}')
        atomic('add', '1', '96')
        A.i('s_mov_b32 s52, s55')
        claim()
        A.i('s_cmp_lt_i32 s3, 0'); A.i('s_cbranch_scc0 R_role_pub'); A.i(f's_branch {lab}')
        A.label(nx)
    A.label('R_role_pub')
    A.i('v_mov_b32 v2, s3'); A.i('v_mov_b32 v3, 0'); A.i('ds_write_b32 v3, v2'); A.i('v_mov_b32 v2, s81'); A.i('ds_write_b32 v3, v2 offset:4'); A.i('s_waitcnt lgkmcnt(0)')
    A.i('s_mov_b64 exec, -1')
    A.label('R_role_wait')
    A.i('s_barrier')
    A.i('v_mov_b32 v3, 0'); A.i('ds_read_b32 v2, v3'); A.i('ds_read_b32 v4, v3 offset:4'); A.i('s_waitcnt lgkmcnt(0)'); A.i('v_readfirstlane_b32 s3, v2'); A.i('v_readfirstlane_b32 s81, v4'); A.i('s_nop 3')
    A.i('s_barrier')

def gen_rec(name='rec_kernel', nsteps=NSEG, ngrid=256, workers=None):
    A = Em()
    kernel_header(A, name)
    A.i(f's_load_dwordx2 s[4:5], s[0:1], {KA["ws"]}')
    A.i(f's_cmp_ge_u32 s2, {ngrid}')
    A.i('s_cbranch_scc1 R_exit')
    A.i('v_lshrrev_b32 v1, 6, v0')
    A.i('s_waitcnt lgkmcnt(0)')
    srd(A, 8, 4, WS_SIZE)
    A.i('v_readfirstlane_b32 s16, v1')
    ts_stamp(A, 4)
    assign_role(A, ngrid)
    ts_stamp(A, 6)
    A.i(f's_cmp_lt_u32 s3, {NS+NC}'); A.i('s_cbranch_scc0 W_role' if workers else 's_cbranch_scc0 R_exit')
    A.i('s_mov_b32 s17, 0')
    if KN.get('ev'):
        A.i('s_lshl_b32 s81, s3, 2'); A.i('s_add_u32 s81, s81, s16'); A.i('s_lshl_b32 s81, s81, 11'); A.i(f's_add_u32 s81, s81, {0xE000000}')
    if KN.get('lite'): A.i('s_mov_b32 s64, s3')
    if KN['log']:
        A.i('s_mov_b32 s64, s3')
        for r in range(68, 76): A.i(f's_mov_b32 s{r}, 0')
    A.i(f's_cmp_lt_u32 s3, {NS}')
    A.i('s_cbranch_scc0 C_role')
    gen_S(A, nsteps)
    gen_C(A, nsteps)
    A.label('R_fail')
    A.label('R_done')
    if KN.get('lite'):
        A.i('s_mov_b64 exec, -1'); A.i('v_mbcnt_lo_u32_b32 v1, -1, 0'); A.i('v_mbcnt_hi_u32_b32 v1, -1, v1'); A.i('v_lshlrev_b32 v1, 2, v1')
        A.i('s_lshl_b32 s23, s64, 2'); A.i('s_add_u32 s23, s23, s16'); A.i('s_lshl_b32 s23, s23, 8'); A.i(f's_add_u32 s23, s23, {WS_LOG + 0x10000}')
        A.i('buffer_store_dword v150, v1, s[8:11], s23 offen'); A.i(f's_add_u32 s23, s23, {0x30000}'); A.i('buffer_store_dword v151, v1, s[8:11], s23 offen')
        lab = A.new('lt'); A.i('s_cmp_eq_u32 s16, 0'); A.i(f's_cbranch_scc0 {lab}')
        A.i('s_lshl_b32 s23, s64, 8'); A.i(f's_add_u32 s23, s23, {WS_LOG + 0x5C000}'); A.i('buffer_store_dword v152, v1, s[8:11], s23 offen')
        A.label(lab)
    if KN['log']:
        A.i('s_lshl_b32 s23, s64, 2'); A.i('s_add_u32 s23, s23, s16'); A.i('s_lshl_b32 s23, s23, 5'); A.i(f's_add_u32 s23, s23, {WS_LOG}')
        A.i('s_mov_b64 exec, 1'); A.i('v_mov_b32 v1, 0')
        for r in range(8): A.i(f'v_mov_b32 v{2+r}, s{68+r}')
        A.i('buffer_store_dwordx4 v[2:5], v1, s[8:11], s23 offen'); A.i('buffer_store_dwordx4 v[6:9], v1, s[8:11], s23 offen offset:16')
        A.i('s_mov_b64 exec, -1'); A.i('v_and_b32 v1, 63, v0'); A.i('v_lshlrev_b32 v1, 2, v1')
        A.i('s_lshl_b32 s23, s64, 2'); A.i('s_add_u32 s23, s23, s16'); A.i('s_lshl_b32 s23, s23, 8'); A.i(f's_add_u32 s23, s23, {WS_LOG + 0x10000}')
        A.i('buffer_store_dword v150, v1, s[8:11], s23 offen')
        if KN.get('vtlat'):
            A.i(f's_add_u32 s23, s23, {0x50000}'); A.i('buffer_store_dword v151, v1, s[8:11], s23 offen')
    A.label('R_wexit')
    A.i('s_waitcnt vmcnt(0)')
    if workers and KN['post'] and KN['join']:
        A.i('s_mov_b64 exec, -1'); A.i('s_barrier')
        A.i('v_mbcnt_lo_u32_b32 v0, -1, 0'); A.i('v_mbcnt_hi_u32_b32 v0, -1, v0'); A.i('s_lshl_b32 s23, s16, 6'); A.i('v_add_u32 v0, s23, v0')
        A.i('s_mov_b32 s58, 5')
        A.i('s_getpc_b64 s[92:93]')
        A.label('R_pc')
        A.i('s_add_u32 s92, s92, P_phase-R_pc'); A.i('s_addc_u32 s93, s93, 0')
        A.i('s_setpc_b64 s[92:93]')
    A.label('R_exit')
    A.i('s_endpgm')
    if workers: workers(A)
    return A.text(), kernel_desc(name, 512, 256)
if __name__ == '__main__':
    t, d = gen_rec()
    print('; @launch kernel=rec_kernel grid=(112,1,1) block=(256,1,1) lds=163840')
    print('.amdgcn_target "amdgcn-amd-amdhsa--gfx950"')
    print(t); print(d)
```

```python
from common import *
from rec import Em, LG, SPIN_MAX, KN, ws_wait, ws_add, ws_take, boot_wait, b_tasks
import gemm, post, small, fast
from gemm import *

SRD_WQ, SRD_WK, SRD_WV, SRD_WO = 68, 72, 76, 80
W_NSLOT = 6
LDS_BC = W_NSLOT*SLOT
vNEXT = 5
Q_WORD = 128

def signal_add(A, off_sgpr):
    lab = A.new('sig')
    A.i('s_cmp_eq_u32 s16, 0'); A.i(f's_cbranch_scc0 {lab}')
    A.i('s_mov_b64 exec, 1'); A.i('v_mov_b32 v22, 1'); A.i('v_mov_b32 v23, 0')
    A.i(f'buffer_atomic_add v22, v23, s[8:11], s{off_sgpr} offen')
    A.i('s_mov_b64 exec, -1')
    A.label(lab)

def kq_store_tile(vm, D, t, soff, o, addr=21):
    ga, gb = o, o+4
    L = [f'v_cvt_pk_bf16_f32 v{ga}, v{D}, v{D+1}', f'v_cvt_pk_bf16_f32 v{ga+1}, v{D+2}, v{D+3}',
         f'v_cvt_pk_bf16_f32 v{ga+2}, v{D+8}, v{D+9}', f'v_cvt_pk_bf16_f32 v{ga+3}, v{D+10}, v{D+11}',
         f'v_cvt_pk_bf16_f32 v{gb}, v{D+4}, v{D+5}', f'v_cvt_pk_bf16_f32 v{gb+1}, v{D+6}, v{D+7}',
         f'v_cvt_pk_bf16_f32 v{gb+2}, v{D+12}, v{D+13}', f'v_cvt_pk_bf16_f32 v{gb+3}, v{D+14}, v{D+15}']
    if t == 4: L.append(f's_add_u32 s{soff}, s{soff}, 4096')
    L.append(lambda: vm.issue(f'buffer_store_dwordx4 {vr(ga)}, v{addr}, s[8:11], s{soff} offen offset:{(t%4)*1024} sc1'))
    L.append(lambda: vm.issue(f'buffer_store_dwordx4 {vr(gb)}, v{addr}, s[8:11], s{soff} offen offset:{(t%4)*1024+512} sc1'))
    return L

def task_kq2(A, tail):
    ACT, FR, ACCK, ACCQ, TMP = 0, 160, 32, 128, 224
    A.i('s_mul_i32 s42, s41, 384'); A.i('s_mov_b32 s46, s42')
    A.i('s_lshl_b32 s43, s40, 2'); A.i('s_add_u32 s43, s43, s16')
    A.i(f's_mul_i32 s44, s43, {40*1024}'); A.i(f's_add_u32 s44, s44, {WS_H}')
    A.i('v_and_b32 v22, 63, v0'); A.i('v_lshrrev_b32 v23, 4, v22'); A.i('v_and_b32 v23, 1, v23'); A.i('v_mul_u32_u24 v23, 6144, v23')
    A.i('v_lshrrev_b32 v24, 5, v22'); A.i('v_lshlrev_b32 v24, 4, v24'); A.i('v_and_b32 v25, 15, v22'); A.i('v_add_u32 v24, v24, v25')
    A.i('v_lshlrev_b32 v24, 4, v24'); A.i('v_add_u32 v21, v23, v24')
    A.i('s_lshl_b32 s45, s43, 5'); A.i('s_add_u32 s45, s45, s41'); A.i('s_mul_i32 s45, s45, 12288')
    A.i(f's_add_u32 s47, s45, {WS_QT}'); A.i(f's_add_u32 s45, s45, {WS_KT}')
    vm = VM(A)
    stages = [Stage(192, SRD_WK, 42, 64*12288) for _ in range(10)] + [Stage(192, SRD_WQ, 46, 64*12288) for _ in range(10)]
    e = Engine(A, vm, stages, FR)
    e.prologue_parts = act_parts(A, vm, ACT, 40, 44, ' sc1' if KN['unified'] else '')
    steps = pass192_steps(0, ACCK, ACT, vm, True) + pass192_steps(10, ACCQ, ACT, vm, False)
    def qk():
        for t in range(6): e.side.extend(kq_store_tile(vm, ACCK+16*t, t, 45, TMP + 8*(t & 1)))
    steps[42]['pre'] = qk
    e.run(steps)
    tail()
    e.flush_side()
    A.i('s_nop 7')
    for t in range(6): e.side.extend(kq_store_tile(vm, ACCQ+16*t, t, 47, TMP + 8*(t & 1)))
    e.flush_side()
    vm.wait_all()
    A.i('s_lshl_b32 s48, s40, 5'); A.i('s_add_u32 s48, s48, s41'); A.i('s_lshl_b32 s48, s48, 7'); A.i(f's_add_u32 s48, s48, {FL_KQ}')

def task_vvo2(A, tail):
    ACT, FR = 0, 160
    VACC, VOP, ACC0, ACC1, TMP = 32, 128, 32, 176, 112
    A.i('s_mul_i32 s42, s41, 384')
    A.i(f's_mul_i32 s46, s41, {192*1280}')
    A.i('s_lshl_b32 s43, s40, 2'); A.i('s_add_u32 s43, s43, s16')
    A.i(f's_mul_i32 s44, s43, {40*1024}'); A.i(f's_add_u32 s44, s44, {WS_H}')
    vm = VM(A)
    stages = [Stage(192, SRD_WV, 42, 64*12288) for _ in range(10)] + wo_stages(SRD_WO, 46)
    e = Engine(A, vm, stages, FR)
    e.prologue_parts = act_parts(A, vm, ACT, 40, 44, ' sc1' if KN['unified'] else '')
    steps = pass192_steps(0, VACC, ACT, vm, True)
    def conv():
        A.i('s_nop 7'); A.i('s_nop 7')
        for t in range(6):
            for a in range(2):
                for r in range(4):
                    s = VACC + 16*t + 8*a + 2*r
                    A.i(f'v_cvt_pk_bf16_f32 v{VOP + 4*(2*t+a) + r}, v{s}, v{s+1}')
        A.i('s_nop 1')
    steps[-1]['post'] = conv
    A.i('v_and_b32 v22, 63, v0'); A.i('v_and_b32 v23, 31, v22'); A.i('v_lshrrev_b32 v24, 3, v23'); A.i('v_lshlrev_b32 v24, 14, v24')
    A.i('v_lshrrev_b32 v25, 5, v22'); A.i('v_lshlrev_b32 v25, 8, v25'); A.i('v_and_b32 v23, 7, v23'); A.i('v_lshlrev_b32 v23, 4, v23')
    A.i('v_add3_u32 v21, v23, v24, v25')
    A.i(f's_mul_i32 s47, s43, {80*16384}'); A.i('s_lshr_b32 s23, s41, 1'); A.i('s_lshl_b32 s23, s23, 10'); A.i('s_add_u32 s47, s47, s23')
    A.i('s_and_b32 s23, s41, 1'); A.i('s_lshl_b32 s23, s23, 7'); A.i('s_add_u32 s47, s47, s23'); A.i(f's_add_u32 s47, s47, {WS_VOT}')
    def store_tile(cc, t, D):
        o = TMP + 8*(t & 1)
        L = []
        for q in range(4):
            L.append(f'v_cvt_pk_bf16_f32 v{o+2*q}, v{D+4*q}, v{D+4*q+1}')
            L.append(f'v_cvt_pk_bf16_f32 v{o+2*q+1}, v{D+4*q+2}, v{D+4*q+3}')
        L.append(f's_add_u32 s48, s47, {(cc*20 + t*4)*16384}')
        L.append('s_nop 0')
        for b in (0, 4):
            L.append(f'v_permlane32_swap_b32 v{o+b}, v{o+b+2}')
            L.append(f'v_permlane32_swap_b32 v{o+b+1}, v{o+b+3}')
        L.append(lambda: vm.issue(f'buffer_store_dwordx4 {vr(o)}, v21, s[8:11], s48 offen sc1'))
        L.append(lambda: vm.issue(f'buffer_store_dwordx4 {vr(o+4)}, v21, s[8:11], s48 offen offset:512 sc1'))
        return L
    steps += vo_pass(A, e, vm, 10, VOP, (ACC0, ACC1), store_tile)
    e.run(steps)
    tail()
    A.i('s_nop 7'); A.i('s_nop 7')
    for t in range(5):
        e.side.extend(store_tile(3, t, ACC1 + 16*t))
    e.flush_side()
    vm.wait_all()
    A.i('s_lshl_b32 s48, s40, 7'); A.i(f's_add_u32 s48, s48, {FL_VVO}')

def task_head(A, tail):
    ACT, FR = 0, 160
    VACC, VOP, ACC0, ACC1, TMP = 32, 128, 32, 176, 112
    ACCK, ACCQ, TMPK = 32, 128, 224
    A.i('s_mul_i32 s42, s41, 384'); A.i('s_mov_b32 s49, s42'); A.i('s_mov_b32 s50, s42')
    A.i(f's_mul_i32 s46, s41, {192*1280}')
    A.i('s_lshl_b32 s43, s40, 2'); A.i('s_add_u32 s43, s43, s16')
    A.i(f's_mul_i32 s44, s43, {40*1024}'); A.i(f's_add_u32 s44, s44, {WS_H}')
    vm = VM(A)
    stages = ([Stage(192, SRD_WV, 42, 64*12288) for _ in range(10)] + wo_stages(SRD_WO, 46) +
              [Stage(192, SRD_WK, 49, 64*12288) for _ in range(10)] + [Stage(192, SRD_WQ, 50, 64*12288) for _ in range(10)])
    e = Engine(A, vm, stages, FR)
    e.prologue_parts = act_parts(A, vm, ACT, 40, 44, ' sc1' if KN['unified'] else '')
    steps = pass192_steps(0, VACC, ACT, vm, True)
    def conv():
        A.i('s_nop 7'); A.i('s_nop 7')
        for t in range(6):
            for a in range(2):
                for r in range(4):
                    s = VACC + 16*t + 8*a + 2*r
                    A.i(f'v_cvt_pk_bf16_f32 v{VOP + 4*(2*t+a) + r}, v{s}, v{s+1}')
        A.i('s_nop 1')
    steps[-1]['post'] = conv
    A.i('v_and_b32 v22, 63, v0'); A.i('v_and_b32 v23, 31, v22'); A.i('v_lshrrev_b32 v24, 3, v23'); A.i('v_lshlrev_b32 v24, 14, v24')
    A.i('v_lshrrev_b32 v25, 5, v22'); A.i('v_lshlrev_b32 v25, 8, v25'); A.i('v_and_b32 v23, 7, v23'); A.i('v_lshlrev_b32 v23, 4, v23')
    A.i('v_add3_u32 v21, v23, v24, v25')
    A.i('v_lshrrev_b32 v23, 4, v22'); A.i('v_and_b32 v23, 1, v23'); A.i('v_mul_u32_u24 v23, 6144, v23')
    A.i('v_lshrrev_b32 v24, 5, v22'); A.i('v_lshlrev_b32 v24, 4, v24'); A.i('v_and_b32 v25, 15, v22'); A.i('v_add_u32 v24, v24, v25')
    A.i('v_lshlrev_b32 v24, 4, v24'); A.i('v_add_u32 v30, v23, v24')
    A.i(f's_mul_i32 s47, s43, {80*16384}'); A.i('s_lshr_b32 s23, s41, 1'); A.i('s_lshl_b32 s23, s23, 10'); A.i('s_add_u32 s47, s47, s23')
    A.i('s_and_b32 s23, s41, 1'); A.i('s_lshl_b32 s23, s23, 7'); A.i('s_add_u32 s47, s47, s23'); A.i(f's_add_u32 s47, s47, {WS_VOT}')
    A.i('s_lshl_b32 s45, s43, 5'); A.i('s_add_u32 s45, s45, s41'); A.i('s_mul_i32 s45, s45, 12288')
    A.i(f's_add_u32 s51, s45, {WS_QT}'); A.i(f's_add_u32 s45, s45, {WS_KT}')
    def store_tile(cc, t, D, tmp=TMP):
        o = tmp + 8*(t & 1)
        L = []
        for q in range(4):
            L.append(f'v_cvt_pk_bf16_f32 v{o+2*q}, v{D+4*q}, v{D+4*q+1}')
            L.append(f'v_cvt_pk_bf16_f32 v{o+2*q+1}, v{D+4*q+2}, v{D+4*q+3}')
        L.append(f's_add_u32 s48, s47, {(cc*20 + t*4)*16384}')
        L.append('s_nop 0')
        for b in (0, 4):
            L.append(f'v_permlane32_swap_b32 v{o+b}, v{o+b+2}')
            L.append(f'v_permlane32_swap_b32 v{o+b+1}, v{o+b+3}')
        L.append(lambda: vm.issue(f'buffer_store_dwordx4 {vr(o)}, v21, s[8:11], s48 offen sc1'))
        L.append(lambda: vm.issue(f'buffer_store_dwordx4 {vr(o+4)}, v21, s[8:11], s48 offen offset:512 sc1'))
        return L
    steps += vo_pass(A, e, vm, 10, VOP, (ACC0, ACC1), store_tile)
    ks_ = pass192_steps(22, ACCK, ACT, vm, False)
    def last_vo():
        for t in range(5): e.side.extend(store_tile(3, t, ACC1 + 16*t, VOP))
    ks_[1]['pre'] = last_vo
    qs_ = pass192_steps(32, ACCQ, ACT, vm, False)
    def kq_tiles(acc, soff):
        for t in range(6):
            L = kq_store_tile(vm, acc+16*t, t, soff, TMPK + 8*(t & 1), addr=30)
            e.side.extend(L)
    qs_[0]['pre'] = lambda: e.flush_side()
    qs_[2]['pre'] = lambda: kq_tiles(ACCK, 45)
    steps += ks_ + qs_
    e.run(steps)
    tail()
    e.flush_side()
    A.i('s_nop 7')
    kq_tiles(ACCQ, 51)
    e.flush_side()
    vm.wait_all()
    A.i('s_lshl_b32 s48, s40, 7'); A.i(f's_add_u32 s48, s48, {FL_VVO}')
    A.i('s_lshl_b32 s49, s40, 5'); A.i('s_add_u32 s49, s49, s41'); A.i('s_lshl_b32 s49, s49, 7'); A.i(f's_add_u32 s49, s49, {FL_KQ}')

def wait_dep(A, off_sgpr, target, backoff=12):
    l0, l1 = A.new('dep'), A.new('dep')
    A.i('s_cmp_eq_u32 s16, 0'); A.i(f's_cbranch_scc0 {l1}')
    A.i('s_mov_b32 s22, 0'); A.i('v_mov_b32 v22, 0')
    A.label(l0)
    A.i(f'buffer_load_dword v23, v22, s[8:11], s{off_sgpr} offen sc1')
    A.i('s_add_u32 s22, s22, 1'); A.i(f's_cmp_gt_u32 s22, {SPIN_MAX//8}'); A.i(f's_cbranch_scc1 {l1}')
    A.i('s_waitcnt vmcnt(0)'); A.i('v_readfirstlane_b32 s23, v23'); A.i('s_nop 3')
    A.i(f's_cmp_ge_u32 s23, {target}'); A.i(f's_cbranch_scc1 {l1}')
    A.i(f's_sleep {backoff}'); A.i(f's_branch {l0}')
    A.label(l1)
    A.i('s_barrier')

def wait_words(A, off_sgpr, n, backoff=12, grouped=False):
    l0, l1 = A.new('dw'), A.new('dw')
    A.i('s_cmp_eq_u32 s16, 0'); A.i(f's_cbranch_scc0 {l1}')
    A.i('s_mov_b32 s22, 0')
    A.i('v_and_b32 v22, 63, v0'); A.i('v_min_u32 v24, %d, v22' % (min(n, 64)-1))
    if grouped:
        A.i('v_lshrrev_b32 v25, 3, v24'); A.i('v_lshlrev_b32 v25, 7, v25'); A.i('v_and_b32 v24, 7, v24'); A.i('v_lshlrev_b32 v24, 2, v24'); A.i('v_add_u32 v24, v24, v25')
    else: A.i('v_lshlrev_b32 v24, 2, v24')
    if n > 64:
        A.i('v_add_u32 v25, 64, v22'); A.i(f'v_min_u32 v25, {n-1}, v25'); A.i('v_lshlrev_b32 v25, 2, v25')
    A.label(l0)
    A.i(f'buffer_load_dword v23, v24, s[8:11], s{off_sgpr} offen sc1')
    if n > 64: A.i(f'buffer_load_dword v26, v25, s[8:11], s{off_sgpr} offen sc1')
    A.i('s_add_u32 s22, s22, 1'); A.i(f's_cmp_gt_u32 s22, {SPIN_MAX//8}'); A.i(f's_cbranch_scc1 {l1}')
    A.i('s_waitcnt vmcnt(0)')
    if n > 64: A.i('v_min_u32 v23, v23, v26')
    A.i('v_cmp_eq_u32 vcc, 0, v23'); A.i(f's_cbranch_vccz {l1}')
    A.i(f's_sleep {backoff}'); A.i(f's_branch {l0}')
    A.label(l1)
    A.i('s_barrier')

SRD_WG, SRD_WU, SRD_WD, SRD_X, SRD_OUT = 68, 72, 76, 80, 84
NENG = 12
KEYS = (-2, 0, 1.5, 3)
NBACK = 8
def post_table():
    TA, T = [], []
    for r in range(NENG):
        for i in range(20): TA.append((0 << 16) | (r << 8) | i)
    def e(ty, a, n):
        for i in range(n): T.append((ty << 16) | (a << 8) | i)
    for i in range(256): T.append((8 << 16) | i)
    ST = ((1, 4), (2, 8), (3, 4))
    for ty, n in ST:
        for r in range(NBACK): e(ty, r, n)
    for d in range(NBACK, NENG + 2):
        for back in (2, 1, 0):
            r = d - back
            if NBACK <= r < NENG: e(ST[back][0], r, ST[back][1])
    s0 = 4*NENG
    FS = ((4, 10), (5, 2), (6, 24), (7, 10))
    items = []
    for ty_i, (ty, n) in enumerate(FS):
        for r in range(s0, 64): items.append((r + KEYS[ty_i], -ty_i, ty, r, n))
    for _, _, ty, r, n in sorted(items): e(ty, r, n)
    global NPA
    NPA = len(TA)
    return TA + T
POST_T = post_table()
NPOST = len(POST_T)

def gen_post(A, fetch, publish, log_end):
    A.label('P_phase')
    for reg, key, nb in ((SRD_WG, 'wg', 640*3072), (SRD_WU, 'wu', 640*3072), (SRD_WD, 'wd', 1536*1280), (SRD_X, 'x', 2048*1280), (SRD_OUT, 'out', 2048*1280)):
        A.i(f's_load_dwordx2 s[6:7], s[0:1], {KA[key]}'); A.i('s_waitcnt lgkmcnt(0)'); srd(A, reg, 6, nb)
    A.i(f's_load_dwordx2 s[6:7], s[0:1], {KA["dbg"]}'); A.i('s_waitcnt lgkmcnt(0)'); srd(A, 12, 6, 256)
    A.i('s_mov_b32 s54, 0'); A.i('s_mov_b32 s95, -1')
    A.label('P_refetch')
    fetch(); A.i('s_waitcnt vmcnt(0)'); publish()
    A.i('s_barrier')
    A.label('P_loop')
    A.i(f'v_mov_b32 v22, {LDS_BC}'); A.i('ds_read_b32 v23, v22'); A.i('s_waitcnt lgkmcnt(0)'); A.i('v_readfirstlane_b32 s60, v23'); A.i('s_nop 3')
    A.i('s_barrier')
    A.i('s_cmp_eq_u32 s58, 4'); A.i('s_cbranch_scc0 P_qb')
    A.i(f's_cmp_ge_u32 s60, {NPA}'); A.i('s_cbranch_scc0 P_go')
    A.i('s_mov_b32 s58, 5'); A.i('s_branch P_refetch')
    A.label('P_qb')
    A.i(f's_add_u32 s60, s60, {NPA}')
    A.i(f's_cmp_ge_u32 s60, {NPOST}'); A.i('s_cbranch_scc0 P_go')
    ts_stamp(A, 5)
    A.i('s_waitcnt vmcnt(0)'); A.i('s_endpgm')
    A.label('P_go')
    A.i('s_getpc_b64 s[92:93]')
    A.label('P_pc')
    A.i('s_add_u32 s92, s92, P_table-P_pc'); A.i('s_addc_u32 s93, s93, 0')
    A.i('s_lshl_b32 s23, s60, 2'); A.i('s_load_dword s57, s[92:93], s23'); A.i('s_waitcnt lgkmcnt(0)')
    A.i('s_lshr_b32 s56, s57, 16'); A.i('s_lshr_b32 s40, s57, 8'); A.i('s_and_b32 s40, s40, 255'); A.i('s_and_b32 s41, s57, 255')
    if KN['log']: A.i('s_memrealtime s[62:63]'); A.i('s_waitcnt lgkmcnt(0)')
    for ty, lab in ((8, 'P_wf'), (7, 'P_f2f'), (6, 'P_f1f'), (5, 'P_lnf'), (4, 'P_t2f'), (3, 'P_f2'), (2, 'P_f1'), (1, 'P_ln')):
        A.i(f's_cmp_eq_u32 s56, {ty}'); A.i(f's_cbranch_scc1 {lab}')
    A.i('s_mul_i32 s24, s41, 13108'); A.i('s_lshr_b32 s24, s24, 16')
    A.i('s_mul_i32 s25, s24, 5'); A.i('s_sub_u32 s41, s41, s25')
    A.i('s_mov_b32 s55, s40'); A.i('s_lshl_b32 s40, s40, 2'); A.i('s_add_u32 s40, s40, s24')
    def wait_seg(bo=12, regs=(48, 49)):
        r0, r1 = regs
        l5, l6 = A.new('ws'), A.new('ws')
        A.i('s_cmp_ge_u32 s40, 62'); A.i(f's_cbranch_scc1 {l5}')
        A.i(f's_add_u32 s{r0}, s40, 1'); A.i(f's_lshl_b32 s{r0}, s{r0}, 9'); A.i(f's_add_u32 s{r0}, s{r0}, {FL_PT}')
        wait_words(A, r0, 32, bo, grouped=True)
        A.i(f's_branch {l6}')
        A.label(l5)
        A.i(f's_mov_b32 s{r0}, {FL_PT + 63*512}'); A.i(f's_mov_b32 s{r1}, {FL_VM}')
        wait_words(A, r0, 32, 2, grouped=True); wait_words(A, r1, 80, 2)
        A.label(l6)
    wait_seg(KN.get('boA', 40))
    post.task_t2(A, sc=' sc1', xsrd=SRD_X, tail=fetch)
    A.i('s_lshl_b32 s48, s55, 7'); A.i(f's_add_u32 s48, s48, {FL_T2}')
    A.i('s_branch P_end')
    A.label('P_ln')
    A.i('s_mov_b32 s55, s40')
    A.i('s_lshl_b32 s48, s40, 7'); A.i(f's_add_u32 s48, s48, {FL_T2}')
    wait_dep(A, 48, 20)
    A.i('s_lshl_b32 s40, s40, 2'); A.i('s_add_u32 s40, s40, s41'); A.i('s_lshl_b32 s40, s40, 1')
    A.i(f's_mov_b32 s27, {WS_X1}')
    for it in range(2):
        small.role_ln(A, lambda: None, 's27', 3, 4, WS_H2, sc=' sc1', ssrd=8)
        if it == 0: A.i('s_add_u32 s40, s40, 1')
    fetch()
    A.i('s_waitcnt vmcnt(0)')
    A.i('s_lshl_b32 s48, s55, 7'); A.i(f's_add_u32 s48, s48, {FL_LN}')
    A.i('s_branch P_end')
    A.label('P_f1')
    A.i('s_lshl_b32 s48, s40, 7'); A.i(f's_add_u32 s48, s48, {FL_LN}')
    wait_dep(A, 48, 4)
    setup_lane(A)
    post.task_ffn1(A, sc=' sc1', srds=(SRD_WG, SRD_WU), tail=fetch)
    A.i('s_lshl_b32 s48, s40, 7'); A.i(f's_add_u32 s48, s48, {FL_F1}')
    A.i('s_branch P_end')
    A.label('P_f2')
    A.i('s_lshl_b32 s48, s40, 7'); A.i(f's_add_u32 s48, s48, {FL_F1}')
    wait_dep(A, 48, 8)
    setup_lane(A)
    post.task_ffn2(A, sc=' sc1', srds=(SRD_WD, SRD_OUT), tail=fetch)
    A.i('s_mov_b32 s48, -1')
    A.i('s_branch P_end')
    A.label('P_t2f')
    lab = A.new('vvok')
    A.i('s_lshr_b32 s55, s40, 2'); A.i('s_cmp_eq_u32 s55, s95'); A.i(f's_cbranch_scc1 {lab}')
    A.i('s_lshl_b32 s48, s55, 7'); A.i(f's_add_u32 s48, s48, {FL_VVO}'); wait_dep(A, 48, 32, 4); A.i('s_mov_b32 s95, s55')
    A.label(lab)
    fast.task_t2f(A, SRD_X, fetch, lambda: wait_seg(KN.get('boF', 8), (52, 53)))
    A.i('s_lshl_b32 s48, s40, 7'); A.i(f's_add_u32 s48, s48, {FL_T2S}')
    A.i('s_branch P_end')
    A.label('P_lnf')
    A.i('s_mov_b32 s55, s40')
    A.i('s_lshl_b32 s48, s40, 7'); A.i(f's_add_u32 s48, s48, {FL_T2S}')
    A.i('s_lshl_b32 s40, s40, 1'); A.i('s_add_u32 s40, s40, s41')
    A.i(f's_mov_b32 s27, {WS_X1}')
    small.role_ln(A, lambda: None, 's27', 3, 4, WS_H2, sc=' sc1', ssrd=8, dep=lambda: wait_dep(A, 48, 10, 2))
    fetch()
    A.i('s_waitcnt vmcnt(0)')
    A.i('s_lshl_b32 s48, s55, 7'); A.i(f's_add_u32 s48, s48, {FL_LNS - 48*128}')
    A.i('s_branch P_end')
    A.label('P_wf')
    A.i('s_mov_b32 s40, s41')
    small.role_wfrag(A, ' sc1')
    fetch(); A.i('s_waitcnt vmcnt(0)')
    A.i(f's_mov_b32 s48, {FL_WF}')
    A.i('s_branch P_end')
    def wf_ready():
        lab = A.new('wfok')
        A.i('s_cmp_eq_u32 s54, 1'); A.i(f's_cbranch_scc1 {lab}')
        A.i(f's_mov_b32 s48, {FL_WF}'); wait_dep(A, 48, 256, 8); A.i('s_mov_b32 s54, 1')
        A.label(lab)
    A.label('P_f1f')
    wf_ready()
    A.i('s_lshl_b32 s55, s40, 7'); A.i(f's_add_u32 s55, s55, {FL_LNS - 48*128}')
    fast.task_f1f(A, fetch, lambda: wait_dep(A, 55, 2, 2))
    A.i('s_lshl_b32 s48, s40, 7'); A.i(f's_add_u32 s48, s48, {FL_F1S - 48*128}')
    A.i('s_branch P_end')
    A.label('P_f2f')
    wf_ready()
    A.i('s_lshl_b32 s55, s40, 7'); A.i(f's_add_u32 s55, s55, {FL_F1S - 48*128}')
    fast.task_f2f(A, SRD_OUT, fetch, lambda: wait_dep(A, 55, 24, 2))
    A.i('s_mov_b32 s48, -1')
    A.label('P_end')
    publish()
    A.i('s_barrier')
    lab = A.new('P_nosig')
    A.i('s_cmp_eq_u32 s48, -1'); A.i(f's_cbranch_scc1 {lab}')
    signal_add(A, 48)
    A.label(lab)
    log_end(4*QLEN)
    A.i('s_branch P_loop')
    A.L.append('.p2align 2')
    A.L.append('.type P_table,@object')
    A.label('P_table')
    for i in range(0, NPOST, 16):
        A.L.append('.long ' + ','.join(str(x) for x in POST_T[i:i+16]))
    A.L.append(f'.size P_table, {4*NPOST}')

NSPLIT = 256
QLEN = NSPLIT + (16 - NSPLIT//16)*8
def gen_startup(A):
    A.i('s_getreg_b32 s58, hwreg(HW_REG_XCC_ID)'); A.i('s_and_b32 s58, s58, 7'); A.i('s_cmp_lt_u32 s58, 4'); A.i('s_cbranch_scc0 U_boot')
    b_tasks(A, None, 'W')
    A.label('U_more')
    ws_take(A, BT_SQ, 84)
    A.i('s_cmp_lt_u32 s84, 97'); A.i('s_cbranch_scc0 U_ln')
    A.i('s_mov_b32 s82, 0'); A.i('s_branch U_do')
    A.label('U_boot')
    boot_wait(A, 22)
    ws_take(A, BT_SQ, 84)
    A.i('s_mov_b32 s82, 1')
    A.label('U_do')
    A.i('s_cmp_lt_u32 s84, 60'); A.i('s_cbranch_scc0 U_a')
    A.i('s_mov_b32 s40, s84'); small.role_mod(A, True, inmain=True); A.i('s_branch U_more')
    A.label('U_a')
    A.i('s_cmp_lt_u32 s84, 64'); A.i('s_cbranch_scc0 U_b')
    A.i('s_sub_u32 s40, s84, 60'); small.role_zero(A); A.i('s_branch U_init')
    A.label('U_b')
    A.i('s_cmp_lt_u32 s84, 96'); A.i('s_cbranch_scc0 U_c')
    A.i('s_sub_u32 s40, s84, 64'); small.role_fill(A, 32); A.i('s_branch U_init')
    A.label('U_c')
    A.i('s_cmp_eq_u32 s84, 96'); A.i('s_cbranch_scc0 U_bt')
    small.role_mem0(A)
    A.label('U_init')
    A.i('s_barrier'); ws_add(A, BT_INIT, 22)
    A.label('U_bt')
    A.i('s_cmp_eq_u32 s82, 1'); A.i('s_cbranch_scc0 U_more')
    b_tasks(A, KN.get('wB', 1), 'X')
    A.i('s_branch U_more')
    A.label('U_ln')
    ws_take(A, BT_LQ, 84)
    A.i('s_cmp_lt_u32 s84, 128'); A.i('s_cbranch_scc0 U_done')
    A.i('s_mov_b32 s40, s84')
    def su():
        A.i(f's_load_dwordx2 s[6:7], s[0:1], {KA["x"]}'); A.i('s_waitcnt lgkmcnt(0)'); srd(A, 36, 6, 2048*1280)
    small.role_ln(A, su, '0', 0, 1, WS_H, sc=' sc1', ssrd=36, wait_mod='main')
    A.i('s_barrier')
    lab = A.new('U_sig')
    A.i('s_cmp_eq_u32 s16, 0'); A.i(f's_cbranch_scc0 {lab}')
    A.i('s_lshr_b32 s23, s40, 3'); A.i('s_lshl_b32 s23, s23, 7'); A.i(f's_add_u32 s23, s23, {BT_LN}')
    A.i('s_mov_b64 exec, 1'); A.i('v_mov_b32 v22, 1'); A.i('v_mov_b32 v23, s23')
    A.i('buffer_atomic_add v22, v23, s[8:11], 0 offen'); A.i('s_mov_b64 exec, -1')
    A.label(lab)
    A.i('s_branch U_ln')
    A.label('U_done')
    ts_stamp(A, 1, 22)
    ws_wait(A, BT_INIT, N_INIT, 22)
    ts_stamp(A, 3, 22)
    A.i('s_mov_b32 s96, -1')

def ln_ready(A):
    if not KN['unified']: return
    lab, l0, l1 = A.new('lnr'), A.new('lnr'), A.new('lnr')
    A.i('s_cmp_eq_u32 s40, s96'); A.i(f's_cbranch_scc1 {lab}')
    A.i('s_cmp_eq_u32 s16, 0'); A.i(f's_cbranch_scc0 {l1}')
    A.i('s_lshl_b32 s25, s40, 7'); A.i(f's_add_u32 s25, s25, {BT_LN}'); A.i('v_mov_b32 v22, s25'); A.i('s_mov_b32 s22, 0')
    A.label(l0)
    A.i('buffer_load_dword v23, v22, s[8:11], 0 offen sc1')
    A.i('s_add_u32 s22, s22, 1'); A.i(f's_cmp_gt_u32 s22, {SPIN_MAX//4}'); A.i(f's_cbranch_scc1 {l1}')
    A.i('s_waitcnt vmcnt(0)'); A.i('v_readfirstlane_b32 s23, v23'); A.i('s_nop 3')
    A.i('s_cmp_ge_u32 s23, 8'); A.i(f's_cbranch_scc1 {l1}'); A.i('s_sleep 3'); A.i(f's_branch {l0}')
    A.label(l1)
    A.i('s_barrier')
    A.i('s_mov_b32 s96, s40')
    A.label(lab)

def gen_worker(A):
    gemm.set_ring(W_NSLOT)
    A.label('W_role')
    if KN['unified']: gen_startup(A)
    if KN['post'] and KN.get('spareA', True):
        A.i('s_getreg_b32 s58, hwreg(HW_REG_XCC_ID)'); A.i('s_and_b32 s58, s58, 7')
        if KN.get('farA'):
            A.i('s_cmp_ge_u32 s58, 4'); A.i('s_cbranch_scc0 W_pre'); A.i('s_cmp_lt_u32 s81, 4'); A.i('s_cbranch_scc0 W_pre')
        else:
            A.i('s_cmp_lt_u32 s58, 4'); A.i('s_cbranch_scc0 W_pre')
        A.label('W_serveA')
        lab = A.new('W_reg')
        A.i('s_cmp_eq_u32 s16, 0'); A.i(f's_cbranch_scc0 {lab}')
        A.i('s_mov_b64 exec, 1'); A.i('v_mov_b32 v22, 1'); A.i('v_mov_b32 v23, 104')
        A.i('buffer_atomic_add v22, v23, s[12:15], 0 offen'); A.i('s_waitcnt vmcnt(0)'); A.i('s_mov_b64 exec, -1')
        A.label(lab)
        A.i('s_mov_b32 s58, 4')
        A.i('s_getpc_b64 s[92:93]')
        A.label('W_pc')
        A.i('s_add_u32 s92, s92, P_phase-W_pc'); A.i('s_addc_u32 s93, s93, 0'); A.i('s_setpc_b64 s[92:93]')
        A.label('W_pre')
    if KN.get('nospare'):
        A.i('s_getreg_b32 s58, hwreg(HW_REG_XCC_ID)'); A.i('s_and_b32 s58, s58, 15'); A.i('s_cmp_lt_u32 s58, 4'); A.i('s_cbranch_scc0 W_go0')
        A.i('s_endpgm')
        A.label('W_go0')
    for reg, key, nb in ((SRD_WQ, 'wq', 640*12288), (SRD_WK, 'wk', 640*12288), (SRD_WV, 'wv', 640*12288), (SRD_WO, 'wo', 6144*1280)):
        A.i(f's_load_dwordx2 s[6:7], s[0:1], {KA[key]}'); A.i('s_waitcnt lgkmcnt(0)'); srd(A, reg, 6, nb)
    A.i(f's_load_dwordx2 s[6:7], s[0:1], {KA["dbg"]}'); A.i('s_waitcnt lgkmcnt(0)'); srd(A, 12, 6, 256)
    setup_lane(A); setup_dma192(A, 12288); setup_dma160(A, 1280)
    A.i('s_getreg_b32 s58, hwreg(HW_REG_XCC_ID)'); A.i('s_and_b32 s58, s58, 3')
    A.i('s_mov_b32 s59, 0')
    def fetch():
        lab = A.new('W_f')
        A.i('s_cmp_eq_u32 s16, 0'); A.i(f's_cbranch_scc0 {lab}')
        A.i('s_lshl_b32 s23, s58, 2'); A.i(f's_add_u32 s23, s23, {Q_WORD}')
        A.i('s_mov_b64 exec, 1'); A.i(f'v_mov_b32 v{vNEXT}, 1'); A.i('v_mov_b32 v22, s23')
        A.i(f'buffer_atomic_add v{vNEXT}, v22, s[12:15], 0 offen sc0')
        A.i('s_mov_b64 exec, -1')
        A.label(lab)
    def publish():
        lab = A.new('W_p')
        A.i('s_cmp_eq_u32 s16, 0'); A.i(f's_cbranch_scc0 {lab}')
        A.i('s_mov_b64 exec, 1'); A.i(f'v_mov_b32 v22, {LDS_BC}'); A.i(f'ds_write_b32 v22, v{vNEXT}'); A.i('s_waitcnt lgkmcnt(0)')
        A.i('s_mov_b64 exec, -1')
        A.label(lab)
    A.label('W_refetch')
    fetch(); A.i('s_waitcnt vmcnt(0)'); publish()
    A.i('s_barrier')
    A.label('W_loop')
    A.i(f'v_mov_b32 v22, {LDS_BC}'); A.i('ds_read_b32 v23, v22'); A.i('s_waitcnt lgkmcnt(0)'); A.i('v_readfirstlane_b32 s60, v23'); A.i('s_nop 3')
    A.i('s_barrier')
    A.i(f's_cmp_ge_u32 s60, {QLEN}'); A.i('s_cbranch_scc0 W_have')
    A.i('s_add_u32 s59, s59, 1'); A.i('s_cmp_ge_u32 s59, 4'); A.i('s_cbranch_scc1 W_done')
    A.i('s_add_u32 s58, s58, 1'); A.i('s_and_b32 s58, s58, 3'); A.i('s_branch W_refetch')
    A.label('W_have')
    A.i('s_mov_b32 s61, s58')
    if KN['log']: A.i('s_memrealtime s[62:63]'); A.i('s_waitcnt lgkmcnt(0)')
    if NSPLIT < 256: A.i(f's_cmp_lt_u32 s60, {NSPLIT}'); A.i('s_cbranch_scc0 W_head')
    A.i('s_and_b32 s40, s60, 1'); A.i('s_lshr_b32 s23, s60, 5'); A.i('s_lshl_b32 s23, s23, 1'); A.i('s_add_u32 s40, s40, s23')
    A.i('s_lshr_b32 s41, s60, 2'); A.i('s_and_b32 s41, s41, 7'); A.i('s_lshl_b32 s23, s61, 3'); A.i('s_add_u32 s41, s41, s23')
    ln_ready(A)
    A.i('s_bitcmp1_b32 s60, 1'); A.i('s_cbranch_scc1 W_kq')
    task_vvo2(A, fetch)
    A.i('s_mov_b32 s49, -1')
    A.i('s_branch W_end')
    A.label('W_kq')
    task_kq2(A, fetch)
    A.i('s_mov_b32 s49, s48'); A.i('s_mov_b32 s48, -1')
    if NSPLIT < 256:
        A.i('s_branch W_end')
        A.label('W_head')
        A.i(f's_sub_u32 s23, s60, {NSPLIT}')
        A.i('s_lshr_b32 s40, s23, 5'); A.i('s_lshl_b32 s40, s40, 2'); A.i('s_and_b32 s24, s23, 3'); A.i('s_add_u32 s40, s40, s24'); A.i(f's_add_u32 s40, s40, {NSPLIT//16}')
        A.i('s_lshr_b32 s41, s23, 2'); A.i('s_and_b32 s41, s41, 7')
        A.i('s_lshl_b32 s23, s61, 3'); A.i('s_add_u32 s41, s41, s23')
        task_head(A, fetch)
    A.label('W_end')
    if TS['on']:
        lab = A.new('ts1'); A.i('s_cmp_lt_u32 s60, 32'); A.i(f's_cbranch_scc0 {lab}'); ts_stamp(A, 9, 22); A.label(lab)
    publish()
    A.i('s_barrier')
    for r in (48, 49):
        lab = A.new('W_nosig')
        A.i(f's_cmp_eq_u32 s{r}, -1'); A.i(f's_cbranch_scc1 {lab}')
        signal_add(A, r)
        A.label(lab)
    def log_end(base, mulq=False):
        if not KN['log']: return
        A.i('s_memrealtime s[64:65]'); A.i('s_waitcnt lgkmcnt(0)')
        A.i('s_getreg_b32 s66, hwreg(HW_REG_XCC_ID)')
        A.i('s_lshl_b32 s66, s66, 16'); A.i('s_lshl_b32 s23, s40, 8'); A.i('s_or_b32 s66, s66, s23'); A.i('s_or_b32 s66, s66, s41')
        A.i('v_mov_b32 v24, s62'); A.i('v_mov_b32 v25, s64'); A.i('v_mov_b32 v26, s66'); A.i('v_mov_b32 v27, s60'); A.i('v_mov_b32 v23, 0')
        if mulq: A.i(f's_mul_i32 s23, s61, {QLEN}'); A.i('s_add_u32 s23, s23, s60')
        else: A.i(f's_add_u32 s23, s60, {base}')
        A.i('s_lshl_b32 s23, s23, 4'); A.i(f's_add_u32 s23, s23, {WS_LOG + 0x30000}')
        A.i('s_mov_b64 exec, 1'); A.i('buffer_store_dwordx4 v[24:27], v23, s[8:11], s23 offen'); A.i('s_mov_b64 exec, -1')
    log_end(0, True)
    A.i('s_branch W_loop')
    A.label('W_done')
    if KN['post'] and KN.get('spareA', True):
        lab = A.new('W_cnt')
        A.i('s_cmp_eq_u32 s16, 0'); A.i(f's_cbranch_scc0 {lab}')
        A.i('v_mov_b32 v22, 104'); A.i('buffer_load_dword v23, v22, s[12:15], 0 offen sc1'); A.i('s_waitcnt vmcnt(0)')
        A.i(f'v_mov_b32 v22, {LDS_BC + 16}'); A.i('ds_write_b32 v22, v23'); A.i('s_waitcnt lgkmcnt(0)')
        A.label(lab)
        A.i('s_barrier')
        A.i(f'v_mov_b32 v22, {LDS_BC + 16}'); A.i('ds_read_b32 v23, v22'); A.i('s_waitcnt lgkmcnt(0)')
        A.i('v_readfirstlane_b32 s23, v23'); A.i('s_nop 3'); A.i('s_cmp_lt_u32 s23, 4'); A.i('s_cbranch_scc0 W_toB')
        A.i('s_getpc_b64 s[92:93]')
        A.label('W_pc2')
        A.i('s_sub_u32 s92, s92, W_pc2-W_serveA'); A.i('s_subb_u32 s93, s93, 0'); A.i('s_setpc_b64 s[92:93]')
        A.label('W_toB')
    A.i('s_mov_b32 s58, 5')
    if KN['post']: gen_post(A, fetch, publish, log_end)
    else: A.i('s_waitcnt vmcnt(0)'); A.i('s_endpgm')
    gemm.set_ring(4)
```

```python
from common import *
from rec import Em, LG
from gemm import *

def unpack(A, lo, hi, src):
    A.i(f'v_lshlrev_b32 v{lo}, 16, v{src}'); A.i(f'v_and_b32 v{hi}, 0xffff0000, v{src}')

def residual_addr(A, col0_sgpr, row_sgpr, mod_idx):
    A.i('v_and_b32 v22, 63, v0'); A.i('v_and_b32 v23, 31, v22'); A.i(f'v_add_u32 v23, s{row_sgpr}, v23'); A.i('v_mul_u32_u24 v23, 1280, v23')
    A.i('v_lshrrev_b32 v24, 5, v22'); A.i('v_lshlrev_b32 v25, 3, v24'); A.i('v_add_u32 v23, v23, v25')
    A.i(f's_lshl_b32 s23, s{col0_sgpr}, 1'); A.i('v_add_u32 v23, s23, v23')
    A.i('v_lshlrev_b32 v24, 4, v24'); A.i(f's_lshl_b32 s23, s{col0_sgpr}, 2'); A.i('v_add_u32 v24, s23, v24')
    A.i(f's_mov_b32 s24, {WS_MOD + mod_idx*2560}')

def residual_loads(A, vm, nt, res_srd, res_soff, T, res_sc):
    for ti in range(nt):
        for q in range(4):
            vm.issue(f'buffer_load_dwordx4 {vr(T+16*ti+4*q)}, v24, s[8:11], s24 offen offset:{ti*128 + q*32}', 'g')
            r = T + 16*nt + 8*ti + 2*q
            vm.issue(f'buffer_load_dwordx2 v[{r}:{r+1}], v23, s[{res_srd}:{res_srd+3}], {res_soff} offen offset:{ti*64 + q*16}{res_sc}', 'g')

def residual_epilogue(A, vm, tiles, col0_sgpr, mod_idx, res_srd, res_soff, dst_srd, dst_soff, row_sgpr, T=0, res_sc='', dst_sc='', preloaded=False):
    nt = len(tiles)
    if not preloaded:
        residual_addr(A, col0_sgpr, row_sgpr, mod_idx)
        residual_loads(A, vm, nt, res_srd, res_soff, T, res_sc)
    vm.wait('g')
    for ti, D in enumerate(tiles):
        G, R = T + 16*ti, T + 16*nt + 8*ti
        for q in range(4):
            d = D + 4*q
            for h2 in range(2):
                a, b = d + 2*h2, d + 2*h2 + 1
                A.i(f'v_cvt_pk_bf16_f32 v26, v{a}, v{b}'); unpack(A, a, b, 26)
                A.i(f'v_mul_f32 v{a}, v{a}, v{G+4*q+2*h2}'); A.i(f'v_mul_f32 v{b}, v{b}, v{G+4*q+2*h2+1}')
                A.i(f'v_cvt_pk_bf16_f32 v26, v{a}, v{b}'); unpack(A, a, b, 26)
                unpack(A, 27, 28, R+2*q+h2)
                A.i(f'v_add_f32 v{a}, v{a}, v27'); A.i(f'v_add_f32 v{b}, v{b}, v28')
                A.i(f'v_cvt_pk_bf16_f32 v{R+2*q+h2}, v{a}, v{b}')
            vm.issue(f'buffer_store_dwordx2 v[{R+2*q}:{R+2*q+1}], v23, s[{dst_srd}:{dst_srd+3}], {dst_soff} offen offset:{ti*64 + q*16}{dst_sc}')

def task_t2(A, sc='', xsrd=None, tail=None):
    ACC, AF, BF, NPF = 32, 64, 48, 12
    vm = VM(A)
    A.i('v_and_b32 v22, 63, v0'); A.i('v_lshlrev_b32 v1, 4, v22')
    A.i(f's_mul_i32 s42, s40, {32*2560}'); A.i('s_mul_i32 s23, s16, 20480'); A.i('s_add_u32 s42, s42, s23'); A.i(f's_add_u32 s42, s42, {WS_PTOK}')
    for j in range(5):
        A.i(f's_add_u32 m0, s23, {j*4096}'); A.i('s_nop 0')
        for q in range(4): vm.issue(f'buffer_load_dwordx4 v1, s[8:11], s42 offen offset:{q*1024}{sc} lds', 'p')
        A.i('s_add_u32 s42, s42, 4096')
    A.i('v_and_b32 v23, 31, v22'); A.i('v_lshrrev_b32 v24, 3, v23'); A.i('v_and_b32 v23, 7, v23'); A.i('v_lshlrev_b32 v23, 4, v23')
    A.i('v_lshrrev_b32 v25, 5, v22'); A.i('v_lshlrev_b32 v26, 8, v25'); A.i('v_add_u32 v23, v23, v26')
    A.i('v_lshlrev_b32 v26, 14, v24'); A.i('v_add_u32 v2, v23, v26')
    A.i('v_lshlrev_b32 v26, 12, v24'); A.i('v_add_u32 v3, v23, v26')
    A.i('s_lshl_b32 s43, s41, 4'); A.i('s_lshl_b32 s23, s16, 2'); A.i('s_add_u32 s43, s43, s23')
    A.i('s_mul_i32 s44, s40, 80'); A.i('s_add_u32 s44, s44, s43')
    A.i('s_lshl_b32 s45, s44, 12'); A.i(f's_add_u32 s45, s45, {WS_VOM}')
    A.i('s_lshl_b32 s44, s44, 14'); A.i(f's_add_u32 s44, s44, {WS_VOT}')
    import rec
    if rec.KN.get('t2fake'): A.i('s_lshl_b32 s44, s43, 14'); A.i(f's_add_u32 s44, s44, {WS_VOT}')
    A.i('v_mul_u32_u24 v26, 2560, v25'); A.i('v_and_b32 v27, 31, v22'); A.i('v_lshlrev_b32 v27, 4, v27'); A.i('v_add3_u32 v4, v26, v27, 0')
    A.i('v_add_u32 v4, 2048, v4')
    ks = []
    for h in range(32):
        for k in range(2): ks.append(('t', h, k))
    for v in range(16): ks.append(('m', v, 0))
    cur = {'p': 0}
    def a_issue(j):
        kind, x, k = ks[j]; r = AF + 4*(j % NPF)
        if kind == 't':
            p = x >> 1
            if p != cur['p'] and p % 4 == 0: A.i('s_add_u32 s44, s44, 4096')
            cur['p'] = p
            vm.issue(f'buffer_load_dwordx4 {vr(r)}, v2, s[8:11], s44 offen offset:{(p%4)*1024 + k*512 + (x&1)*128}{sc}', f'a{j}')
        else:
            vm.issue(f'buffer_load_dwordx4 {vr(r)}, v3, s[8:11], s45 offen offset:{(x>>2)*1024 + (x&1)*512 + ((x>>1)&1)*128}{sc}', f'a{j}')
    lg = LG(A)
    def b_issue(j):
        kind, x, k = ks[j]; r = BF + 4*(j % 4)
        if kind == 't': lg.issue(f'ds_read_b128 {vr(r)}, v1 offset:{x*2560 + k*1024}' if x*2560 + k*1024 < 65536 else f'ds_read_b128 {vr(r)}, v5 offset:{x*2560 + k*1024 - 40960}', f'b{j}')
        else: lg.issue(f'ds_read_b128 {vr(r)}, v4 offset:{2*x*2560}' if 2*x*2560 < 60000 else f'ds_read_b128 {vr(r)}, v6 offset:{2*x*2560 - 40960}', f'b{j}')
    A.i('v_add_u32 v5, 40960, v1'); A.i('v_add_u32 v6, 40960, v4')
    for j in range(NPF): a_issue(j)
    vm.wait('p'); A.i('s_barrier')
    for j in range(3): b_issue(j)
    for j in range(80):
        vm.wait(f'a{j}'); lg.wait(f'b{j}')
        c = '0' if j == 0 else vr(ACC, 16)
        A.i(f'{MF} {vr(ACC,16)}, {vr(AF+4*(j%NPF))}, {vr(BF+4*(j%4))}, {c}')
        if j + NPF < 80: a_issue(j + NPF)
        if j + 3 < 80: b_issue(j + 3)
    A.i('s_nop 7'); A.i('s_nop 7')
    if tail: tail()
    if xsrd is None:
        A.i(f's_load_dwordx2 s[6:7], s[0:1], {KA["x"]}'); A.i('s_waitcnt lgkmcnt(0)'); srd(A, 12, 6, 2048*1280); xsrd = 12
    A.i('s_lshl_b32 s46, s43, 3')
    A.i('s_lshl_b32 s47, s40, 5')
    A.i(f's_mov_b32 s49, {WS_X1}')
    residual_epilogue(A, vm, [ACC], 46, 2, xsrd, '0', 8, 's49', 47, T=64, dst_sc=sc)
    vm.wait_all()

def gen_t2(name='t2_kernel'):
    A = Em()
    kernel_prolog(A, name, 320)
    A.i('s_nop 3')
    A.i('s_mul_i32 s40, s2, 0x3334'); A.i('s_lshr_b32 s40, s40, 16'); A.i('s_mul_i32 s23, s40, 5'); A.i('s_sub_u32 s41, s2, s23')
    task_t2(A)
    A.label(f'{name}_exit')
    A.i('s_endpgm')
    return A.text(), kernel_desc(name, 128, 128)

def task_ffn1(A, sc='', srds=None, tail=None):
    ACT, FR, ACCG, ACCU = 0, 160, 32, 128
    if srds is None:
        A.i(f's_load_dwordx2 s[6:7], s[0:1], {KA["wg"]}'); A.i(f's_load_dwordx2 s[18:19], s[0:1], {KA["wu"]}')
        A.i('s_waitcnt lgkmcnt(0)')
        srd(A, 12, 6, 640*3072); srd(A, 28, 18, 640*3072); srds = (12, 28)
    setup_dma192(A, 3072)
    A.i('s_mul_i32 s42, s41, 384'); A.i('s_mov_b32 s46, s42')
    A.i('s_lshl_b32 s43, s40, 2'); A.i('s_add_u32 s43, s43, s16')
    A.i(f's_mul_i32 s44, s43, {40*1024}'); A.i(f's_add_u32 s44, s44, {WS_H2}')
    vm = VM(A)
    stages = [Stage(192, srds[0], 42, 64*3072) for _ in range(10)] + [Stage(192, srds[1], 46, 64*3072) for _ in range(10)]
    e = Engine(A, vm, stages, FR)
    e.prologue_parts = act_parts(A, vm, ACT, 40, 44, sc)
    steps = pass192_steps(0, ACCG, ACT, vm, True) + pass192_steps(10, ACCU, ACT, vm, False)
    e.run(steps)
    if tail: tail()
    A.i('s_nop 7'); A.i('s_nop 7')
    A.i(f's_mul_i32 s45, s43, {96*1024}'); A.i(f's_mul_i32 s23, s41, {12*1024}'); A.i('s_add_u32 s45, s45, s23'); A.i(f's_add_u32 s45, s45, {WS_HM}')
    for t in range(6):
        for a in range(2):
            o = 24 if a == 0 else 28
            for r in range(4):
                g = ACCG + 16*t + 8*a + 2*r; u = ACCU + 16*t + 8*a + 2*r
                A.i(f'v_cvt_pk_bf16_f32 v22, v{g}, v{g+1}'); unpack(A, g, g+1, 22)
                A.i(f'v_cvt_pk_bf16_f32 v22, v{u}, v{u+1}'); unpack(A, u, u+1, 22)
                A.i(f'v_mul_f32 v{g}, v{g}, v{u}'); A.i(f'v_mul_f32 v{g+1}, v{g+1}, v{u+1}')
                A.i(f'v_cvt_pk_bf16_f32 v{o+r}, v{g}, v{g+1}')
            ks = 2*t + a
            if ks and ks % 4 == 0: A.i('s_add_u32 s45, s45, 4096')
            vm.issue(f'buffer_store_dwordx4 {vr(o)}, v{vL16}, s[8:11], s45 offen offset:{(ks%4)*1024}{sc}')
    vm.wait_all()

def task_ffn2(A, sc='', srds=None, tail=None):
    FR, ACC, AF, NPF = 160, 32, 0, 16
    if srds is None:
        A.i(f's_load_dwordx2 s[18:19], s[0:1], {KA["wd"]}'); A.i(f's_load_dwordx2 s[6:7], s[0:1], {KA["out"]}')
        A.i('s_waitcnt lgkmcnt(0)')
        srd(A, 28, 18, 1536*1280); srd(A, 12, 6, 2048*1280); srds = (28, 12)
    setup_dma160(A, 1280)
    A.i('s_mul_i32 s46, s41, 320')
    A.i('s_lshl_b32 s43, s40, 2'); A.i('s_add_u32 s43, s43, s16')
    A.i(f's_mul_i32 s44, s43, {96*1024}'); A.i(f's_add_u32 s44, s44, {WS_HM}')
    vm = VM(A)
    stages = [Stage(160, srds[0], 46, 64*1280) for _ in range(24)]
    e = Engine(A, vm, stages, FR)
    def act_issue(ks):
        if ks >= 96: return
        if ks and ks % 4 == 0: A.i('s_add_u32 s44, s44, 4096')
        r = AF + 4*(ks % NPF)
        vm.issue(f'buffer_load_dwordx4 a[{r}:{r+3}], v{vL16}, s[8:11], s44 offen offset:{(ks%4)*1024}{sc}', f'act{ks}')
    e.prologue_hook = lambda: [act_issue(k) for k in range(NPF)]
    steps = []
    for ks in range(96):
        def mf(t, fr, ks=ks):
            c = '0' if ks == 0 else vr(ACC+16*t, 16)
            r = AF + 4*(ks % NPF)
            return f'{MF} {vr(ACC+16*t,16)}, {fr}, a[{r}:{r+3}], {c}'
        steps.append(dict(stage=ks//4, ksl=ks % 4, nt=5, mfma=mf, pre=(lambda ks=ks: vm.wait(f'act{ks}')), post=(lambda ks=ks: act_issue(ks+NPF))))
    def early():
        A.i('s_mul_i32 s46, s41, 160'); A.i('s_lshl_b32 s47, s43, 5'); A.i(f's_mov_b32 s49, {WS_X1}')
        residual_addr(A, 46, 47, 5)
        residual_loads(A, vm, 5, 8, 's49', 128, sc)
    steps[90]['post'] = early
    e.run(steps)
    if tail: tail()
    A.i('s_nop 7'); A.i('s_nop 7')
    residual_epilogue(A, vm, [ACC+16*t for t in range(5)], 46, 5, 8, 's49', srds[1], '0', 47, T=128, res_sc=sc, preloaded=True)
    vm.wait_all()

def gen_ffn1(name='ffn1_kernel'):
    A = Em()
    kernel_prolog(A, name, 128)
    setup_lane(A)
    A.i('s_and_b32 s41, s2, 7'); A.i('s_lshr_b32 s40, s2, 3')
    task_ffn1(A)
    A.label(f'{name}_exit')
    A.i('s_endpgm')
    return A.text(), kernel_desc(name, 512, 256)

def gen_ffn2(name='ffn2_kernel'):
    A = Em()
    kernel_prolog(A, name, 64)
    setup_lane(A)
    A.i('s_and_b32 s41, s2, 3'); A.i('s_lshr_b32 s40, s2, 2')
    task_ffn2(A)
    A.label(f'{name}_exit')
    A.i('s_endpgm')
    return A.text(), kernel_desc(name, 512, 256)
```

```python
from common import *
from rec import Em, LG, SPIN_MAX, KN, ws_wait, ws_add, ws_take, boot_wait, b_tasks
import gemm, post, small, fast
from gemm import *

SRD_WQ, SRD_WK, SRD_WV, SRD_WO = 68, 72, 76, 80
W_NSLOT = 6
LDS_BC = W_NSLOT*SLOT
vNEXT = 5
Q_WORD = 128

def signal_add(A, off_sgpr):
    lab = A.new('sig')
    A.i('s_cmp_eq_u32 s16, 0'); A.i(f's_cbranch_scc0 {lab}')
    A.i('s_mov_b64 exec, 1'); A.i('v_mov_b32 v22, 1'); A.i('v_mov_b32 v23, 0')
    A.i(f'buffer_atomic_add v22, v23, s[8:11], s{off_sgpr} offen')
    A.i('s_mov_b64 exec, -1')
    A.label(lab)

def kq_store_tile(vm, D, t, soff, o, addr=21):
    ga, gb = o, o+4
    L = [f'v_cvt_pk_bf16_f32 v{ga}, v{D}, v{D+1}', f'v_cvt_pk_bf16_f32 v{ga+1}, v{D+2}, v{D+3}',
         f'v_cvt_pk_bf16_f32 v{ga+2}, v{D+8}, v{D+9}', f'v_cvt_pk_bf16_f32 v{ga+3}, v{D+10}, v{D+11}',
         f'v_cvt_pk_bf16_f32 v{gb}, v{D+4}, v{D+5}', f'v_cvt_pk_bf16_f32 v{gb+1}, v{D+6}, v{D+7}',
         f'v_cvt_pk_bf16_f32 v{gb+2}, v{D+12}, v{D+13}', f'v_cvt_pk_bf16_f32 v{gb+3}, v{D+14}, v{D+15}']
    if t == 4: L.append(f's_add_u32 s{soff}, s{soff}, 4096')
    L.append(lambda: vm.issue(f'buffer_store_dwordx4 {vr(ga)}, v{addr}, s[8:11], s{soff} offen offset:{(t%4)*1024} sc1'))
    L.append(lambda: vm.issue(f'buffer_store_dwordx4 {vr(gb)}, v{addr}, s[8:11], s{soff} offen offset:{(t%4)*1024+512} sc1'))
    return L

def task_kq2(A, tail):
    ACT, FR, ACCK, ACCQ, TMP = 0, 160, 32, 128, 224
    A.i('s_mul_i32 s42, s41, 384'); A.i('s_mov_b32 s46, s42')
    A.i('s_lshl_b32 s43, s40, 2'); A.i('s_add_u32 s43, s43, s16')
    A.i(f's_mul_i32 s44, s43, {40*1024}'); A.i(f's_add_u32 s44, s44, {WS_H}')
    A.i('v_and_b32 v22, 63, v0'); A.i('v_lshrrev_b32 v23, 4, v22'); A.i('v_and_b32 v23, 1, v23'); A.i('v_mul_u32_u24 v23, 6144, v23')
    A.i('v_lshrrev_b32 v24, 5, v22'); A.i('v_lshlrev_b32 v24, 4, v24'); A.i('v_and_b32 v25, 15, v22'); A.i('v_add_u32 v24, v24, v25')
    A.i('v_lshlrev_b32 v24, 4, v24'); A.i('v_add_u32 v21, v23, v24')
    A.i('s_lshl_b32 s45, s43, 5'); A.i('s_add_u32 s45, s45, s41'); A.i('s_mul_i32 s45, s45, 12288')
    A.i(f's_add_u32 s47, s45, {WS_QT}'); A.i(f's_add_u32 s45, s45, {WS_KT}')
    vm = VM(A)
    stages = [Stage(192, SRD_WK, 42, 64*12288) for _ in range(10)] + [Stage(192, SRD_WQ, 46, 64*12288) for _ in range(10)]
    e = Engine(A, vm, stages, FR)
    e.prologue_parts = act_parts(A, vm, ACT, 40, 44, ' sc1' if KN['unified'] else '')
    steps = pass192_steps(0, ACCK, ACT, vm, True) + pass192_steps(10, ACCQ, ACT, vm, False)
    def qk():
        for t in range(6): e.side.extend(kq_store_tile(vm, ACCK+16*t, t, 45, TMP + 8*(t & 1)))
    steps[42]['pre'] = qk
    e.run(steps)
    tail()
    e.flush_side()
    A.i('s_nop 7')
    for t in range(6): e.side.extend(kq_store_tile(vm, ACCQ+16*t, t, 47, TMP + 8*(t & 1)))
    e.flush_side()
    vm.wait_all()
    A.i('s_lshl_b32 s48, s40, 5'); A.i('s_add_u32 s48, s48, s41'); A.i('s_lshl_b32 s48, s48, 7'); A.i(f's_add_u32 s48, s48, {FL_KQ}')

def task_vvo2(A, tail):
    ACT, FR = 0, 160
    VACC, VOP, ACC0, ACC1, TMP = 32, 128, 32, 176, 112
    A.i('s_mul_i32 s42, s41, 384')
    A.i(f's_mul_i32 s46, s41, {192*1280}')
    A.i('s_lshl_b32 s43, s40, 2'); A.i('s_add_u32 s43, s43, s16')
    A.i(f's_mul_i32 s44, s43, {40*1024}'); A.i(f's_add_u32 s44, s44, {WS_H}')
    vm = VM(A)
    stages = [Stage(192, SRD_WV, 42, 64*12288) for _ in range(10)] + wo_stages(SRD_WO, 46)
    e = Engine(A, vm, stages, FR)
    e.prologue_parts = act_parts(A, vm, ACT, 40, 44, ' sc1' if KN['unified'] else '')
    steps = pass192_steps(0, VACC, ACT, vm, True)
    def conv():
        A.i('s_nop 7'); A.i('s_nop 7')
        for t in range(6):
            for a in range(2):
                for r in range(4):
                    s = VACC + 16*t + 8*a + 2*r
                    A.i(f'v_cvt_pk_bf16_f32 v{VOP + 4*(2*t+a) + r}, v{s}, v{s+1}')
        A.i('s_nop 1')
    steps[-1]['post'] = conv
    A.i('v_and_b32 v22, 63, v0'); A.i('v_and_b32 v23, 31, v22'); A.i('v_lshrrev_b32 v24, 3, v23'); A.i('v_lshlrev_b32 v24, 14, v24')
    A.i('v_lshrrev_b32 v25, 5, v22'); A.i('v_lshlrev_b32 v25, 8, v25'); A.i('v_and_b32 v23, 7, v23'); A.i('v_lshlrev_b32 v23, 4, v23')
    A.i('v_add3_u32 v21, v23, v24, v25')
    A.i(f's_mul_i32 s47, s43, {80*16384}'); A.i('s_lshr_b32 s23, s41, 1'); A.i('s_lshl_b32 s23, s23, 10'); A.i('s_add_u32 s47, s47, s23')
    A.i('s_and_b32 s23, s41, 1'); A.i('s_lshl_b32 s23, s23, 7'); A.i('s_add_u32 s47, s47, s23'); A.i(f's_add_u32 s47, s47, {WS_VOT}')
    def store_tile(cc, t, D):
        o = TMP + 8*(t & 1)
        L = []
        for q in range(4):
            L.append(f'v_cvt_pk_bf16_f32 v{o+2*q}, v{D+4*q}, v{D+4*q+1}')
            L.append(f'v_cvt_pk_bf16_f32 v{o+2*q+1}, v{D+4*q+2}, v{D+4*q+3}')
        L.append(f's_add_u32 s48, s47, {(cc*20 + t*4)*16384}')
        L.append('s_nop 0')
        for b in (0, 4):
            L.append(f'v_permlane32_swap_b32 v{o+b}, v{o+b+2}')
            L.append(f'v_permlane32_swap_b32 v{o+b+1}, v{o+b+3}')
        L.append(lambda: vm.issue(f'buffer_store_dwordx4 {vr(o)}, v21, s[8:11], s48 offen sc1'))
        L.append(lambda: vm.issue(f'buffer_store_dwordx4 {vr(o+4)}, v21, s[8:11], s48 offen offset:512 sc1'))
        return L
    steps += vo_pass(A, e, vm, 10, VOP, (ACC0, ACC1), store_tile)
    e.run(steps)
    tail()
    A.i('s_nop 7'); A.i('s_nop 7')
    for t in range(5):
        e.side.extend(store_tile(3, t, ACC1 + 16*t))
    e.flush_side()
    vm.wait_all()
    A.i('s_lshl_b32 s48, s40, 7'); A.i(f's_add_u32 s48, s48, {FL_VVO}')

def task_head(A, tail):
    ACT, FR = 0, 160
    VACC, VOP, ACC0, ACC1, TMP = 32, 128, 32, 176, 112
    ACCK, ACCQ, TMPK = 32, 128, 224
    A.i('s_mul_i32 s42, s41, 384'); A.i('s_mov_b32 s49, s42'); A.i('s_mov_b32 s50, s42')
    A.i(f's_mul_i32 s46, s41, {192*1280}')
    A.i('s_lshl_b32 s43, s40, 2'); A.i('s_add_u32 s43, s43, s16')
    A.i(f's_mul_i32 s44, s43, {40*1024}'); A.i(f's_add_u32 s44, s44, {WS_H}')
    vm = VM(A)
    stages = ([Stage(192, SRD_WV, 42, 64*12288) for _ in range(10)] + wo_stages(SRD_WO, 46) +
              [Stage(192, SRD_WK, 49, 64*12288) for _ in range(10)] + [Stage(192, SRD_WQ, 50, 64*12288) for _ in range(10)])
    e = Engine(A, vm, stages, FR)
    e.prologue_parts = act_parts(A, vm, ACT, 40, 44, ' sc1' if KN['unified'] else '')
    steps = pass192_steps(0, VACC, ACT, vm, True)
    def conv():
        A.i('s_nop 7'); A.i('s_nop 7')
        for t in range(6):
            for a in range(2):
                for r in range(4):
                    s = VACC + 16*t + 8*a + 2*r
                    A.i(f'v_cvt_pk_bf16_f32 v{VOP + 4*(2*t+a) + r}, v{s}, v{s+1}')
        A.i('s_nop 1')
    steps[-1]['post'] = conv
    A.i('v_and_b32 v22, 63, v0'); A.i('v_and_b32 v23, 31, v22'); A.i('v_lshrrev_b32 v24, 3, v23'); A.i('v_lshlrev_b32 v24, 14, v24')
    A.i('v_lshrrev_b32 v25, 5, v22'); A.i('v_lshlrev_b32 v25, 8, v25'); A.i('v_and_b32 v23, 7, v23'); A.i('v_lshlrev_b32 v23, 4, v23')
    A.i('v_add3_u32 v21, v23, v24, v25')
    A.i('v_lshrrev_b32 v23, 4, v22'); A.i('v_and_b32 v23, 1, v23'); A.i('v_mul_u32_u24 v23, 6144, v23')
    A.i('v_lshrrev_b32 v24, 5, v22'); A.i('v_lshlrev_b32 v24, 4, v24'); A.i('v_and_b32 v25, 15, v22'); A.i('v_add_u32 v24, v24, v25')
    A.i('v_lshlrev_b32 v24, 4, v24'); A.i('v_add_u32 v30, v23, v24')
    A.i(f's_mul_i32 s47, s43, {80*16384}'); A.i('s_lshr_b32 s23, s41, 1'); A.i('s_lshl_b32 s23, s23, 10'); A.i('s_add_u32 s47, s47, s23')
    A.i('s_and_b32 s23, s41, 1'); A.i('s_lshl_b32 s23, s23, 7'); A.i('s_add_u32 s47, s47, s23'); A.i(f's_add_u32 s47, s47, {WS_VOT}')
    A.i('s_lshl_b32 s45, s43, 5'); A.i('s_add_u32 s45, s45, s41'); A.i('s_mul_i32 s45, s45, 12288')
    A.i(f's_add_u32 s51, s45, {WS_QT}'); A.i(f's_add_u32 s45, s45, {WS_KT}')
    def store_tile(cc, t, D, tmp=TMP):
        o = tmp + 8*(t & 1)
        L = []
        for q in range(4):
            L.append(f'v_cvt_pk_bf16_f32 v{o+2*q}, v{D+4*q}, v{D+4*q+1}')
            L.append(f'v_cvt_pk_bf16_f32 v{o+2*q+1}, v{D+4*q+2}, v{D+4*q+3}')
        L.append(f's_add_u32 s48, s47, {(cc*20 + t*4)*16384}')
        L.append('s_nop 0')
        for b in (0, 4):
            L.append(f'v_permlane32_swap_b32 v{o+b}, v{o+b+2}')
            L.append(f'v_permlane32_swap_b32 v{o+b+1}, v{o+b+3}')
        L.append(lambda: vm.issue(f'buffer_store_dwordx4 {vr(o)}, v21, s[8:11], s48 offen sc1'))
        L.append(lambda: vm.issue(f'buffer_store_dwordx4 {vr(o+4)}, v21, s[8:11], s48 offen offset:512 sc1'))
        return L
    steps += vo_pass(A, e, vm, 10, VOP, (ACC0, ACC1), store_tile)
    ks_ = pass192_steps(22, ACCK, ACT, vm, False)
    def last_vo():
        for t in range(5): e.side.extend(store_tile(3, t, ACC1 + 16*t, VOP))
    ks_[1]['pre'] = last_vo
    qs_ = pass192_steps(32, ACCQ, ACT, vm, False)
    def kq_tiles(acc, soff):
        for t in range(6):
            L = kq_store_tile(vm, acc+16*t, t, soff, TMPK + 8*(t & 1), addr=30)
            e.side.extend(L)
    qs_[0]['pre'] = lambda: e.flush_side()
    qs_[2]['pre'] = lambda: kq_tiles(ACCK, 45)
    steps += ks_ + qs_
    e.run(steps)
    tail()
    e.flush_side()
    A.i('s_nop 7')
    kq_tiles(ACCQ, 51)
    e.flush_side()
    vm.wait_all()
    A.i('s_lshl_b32 s48, s40, 7'); A.i(f's_add_u32 s48, s48, {FL_VVO}')
    A.i('s_lshl_b32 s49, s40, 5'); A.i('s_add_u32 s49, s49, s41'); A.i('s_lshl_b32 s49, s49, 7'); A.i(f's_add_u32 s49, s49, {FL_KQ}')

def wait_dep(A, off_sgpr, target, backoff=12):
    l0, l1 = A.new('dep'), A.new('dep')
    A.i('s_cmp_eq_u32 s16, 0'); A.i(f's_cbranch_scc0 {l1}')
    A.i('s_mov_b32 s22, 0'); A.i('v_mov_b32 v22, 0')
    A.label(l0)
    A.i(f'buffer_load_dword v23, v22, s[8:11], s{off_sgpr} offen sc1')
    A.i('s_add_u32 s22, s22, 1'); A.i(f's_cmp_gt_u32 s22, {SPIN_MAX//8}'); A.i(f's_cbranch_scc1 {l1}')
    A.i('s_waitcnt vmcnt(0)'); A.i('v_readfirstlane_b32 s23, v23'); A.i('s_nop 3')
    A.i(f's_cmp_ge_u32 s23, {target}'); A.i(f's_cbranch_scc1 {l1}')
    A.i(f's_sleep {backoff}'); A.i(f's_branch {l0}')
    A.label(l1)
    A.i('s_barrier')

def wait_words(A, off_sgpr, n, backoff=12, grouped=False):
    l0, l1 = A.new('dw'), A.new('dw')
    A.i('s_cmp_eq_u32 s16, 0'); A.i(f's_cbranch_scc0 {l1}')
    A.i('s_mov_b32 s22, 0')
    A.i('v_and_b32 v22, 63, v0'); A.i('v_min_u32 v24, %d, v22' % (min(n, 64)-1))
    if grouped:
        A.i('v_lshrrev_b32 v25, 3, v24'); A.i('v_lshlrev_b32 v25, 7, v25'); A.i('v_and_b32 v24, 7, v24'); A.i('v_lshlrev_b32 v24, 2, v24'); A.i('v_add_u32 v24, v24, v25')
    else: A.i('v_lshlrev_b32 v24, 2, v24')
    if n > 64:
        A.i('v_add_u32 v25, 64, v22'); A.i(f'v_min_u32 v25, {n-1}, v25'); A.i('v_lshlrev_b32 v25, 2, v25')
    A.label(l0)
    A.i(f'buffer_load_dword v23, v24, s[8:11], s{off_sgpr} offen sc1')
    if n > 64: A.i(f'buffer_load_dword v26, v25, s[8:11], s{off_sgpr} offen sc1')
    A.i('s_add_u32 s22, s22, 1'); A.i(f's_cmp_gt_u32 s22, {SPIN_MAX//8}'); A.i(f's_cbranch_scc1 {l1}')
    A.i('s_waitcnt vmcnt(0)')
    if n > 64: A.i('v_min_u32 v23, v23, v26')
    A.i('v_cmp_eq_u32 vcc, 0, v23'); A.i(f's_cbranch_vccz {l1}')
    A.i(f's_sleep {backoff}'); A.i(f's_branch {l0}')
    A.label(l1)
    A.i('s_barrier')

SRD_WG, SRD_WU, SRD_WD, SRD_X, SRD_OUT = 68, 72, 76, 80, 84
NENG = 13
KEYS = (-2, 0, 1.5, 3)
NWFA = 160
NBACK = 10
def post_table():
    TA, T = [], []
    for i in range(NWFA): TA.append((8 << 16) | i)
    for r in range(NENG):
        for i in range(20): TA.append((0 << 16) | (r << 8) | i)
    def e(ty, a, n):
        for i in range(n): T.append((ty << 16) | (a << 8) | i)
    for i in range(NWFA, 256): T.append((8 << 16) | i)
    ST = ((1, 4), (2, 8), (3, 4))
    for ty, n in ST:
        for r in range(NBACK): e(ty, r, n)
    for d in range(NBACK, NENG + 2):
        for back in (2, 1, 0):
            r = d - back
            if NBACK <= r < NENG: e(ST[back][0], r, ST[back][1])
    s0 = 4*NENG
    FS = ((4, 10), (5, 2), (6, 24), (7, 10))
    items = []
    for ty_i, (ty, n) in enumerate(FS):
        for r in range(s0, 64): items.append((r + KEYS[ty_i], -ty_i, ty, r, n))
    for _, _, ty, r, n in sorted(items): e(ty, r, n)
    global NPA
    NPA = len(TA)
    return TA + T
POST_T = post_table()
NPOST = len(POST_T)

def gen_post(A, fetch, publish, log_end):
    A.label('P_phase')
    for reg, key, nb in ((SRD_WG, 'wg', 640*3072), (SRD_WU, 'wu', 640*3072), (SRD_WD, 'wd', 1536*1280), (SRD_X, 'x', 2048*1280), (SRD_OUT, 'out', 2048*1280)):
        A.i(f's_load_dwordx2 s[6:7], s[0:1], {KA[key]}'); A.i('s_waitcnt lgkmcnt(0)'); srd(A, reg, 6, nb)
    A.i(f's_load_dwordx2 s[6:7], s[0:1], {KA["dbg"]}'); A.i('s_waitcnt lgkmcnt(0)'); srd(A, 12, 6, 256)
    A.i('s_mov_b32 s54, 0'); A.i('s_mov_b32 s95, -1')
    A.label('P_refetch')
    fetch(); A.i('s_waitcnt vmcnt(0)'); publish()
    A.i('s_barrier')
    A.label('P_loop')
    A.i(f'v_mov_b32 v22, {LDS_BC}'); A.i('ds_read_b32 v23, v22'); A.i('s_waitcnt lgkmcnt(0)'); A.i('v_readfirstlane_b32 s60, v23'); A.i('s_nop 3')
    A.i('s_barrier')
    A.i('s_cmp_eq_u32 s58, 4'); A.i('s_cbranch_scc0 P_qb')
    A.i(f's_cmp_ge_u32 s60, {NPA}'); A.i('s_cbranch_scc0 P_go')
    A.i('s_mov_b32 s58, 5'); A.i('s_branch P_refetch')
    A.label('P_qb')
    A.i(f's_add_u32 s60, s60, {NPA}')
    A.i(f's_cmp_ge_u32 s60, {NPOST}'); A.i('s_cbranch_scc0 P_go')
    ts_stamp(A, 5)
    A.i('s_waitcnt vmcnt(0)'); A.i('s_endpgm')
    A.label('P_go')
    A.i('s_getpc_b64 s[92:93]')
    A.label('P_pc')
    A.i('s_add_u32 s92, s92, P_table-P_pc'); A.i('s_addc_u32 s93, s93, 0')
    A.i('s_lshl_b32 s23, s60, 2'); A.i('s_load_dword s57, s[92:93], s23'); A.i('s_waitcnt lgkmcnt(0)')
    A.i('s_lshr_b32 s56, s57, 16'); A.i('s_lshr_b32 s40, s57, 8'); A.i('s_and_b32 s40, s40, 255'); A.i('s_and_b32 s41, s57, 255')
    if KN['log']: A.i('s_memrealtime s[62:63]'); A.i('s_waitcnt lgkmcnt(0)')
    for ty, lab in ((8, 'P_wf'), (7, 'P_f2f'), (6, 'P_f1f'), (5, 'P_lnf'), (4, 'P_t2f'), (3, 'P_f2'), (2, 'P_f1'), (1, 'P_ln')):
        A.i(f's_cmp_eq_u32 s56, {ty}'); A.i(f's_cbranch_scc1 {lab}')
    A.i('s_mul_i32 s24, s41, 13108'); A.i('s_lshr_b32 s24, s24, 16')
    A.i('s_mul_i32 s25, s24, 5'); A.i('s_sub_u32 s41, s41, s25')
    A.i('s_mov_b32 s55, s40'); A.i('s_lshl_b32 s40, s40, 2'); A.i('s_add_u32 s40, s40, s24')
    def wait_seg(bo=12, regs=(48, 49)):
        r0, r1 = regs
        l5, l6 = A.new('ws'), A.new('ws')
        A.i('s_cmp_ge_u32 s40, 62'); A.i(f's_cbranch_scc1 {l5}')
        A.i(f's_add_u32 s{r0}, s40, 1'); A.i(f's_lshl_b32 s{r0}, s{r0}, 9'); A.i(f's_add_u32 s{r0}, s{r0}, {FL_PT}')
        wait_words(A, r0, 32, bo, grouped=True)
        A.i(f's_branch {l6}')
        A.label(l5)
        A.i(f's_mov_b32 s{r0}, {FL_PT + 63*512}'); A.i(f's_mov_b32 s{r1}, {FL_VM}')
        wait_words(A, r0, 32, 2, grouped=True); wait_words(A, r1, 80, 2)
        A.label(l6)
    wait_seg(KN.get('boA', 40))
    post.task_t2(A, sc=' sc1', xsrd=SRD_X, tail=fetch)
    A.i('s_lshl_b32 s48, s55, 7'); A.i(f's_add_u32 s48, s48, {FL_T2}')
    A.i('s_branch P_end')
    A.label('P_ln')
    A.i('s_mov_b32 s55, s40')
    A.i('s_lshl_b32 s48, s40, 7'); A.i(f's_add_u32 s48, s48, {FL_T2}')
    wait_dep(A, 48, 20)
    A.i('s_lshl_b32 s40, s40, 2'); A.i('s_add_u32 s40, s40, s41'); A.i('s_lshl_b32 s40, s40, 1')
    A.i(f's_mov_b32 s27, {WS_X1}')
    for it in range(2):
        small.role_ln(A, lambda: None, 's27', 3, 4, WS_H2, sc=' sc1', ssrd=8)
        if it == 0: A.i('s_add_u32 s40, s40, 1')
    fetch()
    A.i('s_waitcnt vmcnt(0)')
    A.i('s_lshl_b32 s48, s55, 7'); A.i(f's_add_u32 s48, s48, {FL_LN}')
    A.i('s_branch P_end')
    A.label('P_f1')
    A.i('s_lshl_b32 s48, s40, 7'); A.i(f's_add_u32 s48, s48, {FL_LN}')
    wait_dep(A, 48, 4)
    setup_lane(A)
    post.task_ffn1(A, sc=' sc1', srds=(SRD_WG, SRD_WU), tail=fetch)
    A.i('s_lshl_b32 s48, s40, 7'); A.i(f's_add_u32 s48, s48, {FL_F1}')
    A.i('s_branch P_end')
    A.label('P_f2')
    A.i('s_lshl_b32 s48, s40, 7'); A.i(f's_add_u32 s48, s48, {FL_F1}')
    wait_dep(A, 48, 8)
    setup_lane(A)
    post.task_ffn2(A, sc=' sc1', srds=(SRD_WD, SRD_OUT), tail=fetch)
    A.i('s_mov_b32 s48, -1')
    A.i('s_branch P_end')
    A.label('P_t2f')
    lab = A.new('vvok')
    A.i('s_lshr_b32 s55, s40, 2'); A.i('s_cmp_eq_u32 s55, s95'); A.i(f's_cbranch_scc1 {lab}')
    A.i('s_lshl_b32 s48, s55, 7'); A.i(f's_add_u32 s48, s48, {FL_VVO}'); wait_dep(A, 48, 32, 4); A.i('s_mov_b32 s95, s55')
    A.label(lab)
    fast.task_t2f(A, SRD_X, fetch, lambda: wait_seg(KN.get('boF', 8), (52, 53)))
    A.i('s_lshl_b32 s48, s40, 7'); A.i(f's_add_u32 s48, s48, {FL_T2S}')
    A.i('s_branch P_end')
    A.label('P_lnf')
    A.i('s_mov_b32 s55, s40')
    A.i('s_lshl_b32 s48, s40, 7'); A.i(f's_add_u32 s48, s48, {FL_T2S}')
    A.i('s_lshl_b32 s40, s40, 1'); A.i('s_add_u32 s40, s40, s41')
    A.i(f's_mov_b32 s27, {WS_X1}')
    small.role_ln(A, lambda: None, 's27', 3, 4, WS_H2, sc=' sc1', ssrd=8, dep=lambda: wait_dep(A, 48, 10, 2))
    fetch()
    A.i('s_waitcnt vmcnt(0)')
    A.i('s_lshl_b32 s48, s55, 7'); A.i(f's_add_u32 s48, s48, {FL_LNS - 48*128}')
    A.i('s_branch P_end')
    A.label('P_wf')
    A.i('s_mov_b32 s40, s41')
    small.role_wfrag(A, ' sc1')
    fetch(); A.i('s_waitcnt vmcnt(0)')
    A.i(f's_mov_b32 s48, {FL_WF}')
    A.i('s_branch P_end')
    def wf_ready():
        lab = A.new('wfok')
        A.i('s_cmp_eq_u32 s54, 1'); A.i(f's_cbranch_scc1 {lab}')
        A.i(f's_mov_b32 s48, {FL_WF}'); wait_dep(A, 48, 256, 8); A.i('s_mov_b32 s54, 1')
        A.label(lab)
    A.label('P_f1f')
    wf_ready()
    A.i('s_lshl_b32 s55, s40, 7'); A.i(f's_add_u32 s55, s55, {FL_LNS - 48*128}')
    fast.task_f1f(A, fetch, lambda: wait_dep(A, 55, 2, 2))
    A.i('s_lshl_b32 s48, s40, 7'); A.i(f's_add_u32 s48, s48, {FL_F1S - 48*128}')
    A.i('s_branch P_end')
    A.label('P_f2f')
    wf_ready()
    A.i('s_lshl_b32 s55, s40, 7'); A.i(f's_add_u32 s55, s55, {FL_F1S - 48*128}')
    fast.task_f2f(A, SRD_OUT, fetch, lambda: wait_dep(A, 55, 24, 2))
    A.i('s_mov_b32 s48, -1')
    A.label('P_end')
    publish()
    A.i('s_barrier')
    lab = A.new('P_nosig')
    A.i('s_cmp_eq_u32 s48, -1'); A.i(f's_cbranch_scc1 {lab}')
    signal_add(A, 48)
    A.label(lab)
    log_end(4*QLEN)
    A.i('s_branch P_loop')
    A.L.append('.p2align 2')
    A.L.append('.type P_table,@object')
    A.label('P_table')
    for i in range(0, NPOST, 16):
        A.L.append('.long ' + ','.join(str(x) for x in POST_T[i:i+16]))
    A.L.append(f'.size P_table, {4*NPOST}')

NSPLIT = 256
QLEN = NSPLIT + (16 - NSPLIT//16)*8
def gen_startup(A):
    A.i('s_getreg_b32 s58, hwreg(HW_REG_XCC_ID)'); A.i('s_and_b32 s58, s58, 7'); A.i('s_cmp_lt_u32 s58, 4'); A.i('s_cbranch_scc0 U_boot')
    b_tasks(A, None, 'W')
    A.label('U_more')
    ws_take(A, BT_SQ, 84)
    A.i('s_cmp_lt_u32 s84, 97'); A.i('s_cbranch_scc0 U_ln')
    A.i('s_mov_b32 s82, 0'); A.i('s_branch U_do')
    A.label('U_boot')
    boot_wait(A, 22)
    ws_take(A, BT_SQ, 84)
    A.i('s_mov_b32 s82, 1')
    A.label('U_do')
    A.i('s_cmp_lt_u32 s84, 60'); A.i('s_cbranch_scc0 U_a')
    A.i('s_mov_b32 s40, s84'); small.role_mod(A, True, inmain=True); A.i('s_branch U_more')
    A.label('U_a')
    A.i('s_cmp_lt_u32 s84, 64'); A.i('s_cbranch_scc0 U_b')
    A.i('s_sub_u32 s40, s84, 60'); small.role_zero(A); A.i('s_branch U_init')
    A.label('U_b')
    A.i('s_cmp_lt_u32 s84, 96'); A.i('s_cbranch_scc0 U_c')
    A.i('s_sub_u32 s40, s84, 64'); small.role_fill(A, 32); A.i('s_branch U_init')
    A.label('U_c')
    A.i('s_cmp_eq_u32 s84, 96'); A.i('s_cbranch_scc0 U_bt')
    small.role_mem0(A)
    A.label('U_init')
    A.i('s_barrier'); ws_add(A, BT_INIT, 22)
    A.label('U_bt')
    A.i('s_cmp_eq_u32 s82, 1'); A.i('s_cbranch_scc0 U_more')
    b_tasks(A, KN.get('wB', 1), 'X')
    A.i('s_branch U_more')
    A.label('U_ln')
    ws_take(A, BT_LQ, 84)
    A.i('s_cmp_lt_u32 s84, 128'); A.i('s_cbranch_scc0 U_done')
    A.i('s_mov_b32 s40, s84')
    def su():
        A.i(f's_load_dwordx2 s[6:7], s[0:1], {KA["x"]}'); A.i('s_waitcnt lgkmcnt(0)'); srd(A, 36, 6, 2048*1280)
    small.role_ln(A, su, '0', 0, 1, WS_H, sc=' sc1', ssrd=36, wait_mod='main')
    A.i('s_barrier')
    lab = A.new('U_sig')
    A.i('s_cmp_eq_u32 s16, 0'); A.i(f's_cbranch_scc0 {lab}')
    A.i('s_lshr_b32 s23, s40, 3'); A.i('s_lshl_b32 s23, s23, 7'); A.i(f's_add_u32 s23, s23, {BT_LN}')
    A.i('s_mov_b64 exec, 1'); A.i('v_mov_b32 v22, 1'); A.i('v_mov_b32 v23, s23')
    A.i('buffer_atomic_add v22, v23, s[8:11], 0 offen'); A.i('s_mov_b64 exec, -1')
    A.label(lab)
    A.i('s_branch U_ln')
    A.label('U_done')
    ts_stamp(A, 1, 22)
    ws_wait(A, BT_INIT, N_INIT, 22)
    ts_stamp(A, 3, 22)
    A.i('s_mov_b32 s96, -1')

def ln_ready(A):
    if not KN['unified']: return
    lab, l0, l1 = A.new('lnr'), A.new('lnr'), A.new('lnr')
    A.i('s_cmp_eq_u32 s40, s96'); A.i(f's_cbranch_scc1 {lab}')
    A.i('s_cmp_eq_u32 s16, 0'); A.i(f's_cbranch_scc0 {l1}')
    A.i('s_lshl_b32 s25, s40, 7'); A.i(f's_add_u32 s25, s25, {BT_LN}'); A.i('v_mov_b32 v22, s25'); A.i('s_mov_b32 s22, 0')
    A.label(l0)
    A.i('buffer_load_dword v23, v22, s[8:11], 0 offen sc1')
    A.i('s_add_u32 s22, s22, 1'); A.i(f's_cmp_gt_u32 s22, {SPIN_MAX//4}'); A.i(f's_cbranch_scc1 {l1}')
    A.i('s_waitcnt vmcnt(0)'); A.i('v_readfirstlane_b32 s23, v23'); A.i('s_nop 3')
    A.i('s_cmp_ge_u32 s23, 8'); A.i(f's_cbranch_scc1 {l1}'); A.i('s_sleep 3'); A.i(f's_branch {l0}')
    A.label(l1)
    A.i('s_barrier')
    A.i('s_mov_b32 s96, s40')
    A.label(lab)

def gen_worker(A):
    gemm.set_ring(W_NSLOT)
    A.label('W_role')
    if KN['unified']: gen_startup(A)
    if KN['post'] and KN.get('spareA', True):
        A.i('s_getreg_b32 s58, hwreg(HW_REG_XCC_ID)'); A.i('s_and_b32 s58, s58, 7')
        if KN.get('farA'):
            A.i('s_cmp_ge_u32 s58, 4'); A.i('s_cbranch_scc0 W_pre'); A.i('s_cmp_lt_u32 s81, 4'); A.i('s_cbranch_scc0 W_pre')
        else:
            A.i('s_cmp_lt_u32 s58, 4'); A.i('s_cbranch_scc0 W_pre')
        A.label('W_serveA')
        lab = A.new('W_reg')
        A.i('s_cmp_eq_u32 s16, 0'); A.i(f's_cbranch_scc0 {lab}')
        A.i('s_mov_b64 exec, 1'); A.i('v_mov_b32 v22, 1'); A.i('v_mov_b32 v23, 104')
        A.i('buffer_atomic_add v22, v23, s[12:15], 0 offen'); A.i('s_waitcnt vmcnt(0)'); A.i('s_mov_b64 exec, -1')
        A.label(lab)
        A.i('s_mov_b32 s58, 4')
        A.i('s_getpc_b64 s[92:93]')
        A.label('W_pc')
        A.i('s_add_u32 s92, s92, P_phase-W_pc'); A.i('s_addc_u32 s93, s93, 0'); A.i('s_setpc_b64 s[92:93]')
        A.label('W_pre')
    if KN.get('nospare'):
        A.i('s_getreg_b32 s58, hwreg(HW_REG_XCC_ID)'); A.i('s_and_b32 s58, s58, 15'); A.i('s_cmp_lt_u32 s58, 4'); A.i('s_cbranch_scc0 W_go0')
        A.i('s_endpgm')
        A.label('W_go0')
    for reg, key, nb in ((SRD_WQ, 'wq', 640*12288), (SRD_WK, 'wk', 640*12288), (SRD_WV, 'wv', 640*12288), (SRD_WO, 'wo', 6144*1280)):
        A.i(f's_load_dwordx2 s[6:7], s[0:1], {KA[key]}'); A.i('s_waitcnt lgkmcnt(0)'); srd(A, reg, 6, nb)
    A.i(f's_load_dwordx2 s[6:7], s[0:1], {KA["dbg"]}'); A.i('s_waitcnt lgkmcnt(0)'); srd(A, 12, 6, 256)
    setup_lane(A); setup_dma192(A, 12288); setup_dma160(A, 1280)
    A.i('s_getreg_b32 s58, hwreg(HW_REG_XCC_ID)'); A.i('s_and_b32 s58, s58, 3')
    A.i('s_mov_b32 s59, 0')
    def fetch():
        lab = A.new('W_f')
        A.i('s_cmp_eq_u32 s16, 0'); A.i(f's_cbranch_scc0 {lab}')
        A.i('s_lshl_b32 s23, s58, 2'); A.i(f's_add_u32 s23, s23, {Q_WORD}')
        A.i('s_mov_b64 exec, 1'); A.i(f'v_mov_b32 v{vNEXT}, 1'); A.i('v_mov_b32 v22, s23')
        A.i(f'buffer_atomic_add v{vNEXT}, v22, s[12:15], 0 offen sc0')
        A.i('s_mov_b64 exec, -1')
        A.label(lab)
    def publish():
        lab = A.new('W_p')
        A.i('s_cmp_eq_u32 s16, 0'); A.i(f's_cbranch_scc0 {lab}')
        A.i('s_mov_b64 exec, 1'); A.i(f'v_mov_b32 v22, {LDS_BC}'); A.i(f'ds_write_b32 v22, v{vNEXT}'); A.i('s_waitcnt lgkmcnt(0)')
        A.i('s_mov_b64 exec, -1')
        A.label(lab)
    A.label('W_refetch')
    fetch(); A.i('s_waitcnt vmcnt(0)'); publish()
    A.i('s_barrier')
    A.label('W_loop')
    A.i(f'v_mov_b32 v22, {LDS_BC}'); A.i('ds_read_b32 v23, v22'); A.i('s_waitcnt lgkmcnt(0)'); A.i('v_readfirstlane_b32 s60, v23'); A.i('s_nop 3')
    A.i('s_barrier')
    A.i(f's_cmp_ge_u32 s60, {QLEN}'); A.i('s_cbranch_scc0 W_have')
    A.i('s_add_u32 s59, s59, 1'); A.i('s_cmp_ge_u32 s59, 4'); A.i('s_cbranch_scc1 W_done')
    A.i('s_add_u32 s58, s58, 1'); A.i('s_and_b32 s58, s58, 3'); A.i('s_branch W_refetch')
    A.label('W_have')
    A.i('s_mov_b32 s61, s58')
    if KN['log']: A.i('s_memrealtime s[62:63]'); A.i('s_waitcnt lgkmcnt(0)')
    if NSPLIT < 256: A.i(f's_cmp_lt_u32 s60, {NSPLIT}'); A.i('s_cbranch_scc0 W_head')
    A.i('s_and_b32 s40, s60, 1'); A.i('s_lshr_b32 s23, s60, 5'); A.i('s_lshl_b32 s23, s23, 1'); A.i('s_add_u32 s40, s40, s23')
    A.i('s_lshr_b32 s41, s60, 2'); A.i('s_and_b32 s41, s41, 7'); A.i('s_lshl_b32 s23, s61, 3'); A.i('s_add_u32 s41, s41, s23')
    ln_ready(A)
    A.i('s_bitcmp1_b32 s60, 1'); A.i('s_cbranch_scc1 W_kq')
    task_vvo2(A, fetch)
    A.i('s_mov_b32 s49, -1')
    A.i('s_branch W_end')
    A.label('W_kq')
    task_kq2(A, fetch)
    A.i('s_mov_b32 s49, s48'); A.i('s_mov_b32 s48, -1')
    if NSPLIT < 256:
        A.i('s_branch W_end')
        A.label('W_head')
        A.i(f's_sub_u32 s23, s60, {NSPLIT}')
        A.i('s_lshr_b32 s40, s23, 5'); A.i('s_lshl_b32 s40, s40, 2'); A.i('s_and_b32 s24, s23, 3'); A.i('s_add_u32 s40, s40, s24'); A.i(f's_add_u32 s40, s40, {NSPLIT//16}')
        A.i('s_lshr_b32 s41, s23, 2'); A.i('s_and_b32 s41, s41, 7')
        A.i('s_lshl_b32 s23, s61, 3'); A.i('s_add_u32 s41, s41, s23')
        task_head(A, fetch)
    A.label('W_end')
    if TS['on']:
        lab = A.new('ts1'); A.i('s_cmp_lt_u32 s60, 32'); A.i(f's_cbranch_scc0 {lab}'); ts_stamp(A, 9, 22); A.label(lab)
    publish()
    A.i('s_barrier')
    for r in (48, 49):
        lab = A.new('W_nosig')
        A.i(f's_cmp_eq_u32 s{r}, -1'); A.i(f's_cbranch_scc1 {lab}')
        signal_add(A, r)
        A.label(lab)
    def log_end(base, mulq=False):
        if not KN['log']: return
        A.i('s_memrealtime s[64:65]'); A.i('s_waitcnt lgkmcnt(0)')
        A.i('s_getreg_b32 s66, hwreg(HW_REG_XCC_ID)')
        A.i('s_lshl_b32 s66, s66, 16'); A.i('s_lshl_b32 s23, s40, 8'); A.i('s_or_b32 s66, s66, s23'); A.i('s_or_b32 s66, s66, s41')
        A.i('v_mov_b32 v24, s62'); A.i('v_mov_b32 v25, s64'); A.i('v_mov_b32 v26, s66'); A.i('v_mov_b32 v27, s60'); A.i('v_mov_b32 v23, 0')
        if mulq: A.i(f's_mul_i32 s23, s61, {QLEN}'); A.i('s_add_u32 s23, s23, s60')
        else: A.i(f's_add_u32 s23, s60, {base}')
        A.i('s_lshl_b32 s23, s23, 4'); A.i(f's_add_u32 s23, s23, {WS_LOG + 0x30000}')
        A.i('s_mov_b64 exec, 1'); A.i('buffer_store_dwordx4 v[24:27], v23, s[8:11], s23 offen'); A.i('s_mov_b64 exec, -1')
    log_end(0, True)
    A.i('s_branch W_loop')
    A.label('W_done')
    if KN['post'] and KN.get('spareA', True):
        lab = A.new('W_cnt')
        A.i('s_cmp_eq_u32 s16, 0'); A.i(f's_cbranch_scc0 {lab}')
        A.i('v_mov_b32 v22, 104'); A.i('buffer_load_dword v23, v22, s[12:15], 0 offen sc1'); A.i('s_waitcnt vmcnt(0)')
        A.i(f'v_mov_b32 v22, {LDS_BC + 16}'); A.i('ds_write_b32 v22, v23'); A.i('s_waitcnt lgkmcnt(0)')
        A.label(lab)
        A.i('s_barrier')
        A.i(f'v_mov_b32 v22, {LDS_BC + 16}'); A.i('ds_read_b32 v23, v22'); A.i('s_waitcnt lgkmcnt(0)')
        A.i('v_readfirstlane_b32 s23, v23'); A.i('s_nop 3'); A.i('s_cmp_lt_u32 s23, 4'); A.i('s_cbranch_scc0 W_toB')
        A.i('s_getpc_b64 s[92:93]')
        A.label('W_pc2')
        A.i('s_sub_u32 s92, s92, W_pc2-W_serveA'); A.i('s_subb_u32 s93, s93, 0'); A.i('s_setpc_b64 s[92:93]')
        A.label('W_toB')
    A.i('s_mov_b32 s58, 5')
    if KN['post']: gen_post(A, fetch, publish, log_end)
    else: A.i('s_waitcnt vmcnt(0)'); A.i('s_endpgm')
    gemm.set_ring(4)
```

```python
S_TOK, DM, NH, DH, NSEG, SEG, MM, FF = 2048, 640, 32, 192, 64, 32, 8, 1536

KA = dict(x=0, mem0=8, wq=16, wk=24, wv=32, wo=40, seglen=48, bx=56, wg=64, wu=72, wd=80, c=88, wmod=96, out=104, dbg=112, ws=120)

WS_TAB   = 0x0000000
WS_MOD   = 0x0001000
WS_FLAGS = 0x0020000
WS_FLAGS_SIZE = 0x20000
FL_KQ  = WS_FLAGS
FL_VVO = WS_FLAGS + 0x10000
FL_PT  = WS_FLAGS + 0x18000
FL_VM  = WS_FLAGS + 0x11000
FL_T2S = WS_FLAGS + 0x13000
FL_LNS = WS_FLAGS + 0x17000
FL_F1S = WS_FLAGS + 0x17800
FL_CAL = WS_FLAGS + 0x16d00
FL_B   = WS_FLAGS + 0x16c00
FL_WF  = WS_FLAGS + 0x16f00
FL_T2  = WS_FLAGS + 0x15000
FL_LN  = WS_FLAGS + 0x15800
FL_F1  = WS_FLAGS + 0x16000
WS_HAND  = 0x0200000
WS_HAND_SIZE = 0x600000
MEM_STRIDE = 32768
P_STRIDE   = 65536
HB_MEM = 0
HB_P   = 0x200000
WS_H     = 0x0A00000
WS_X1    = 0x0D00000
WS_LOG   = 0x0F80000
WS_H2    = 0x1000000
WS_HM    = 0x1300000
WS_PTOK  = 0x1900000
WS_WQK   = 0x1E00000
WS_BW    = 0x2D00000
WS_KT    = 0x4600000
WS_QT    = 0x5E00000
WS_VOM   = 0x7600000
WS_VOT   = 0x8A00000
WS_WGF   = 0xDA00000
WS_WDF   = 0xDE00000
WS_SIZE  = 0x10000000
assert WS_VOT + 64*80*16384 <= WS_SIZE

BT_SQ, BT_BQ, BT_MOD, BT_INIT, BT_BDONE, BT_LQ, BT_LN = 0, 128, 256, 384, 512, 640, 1024
BT_SIZE = 4096
DB_BOOT, DB_CAL = 108, 224
N_INIT = 4 + 32 + 1

def hand_base(A, dst, ptr_lo=4):
    f = A.i if hasattr(A, 'i') else A
    f(f's_sub_u32 s{dst}, 0, s{ptr_lo}')
    f(f's_and_b32 s{dst}, s{dst}, 0x1fffff')
    f(f's_add_u32 s{dst}, s{dst}, {WS_HAND}')

class Asm:
    def __init__(self):
        self.L = []
        self.uid = 0
    def __call__(self, s):
        for line in s.split('\n'):
            line = line.rstrip()
            if line.strip():
                self.L.append(line if line.endswith(':') and not line.startswith(' ') else '  ' + line.strip())
    def label(self, n):
        self.L.append(f'{n}:')
    def c(self, s):
        self.L.append(f'  ; {s}')
    def new(self, p='L'):
        self.uid += 1
        return f'{p}_{self.uid}'
    def text(self):
        return '\n'.join(self.L) + '\n'

def vr(b, n=4):
    return f'v[{b}:{b+n-1}]' if n > 1 else f'v{b}'
def ar(b, n=4):
    return f'a[{b}:{b+n-1}]' if n > 1 else f'a{b}'
def sr(b, n=2):
    return f's[{b}:{b+n-1}]' if n > 1 else f's{b}'

class Lgkm:
    def __init__(self, asm):
        self.asm = asm; self.q = []
    def issue(self, text, tag):
        self.asm(text); self.q.append(tag)
        assert len(self.q) <= 15, f'too many LDS ops in flight: {self.q}'
    def wait(self, tag):
        if tag not in self.q: return
        i = max(j for j, t in enumerate(self.q) if t == tag)
        n = len(self.q) - 1 - i
        self.asm(f's_waitcnt lgkmcnt({n})')
        self.q = self.q[i+1:]
    def wait_all(self):
        self.asm('s_waitcnt lgkmcnt(0)'); self.q = []

TS = dict(on=False)
def ts_stamp(A, slot, vtmp=2):
    if not TS['on']: return
    f = A.i if hasattr(A, 'i') else A
    f('s_memrealtime s[98:99]'); f('s_waitcnt lgkmcnt(0)'); f(f'v_mov_b32 v{vtmp}, s98')
    f('s_lshl_b32 s97, s2, 2'); f(f's_add_u32 s97, s97, {0xF80000 + 0x70000 + slot*4096}')
    f(f'buffer_store_dword v{vtmp}, off, s[8:11], s97'); f('s_waitcnt vmcnt(0)')

FAKE = dict(xcc=None)
def get_xcc(A, dst):
    f = A.i if hasattr(A, 'i') else A
    if FAKE['xcc'] is None:
        f(f's_getreg_b32 s{dst}, hwreg(HW_REG_XCC_ID)'); f(f's_and_b32 s{dst}, s{dst}, 7')
    elif FAKE['xcc'] == 'odd': f(f's_and_b32 s{dst}, s2, 1')
    elif FAKE['xcc'] == 'low': f(f's_and_b32 s{dst}, s2, 3')
    else: f(f's_mov_b32 s{dst}, {FAKE["xcc"]}')

def kernel_header(A, name):
    A.L.append('.text')
    A.L.append(f'.globl {name}')
    A.L.append('.p2align 8')
    A.L.append(f'.type {name},@function')
    A.L.append(f'{name}:')

def kernel_desc(name, vgpr, accum, sgpr=100):
    return f'''.section .rodata,"a"
.p2align 6
.amdhsa_kernel {name}
  .amdhsa_next_free_vgpr {vgpr}
  .amdhsa_next_free_sgpr {sgpr}
  .amdhsa_accum_offset {accum}
  .amdhsa_group_segment_fixed_size 0
  .amdhsa_kernarg_size 128
  .amdhsa_user_sgpr_count 2
  .amdhsa_user_sgpr_kernarg_segment_ptr 1
  .amdhsa_system_sgpr_workgroup_id_x 1
  .amdhsa_float_denorm_mode_32 3
  .amdhsa_float_denorm_mode_16_64 3
.end_amdhsa_kernel
'''

def srd(A, dst, ptr, nbytes):
    A(f's_mov_b32 s{dst}, s{ptr}')
    A(f's_and_b32 s{dst+1}, s{ptr+1}, 0xffff')
    A(f's_mov_b32 s{dst+2}, {nbytes:#x}')
    A(f's_mov_b32 s{dst+3}, 0x20000')
```

```python
from common import *
NS, NC = 32, 80
FL_DB = WS_FLAGS + 0x16800
KN = dict(own=True, unified=True, late=False, lateC=False, adapt=False, up=2, down=3, loS=1, hiS=12, loC=4, hiC=18, gl='sc1', bmain=False, join=True, db=True, dbS=4, dbC=10, dbCm=6, ring_at=0, preS=0, dC0=0, preC=0, log=False, flags=True, post=True)
SPIN_MAX = 0x400000
LOG2E = 1.4426950408889634
import struct
def fbits(x): return struct.unpack('<I', struct.pack('<f', x))[0]
class Em(Asm):
    def __init__(self):
        super().__init__(); self.n = 0; self.marks = {}
    def i(self, s):
        for line in s.split('\n'):
            if line.strip():
                self(line)
                t = line.strip()
                if t.startswith('s_nop'): self.n += int(t.split()[1]) + 1
                elif not t.endswith(':') and not t.startswith(';'): self.n += 1
    def mark(self, k): self.marks[k] = self.n
    def need(self, k, d):
        if k not in self.marks: return
        have = self.n - self.marks[k]
        if have < d:
            r = d - have
            while r > 0:
                q = min(r, 16); self.i(f's_nop {q-1}'); r -= q
class LG(Lgkm):
    def issue(self, text, tag):
        self.asm.i(text); self.q.append(tag)
        assert len(self.q) <= 15, f'too many LDS ops in flight: {self.q}'
    def wait(self, tag):
        if tag not in self.q: return
        k = max(j for j, t in enumerate(self.q) if t == tag)
        self.asm.i(f's_waitcnt lgkmcnt({len(self.q)-1-k})'); self.q = self.q[k+1:]
    def wait_all(self):
        self.asm.i('s_waitcnt lgkmcnt(0)'); self.q = []
def remap(A, v, tmp):
    A.i(f'v_lshrrev_b32 v{tmp}, 13, v{v}')
    A.i(f'v_lshlrev_b32 v{tmp}, 14, v{tmp}')
    A.i(f'v_and_b32 v{v}, 0x1fff, v{v}')
    A.i(f'v_add_u32 v{v}, v{v}, v{tmp}')
S_WRES, S_KQ, S_MEM, S_X = 0, 98304, 147456, 157696
C_MEM, C_RED = 0, 16384
def gather_mem(A, lbl, fail, gv, lv0, lv2, t0):
    A.i('s_mov_b32 s22, 0')
    A.label(lbl)
    for j in range(3):
        A.i(f'buffer_load_dwordx4 {vr(t0+4*j)}, v{gv+j}, s[8:11], s18 offen {KN["gl"]}')
    A.i('s_add_u32 s22, s22, 1')
    A.i(f's_cmp_gt_u32 s22, {SPIN_MAX}')
    A.i(f's_cbranch_scc1 {fail}')
    x, y = t0+12, t0+13
    A.i('s_waitcnt vmcnt(2)')
    A.i(f'ds_write_b128 v{lv0}, {vr(t0)}')
    A.i(f'v_max3_u32 v{x}, v{t0}, v{t0+1}, v{t0+2}')
    A.i('s_waitcnt vmcnt(1)')
    A.i(f'ds_write_b128 v{lv0}, {vr(t0+4)} offset:4096')
    A.i(f'v_max3_u32 v{y}, v{t0+3}, v{t0+4}, v{t0+5}')
    A.i(f'v_max3_u32 v{x}, v{t0+6}, v{t0+7}, v{x}')
    A.i('s_waitcnt vmcnt(0)')
    A.i(f'ds_write_b128 v{lv2}, {vr(t0+8)}')
    A.i(f'v_max3_u32 v{y}, v{t0+8}, v{t0+9}, v{y}')
    A.i(f'v_max3_u32 v{x}, v{t0+10}, v{t0+11}, v{x}')
    A.i(f'v_max_u32 v{x}, v{x}, v{y}')
    A.i(f'v_cmp_eq_u32 vcc, -1, v{x}')
    A.i(f's_cbranch_vccnz {lbl}')
    A.i('s_waitcnt lgkmcnt(0)')
    A.i('s_barrier')

def setup_gather_addrs(A, gv, lv0, lv2, ldsbase, tmp):
    A.i(f'v_lshlrev_b32 v{gv}, 4, v0')
    A.i(f'v_add_u32 v{gv+1}, 4096, v{gv}')
    A.i(f'v_add_u32 v{gv+2}, 16384, v{gv}')
    A.i(f'v_add_u32 v{lv0}, {ldsbase}, v{gv}')
    A.i(f'v_add_u32 v{lv2}, {ldsbase+8192}, v{gv}')
    A.i('v_cmp_gt_u32 vcc, 128, v0')
    A.i('s_nop 1')
    A.i(f'v_cndmask_b32 v{gv+2}, v{gv}, v{gv+2}, vcc')
    A.i(f'v_cndmask_b32 v{lv2}, v{lv0}, v{lv2}, vcc')
def poll_flag(A, off_sgpr, target, vtmp, fail='R_fail', backoff=0):
    lab = A.new('pf')
    A.i('s_mov_b32 s22, 0'); A.i(f'v_mov_b32 v{vtmp}, 0')
    A.label(lab)
    A.i(f'buffer_load_dword v{vtmp+1}, v{vtmp}, s[8:11], s{off_sgpr} offen sc1')
    A.i('s_add_u32 s22, s22, 1'); A.i(f's_cmp_gt_u32 s22, {SPIN_MAX}'); A.i(f's_cbranch_scc1 {fail}')
    A.i('s_waitcnt vmcnt(0)'); A.i(f'v_readfirstlane_b32 s23, v{vtmp+1}'); A.i('s_nop 3')
    if backoff:
        l2 = A.new('pf')
        A.i(f's_cmp_ge_u32 s23, {target}'); A.i(f's_cbranch_scc1 {l2}'); A.i(f's_sleep {backoff}'); A.i(f's_branch {lab}'); A.label(l2)
    else:
        A.i(f's_cmp_ge_u32 s23, {target}'); A.i(f's_cbranch_scc0 {lab}')

def signal(A, base, shift, seg_sgpr, slot_sgpr, v):
    if shift: A.i(f's_lshl_b32 s23, s{seg_sgpr}, {shift}'); A.i(f's_add_u32 s23, s23, {base}')
    else: A.i(f's_mov_b32 s23, {base}')
    A.i('s_mov_b64 exec, 1'); A.i(f'v_mov_b32 v{v}, 1'); A.i(f'v_mov_b32 v{v+1}, s{slot_sgpr}'); A.i(f'v_lshlrev_b32 v{v+1}, 2, v{v+1}')
    A.i(f'buffer_store_dword v{v}, v{v+1}, s[8:11], s23 offen sc1')
    A.i('s_mov_b64 exec, -1')

def adapt(A, areg, creg, lo, hi):
    if not (KN['db'] and KN['adapt']): return
    l1, l2 = A.new('ad'), A.new('ad')
    A.i('s_cmp_gt_u32 s22, 1'); A.i(f's_cbranch_scc0 {l1}')
    A.i(f's_add_u32 s{areg}, s{areg}, {KN["up"]}'); A.i(f's_min_u32 s{areg}, s{areg}, {hi}'); A.i(f's_mov_b32 s{creg}, 0'); A.i(f's_branch {l2}')
    A.label(l1)
    A.i(f's_add_u32 s{creg}, s{creg}, 1'); A.i(f's_cmp_ge_u32 s{creg}, {KN["down"]}'); A.i(f's_cbranch_scc0 {l2}')
    A.i(f's_mov_b32 s{creg}, 0'); A.i(f's_sub_u32 s{areg}, s{areg}, 1'); A.i(f's_max_u32 s{areg}, s{areg}, {lo}')
    A.label(l2)

def db_wait(A, vaddr, vdata, off_sgpr, tag_sgpr, extra_sleep=0, areg=None):
    if not KN['db']: return
    l0, l1 = A.new('db'), A.new('db')
    A.c('bounded wait for the producers on this XCD + short back-off: the slot is then read once, after it was written')
    A.i('s_cmp_eq_u32 s76, 0'); A.i(f's_cbranch_scc1 {l1}')
    A.i('s_mov_b32 s22, 0')
    A.label(l0)
    A.i(f'buffer_load_dword v{vdata}, v{vaddr}, s[8:11], s{off_sgpr} offen sc1')
    A.i('s_add_u32 s22, s22, 1'); A.i('s_cmp_gt_u32 s22, 256'); A.i(f's_cbranch_scc1 {l1}')
    A.i('s_waitcnt vmcnt(0)')
    A.i(f'v_cmp_gt_u32 vcc, s{tag_sgpr}, v{vdata}')
    A.i(f's_cbranch_vccnz {l0}')
    if areg is None: sleep(A, extra_sleep)
    else:
        l2 = A.new('db')
        A.i(f's_mov_b32 s86, s{areg}')
        A.label(l2)
        A.i('s_sleep 1'); A.i('s_sub_u32 s86, s86, 1'); A.i('s_cmp_gt_i32 s86, 0'); A.i(f's_cbranch_scc1 {l2}')
    A.label(l1)

def db_ring(A, vtmp, off_sgpr, tag_sgpr):
    if not KN['db']: return
    A.i('s_mov_b64 exec, 1'); A.i(f'v_mov_b32 v{vtmp}, s{tag_sgpr}')
    A.i(f'buffer_store_dword v{vtmp}, off, s[8:11], s{off_sgpr}')
    A.i('s_mov_b64 exec, -1')

def ws_wait(A, off, target, v, backoff=4, srd_=8):
    lab, l2 = A.new('dw'), A.new('dw')
    A.i('s_cmp_eq_u32 s16, 0'); A.i(f's_cbranch_scc0 {l2}')
    A.i('s_mov_b32 s22, 0'); A.i(f'v_mov_b32 v{v}, {off}')
    A.label(lab)
    A.i(f'buffer_load_dword v{v+1}, v{v}, s[{srd_}:{srd_+3}], 0 offen sc1')
    A.i('s_add_u32 s22, s22, 1'); A.i(f's_cmp_gt_u32 s22, {SPIN_MAX//4}'); A.i(f's_cbranch_scc1 {l2}')
    A.i('s_waitcnt vmcnt(0)'); A.i(f'v_readfirstlane_b32 s23, v{v+1}'); A.i('s_nop 3')
    A.i(f's_cmp_ge_u32 s23, {target}'); A.i(f's_cbranch_scc1 {l2}'); A.i(f's_sleep {backoff}'); A.i(f's_branch {lab}')
    A.label(l2)
    A.i('s_barrier')

def boot_wait(A, v): ws_wait(A, DB_BOOT, 1, v, 2, 12)

def boot_clear(A):
    lab = A.new('bc')
    A.i('s_cmp_eq_u32 s2, 0'); A.i(f's_cbranch_scc0 {lab}')
    A.i('v_lshlrev_b32 v2, 4, v0')
    for r in range(4): A.i(f'v_mov_b32 v{4+r}, 0')
    A.i('buffer_store_dwordx4 v[4:7], v2, s[8:11], 0 offen sc1'); A.i('s_waitcnt vmcnt(0)'); A.i('s_barrier')
    A.i('v_mov_b32 v2, 1'); A.i(f'v_mov_b32 v3, {DB_BOOT}'); A.i('s_mov_b64 exec, 1')
    A.i('buffer_store_dword v2, v3, s[12:15], 0 offen sc1'); A.i('s_waitcnt vmcnt(0)'); A.i('s_mov_b64 exec, -1')
    A.label(lab)

def ws_add(A, off, v):
    lab = A.new('da')
    A.i('s_cmp_eq_u32 s16, 0'); A.i(f's_cbranch_scc0 {lab}')
    A.i('s_mov_b64 exec, 1'); A.i(f'v_mov_b32 v{v}, 1'); A.i(f'v_mov_b32 v{v+1}, {off}')
    A.i(f'buffer_atomic_add v{v}, v{v+1}, s[8:11], 0 offen'); A.i('s_mov_b64 exec, -1')
    A.label(lab)

def ws_take(A, off, dst):
    lab = A.new('dt')
    A.i('s_barrier')
    A.i('s_cmp_eq_u32 s16, 0'); A.i(f's_cbranch_scc0 {lab}')
    A.i('s_mov_b64 exec, 1'); A.i('v_mov_b32 v22, 1'); A.i(f'v_mov_b32 v23, {off}')
    A.i('buffer_atomic_add v22, v23, s[8:11], 0 offen sc0'); A.i('s_waitcnt vmcnt(0)')
    A.i('v_mov_b32 v23, 163836'); A.i('ds_write_b32 v23, v22'); A.i('s_waitcnt lgkmcnt(0)'); A.i('s_mov_b64 exec, -1')
    A.label(lab)
    A.i('s_barrier')
    A.i('v_mov_b32 v23, 163836'); A.i('ds_read_b32 v22, v23'); A.i('s_waitcnt lgkmcnt(0)'); A.i(f'v_readfirstlane_b32 s{dst}, v22'); A.i('s_nop 3')

def b_tasks(A, limit, tag):
    import gemm
    gemm.set_ring(4, 20480)
    boot_wait(A, 22)
    gemm.setup_lane(A)
    A.i('s_mov_b32 s85, 0')
    A.label(f'B_loop{tag}')
    ws_take(A, BT_BQ, 84)
    A.i('s_cmp_ge_u32 s84, 320'); A.i(f's_cbranch_scc1 B_end{tag}')
    A.i('s_and_b32 s41, s84, 31'); A.i('s_lshr_b32 s40, s84, 5')
    A.i('s_cmp_ge_u32 s40, 5'); A.i('s_cselect_b32 s83, 1, 0'); A.i('s_mul_i32 s23, s83, 5'); A.i('s_sub_u32 s40, s40, s23')
    gemm.task_b_half(A, wv_srd=36, sc=' sc1')
    A.i('s_barrier')
    ws_add(A, BT_BDONE, 22)
    A.i('s_add_u32 s85, s85, 1')
    if limit: A.i(f's_cmp_lt_u32 s85, {limit}'); A.i(f's_cbranch_scc1 B_loop{tag}')
    else: A.i(f's_branch B_loop{tag}')
    A.label(f'B_end{tag}')
    gemm.set_ring(4)

def read_parity(A, v):
    lab = A.new('par')
    A.i(f'v_mov_b32 v{v}, {DB_CAL}'); A.i('s_mov_b32 s22, 0')
    A.label(lab)
    A.i(f'buffer_load_dwordx4 v[{v+2}:{v+5}], v{v}, s[12:15], 0 offen sc1')
    A.i('s_add_u32 s22, s22, 1'); A.i(f's_cmp_gt_u32 s22, {SPIN_MAX}'); A.i('s_cbranch_scc1 R_fail')
    A.i('s_waitcnt vmcnt(0)')
    A.i(f'v_and_b32 v{v+1}, v{v+2}, v{v+3}'); A.i(f'v_and_b32 v{v+1}, v{v+1}, v{v+4}'); A.i('s_nop 0')
    A.i(f'v_readfirstlane_b32 s79, v{v+1}'); A.i(f'v_readfirstlane_b32 s44, v{v+2}'); A.i(f'v_readfirstlane_b32 s45, v{v+3}'); A.i(f'v_readfirstlane_b32 s46, v{v+4}')
    A.i('s_nop 3'); A.i('s_bitcmp1_b32 s79, 16'); A.i(f's_cbranch_scc0 {lab}')
    A.i('s_and_b32 s44, s44, 8192'); A.i('s_and_b32 s45, s45, 8192'); A.i('s_and_b32 s46, s46, 8192')
    hand_base(A, 18)
    A.i(f's_add_u32 s19, s18, {HB_P}'); A.i('s_add_u32 s19, s19, s45')
    A.i('s_add_u32 s18, s18, s44')
    A.i('s_sub_u32 s33, s46, s45')

def probe_parity(A):
    lab = A.new('cal')
    A.c('NUMA probe (this launch only): latency of an atomic on either 8 KB block parity of a hand-off page; the faster one is published')
    A.i('s_cmp_eq_u32 s3, 0'); A.i(f's_cbranch_scc0 {lab}')
    A.i('s_cmp_lt_u32 s16, 3'); A.i(f's_cbranch_scc0 {lab}')
    hand_base(A, 24)
    A.i('s_lshl_b32 s25, s16, 21'); A.i('s_add_u32 s24, s24, s25'); A.i(f's_add_u32 s24, s24, {65536 + 49152 + 4096}')
    A.i('s_mov_b64 exec, 1')
    A.i('v_mov_b32 v2, 0'); A.i('v_mov_b32 v3, 8192')
    A.i('s_mov_b32 s40, -1'); A.i('s_mov_b32 s41, -1')
    for rep in range(5):
        for par in range(2):
            A.i('v_mov_b32 v4, 0')
            A.i('s_memtime s[42:43]'); A.i('s_waitcnt lgkmcnt(0)')
            A.i(f'buffer_atomic_add v4, v{2+par}, s[8:11], s24 offen sc0')
            A.i('s_waitcnt vmcnt(0)')
            A.i('s_memtime s[48:49]'); A.i('s_waitcnt lgkmcnt(0)')
            A.i('s_sub_u32 s48, s48, s42')
            if rep > 0: A.i(f's_min_u32 s{40+par}, s{40+par}, s48')
    A.i('s_cmp_lt_u32 s41, s40'); A.i('s_cselect_b32 s46, 8192, 0'); A.i('s_or_b32 s46, s46, 0x10000')
    A.i('v_mov_b32 v4, s46'); A.i('s_lshl_b32 s25, s16, 2'); A.i(f's_add_u32 s25, s25, {DB_CAL}'); A.i('v_mov_b32 v5, s25')
    A.i('buffer_store_dword v4, v5, s[12:15], 0 offen sc1')
    A.i('s_waitcnt vmcnt(0)')
    A.i('s_mov_b64 exec, -1')
    A.label(lab)

def advance(A):
    A.i(f's_add_u32 s18, s18, {MEM_STRIDE}'); A.i(f's_add_u32 s19, s19, {P_STRIDE}')
    A.i('s_add_u32 s17, s17, 1')
    A.i('s_cmp_eq_u32 s17, 32'); A.i('s_cselect_b32 s23, s33, 0'); A.i('s_add_u32 s19, s19, s23')
def sleep(A, n):
    while n > 0:
        k = min(n, 100); A.i(f's_sleep {k}'); n -= k
def stamp(A, acc):
    if KN['log']:
        A.i(('s_memtime' if KN.get('clk') else 's_memrealtime') + ' s[34:35]'); A.i('s_waitcnt lgkmcnt(0)')
        A.i('s_sub_u32 s67, s34, s66'); A.i(f's_add_u32 s{acc}, s{acc}, s67'); A.i('s_mov_b32 s66, s34')
def ev(A, k, v):
    if KN.get('ev'):
        A.i('s_memrealtime s[34:35]'); A.i('s_waitcnt lgkmcnt(0)')
        A.i(f'v_mov_b32 v{v}, s34')
        A.i('s_lshl_b32 s67, s17, 5'); A.i('s_add_u32 s67, s67, s81')
        A.i(f'buffer_store_dword v{v}, off, s[8:11], s67 offset:{4*k}')

def xlane_reduce(A, op, x, t):
    A.i(f'v_mov_b32 v{t}, v{x}')
    A.i('s_nop 1')
    A.i(f'v_permlane16_swap_b32 v{x}, v{t}')
    A.i(f'{op} v{x}, v{x}, v{t}')
    A.i(f'v_mov_b32 v{t}, v{x}')
    A.i('s_nop 1')
    A.i(f'v_permlane32_swap_b32 v{x}, v{t}')
    A.i(f'{op} v{x}, v{x}, v{t}')
def s_wloc(tt, kk):
    lds = {(0,2):0,(1,4):1,(0,6):2,(1,8):3}
    key = (tt & 1, kk)
    if key in lds: return ('l', (tt >> 1)*4 + lds[key])
    idx = 0
    for t in range(6):
        for k in range(10):
            if (t & 1, k) in lds: continue
            if (t, k) == (tt, kk):
                return ('a', idx*8) if idx < 32 else ('v', 128 + (idx-32)*8)
            idx += 1
def gen_S(A, nsteps):
    vL16, vG, vLm0, vLm2, vAr, vWr, vXw, vB, vXk, vKt, vPu, vP0, vIdx = 1, 2, 5, 6, 7, 8, 9, 10, 11, 12, 13, 14, 15
    RA, RST, RACC, RAIN, RD3, RSC, RSEL, RCI = 16, 56, 72, 96, 100, 104, 116, 120
    T0, T1, T2, VNINF = 124, 125, 126, 127
    A.label('S_role')
    A.c('---- score role setup; s3 = head')
    if KN['unified']:
        if KN.get('sB', 1): b_tasks(A, KN.get('sB', 1), 'S')
        else: boot_wait(A, 22)
    A.c('weights of this head: row-major tiles -> sparse-MFMA dense operands')
    WD, WA, WT = 2, 112, 16
    A.i(f's_load_dwordx2 s[6:7], s[0:1], {KA["wq"]}'); A.i(f's_load_dwordx2 s[40:41], s[0:1], {KA["wk"]}')
    A.i('v_and_b32 v22, 63, v0')
    for j in range(6):
        A.i(f's_mul_i32 s23, s16, 384'); A.i(f's_add_u32 s23, s23, {64*j}')
        A.i('v_add_u32 v23, s23, v22')
        A.i('v_mul_u32_u24 v24, 2731, v23'); A.i('v_lshrrev_b32 v24, 16, v24')
        A.i('v_mul_u32_u24 v25, 24, v24'); A.i('v_sub_u32 v25, v23, v25')
        A.i('v_lshrrev_b32 v26, 1, v24'); A.i('v_and_b32 v26, 1, v26'); A.i('v_lshlrev_b32 v26, 2, v26')
        A.i('v_xor_b32 v25, v25, v26'); A.i('v_lshlrev_b32 v25, 4, v25')
        A.i('v_mul_u32_u24 v24, 12288, v24'); A.i(f'v_add_u32 v{WD+j}, v24, v25')
    A.i('v_lshrrev_b32 v23, 4, v22'); A.i('v_and_b32 v24, 15, v22')
    A.i('v_lshrrev_b32 v25, 1, v23'); A.i('v_lshlrev_b32 v25, 4, v25'); A.i('v_and_b32 v26, 1, v23'); A.i('v_lshlrev_b32 v26, 2, v26'); A.i('v_add_u32 v25, v25, v26')
    A.i('v_lshrrev_b32 v26, 2, v24')
    A.i('v_and_b32 v27, 1, v26'); A.i('v_lshrrev_b32 v26, 1, v26'); A.i('v_lshlrev_b32 v26, 3, v26'); A.i('v_add3_u32 v25, v25, v26, v27')
    A.i('v_and_b32 v24, 3, v24'); A.i('v_lshlrev_b32 v24, 2, v24'); A.i('s_mul_i32 s23, s16, 48'); A.i('v_add_u32 v24, s23, v24')
    for p in range(3):
        for hb in range(2):
            for jj in range(2):
                A.i(f'v_add_u32 v28, {32*hb + 2*jj}, v25'); A.i(f'v_add_u32 v29, {16*p}, v24')
                A.i('v_lshrrev_b32 v30, 1, v28'); A.i('v_and_b32 v30, 1, v30'); A.i('v_lshrrev_b32 v31, 5, v29'); A.i('v_xor_b32 v30, v30, v31'); A.i('v_lshlrev_b32 v30, 6, v30')
                A.i('v_and_b32 v29, 31, v29'); A.i('v_lshlrev_b32 v29, 1, v29'); A.i('v_mul_u32_u24 v28, 384, v28'); A.i(f'v_add3_u32 v{WA+4*p+2*hb+jj}, v28, v29, v30')
    A.i('s_waitcnt lgkmcnt(0)')
    srd(A, 28, 6, 640*12288); srd(A, 44, 40, 640*12288)
    A.i('s_mul_i32 s42, s3, 384'); A.i('s_mov_b32 s43, s42'); A.i('s_mul_i32 s52, s16, 6144')
    tiles = [(kk, mt) for kk in range(10) for mt in range(2)]
    NB = 6
    def tile_dma(i):
        kk, mt = tiles[i]
        for j in range(6):
            A.i(f's_add_u32 m0, s52, {(i % NB)*24576 + j*1024}'); A.i('s_nop 0')
            A.i(f'buffer_load_dwordx4 v{WD+j}, s[{44 if mt else 28}:{47 if mt else 31}], s{43 if mt else 42} offen lds')
        A.i(f's_add_u32 s{43 if mt else 42}, s{43 if mt else 42}, {64*12288}')
    for i in range(NB-1): tile_dma(i)
    for i, (kk, mt) in enumerate(tiles):
        A.i(f's_waitcnt vmcnt({6*min(NB-2, 19-i)})'); A.i('s_barrier')
        if i + NB-1 < 20: tile_dma(i + NB-1)
        buf = (i % NB)*24576
        for p in range(3):
            kind, r = s_wloc(2*p+mt, kk)
            for hb in range(2):
                for jj in range(2):
                    if kind == 'l': dst = f'v[{WT + r*8 + 4*hb + 2*jj}:{WT + r*8 + 4*hb + 2*jj + 1}]'
                    else: dst = f'{kind}[{r + 4*hb + 2*jj}:{r + 4*hb + 2*jj + 1}]'
                    base = WA + 4*p + 2*hb + jj
                    if buf < 65536: A.i(f'ds_read_b64_tr_b16 {dst}, v{base} offset:{buf}')
                    else:
                        A.i(f'v_add_u32 v1, {buf}, v{base}'); A.i(f'ds_read_b64_tr_b16 {dst}, v1')
        A.i('s_waitcnt lgkmcnt(0)')
    A.i('s_barrier')
    A.i('v_and_b32 v1, 63, v0'); A.i('v_lshlrev_b32 v1, 4, v1'); A.i('s_mul_i32 s23, s16, 24576'); A.i('v_add_u32 v1, s23, v1')
    for slot in range(12):
        for hb in range(2):
            A.i(f'ds_write_b128 v1, {vr(WT + slot*8 + 4*hb)} offset:{S_WRES + slot*2048 + hb*1024}')
        if slot % 4 == 3: A.i('s_waitcnt lgkmcnt(0)')
    A.i('s_barrier')
    A.i('v_and_b32 v16, 63, v0')
    A.i(f'v_lshlrev_b32 v{vL16}, 4, v16')
    if KN['own']:
        A.i(f'v_mov_b32 v{vG}, v{vL16}')
        A.i('s_lshl_b32 s23, s16, 11'); A.i('s_add_u32 s23, s23, 2048')
        A.i(f's_add_u32 s24, s23, {S_MEM}'); A.i(f'v_add_u32 v{vLm0}, s24, v{vL16}')
        A.i('s_cmp_ge_u32 s23, 8192'); A.i('s_cselect_b32 s24, 8192, 0'); A.i('s_add_u32 s23, s23, s24')
        A.i(f'v_add_u32 v{vG+1}, s23, v{vL16}')
    else:
        setup_gather_addrs(A, vG, vLm0, vLm2, S_MEM, 17)
    A.i(f'v_add_u32 v{vAr}, {S_MEM}, v{vL16}')
    A.i(f's_mul_i32 s23, s16, 24576')
    A.i(f'v_add_u32 v{vWr}, s23, v{vL16}')
    A.i('v_and_b32 v17, 15, v16'); A.i('v_lshrrev_b32 v18, 4, v16'); A.i('v_and_b32 v19, 7, v16')
    A.i('s_mul_i32 s23, s16, 3')
    A.i('s_lshr_b32 s24, s23, 1'); A.i('s_lshl_b32 s24, s24, 10'); A.i('s_and_b32 s25, s23, 1'); A.i('s_lshl_b32 s25, s25, 3')
    A.i('s_add_u32 s24, s24, s25'); A.i(f's_add_u32 s24, s24, {S_X}')
    A.i(f'v_add_u32 v{vXw}, s24, v{vL16}')
    A.i('s_and_b32 s25, s16, 1')
    A.i('s_cmp_eq_u32 s25, 0')
    A.i('s_cselect_b32 s40, 8, 1016')
    A.i('s_mov_b32 s41, 1024')
    A.i(f'v_lshlrev_b32 v20, 4, v18'); A.i('v_add_u32 v20, v20, v19')
    A.i(f'v_lshlrev_b32 v20, 4, v20')
    A.i(f'v_add_u32 v{vXk}, {S_X+128}, v20')
    A.i(f'v_add_u32 v{vB}, {S_X}, v20')
    A.i('s_cmp_eq_u32 s16, 0')
    lab = A.new('S_notq')
    A.i(f's_cbranch_scc1 {lab}')
    A.i('s_sub_u32 s23, s16, 2'); A.i('s_mul_i32 s23, s23, 6144'); A.i(f's_add_u32 s23, s23, {S_KQ+12288}')
    A.i(f'v_add_u32 v{vB}, s23, v{vL16}')
    A.label(lab)
    A.i(f'v_add_u32 v{vKt}, {S_KQ}, v{vL16}')
    A.i('s_mov_b32 s36, 24576')
    A.i('v_and_b32 v20, 8, v16'); A.i('v_cmp_eq_u32 vcc, 0, v20')
    A.i(f'v_mov_b32 v{vIdx}, 0xeeee'); A.i('v_mov_b32 v21, 0x4444'); A.i('s_nop 0')
    A.i(f'v_cndmask_b32 v{vIdx}, v{vIdx}, v21, vcc')
    A.i('v_lshlrev_b32 v20, 2, v18'); A.i('v_and_b32 v20, 7, v20')
    A.i('v_sub_u32 v21, v17, v20')
    A.i('v_subrev_u32 v22, 8, v21')
    ONE = 0x3f80
    for r in range(4):
        src = 21 if r < 2 else 22
        e0 = (r & 1)*2
        A.i(f'v_cmp_eq_u32 vcc, {e0}, v{src}'); A.i('v_mov_b32 v23, 0'); A.i(f'v_mov_b32 v24, {ONE:#x}')
        A.i('v_cndmask_b32 v25, v23, v24, vcc')
        A.i(f'v_cmp_eq_u32 vcc, {e0+1}, v{src}'); A.i(f'v_mov_b32 v24, {ONE<<16:#x}'); A.i('s_nop 0')
        A.i('v_cndmask_b32 v26, v23, v24, vcc')
        A.i(f'v_or_b32 v{RSEL+r}, v25, v26')
    A.i(f'v_mov_b32 v{VNINF}, 0xff800000')
    A.i('v_cmp_gt_u32 vcc, 32, v16'); A.i('s_nop 3'); A.i('s_mov_b64 s[42:43], vcc')
    A.i('v_and_b32 v20, 8, v16'); A.i('v_cmp_eq_u32 vcc, 0, v20'); A.i('s_nop 3'); A.i('s_and_b64 s[44:45], vcc, s[42:43]')
    A.i('s_cmp_eq_u32 s16, 0'); A.i('s_cselect_b64 s[42:43], s[44:45], s[42:43]')
    A.i('v_mov_b32 v23, 0'); A.i('s_nop 1')
    for r in range(4): A.i(f'v_cndmask_b32 v{RCI+r}, v{VNINF}, v23, s[42:43]')
    A.i('s_mov_b32 s26, 0xff00ff00'); A.i('s_mov_b32 s27, 0xff00ff00')
    A.i('v_lshlrev_b32 v20, 2, v18')
    for r in range(4):
        A.i(f'v_add_u32 v21, {r}, v20'); A.i('v_cmp_le_u32 vcc, v21, v17'); A.i('s_nop 3'); A.i('s_mov_b64 s[44:45], vcc')
        A.i('s_cmp_eq_u32 s16, 2')
        A.i(f's_cselect_b64 s[{48+2*r}:{49+2*r}], s[44:45], -1')
        A.i(f's_cselect_b64 s[{56+2*r}:{57+2*r}], 0, s[44:45]')
    A.i('s_mul_i32 s23, s3, 640')
    A.i('v_lshrrev_b32 v20, 3, v16'); A.i('v_and_b32 v20, 1, v20'); A.i('v_lshlrev_b32 v20, 1, v20')
    A.i('v_lshrrev_b32 v21, 1, v18'); A.i('v_add3_u32 v20, v20, v21, 1')
    A.i('v_lshlrev_b32 v20, 7, v20'); A.i('v_lshlrev_b32 v21, 4, v19'); A.i('v_add_u32 v20, v20, v21')
    A.i('v_and_b32 v21, 1, v18'); A.i('v_lshlrev_b32 v21, 3, v21')
    A.i(f'v_add3_u32 v{vPu}, v20, v21, s23')
    remap(A, vPu, 22)
    A.i('v_lshlrev_b32 v20, 4, v19'); A.i('v_lshlrev_b32 v21, 3, v18'); A.i(f'v_add3_u32 v{vP0}, v20, v21, s23')
    remap(A, vP0, 22)
    A.i('v_cmp_gt_u32 vcc, 32, v16'); A.i('s_nop 3'); A.i('s_mov_b64 s[44:45], vcc')
    A.i('v_and_b32 v20, 8, v16'); A.i('v_cmp_eq_u32 vcc, 0, v20'); A.i('s_nop 3'); A.i('s_and_b64 s[44:45], vcc, s[44:45]')
    A.i('v_mov_b32 v22, 0x80000000'); A.i('s_nop 0')
    A.i(f'v_cndmask_b32 v{vP0}, v22, v{vP0}, s[44:45]')
    lab = A.new('S_tokoff')
    A.i('s_cmp_lt_u32 s16, 2'); A.i(f's_cbranch_scc1 {lab}')
    A.i('s_sub_u32 s23, s16, 2'); A.i('s_lshl_b32 s23, s23, 4')
    A.i('v_add_u32 v20, s23, v17')
    A.i('v_lshrrev_b32 v21, 1, v18'); A.i('v_lshlrev_b32 v21, 5, v21'); A.i('v_add_u32 v21, v21, v20'); A.i('v_lshlrev_b32 v21, 4, v21')
    A.i('v_and_b32 v22, 1, v18'); A.i('v_lshlrev_b32 v22, 3, v22')
    A.i(f'v_add_u32 v{vPu}, v21, v22')
    A.i('v_lshlrev_b32 v21, 4, v20'); A.i('v_lshlrev_b32 v22, 3, v18'); A.i('v_add_u32 v21, v21, v22')
    A.i(f'v_add_u32 v{vP0}, 2048, v21')
    A.i('v_cmp_gt_u32 vcc, 32, v16'); A.i('v_mov_b32 v22, 0x80000000'); A.i('s_nop 0')
    A.i(f'v_cndmask_b32 v{vP0}, v22, v{vP0}, vcc')
    A.label(lab)
    ts_stamp(A, 7, 16)
    A.i(f's_mul_i32 s20, s3, 12288'); A.i(f's_add_u32 s21, s20, {WS_QT}'); A.i(f's_add_u32 s20, s20, {WS_KT}')
    A.i(f's_mul_i32 s37, s3, 2560'); A.i(f's_add_u32 s37, s37, {WS_PTOK}')
    A.i(f's_mov_b32 s38, {S_KQ}')
    def kq_dma():
        for which, so in ((0, 's20'), (1, 's21')):
            for blk in range(3):
                A.i(f's_add_u32 m0, s38, {which*12288 + blk*4096}')
                A.i(f's_add_u32 s23, {so}, {blk*4096}')
                for q in range(4):
                    A.i(f'buffer_load_dwordx4 v{vL16}, s[8:11], s23 offen offset:{q*1024} sc1 lds')
    if KN['unified']: ws_wait(A, BT_INIT, N_INIT, T0)
    A.i(f's_lshl_b32 s65, s3, 7'); A.i(f's_add_u32 s65, s65, {FL_KQ}')
    lab = A.new('S_nodma0')
    A.i('s_cmp_eq_u32 s16, 1'); A.i(f's_cbranch_scc0 {lab}')
    if KN['flags']: poll_flag(A, 65, 1, T0, backoff=4)
    kq_dma()
    A.label(lab)
    A.i(f's_add_u32 s20, s20, {32*12288}'); A.i(f's_add_u32 s21, s21, {32*12288}')
    A.i(f's_add_u32 s38, s38, s36')
    for r in range(24): A.i(f'v_mov_b32 v{RACC+r}, 0')
    A.i(f'v_mov_b32 v{RSC}, 0')
    A.i(f's_mov_b32 s24, {fbits(DH**-0.5*LOG2E):#x}')
    A.i('s_waitcnt vmcnt(0)')
    A.i('s_barrier')
    A.i('s_lshr_b32 s77, s3, 3'); A.i('s_lshl_b32 s77, s77, 8'); A.i(f's_add_u32 s77, s77, {FL_DB}')
    A.i('s_add_u32 s78, s77, 128')
    A.i('s_and_b32 s23, s3, 7'); A.i('s_lshl_b32 s23, s23, 2'); A.i('s_add_u32 s77, s77, s23')
    A.i('v_and_b32 v0, 63, v0'); A.i('v_min_u32 v0, 19, v0'); A.i('v_lshlrev_b32 v0, 2, v0')
    A.i('s_mov_b32 s25, s24')
    A.i(f's_mov_b32 s82, {WS_FLAGS + 0x16e00}')
    A.i('s_lshr_b32 s83, s3, 3'); A.i('s_lshl_b32 s83, s83, 7'); A.i('s_and_b32 s23, s3, 7'); A.i('s_lshl_b32 s23, s23, 2'); A.i('s_add_u32 s83, s83, s23'); A.i(f's_add_u32 s83, s83, {FL_PT}')
    placement_ok(A, RA)
    A.i(f's_mov_b32 s87, {KN["dbS"]}'); A.i('s_mov_b32 s88, 0')
    read_parity(A, RA)
    if KN['log']: A.i(('s_memtime' if KN.get('clk') else 's_memrealtime') + ' s[34:35]'); A.i('s_waitcnt lgkmcnt(0)'); A.i('s_mov_b32 s66, s34')
    A.label('S_loop')
    db_wait(A, 0, RA+14, 78, 17, KN['dbS'], 87 if KN['adapt'] else None)
    ev(A, 0, T2)
    sleep(A, KN['preS'])
    Areg = lambda kk: RA + 4*kk
    lg = LG(A)
    def wread(slot, half):
        st = RST + 8*(slot & 1) + 4*half
        lg.issue(f'ds_read_b128 {vr(st)}, v{vWr} offset:{slot*2048 + half*1024}', f'W{slot}' if half else f'W{slot}a')
    if KN['own']:
        A.i('s_mov_b32 s22, 0')
        A.label('S_poll')
        A.i(f'buffer_load_dwordx4 {vr(Areg(0))}, v{vG}, s[8:11], s18 offen {KN["gl"]}')
        A.i(f'buffer_load_dwordx4 {vr(Areg(1))}, v{vG}, s[8:11], s18 offen offset:1024 {KN["gl"]}')
        A.i(f'buffer_load_dwordx4 {vr(Areg(2))}, v{vG+1}, s[8:11], s18 offen {KN["gl"]}')
        A.i(f'buffer_load_dwordx4 {vr(Areg(3))}, v{vG+1}, s[8:11], s18 offen offset:1024 {KN["gl"]}')
        A.i('s_add_u32 s22, s22, 1'); A.i(f's_cmp_gt_u32 s22, {SPIN_MAX}'); A.i('s_cbranch_scc1 R_fail')
        x, y, t0 = Areg(4), Areg(4)+1, Areg(0)
        A.i('s_waitcnt vmcnt(2)')
        A.i(f'v_max3_u32 v{x}, v{t0}, v{t0+1}, v{t0+2}'); A.i(f'v_max3_u32 v{y}, v{t0+3}, v{t0+4}, v{t0+5}'); A.i(f'v_max3_u32 v{x}, v{t0+6}, v{t0+7}, v{x}')
        A.i('s_waitcnt vmcnt(1)')
        A.i(f'ds_write_b128 v{vLm0}, {vr(Areg(2))}')
        A.i(f'v_max3_u32 v{y}, v{t0+8}, v{t0+9}, v{y}'); A.i(f'v_max3_u32 v{x}, v{t0+10}, v{t0+11}, v{x}')
        A.i('s_waitcnt vmcnt(0)')
        A.i(f'ds_write_b128 v{vLm0}, {vr(Areg(3))} offset:1024')
        A.i(f'v_max3_u32 v{y}, v{t0+12}, v{t0+13}, v{y}'); A.i(f'v_max3_u32 v{x}, v{t0+14}, v{t0+15}, v{x}')
        A.i(f'v_max_u32 v{x}, v{x}, v{y}'); A.i(f'v_cmp_eq_u32 vcc, -1, v{x}'); A.i('s_cbranch_vccnz S_poll')
    else:
        gather_mem(A, 'S_poll', 'R_fail', vG, vLm0, vLm2, RA)
    if KN['adapt']: A.i('s_mov_b32 s94, s22')
    if KN['log']: A.i('s_add_u32 s72, s72, s22')
    if not KN['own']:
        stamp(A, 68)
        ev(A, 1, T2)
        for kk in range(10):
            lg.issue(f'ds_read_b128 {vr(Areg(kk))}, v{vAr} offset:{kk*1024}', f'A{kk}')
        wread(0, 0); wread(0, 1)
    ktreg = lambda j: Areg(j) if j < 10 else RST + 4*(j-10)
    def kt_issue(j):
        T, kq = j & 1, j >> 1
        lg.issue(f'ds_read_b128 {vr(ktreg(j))}, v{vKt} offset:{(T*6+kq)*1024}', f'K{j}')
    def T_cvt1(p, r):
        src = RACC + 8*p + (0 if r < 2 else 4) + 2*(r & 1)
        A.need(f'acc{p}', 8)
        A.i(f'v_cvt_pk_bf16_f32 v{RAIN+r}, v{src}, v{src+1}'); A.mark('ain')
    def T_mfma(p):
        A.need('ain', 2)
        A.i(f'v_mfma_f32_16x16x32_bf16 {vr(RD3)}, {vr(RAIN)}, {vr(RSEL)}, 0'); A.mark('d3')
    def T_cvt2(p, h):
        A.need('d3', 8)
        A.i(f'v_cvt_pk_bf16_f32 v{T0+h}, v{RD3+2*h}, v{RD3+2*h+1}')
    def T_addr(p): A.i(f'v_add_u32 v{T2}, s{39+p}, v{vXw}')
    def T_write(p):
        lg.issue(f'ds_write_b64 v{vXw if p == 0 else T2}, v[{T0}:{T0+1}]', f'X{p}')
    def smf(tt, kk):
        kind, r = s_wloc(tt, kk)
        if kind == 'l':
            lg.wait(f'W{r}')
            breg = vr(RST + 8*(r & 1), 8)
        else:
            breg = (ar if kind == 'a' else vr)(r, 8)
        A.i(f'v_smfmac_f32_16x16x64_bf16 {vr(RACC+4*tt)}, {vr(Areg(kk))}, {breg}, v{vIdx}')
    if KN['own']:
        for tt in range(6): smf(tt, 0)
        A.i('s_waitcnt lgkmcnt(0)'); A.i('s_barrier')
        stamp(A, 68); ev(A, 1, T2)
        seq = [lambda kk=kk: lg.issue(f'ds_read_b128 {vr(Areg(kk))}, v{vAr} offset:{kk*1024}', f'A{kk}') for kk in range(2, 10)]
        pre = [seq[0], lambda: wread(0, 0), lambda: wread(0, 1)] + seq[1:]
        for f in pre[:5]: f()
        rest = pre[5:]
        for tt in range(6):
            smf(tt, 1)
            if rest: rest.pop(0)()
        while rest: rest.pop(0)()
        for p in range(3):
            ex = {}
            def put(pos, f):
                ex.setdefault(pos, []).append(f)
            b = 4*p
            put(0, lambda: wread(b+1, 0)); put(1, lambda: wread(b+1, 1))
            put(2, lambda: wread(b+2, 0)); put(3, lambda: wread(b+2, 1))
            put(6, lambda: wread(b+3, 0)); put(7, lambda: wread(b+3, 1))
            if p < 2: put(9, lambda: wread(b+4, 0)); put(10, lambda: wread(b+4, 1))
            if p > 0:
                q = p-1
                put(4, lambda: T_cvt1(q, 0)); put(5, lambda: T_cvt1(q, 1)); put(6, lambda: T_cvt1(q, 2)); put(8, lambda: T_cvt1(q, 3))
                put(10, lambda: T_mfma(q))
                if q > 0: put(1, lambda: T_addr(q))
                put(14, lambda: T_cvt2(q, 0)); put(15, lambda: T_cvt2(q, 1))
            if p == 0: put(11, lambda: kt_issue(0)); put(12, lambda: kt_issue(1))
            if p == 2:
                for j in range(2, 9): put(2*(j-2) + 2, lambda j=j: kt_issue(j))
                put(11, lambda: kt_issue(10)); put(13, lambda: kt_issue(11))
            for pos in range(16):
                kk, isk = 2 + (pos >> 1), pos & 1
                if p == 0 and isk == 0 and kk in (2, 3, 5): lg.wait(f'A{ {2:2, 3:4, 5:9}[kk] }')
                if p == 2 and pos == 0: T_write(0)
                smf(2*p + isk, kk)
                if pos == 15: A.mark(f'acc{p}')
                for f in ex.get(pos, []): f()
    else:
        def extras(p):
            ex = {}
            def put(pos, f):
                while pos in ex: pos += 1
                ex[pos] = f
            b = 4*p
            put(0, lambda: wread(b+1, 0)); put(1, lambda: wread(b+1, 1))
            put(5, lambda: wread(b+2, 0)); put(6, lambda: wread(b+2, 1))
            put(10, lambda: wread(b+3, 0)); put(13, lambda: wread(b+3, 1))
            if p < 2:
                put(14, lambda: wread(b+4, 0)); put(15, lambda: wread(b+4, 1))
            if p > 0:
                q = p-1
                put(4, lambda: T_cvt1(q, 0)); put(7, lambda: T_cvt1(q, 1)); put(8, lambda: T_cvt1(q, 2)); put(9, lambda: T_cvt1(q, 3))
                put(12, lambda: T_mfma(q))
                if q > 0: put(2, lambda: T_addr(q))
                put(17, lambda: T_cvt2(q, 0)); put(18, lambda: T_cvt2(q, 1))
            return ex
        for p in range(3):
            ex = extras(p)
            for pos in range(20):
                kk, isk = pos >> 1, pos & 1
                tt = 2*p + isk
                kind, r = s_wloc(tt, kk)
                if p == 0 and isk == 0 and kk in (0, 2, 5): lg.wait(f'A{ {0:1, 2:4, 5:9}[kk] }')
                if p == 2 and pos == 0: T_write(0)
                if kind == 'l':
                    lg.wait(f'W{r}')
                    breg = vr(RST + 8*(r & 1), 8)
                else:
                    breg = (ar if kind == 'a' else vr)(r, 8)
                A.i(f'v_smfmac_f32_16x16x64_bf16 {vr(RACC+4*tt)}, {vr(Areg(kk))}, {breg}, v{vIdx}')
                if pos == 19: A.mark(f'acc{p}')
                if pos in ex: ex[pos]()
                if p == 2:
                    if pos >= 2 and pos % 2 == 0: kt_issue(pos//2 - 1)
                    if pos == 15: kt_issue(10)
                    if pos == 17: kt_issue(11)
    T_write(1)
    kt_issue(9)
    for r in range(4): T_cvt1(2, r)
    T_addr(2)
    T_mfma(2)
    T_cvt2(2, 0); T_cvt2(2, 1)
    T_write(2)
    lg.wait_all()
    A.i('s_barrier')
    stamp(A, 69)
    ev(A, 2, T2)
    D0, D1, D2 = RSC, RSC+4, RSC+8
    xb = lambda b: RACC + 8*b
    def scores():
        lg = LG(A)
        def x_issue(kq):
            b = kq % 3
            lg.issue(f'ds_read_b128 {vr(xb(b))}, v{vB} offset:{kq*1024}', f'B{kq}')
            lg.issue(f'ds_read_b128 {vr(xb(b)+4)}, v{vXk} offset:{kq*1024}', f'Xk{kq}')
        for kq in range(3): x_issue(kq)
        for kq in range(6):
            b = kq % 3
            lg.wait(f'B{kq}')
            c0 = vr(RCI) if kq == 0 else vr(D0)
            c1 = '0' if kq == 0 else vr(D1)
            c2 = '0' if kq == 0 else vr(D2)
            A.i(f'v_mfma_f32_16x16x32_bf16 {vr(D1)}, {vr(ktreg(2*kq))}, {vr(xb(b))}, {c1}')
            A.i(f'v_mfma_f32_16x16x32_bf16 {vr(D2)}, {vr(ktreg(2*kq+1))}, {vr(xb(b))}, {c2}')
            lg.wait(f'Xk{kq}')
            A.i(f'v_mfma_f32_16x16x32_bf16 {vr(D0)}, {vr(xb(b)+4)}, {vr(xb(b))}, {c0}')
            if kq < 3: x_issue(kq+3)
        A.mark('sc')
    A.i('s_cmp_eq_u32 s16, 0')
    A.i('s_cbranch_scc0 S_notw0')
    A.c('memory queries')
    scores()
    U = RACC
    ML, MG, TT, F, SM = RAIN, RAIN+1, RAIN+2, RAIN+3, RD3
    E = RACC+8
    A.need('sc', 8)
    for r in range(4): A.i(f'v_cndmask_b32 v{U+r}, v{D1+r}, v{D2+r}, s[26:27]')
    A.i(f'v_max3_f32 v{ML}, v{D0}, v{D0+1}, v{D0+2}')
    A.i(f'v_max3_f32 v{TT}, v{U}, v{U+1}, v{U+2}')
    A.i(f'v_max3_f32 v{ML}, v{ML}, v{D0+3}, v{U+3}')
    A.i(f'v_max_f32 v{ML}, v{ML}, v{TT}')
    A.i(f'v_mul_f32 v{ML}, s24, v{ML}')
    def pkfma(d, sreg): A.i(f'v_pk_fma_f32 v[{d}:{d+1}], v[{sreg}:{sreg+1}], s[24:25], v[{ML}:{ML+1}] op_sel_hi:[1,1,0] neg_lo:[0,0,1] neg_hi:[0,0,1]')
    pkfma(E, U); pkfma(E+2, U+2)
    A.i(f'v_max_f32_dpp v{MG}, v{ML}, v{ML} row_ror:8 row_mask:0xf bank_mask:0xf')
    A.i(f'v_mov_b32 v{TT}, v{MG}')
    pkfma(E+4, D0); pkfma(E+6, D0+2)
    A.i(f'v_permlane16_swap_b32 v{MG}, v{TT}')
    A.i(f'v_exp_f32 v{E}, v{E}')
    A.i(f'v_max_f32 v{MG}, v{MG}, v{TT}')
    A.i(f'v_exp_f32 v{E+1}, v{E+1}')
    A.i(f'v_mov_b32 v{TT}, v{MG}')
    A.i(f'v_exp_f32 v{E+2}, v{E+2}'); A.i(f'v_exp_f32 v{E+3}, v{E+3}')
    A.i(f'v_permlane32_swap_b32 v{MG}, v{TT}')
    A.i(f'v_exp_f32 v{E+4}, v{E+4}')
    A.i(f'v_max_f32 v{MG}, v{MG}, v{TT}')
    A.i(f'v_exp_f32 v{E+5}, v{E+5}')
    A.i(f'v_sub_f32 v{F}, v{ML}, v{MG}')
    A.i(f'v_exp_f32 v{E+6}, v{E+6}'); A.i(f'v_exp_f32 v{E+7}, v{E+7}')
    A.i(f'v_exp_f32 v{F}, v{F}')
    A.i(f'v_pk_add_f32 v[{SM}:{SM+1}], v[{E}:{E+1}], v[{E+2}:{E+3}]')
    A.i(f'v_pk_add_f32 v[{SM+2}:{SM+3}], v[{E+4}:{E+5}], v[{E+6}:{E+7}]')
    A.i(f'v_pk_add_f32 v[{SM}:{SM+1}], v[{SM}:{SM+1}], v[{SM+2}:{SM+3}]')
    A.i(f'v_add_f32 v{SM}, v{SM}, v{SM+1}')
    A.i(f'v_mul_f32 v{SM}, v{SM}, v{F}')
    A.i('s_nop 1')
    A.i(f'v_add_f32_dpp v{SM}, v{SM}, v{SM} row_ror:8 row_mask:0xf bank_mask:0xf')
    xlane_reduce(A, 'v_add_f32', SM, TT)
    A.i(f'v_rcp_f32 v{SM}, v{SM}')
    A.i('s_nop 0')
    A.i(f'v_mul_f32 v{F}, v{F}, v{SM}')
    for j in range(0, 4, 2): A.i(f'v_pk_mul_f32 v[{E+j}:{E+j+1}], v[{E+j}:{E+j+1}], v[{F-1}:{F}] op_sel:[0,1] op_sel_hi:[1,1]')
    A.i(f'v_cvt_pk_bf16_f32 v{U}, v{E}, v{E+1}'); A.i(f'v_cvt_pk_bf16_f32 v{U+1}, v{E+2}, v{E+3}')
    A.i(f'buffer_store_dwordx2 v[{U}:{U+1}], v{vPu}, s[8:11], s19 offen sc1')
    for j in range(4, 8, 2): A.i(f'v_pk_mul_f32 v[{E+j}:{E+j+1}], v[{E+j}:{E+j+1}], v[{F-1}:{F}] op_sel:[0,1] op_sel_hi:[1,1]')
    A.i(f'v_cvt_pk_bf16_f32 v{U+2}, v{E+4}, v{E+5}'); A.i(f'v_cvt_pk_bf16_f32 v{U+3}, v{E+6}, v{E+7}')
    A.i(f'buffer_store_dwordx2 v[{U+2}:{U+3}], v{vP0}, s[8:11], s19 offen sc1')
    if KN['late']:
        A.i('s_add_u32 s79, s17, 1'); db_ring(A, T0, 77, 79)
    A.i('s_branch S_end')
    A.label('S_notw0')
    A.i('s_cmp_eq_u32 s16, 1')
    A.i('s_cbranch_scc1 S_wave1')
    if KN['post']:
        lab = A.new('S_nopt')
        A.i('s_cmp_eq_u32 s16, 3'); A.i(f's_cbranch_scc0 {lab}')
        A.i('s_mov_b64 exec, 1')
        A.i(f'buffer_store_dword v{vIdx}, off, s[8:11], s82 sc1')
        A.i('s_mov_b64 exec, -1')
        A.i('s_mov_b32 s82, s83'); A.i('s_add_u32 s83, s83, 512')
        A.label(lab)
    scores()
    MX, SM = RAIN, RAIN+2
    TT = RAIN+1
    A.i('s_nop 7')
    for r in range(4):
        A.i(f'v_cndmask_b32 v{D1+r}, v{VNINF}, v{D1+r}, s[{48+2*r}:{49+2*r}]')
        A.i(f'v_cndmask_b32 v{D2+r}, v{VNINF}, v{D2+r}, s[{56+2*r}:{57+2*r}]')
    A.i(f'v_max3_f32 v{MX}, v{D0}, v{D0+1}, v{D0+2}')
    A.i(f'v_max3_f32 v{TT}, v{D1}, v{D1+1}, v{D1+2}')
    A.i(f'v_max3_f32 v{MX}, v{MX}, v{D0+3}, v{D1+3}')
    A.i(f'v_max3_f32 v{TT}, v{TT}, v{D2}, v{D2+1}')
    A.i(f'v_max3_f32 v{MX}, v{MX}, v{D2+2}, v{D2+3}')
    A.i(f'v_max_f32 v{MX}, v{MX}, v{TT}')
    xlane_reduce(A, 'v_max_f32', MX, TT)
    A.i(f'v_mul_f32 v{MX}, s24, v{MX}')
    E = RACC
    for j in range(12): A.i(f'v_fma_f32 v{E+j}, v{D0+j}, s24, -v{MX}')
    for j in range(12): A.i(f'v_exp_f32 v{E+j}, v{E+j}')
    A.i(f'v_add_f32 v{SM}, v{E}, v{E+1}')
    for j in range(2, 12): A.i(f'v_add_f32 v{SM}, v{SM}, v{E+j}')
    xlane_reduce(A, 'v_add_f32', SM, TT)
    A.i(f'v_rcp_f32 v{SM}, v{SM}')
    A.i('s_nop 0')
    for j in range(12): A.i(f'v_mul_f32 v{E+j}, v{E+j}, v{SM}')
    O = RACC+12
    for j in range(6): A.i(f'v_cvt_pk_bf16_f32 v{O+j}, v{E+2*j}, v{E+2*j+1}')
    A.i(f'buffer_store_dwordx2 v[{O}:{O+1}], v{vP0}, s[8:11], s37 offen sc1')
    A.i(f'buffer_store_dwordx2 v[{O+2}:{O+3}], v{vPu}, s[8:11], s37 offen sc1')
    A.i(f'buffer_store_dwordx2 v[{O+4}:{O+5}], v{vPu}, s[8:11], s37 offen offset:1024 sc1')
    A.i('s_branch S_end')
    A.label('S_wave1')
    sleep(A, KN['ring_at'])
    if not KN['late']:
        A.i('s_add_u32 s79, s17, 1')
        db_ring(A, T0, 77, 79)
    A.i(f's_cmp_ge_u32 s17, {nsteps-1}')
    A.i('s_cbranch_scc1 S_end')
    if KN['flags']:
        lab = A.new('S_noflag')
        A.i('s_add_u32 s23, s17, 1'); A.i('s_and_b32 s23, s23, 3'); A.i('s_cmp_eq_u32 s23, 0'); A.i(f's_cbranch_scc0 {lab}')
        A.i(f's_add_u32 s65, s65, {32*128}')
        A.i(f'v_readfirstlane_b32 s23, v{RSC}'); A.i('s_nop 3'); A.i('s_cmp_ge_u32 s23, 1'); A.i(f's_cbranch_scc1 {lab}')
        poll_flag(A, 65, 1, T0)
        A.label(lab)
    kq_dma()
    if KN['flags']:
        lab = A.new('S_nosample')
        A.i('s_add_u32 s23, s17, 2'); A.i('s_and_b32 s23, s23, 3'); A.i('s_cmp_eq_u32 s23, 0'); A.i(f's_cbranch_scc0 {lab}')
        A.i(f's_add_u32 s23, s65, {32*128}')
        A.i(f'buffer_load_dword v{RSC}, off, s[8:11], s23 sc1')
        A.label(lab)
    A.label('S_end')
    stamp(A, 70)
    ev(A, 3, T2)
    if KN['adapt']:
        A.i('s_mov_b32 s22, s94'); adapt(A, 87, 88, KN['loS'], KN['hiS'])
    A.i('s_nop 1')
    for r in range(24): A.i(f'v_mov_b32 v{RACC+r}, 0')
    A.i(f'v_add_u32 v{vKt}, s36, v{vKt}')
    A.i('s_cmp_eq_u32 s16, 0'); A.i('s_cselect_b32 s23, 0, s36')
    A.i(f'v_add_u32 v{vB}, s23, v{vB}')
    A.i('s_sub_u32 s38, s38, s36')
    A.i('s_sub_u32 s36, 0, s36')
    A.i(f's_add_u32 s20, s20, {32*12288}'); A.i(f's_add_u32 s21, s21, {32*12288}')
    A.i(f's_add_u32 s37, s37, {32*2560}')
    advance(A)
    A.i(f's_cmp_lt_u32 s17, {nsteps}')
    A.i('s_cbranch_scc1 S_loop')
    if KN['post']:
        A.i('s_waitcnt vmcnt(0)'); A.i('s_barrier')
        A.i('s_cmp_eq_u32 s16, 3'); A.i('s_cbranch_scc0 R_done')
        A.i('s_mov_b64 exec, 1'); A.i(f'buffer_store_dword v{vIdx}, off, s[8:11], s82 sc1'); A.i('s_mov_b64 exec, -1')
    A.i('s_branch R_done')
def gen_C(A, nsteps):
    vL16, vG, vLm0, vLm2, vAr, vIdx, vPg, vRw, vRr1, vRr2, vPub = 1, 2, 5, 6, 7, 8, 9, 14, 15, 16, 17
    FLG = 149
    RA, RD, RVM, RVT, RP, RO, RT = 20, 60, 76, 80, 112, 132, 136
    wreg = lambda j: (ar, j*8) if j < 32 else (vr, 192 + (j-32)*8)
    A.label('C_role')
    A.c('---- column-owner role setup; s3-NS = column block')
    A.i(f's_sub_u32 s3, s3, {NS}')
    probe_parity(A)
    if KN['unified']:
        b_tasks(A, None, 'C')
        ws_wait(A, BT_BDONE, 320, RT, 8)
        ts_stamp(A, 2, 22)
    A.i(f'v_and_b32 v{RT}, 63, v0')
    A.i(f'v_lshlrev_b32 v{vL16}, 4, v{RT}')
    setup_gather_addrs(A, vG, vLm0, vLm2, C_MEM, RT+1)
    A.i(f'v_add_u32 v{vAr}, {C_MEM}, v{vL16}')
    L, G, M, HF = RT, RT+1, RT+2, RT+3
    A.i(f'v_lshrrev_b32 v{G}, 4, v{L}'); A.i(f'v_and_b32 v{M}, 7, v{L}')
    A.i(f'v_lshrrev_b32 v{HF}, 3, v{L}'); A.i(f'v_and_b32 v{HF}, 1, v{HF}')
    A.i(f'v_cmp_eq_u32 vcc, 0, v{HF}')
    A.i(f'v_mov_b32 v{vIdx}, 0xeeee'); A.i(f'v_mov_b32 v{RT+4}, 0x4444'); A.i('s_nop 0')
    A.i(f'v_cndmask_b32 v{vIdx}, v{vIdx}, v{RT+4}, vcc')
    A.i('s_lshl_b32 s23, s16, 3')
    for u in range(4):
        A.i(f'v_add_u32 v{RT+4}, s23, v{HF}'); A.i(f'v_add_u32 v{RT+4}, {2*u}, v{RT+4}')
        A.i(f'v_mul_u32_u24 v{RT+4}, 640, v{RT+4}')
        A.i(f'v_add_u32 v{RT+5}, 1, v{G}'); A.i(f'v_lshlrev_b32 v{RT+5}, 7, v{RT+5}')
        A.i(f'v_lshlrev_b32 v{RT+6}, 4, v{M}')
        A.i(f'v_add3_u32 v{vPg+u}, v{RT+4}, v{RT+5}, v{RT+6}')
        remap(A, vPg+u, RT+4)
    A.i(f'v_lshlrev_b32 v{RT+4}, 2, v{HF}'); A.i(f'v_add3_u32 v{RT+4}, v{RT+4}, v{G}, s23')
    A.i(f'v_mul_u32_u24 v{RT+4}, 640, v{RT+4}'); A.i(f'v_lshlrev_b32 v{RT+6}, 4, v{M}')
    A.i(f'v_add_u32 v{vPg+4}, v{RT+4}, v{RT+6}')
    remap(A, vPg+4, RT+4)
    A.i('s_lshl_b32 s23, s16, 10'); A.i(f's_add_u32 s23, s23, {C_RED}')
    A.i(f'v_add_u32 v{vRw}, s23, v{vL16}')
    A.i(f'v_lshlrev_b32 v{RT+4}, 10, v{G}')
    A.i(f'v_lshlrev_b32 v{RT+5}, 4, v{HF}'); A.i(f'v_add_u32 v{RT+5}, v{RT+5}, v{M}'); A.i(f'v_lshlrev_b32 v{RT+5}, 4, v{RT+5}')
    A.i(f'v_add_u32 v{RT+4}, v{RT+4}, v{RT+5}')
    A.i(f'v_add_u32 v{vRr1}, {C_RED}, v{RT+4}')
    A.i(f'v_add_u32 v{vRr2}, {C_RED + (2*16+8)*16}, v{RT+4}')
    A.i('s_lshl_b32 s23, s3, 7')
    A.i(f'v_lshlrev_b32 v{RT+4}, 4, v{M}'); A.i(f'v_lshlrev_b32 v{RT+5}, 3, v{HF}'); A.i(f'v_add_u32 v{RT+4}, v{RT+4}, v{RT+5}')
    A.i(f'v_lshrrev_b32 v{RT+5}, 1, v{G}'); A.i(f'v_lshlrev_b32 v{RT+5}, 2, v{RT+5}')
    A.i(f'v_add3_u32 v{vPub}, v{RT+4}, v{RT+5}, s23')
    remap(A, vPub, RT+4)
    A.i(f'v_add_u32 v{vPub}, {MEM_STRIDE}, v{vPub}')
    A.i(f'v_and_b32 v{RT+4}, 1, v{G}'); A.i(f'v_cmp_eq_u32 vcc, 0, v{RT+4}')
    A.i(f'v_mov_b32 v{RT+5}, 0x80000000'); A.i('s_nop 0')
    A.i(f'v_cndmask_b32 v{vPub}, v{RT+5}, v{vPub}, vcc')
    A.i(f's_mul_i32 s23, s3, 327680'); A.i('s_mul_i32 s24, s16, 81920'); A.i('s_add_u32 s23, s23, s24'); A.i(f's_add_u32 s23, s23, {WS_BW}')
    for j in range(40):
        f, r = wreg(j)
        A.i(f'buffer_load_dwordx4 {f(r)}, v{vL16}, s[8:11], s23 offen sc1')
        A.i(f'buffer_load_dwordx4 {f(r+4)}, v{vL16}, s[8:11], s23 offen offset:1024 sc1')
        A.i('s_add_u32 s23, s23, 2048')
        if j % 8 == 7: A.i('s_waitcnt vmcnt(32)')
    A.i('s_waitcnt vmcnt(0)')
    ts_stamp(A, 8, RT)
    A.i('s_mul_i32 s20, s3, 16384'); A.i('s_lshl_b32 s23, s16, 12'); A.i('s_add_u32 s20, s20, s23'); A.i(f's_add_u32 s20, s20, {WS_VOT}')
    A.i('s_mul_i32 s21, s3, 4096'); A.i('s_lshl_b32 s23, s16, 10'); A.i('s_add_u32 s21, s21, s23'); A.i(f's_add_u32 s21, s21, {WS_VOM}')
    def vt_load(buf):
        for u in range(4):
            A.i(f'buffer_load_dwordx4 {vr(RVT+16*buf+4*u)}, v{vL16}, s[8:11], s20 offen offset:{u*1024} sc1')
        A.i(f's_add_u32 s20, s20, {80*16384}')
    if KN['unified']: ws_wait(A, BT_INIT, N_INIT, RT)
    A.i(f's_mov_b32 s65, {FL_VVO}')
    if KN['flags']: poll_flag(A, 65, 32, RT, backoff=4)
    A.i(f'v_mov_b32 v{FLG}, 0')
    vt_load(0)
    A.i('s_waitcnt vmcnt(0)')
    A.i('s_mul_i32 s77, s3, 3277'); A.i('s_lshr_b32 s77, s77, 16')
    A.i('s_mul_i32 s23, s77, 20'); A.i('s_sub_u32 s79, s3, s23')
    A.i('s_lshl_b32 s77, s77, 8'); A.i(f's_add_u32 s78, s77, {FL_DB}')
    A.i('s_add_u32 s80, s78, 128')
    A.i('s_lshl_b32 s79, s79, 2'); A.i('s_add_u32 s77, s80, s79')
    vDS, vDC = 18, 19
    A.i(f'v_and_b32 v{vDS}, 63, v0'); A.i(f'v_min_u32 v{vDC}, 19, v{vDS}'); A.i(f'v_lshlrev_b32 v{vDC}, 2, v{vDC}')
    A.i(f'v_min_u32 v{vDS}, 7, v{vDS}'); A.i(f'v_lshlrev_b32 v{vDS}, 2, v{vDS}')
    placement_ok(A, RT)
    A.i(f's_mov_b32 s87, {KN["dbC"]}'); A.i('s_mov_b32 s88, 0')
    read_parity(A, RT)
    if KN['log']: A.i(('s_memtime' if KN.get('clk') else 's_memrealtime') + ' s[34:35]'); A.i('s_waitcnt lgkmcnt(0)'); A.i('s_mov_b32 s66, s34')

    def body(buf, tagp):
        db_wait(A, vDC, RT, 80, 17, KN['dbCm'])
        ev(A, 0, RT+3)
        sleep(A, KN['dC0'])
        gather_mem(A, f'C_poll{tagp}', 'R_fail', vG, vLm0, vLm2, RP)
        if KN['log']: A.i('s_add_u32 s72, s72, s22')
        stamp(A, 68)
        ev(A, 1, RT+3)
        lg = LG(A)
        for kk in range(10):
            lg.issue(f'ds_read_b128 {vr(RA+4*kk)}, v{vAr} offset:{kk*1024}', f'A{kk}')
        lab = A.new('C_novt')
        A.i(f's_cmp_ge_u32 s17, {nsteps-1}'); A.i(f's_cbranch_scc1 {lab}')
        if KN['flags']:
            l2 = A.new('C_noflag')
            A.i('s_add_u32 s23, s17, 1'); A.i('s_and_b32 s23, s23, 3'); A.i('s_cmp_eq_u32 s23, 0'); A.i(f's_cbranch_scc0 {l2}')
            A.i('s_add_u32 s65, s65, 128')
            A.i(f'v_readfirstlane_b32 s23, v{FLG}'); A.i('s_nop 3'); A.i('s_cmp_ge_u32 s23, 32'); A.i(f's_cbranch_scc1 {l2}')
            poll_flag(A, 65, 32, RT)
            A.label(l2)
        if KN.get('vtlat'): A.i('s_memrealtime s[86:87]'); A.i('s_waitcnt lgkmcnt(0)')
        vt_load(buf ^ 1)
        if KN['flags']:
            l3 = A.new('C_nosample')
            A.i('s_add_u32 s23, s17, 2'); A.i('s_and_b32 s23, s23, 3'); A.i('s_cmp_eq_u32 s23, 0'); A.i(f's_cbranch_scc0 {l3}')
            A.i('s_add_u32 s23, s65, 128')
            A.i(f'buffer_load_dword v{FLG}, off, s[8:11], s23 sc1')
            A.label(l3)
        if KN.get('vtlat'):
            A.i('s_waitcnt vmcnt(0)'); A.i('s_memrealtime s[88:89]'); A.i('s_waitcnt lgkmcnt(0)'); A.i('s_sub_u32 s88, s88, s86')
            A.i('s_mov_b32 m0, s17'); A.i('s_nop 0'); A.i('v_writelane_b32 v151, s88, m0')
        A.label(lab)
        for r in range(16): A.i(f'v_mov_b32 v{RD+r}, 0')
        A.i('s_nop 1')
        for kk in range(10):
            lg.wait(f'A{kk}')
            for t in range(4):
                f, r = wreg(t*10 + kk)
                A.i(f'v_smfmac_f32_16x16x64_bf16 {vr(RD+4*t)}, {vr(RA+4*kk)}, {f(r,8)}, v{vIdx}')
        A.i('s_nop 7')
        for i in range(4):
            A.i(f'v_permlane32_swap_b32 v{RD+i}, v{RD+8+i}')
            A.i(f'v_permlane32_swap_b32 v{RD+4+i}, v{RD+12+i}')
        for i in range(4):
            A.i(f'v_add_f32 v{RD+i}, v{RD+i}, v{RD+8+i}')
            A.i(f'v_add_f32 v{RD+4+i}, v{RD+4+i}, v{RD+12+i}')
        A.i(f'v_cvt_pk_bf16_f32 v{RVM}, v{RD}, v{RD+1}'); A.i(f'v_cvt_pk_bf16_f32 v{RVM+1}, v{RD+2}, v{RD+3}')
        A.i(f'v_cvt_pk_bf16_f32 v{RVM+2}, v{RD+4}, v{RD+5}'); A.i(f'v_cvt_pk_bf16_f32 v{RVM+3}, v{RD+6}, v{RD+7}')
        A.i('s_nop 1')
        A.i(f'v_permlane16_swap_b32 v{RVM}, v{RVM+2}')
        A.i(f'v_permlane16_swap_b32 v{RVM+1}, v{RVM+3}')
        A.i(f's_cmp_ge_u32 s17, {nsteps-1}'); A.i('s_cbranch_scc1 C_last')
        stamp(A, 69)
        ev(A, 2, RT+3)
        A.i('s_add_u32 s79, s17, 1')
        db_wait(A, vDS, RT, 78, 79, KN['dbC'], 87 if KN['adapt'] else None)
        ev(A, 3, RT+3)
        sleep(A, KN['preC'])
        A.i('s_mov_b32 s22, 0')
        A.i(f'v_mov_b32 v{RT+2}, s79')
        lbl = f'C_pp{tagp}'
        A.label(lbl)
        for u in range(5):
            A.i(f'buffer_load_dwordx4 {vr(RP+4*u)}, v{vPg+u}, s[8:11], s19 offen {KN["gl"]}')
        A.i('s_add_u32 s22, s22, 1'); A.i(f's_cmp_gt_u32 s22, {SPIN_MAX}'); A.i('s_cbranch_scc1 R_fail')
        x, y = RT, RT+1
        for u in range(5):
            A.i(f's_waitcnt vmcnt({4-u})')
            a_op = vr(RVT+16*buf+4*u) if u < 4 else vr(RVM)
            cc = '0' if u == 0 else vr(RO)
            A.i(f'v_mfma_f32_16x16x32_bf16 {vr(RO)}, {a_op}, {vr(RP+4*u)}, {cc}')
            p = RP+4*u
            if u == 0:
                A.i(f'v_max3_u32 v{x}, v{p}, v{p+1}, v{p+2}'); A.i(f'v_mov_b32 v{y}, v{p+3}')
            else:
                A.i(f'v_max3_u32 v{x}, v{p}, v{p+1}, v{x}'); A.i(f'v_max3_u32 v{y}, v{p+2}, v{p+3}, v{y}')
        A.mark('ro')
        A.i(f'v_max_u32 v{x}, v{x}, v{y}')
        A.i(f'v_cmp_eq_u32 vcc, -1, v{x}')
        A.i(f's_cbranch_vccnz {lbl}')
        if KN['log']: A.i('s_add_u32 s73, s73, s22')
        stamp(A, 70)
        ev(A, 4, RT+3)
        A.need('ro', 8)
        A.i(f'ds_write_b128 v{vRw}, {vr(RO)}')
        lab = A.new('C_nopub'); lab2 = A.new('C_join')
        A.i('s_cmp_eq_u32 s16, 0'); A.i(f's_cbranch_scc0 {lab}')
        if KN['db'] and not KN['lateC']:
            A.i('s_mov_b64 exec, 1'); A.i(f'buffer_store_dword v{RT+2}, off, s[8:11], s77'); A.i('s_mov_b64 exec, -1')
        A.i('s_waitcnt lgkmcnt(0)')
        A.i('s_barrier')
        R1, R2 = RT+4, RT+8
        A.i(f'ds_read_b128 {vr(R1)}, v{vRr1}'); A.i(f'ds_read_b128 {vr(R2)}, v{vRr2}')
        A.i('s_waitcnt lgkmcnt(0)')
        A.i(f'v_pk_add_f32 v[{R1}:{R1+1}], v[{R1}:{R1+1}], v[{R2}:{R2+1}]'); A.i(f'v_pk_add_f32 v[{R1+2}:{R1+3}], v[{R1+2}:{R1+3}], v[{R2+2}:{R2+3}]')
        A.i('s_nop 1')
        A.i(f'v_permlane32_swap_b32 v{R1}, v{R1+2}')
        A.i(f'v_permlane32_swap_b32 v{R1+1}, v{R1+3}')
        A.i(f'v_pk_add_f32 v[{R1}:{R1+1}], v[{R1}:{R1+1}], v[{R1+2}:{R1+3}]')
        A.i(f'v_mov_b32 v{R2}, v{R1}'); A.i(f'v_mov_b32 v{R2+1}, v{R1+1}')
        A.i('s_nop 0')
        A.i(f'v_permlane16_swap_b32 v{R1}, v{R2}')
        A.i(f'v_permlane16_swap_b32 v{R1+1}, v{R2+1}')
        A.i(f'v_pk_add_f32 v[{R1}:{R1+1}], v[{R1}:{R1+1}], v[{R2}:{R2+1}]')
        A.i(f'v_cvt_pk_bf16_f32 v{R1}, v{R1}, v{R1+1}')
        A.i(f'buffer_store_dword v{R1}, v{vPub}, s[8:11], s18 offen sc1')
        if KN['db'] and KN['lateC']:
            A.i('s_mov_b64 exec, 1'); A.i(f'buffer_store_dword v{RT+2}, off, s[8:11], s77'); A.i('s_mov_b64 exec, -1')
        A.i(f's_branch {lab2}')
        A.label(lab)
        A.i('s_waitcnt lgkmcnt(0)')
        A.i('s_barrier')
        A.label(lab2)
        adapt(A, 87, 88, KN['loC'], KN['hiC'])
        A.i(f'buffer_store_dwordx4 {vr(RVM)}, v{vL16}, s[8:11], s21 offen sc1')
        A.i(f's_add_u32 s21, s21, {80*4096}')
        stamp(A, 71)
        ev(A, 5, RT+3)
        if KN['log'] or KN.get('lite'):
            if not KN['log']: A.i('s_memrealtime s[34:35]'); A.i('s_waitcnt lgkmcnt(0)')
            A.i('s_mov_b32 m0, s17'); A.i('s_nop 0'); A.i('v_writelane_b32 v150, s34, m0')
            if KN.get('lite'):
                A.i('v_writelane_b32 v151, s22, m0')
                A.i('s_memtime s[34:35]'); A.i('s_waitcnt lgkmcnt(0)'); A.i('v_writelane_b32 v152, s34, m0')
        advance(A)
    A.label('C_loop')
    body(0, 'a')
    body(1, 'b')
    A.i('s_branch C_loop')
    A.label('C_last')
    A.i('s_nop 1')
    A.i(f'buffer_store_dwordx4 {vr(RVM)}, v{vL16}, s[8:11], s21 offen sc1')
    if KN['post']:
        A.i('s_waitcnt vmcnt(0)'); A.i('s_barrier')
        A.i('s_cmp_eq_u32 s16, 1'); A.i('s_cbranch_scc0 R_done')
        signal(A, FL_VM, 0, 17, 3, RT)
    A.i('s_branch R_done')
def placement_ok(A, v):
    l0, l1 = A.new('pl'), A.new('pl')
    A.i('s_mov_b32 s76, 0'); A.i('s_mov_b32 s22, 0')
    A.i(f'v_mov_b32 v{v}, 0')
    A.label(l0)
    A.i(f'buffer_load_dwordx4 v[{v+2}:{v+5}], v{v}, s[12:15], 0 offen sc1')
    A.i(f'buffer_load_dword v{v+1}, v{v}, s[12:15], 0 offen offset:96 sc1')
    A.i('s_waitcnt vmcnt(0)')
    A.i(f'v_min_u32 v{v+2}, v{v+2}, v{v+3}'); A.i(f'v_min3_u32 v{v+2}, v{v+2}, v{v+4}, v{v+5}'); A.i('s_nop 0')
    A.i(f'v_readfirstlane_b32 s23, v{v+2}'); A.i(f'v_readfirstlane_b32 s79, v{v+1}')
    A.i('s_add_u32 s22, s22, 1'); A.i('s_cmp_gt_u32 s22, 0x400'); A.i(f's_cbranch_scc1 {l1}')
    A.i('s_cmp_ge_u32 s23, 28'); A.i(f's_cbranch_scc0 {l0}')
    A.i('s_cmp_eq_u32 s79, 0'); A.i('s_cselect_b32 s76, 1, 0')
    A.label(l1)

NGRID = 256
def assign_role(A, ngrid):
    A.i(f's_load_dwordx2 s[6:7], s[0:1], {KA["dbg"]}')
    get_xcc(A, 50)
    A.i('s_waitcnt lgkmcnt(0)')
    srd(A, 12, 6, 256)
    if KN['unified']: boot_clear(A)
    A.i('s_mov_b32 s3, -1')
    A.i('s_cmp_eq_u32 s16, 0'); A.i('s_cbranch_scc0 R_role_wait')
    A.i('s_mov_b64 exec, 1')
    def atomic(op, val, off):
        A.i(f'v_mov_b32 v2, {val}'); A.i(f'v_mov_b32 v3, {off}')
        A.i(f'buffer_atomic_{op} v2, v3, s[12:15], 0 offen sc0')
        A.i('s_waitcnt vmcnt(0)'); A.i('v_readfirstlane_b32 s51, v2'); A.i('s_nop 3')
    def claim():
        A.i('s_lshr_b32 s53, s52, 5'); A.i('s_lshl_b32 s53, s53, 2'); A.i('s_add_u32 s53, s53, 64')
        A.i('s_and_b32 s54, s52, 31'); A.i('s_lshl_b32 s54, 1, s54')
        atomic('or', 's54', 's53')
        A.i('s_and_b32 s51, s51, s54'); A.i('s_cmp_eq_u32 s51, 0'); A.i('s_cselect_b32 s3, s52, s3')
    A.i('s_lshl_b32 s52, s50, 2'); atomic('add', '1', 's52')
    A.i('s_mov_b32 s81, s51')
    A.i('s_cmp_lt_u32 s50, 4'); A.i('s_cbranch_scc0 R_role_free')
    A.i('s_cmp_lt_u32 s51, 8'); A.i('s_cbranch_scc0 R_role_c')
    A.i('s_lshl_b32 s52, s50, 3'); A.i('s_add_u32 s52, s52, s51'); A.i('s_branch R_role_try')
    A.label('R_role_c')
    A.i('s_cmp_lt_u32 s51, 28'); A.i('s_cbranch_scc0 R_role_free')
    A.i('s_mul_i32 s52, s50, 20'); A.i('s_add_u32 s52, s52, s51'); A.i('s_add_u32 s52, s52, 24')
    A.label('R_role_try')
    claim()
    A.i('s_cmp_lt_i32 s3, 0'); A.i('s_cbranch_scc0 R_role_pub')
    A.label('R_role_free')
    A.i('s_mov_b32 s22, 0'); A.i('v_mov_b32 v3, 0')
    A.label('R_role_spin')
    A.i('buffer_load_dwordx4 v[4:7], v3, s[12:15], 0 offen sc1'); A.i('buffer_load_dwordx4 v[8:11], v3, s[12:15], 0 offen offset:16 sc1')
    A.i('s_waitcnt vmcnt(0)')
    A.i('v_min_u32 v2, v4, v5'); A.i('v_min3_u32 v2, v2, v6, v7')
    A.i('v_add3_u32 v4, v4, v5, v6'); A.i('v_add3_u32 v8, v8, v9, v10'); A.i('v_add3_u32 v4, v4, v7, v8'); A.i('v_add_u32 v4, v4, v11'); A.i('s_nop 0')
    A.i('v_readfirstlane_b32 s51, v2'); A.i('v_readfirstlane_b32 s52, v4'); A.i('s_nop 3')
    A.i('s_cmp_ge_u32 s51, 28'); A.i('s_cbranch_scc1 R_role_pub')
    A.i(f's_cmp_ge_u32 s52, {ngrid}'); A.i('s_cbranch_scc1 R_role_scan')
    A.i('s_sleep 4'); A.i('s_add_u32 s22, s22, 1'); A.i('s_cmp_lt_u32 s22, 0x4000'); A.i('s_cbranch_scc1 R_role_spin')
    A.label('R_role_scan')
    for k in range(4):
        lab, nx = f'R_scan{k}', f'R_scan{k}_n'
        valid = 0xffffffff if k < 3 else 0xffff
        A.label(lab)
        atomic('add', '0', str(64 + 4*k))
        A.i('s_not_b32 s51, s51'); A.i(f's_and_b32 s51, s51, {valid:#x}'); A.i('s_cmp_eq_u32 s51, 0'); A.i(f's_cbranch_scc1 {nx}')
        A.i('s_ff1_i32_b32 s55, s51'); A.i(f's_add_u32 s55, s55, {32*k}')
        atomic('add', '1', '96')
        A.i('s_mov_b32 s52, s55')
        claim()
        A.i('s_cmp_lt_i32 s3, 0'); A.i('s_cbranch_scc0 R_role_pub'); A.i(f's_branch {lab}')
        A.label(nx)
    A.label('R_role_pub')
    A.i('v_mov_b32 v2, s3'); A.i('v_mov_b32 v3, 0'); A.i('ds_write_b32 v3, v2'); A.i('v_mov_b32 v2, s81'); A.i('ds_write_b32 v3, v2 offset:4'); A.i('s_waitcnt lgkmcnt(0)')
    A.i('s_mov_b64 exec, -1')
    A.label('R_role_wait')
    A.i('s_barrier')
    A.i('v_mov_b32 v3, 0'); A.i('ds_read_b32 v2, v3'); A.i('ds_read_b32 v4, v3 offset:4'); A.i('s_waitcnt lgkmcnt(0)'); A.i('v_readfirstlane_b32 s3, v2'); A.i('v_readfirstlane_b32 s81, v4'); A.i('s_nop 3')
    A.i('s_barrier')

def gen_rec(name='rec_kernel', nsteps=NSEG, ngrid=256, workers=None):
    A = Em()
    kernel_header(A, name)
    A.i(f's_load_dwordx2 s[4:5], s[0:1], {KA["ws"]}')
    A.i(f's_cmp_ge_u32 s2, {ngrid}')
    A.i('s_cbranch_scc1 R_exit')
    A.i('v_lshrrev_b32 v1, 6, v0')
    A.i('s_waitcnt lgkmcnt(0)')
    srd(A, 8, 4, WS_SIZE)
    A.i('v_readfirstlane_b32 s16, v1')
    ts_stamp(A, 4)
    assign_role(A, ngrid)
    ts_stamp(A, 6)
    A.i(f's_cmp_lt_u32 s3, {NS+NC}'); A.i('s_cbranch_scc0 W_role' if workers else 's_cbranch_scc0 R_exit')
    A.i('s_mov_b32 s17, 0')
    if KN.get('ev'):
        A.i('s_lshl_b32 s81, s3, 2'); A.i('s_add_u32 s81, s81, s16'); A.i('s_lshl_b32 s81, s81, 11'); A.i(f's_add_u32 s81, s81, {0xE000000}')
    if KN.get('lite'): A.i('s_mov_b32 s64, s3')
    if KN['log']:
        A.i('s_mov_b32 s64, s3')
        for r in range(68, 76): A.i(f's_mov_b32 s{r}, 0')
    A.i(f's_cmp_lt_u32 s3, {NS}')
    A.i('s_cbranch_scc0 C_role')
    gen_S(A, nsteps)
    gen_C(A, nsteps)
    A.label('R_fail')
    A.label('R_done')
    if KN.get('lite'):
        A.i('s_mov_b64 exec, -1'); A.i('v_mbcnt_lo_u32_b32 v1, -1, 0'); A.i('v_mbcnt_hi_u32_b32 v1, -1, v1'); A.i('v_lshlrev_b32 v1, 2, v1')
        A.i('s_lshl_b32 s23, s64, 2'); A.i('s_add_u32 s23, s23, s16'); A.i('s_lshl_b32 s23, s23, 8'); A.i(f's_add_u32 s23, s23, {WS_LOG + 0x10000}')
        A.i('buffer_store_dword v150, v1, s[8:11], s23 offen'); A.i(f's_add_u32 s23, s23, {0x30000}'); A.i('buffer_store_dword v151, v1, s[8:11], s23 offen')
        lab = A.new('lt'); A.i('s_cmp_eq_u32 s16, 0'); A.i(f's_cbranch_scc0 {lab}')
        A.i('s_lshl_b32 s23, s64, 8'); A.i(f's_add_u32 s23, s23, {WS_LOG + 0x5C000}'); A.i('buffer_store_dword v152, v1, s[8:11], s23 offen')
        A.label(lab)
    if KN['log']:
        A.i('s_lshl_b32 s23, s64, 2'); A.i('s_add_u32 s23, s23, s16'); A.i('s_lshl_b32 s23, s23, 5'); A.i(f's_add_u32 s23, s23, {WS_LOG}')
        A.i('s_mov_b64 exec, 1'); A.i('v_mov_b32 v1, 0')
        for r in range(8): A.i(f'v_mov_b32 v{2+r}, s{68+r}')
        A.i('buffer_store_dwordx4 v[2:5], v1, s[8:11], s23 offen'); A.i('buffer_store_dwordx4 v[6:9], v1, s[8:11], s23 offen offset:16')
        A.i('s_mov_b64 exec, -1'); A.i('v_and_b32 v1, 63, v0'); A.i('v_lshlrev_b32 v1, 2, v1')
        A.i('s_lshl_b32 s23, s64, 2'); A.i('s_add_u32 s23, s23, s16'); A.i('s_lshl_b32 s23, s23, 8'); A.i(f's_add_u32 s23, s23, {WS_LOG + 0x10000}')
        A.i('buffer_store_dword v150, v1, s[8:11], s23 offen')
        if KN.get('vtlat'):
            A.i(f's_add_u32 s23, s23, {0x50000}'); A.i('buffer_store_dword v151, v1, s[8:11], s23 offen')
    A.label('R_wexit')
    A.i('s_waitcnt vmcnt(0)')
    if workers and KN['post'] and KN['join']:
        A.i('s_mov_b64 exec, -1'); A.i('s_barrier')
        A.i('v_mbcnt_lo_u32_b32 v0, -1, 0'); A.i('v_mbcnt_hi_u32_b32 v0, -1, v0'); A.i('s_lshl_b32 s23, s16, 6'); A.i('v_add_u32 v0, s23, v0')
        A.i('s_mov_b32 s58, 5')
        A.i('s_getpc_b64 s[92:93]')
        A.label('R_pc')
        A.i('s_add_u32 s92, s92, P_phase-R_pc'); A.i('s_addc_u32 s93, s93, 0')
        A.i('s_setpc_b64 s[92:93]')
    A.label('R_exit')
    A.i('s_endpgm')
    if workers: workers(A)
    return A.text(), kernel_desc(name, 512, 256)
if __name__ == '__main__':
    t, d = gen_rec()
    print('; @launch kernel=rec_kernel grid=(112,1,1) block=(256,1,1) lds=163840')
    print('.amdgcn_target "amdgcn-amd-amdhsa--gfx950"')
    print(t); print(d)
```

```python
from common import *
from rec import Em, LG, SPIN_MAX, KN, ws_wait, ws_add, ws_take, boot_wait, b_tasks
import gemm, post, small, fast
from gemm import *

SRD_WQ, SRD_WK, SRD_WV, SRD_WO = 68, 72, 76, 80
W_NSLOT = 6
LDS_BC = W_NSLOT*SLOT
vNEXT = 5
Q_WORD = 128

def signal_add(A, off_sgpr):
    lab = A.new('sig')
    A.i('s_cmp_eq_u32 s16, 0'); A.i(f's_cbranch_scc0 {lab}')
    A.i('s_mov_b64 exec, 1'); A.i('v_mov_b32 v22, 1'); A.i('v_mov_b32 v23, 0')
    A.i(f'buffer_atomic_add v22, v23, s[8:11], s{off_sgpr} offen')
    A.i('s_mov_b64 exec, -1')
    A.label(lab)

def kq_store_tile(vm, D, t, soff, o, addr=21):
    ga, gb = o, o+4
    L = [f'v_cvt_pk_bf16_f32 v{ga}, v{D}, v{D+1}', f'v_cvt_pk_bf16_f32 v{ga+1}, v{D+2}, v{D+3}',
         f'v_cvt_pk_bf16_f32 v{ga+2}, v{D+8}, v{D+9}', f'v_cvt_pk_bf16_f32 v{ga+3}, v{D+10}, v{D+11}',
         f'v_cvt_pk_bf16_f32 v{gb}, v{D+4}, v{D+5}', f'v_cvt_pk_bf16_f32 v{gb+1}, v{D+6}, v{D+7}',
         f'v_cvt_pk_bf16_f32 v{gb+2}, v{D+12}, v{D+13}', f'v_cvt_pk_bf16_f32 v{gb+3}, v{D+14}, v{D+15}']
    if t == 4: L.append(f's_add_u32 s{soff}, s{soff}, 4096')
    L.append(lambda: vm.issue(f'buffer_store_dwordx4 {vr(ga)}, v{addr}, s[8:11], s{soff} offen offset:{(t%4)*1024} sc1'))
    L.append(lambda: vm.issue(f'buffer_store_dwordx4 {vr(gb)}, v{addr}, s[8:11], s{soff} offen offset:{(t%4)*1024+512} sc1'))
    return L

def task_kq2(A, tail):
    ACT, FR, ACCK, ACCQ, TMP = 0, 160, 32, 128, 224
    A.i('s_mul_i32 s42, s41, 384'); A.i('s_mov_b32 s46, s42')
    A.i('s_lshl_b32 s43, s40, 2'); A.i('s_add_u32 s43, s43, s16')
    A.i(f's_mul_i32 s44, s43, {40*1024}'); A.i(f's_add_u32 s44, s44, {WS_H}')
    A.i('v_and_b32 v22, 63, v0'); A.i('v_lshrrev_b32 v23, 4, v22'); A.i('v_and_b32 v23, 1, v23'); A.i('v_mul_u32_u24 v23, 6144, v23')
    A.i('v_lshrrev_b32 v24, 5, v22'); A.i('v_lshlrev_b32 v24, 4, v24'); A.i('v_and_b32 v25, 15, v22'); A.i('v_add_u32 v24, v24, v25')
    A.i('v_lshlrev_b32 v24, 4, v24'); A.i('v_add_u32 v21, v23, v24')
    A.i('s_lshl_b32 s45, s43, 5'); A.i('s_add_u32 s45, s45, s41'); A.i('s_mul_i32 s45, s45, 12288')
    A.i(f's_add_u32 s47, s45, {WS_QT}'); A.i(f's_add_u32 s45, s45, {WS_KT}')
    vm = VM(A)
    stages = [Stage(192, SRD_WK, 42, 64*12288) for _ in range(10)] + [Stage(192, SRD_WQ, 46, 64*12288) for _ in range(10)]
    e = Engine(A, vm, stages, FR)
    e.prologue_parts = act_parts(A, vm, ACT, 40, 44, ' sc1' if KN['unified'] else '')
    steps = pass192_steps(0, ACCK, ACT, vm, True) + pass192_steps(10, ACCQ, ACT, vm, False)
    def qk():
        for t in range(6): e.side.extend(kq_store_tile(vm, ACCK+16*t, t, 45, TMP + 8*(t & 1)))
    steps[42]['pre'] = qk
    e.run(steps)
    tail()
    e.flush_side()
    A.i('s_nop 7')
    for t in range(6): e.side.extend(kq_store_tile(vm, ACCQ+16*t, t, 47, TMP + 8*(t & 1)))
    e.flush_side()
    vm.wait_all()
    A.i('s_lshl_b32 s48, s40, 5'); A.i('s_add_u32 s48, s48, s41'); A.i('s_lshl_b32 s48, s48, 7'); A.i(f's_add_u32 s48, s48, {FL_KQ}')

def task_vvo2(A, tail):
    ACT, FR = 0, 160
    VACC, VOP, ACC0, ACC1, TMP = 32, 128, 32, 176, 112
    A.i('s_mul_i32 s42, s41, 384')
    A.i(f's_mul_i32 s46, s41, {192*1280}')
    A.i('s_lshl_b32 s43, s40, 2'); A.i('s_add_u32 s43, s43, s16')
    A.i(f's_mul_i32 s44, s43, {40*1024}'); A.i(f's_add_u32 s44, s44, {WS_H}')
    vm = VM(A)
    stages = [Stage(192, SRD_WV, 42, 64*12288) for _ in range(10)] + wo_stages(SRD_WO, 46)
    e = Engine(A, vm, stages, FR)
    e.prologue_parts = act_parts(A, vm, ACT, 40, 44, ' sc1' if KN['unified'] else '')
    steps = pass192_steps(0, VACC, ACT, vm, True)
    def conv():
        A.i('s_nop 7'); A.i('s_nop 7')
        for t in range(6):
            for a in range(2):
                for r in range(4):
                    s = VACC + 16*t + 8*a + 2*r
                    A.i(f'v_cvt_pk_bf16_f32 v{VOP + 4*(2*t+a) + r}, v{s}, v{s+1}')
        A.i('s_nop 1')
    steps[-1]['post'] = conv
    A.i('v_and_b32 v22, 63, v0'); A.i('v_and_b32 v23, 31, v22'); A.i('v_lshrrev_b32 v24, 3, v23'); A.i('v_lshlrev_b32 v24, 14, v24')
    A.i('v_lshrrev_b32 v25, 5, v22'); A.i('v_lshlrev_b32 v25, 8, v25'); A.i('v_and_b32 v23, 7, v23'); A.i('v_lshlrev_b32 v23, 4, v23')
    A.i('v_add3_u32 v21, v23, v24, v25')
    A.i(f's_mul_i32 s47, s43, {80*16384}'); A.i('s_lshr_b32 s23, s41, 1'); A.i('s_lshl_b32 s23, s23, 10'); A.i('s_add_u32 s47, s47, s23')
    A.i('s_and_b32 s23, s41, 1'); A.i('s_lshl_b32 s23, s23, 7'); A.i('s_add_u32 s47, s47, s23'); A.i(f's_add_u32 s47, s47, {WS_VOT}')
    def store_tile(cc, t, D):
        o = TMP + 8*(t & 1)
        L = []
        for q in range(4):
            L.append(f'v_cvt_pk_bf16_f32 v{o+2*q}, v{D+4*q}, v{D+4*q+1}')
            L.append(f'v_cvt_pk_bf16_f32 v{o+2*q+1}, v{D+4*q+2}, v{D+4*q+3}')
        L.append(f's_add_u32 s48, s47, {(cc*20 + t*4)*16384}')
        L.append('s_nop 0')
        for b in (0, 4):
            L.append(f'v_permlane32_swap_b32 v{o+b}, v{o+b+2}')
            L.append(f'v_permlane32_swap_b32 v{o+b+1}, v{o+b+3}')
        L.append(lambda: vm.issue(f'buffer_store_dwordx4 {vr(o)}, v21, s[8:11], s48 offen sc1'))
        L.append(lambda: vm.issue(f'buffer_store_dwordx4 {vr(o+4)}, v21, s[8:11], s48 offen offset:512 sc1'))
        return L
    steps += vo_pass(A, e, vm, 10, VOP, (ACC0, ACC1), store_tile)
    e.run(steps)
    tail()
    A.i('s_nop 7'); A.i('s_nop 7')
    for t in range(5):
        e.side.extend(store_tile(3, t, ACC1 + 16*t))
    e.flush_side()
    vm.wait_all()
    A.i('s_lshl_b32 s48, s40, 7'); A.i(f's_add_u32 s48, s48, {FL_VVO}')

def task_head(A, tail):
    ACT, FR = 0, 160
    VACC, VOP, ACC0, ACC1, TMP = 32, 128, 32, 176, 112
    ACCK, ACCQ, TMPK = 32, 128, 224
    A.i('s_mul_i32 s42, s41, 384'); A.i('s_mov_b32 s49, s42'); A.i('s_mov_b32 s50, s42')
    A.i(f's_mul_i32 s46, s41, {192*1280}')
    A.i('s_lshl_b32 s43, s40, 2'); A.i('s_add_u32 s43, s43, s16')
    A.i(f's_mul_i32 s44, s43, {40*1024}'); A.i(f's_add_u32 s44, s44, {WS_H}')
    vm = VM(A)
    stages = ([Stage(192, SRD_WV, 42, 64*12288) for _ in range(10)] + wo_stages(SRD_WO, 46) +
              [Stage(192, SRD_WK, 49, 64*12288) for _ in range(10)] + [Stage(192, SRD_WQ, 50, 64*12288) for _ in range(10)])
    e = Engine(A, vm, stages, FR)
    e.prologue_parts = act_parts(A, vm, ACT, 40, 44, ' sc1' if KN['unified'] else '')
    steps = pass192_steps(0, VACC, ACT, vm, True)
    def conv():
        A.i('s_nop 7'); A.i('s_nop 7')
        for t in range(6):
            for a in range(2):
                for r in range(4):
                    s = VACC + 16*t + 8*a + 2*r
                    A.i(f'v_cvt_pk_bf16_f32 v{VOP + 4*(2*t+a) + r}, v{s}, v{s+1}')
        A.i('s_nop 1')
    steps[-1]['post'] = conv
    A.i('v_and_b32 v22, 63, v0'); A.i('v_and_b32 v23, 31, v22'); A.i('v_lshrrev_b32 v24, 3, v23'); A.i('v_lshlrev_b32 v24, 14, v24')
    A.i('v_lshrrev_b32 v25, 5, v22'); A.i('v_lshlrev_b32 v25, 8, v25'); A.i('v_and_b32 v23, 7, v23'); A.i('v_lshlrev_b32 v23, 4, v23')
    A.i('v_add3_u32 v21, v23, v24, v25')
    A.i('v_lshrrev_b32 v23, 4, v22'); A.i('v_and_b32 v23, 1, v23'); A.i('v_mul_u32_u24 v23, 6144, v23')
    A.i('v_lshrrev_b32 v24, 5, v22'); A.i('v_lshlrev_b32 v24, 4, v24'); A.i('v_and_b32 v25, 15, v22'); A.i('v_add_u32 v24, v24, v25')
    A.i('v_lshlrev_b32 v24, 4, v24'); A.i('v_add_u32 v30, v23, v24')
    A.i(f's_mul_i32 s47, s43, {80*16384}'); A.i('s_lshr_b32 s23, s41, 1'); A.i('s_lshl_b32 s23, s23, 10'); A.i('s_add_u32 s47, s47, s23')
    A.i('s_and_b32 s23, s41, 1'); A.i('s_lshl_b32 s23, s23, 7'); A.i('s_add_u32 s47, s47, s23'); A.i(f's_add_u32 s47, s47, {WS_VOT}')
    A.i('s_lshl_b32 s45, s43, 5'); A.i('s_add_u32 s45, s45, s41'); A.i('s_mul_i32 s45, s45, 12288')
    A.i(f's_add_u32 s51, s45, {WS_QT}'); A.i(f's_add_u32 s45, s45, {WS_KT}')
    def store_tile(cc, t, D, tmp=TMP):
        o = tmp + 8*(t & 1)
        L = []
        for q in range(4):
            L.append(f'v_cvt_pk_bf16_f32 v{o+2*q}, v{D+4*q}, v{D+4*q+1}')
            L.append(f'v_cvt_pk_bf16_f32 v{o+2*q+1}, v{D+4*q+2}, v{D+4*q+3}')
        L.append(f's_add_u32 s48, s47, {(cc*20 + t*4)*16384}')
        L.append('s_nop 0')
        for b in (0, 4):
            L.append(f'v_permlane32_swap_b32 v{o+b}, v{o+b+2}')
            L.append(f'v_permlane32_swap_b32 v{o+b+1}, v{o+b+3}')
        L.append(lambda: vm.issue(f'buffer_store_dwordx4 {vr(o)}, v21, s[8:11], s48 offen sc1'))
        L.append(lambda: vm.issue(f'buffer_store_dwordx4 {vr(o+4)}, v21, s[8:11], s48 offen offset:512 sc1'))
        return L
    steps += vo_pass(A, e, vm, 10, VOP, (ACC0, ACC1), store_tile)
    ks_ = pass192_steps(22, ACCK, ACT, vm, False)
    def last_vo():
        for t in range(5): e.side.extend(store_tile(3, t, ACC1 + 16*t, VOP))
    ks_[1]['pre'] = last_vo
    qs_ = pass192_steps(32, ACCQ, ACT, vm, False)
    def kq_tiles(acc, soff):
        for t in range(6):
            L = kq_store_tile(vm, acc+16*t, t, soff, TMPK + 8*(t & 1), addr=30)
            e.side.extend(L)
    qs_[0]['pre'] = lambda: e.flush_side()
    qs_[2]['pre'] = lambda: kq_tiles(ACCK, 45)
    steps += ks_ + qs_
    e.run(steps)
    tail()
    e.flush_side()
    A.i('s_nop 7')
    kq_tiles(ACCQ, 51)
    e.flush_side()
    vm.wait_all()
    A.i('s_lshl_b32 s48, s40, 7'); A.i(f's_add_u32 s48, s48, {FL_VVO}')
    A.i('s_lshl_b32 s49, s40, 5'); A.i('s_add_u32 s49, s49, s41'); A.i('s_lshl_b32 s49, s49, 7'); A.i(f's_add_u32 s49, s49, {FL_KQ}')

def wait_dep(A, off_sgpr, target, backoff=12):
    l0, l1 = A.new('dep'), A.new('dep')
    A.i('s_cmp_eq_u32 s16, 0'); A.i(f's_cbranch_scc0 {l1}')
    A.i('s_mov_b32 s22, 0'); A.i('v_mov_b32 v22, 0')
    A.label(l0)
    A.i(f'buffer_load_dword v23, v22, s[8:11], s{off_sgpr} offen sc1')
    A.i('s_add_u32 s22, s22, 1'); A.i(f's_cmp_gt_u32 s22, {SPIN_MAX//8}'); A.i(f's_cbranch_scc1 {l1}')
    A.i('s_waitcnt vmcnt(0)'); A.i('v_readfirstlane_b32 s23, v23'); A.i('s_nop 3')
    A.i(f's_cmp_ge_u32 s23, {target}'); A.i(f's_cbranch_scc1 {l1}')
    A.i(f's_sleep {backoff}'); A.i(f's_branch {l0}')
    A.label(l1)
    A.i('s_barrier')

def wait_words(A, off_sgpr, n, backoff=12, grouped=False):
    l0, l1 = A.new('dw'), A.new('dw')
    A.i('s_cmp_eq_u32 s16, 0'); A.i(f's_cbranch_scc0 {l1}')
    A.i('s_mov_b32 s22, 0')
    A.i('v_and_b32 v22, 63, v0'); A.i('v_min_u32 v24, %d, v22' % (min(n, 64)-1))
    if grouped:
        A.i('v_lshrrev_b32 v25, 3, v24'); A.i('v_lshlrev_b32 v25, 7, v25'); A.i('v_and_b32 v24, 7, v24'); A.i('v_lshlrev_b32 v24, 2, v24'); A.i('v_add_u32 v24, v24, v25')
    else: A.i('v_lshlrev_b32 v24, 2, v24')
    if n > 64:
        A.i('v_add_u32 v25, 64, v22'); A.i(f'v_min_u32 v25, {n-1}, v25'); A.i('v_lshlrev_b32 v25, 2, v25')
    A.label(l0)
    A.i(f'buffer_load_dword v23, v24, s[8:11], s{off_sgpr} offen sc1')
    if n > 64: A.i(f'buffer_load_dword v26, v25, s[8:11], s{off_sgpr} offen sc1')
    A.i('s_add_u32 s22, s22, 1'); A.i(f's_cmp_gt_u32 s22, {SPIN_MAX//8}'); A.i(f's_cbranch_scc1 {l1}')
    A.i('s_waitcnt vmcnt(0)')
    if n > 64: A.i('v_min_u32 v23, v23, v26')
    A.i('v_cmp_eq_u32 vcc, 0, v23'); A.i(f's_cbranch_vccz {l1}')
    A.i(f's_sleep {backoff}'); A.i(f's_branch {l0}')
    A.label(l1)
    A.i('s_barrier')

SRD_WG, SRD_WU, SRD_WD, SRD_X, SRD_OUT = 68, 72, 76, 80, 84
NENG = 13
KEYS = (-2, 0, 1.5, 3)
NWFA = 160
NBACK = 10
def post_table():
    TA, T = [], []
    for i in range(NWFA): TA.append((8 << 16) | i)
    for r in range(NENG):
        for i in range(20): TA.append((0 << 16) | (r << 8) | i)
    def e(ty, a, n):
        for i in range(n): T.append((ty << 16) | (a << 8) | i)
    for i in range(NWFA, 256): T.append((8 << 16) | i)
    ST = ((1, 4), (2, 8), (3, 4))
    for ty, n in ST:
        for r in range(NBACK): e(ty, r, n)
    for d in range(NBACK, NENG + 2):
        for back in (2, 1, 0):
            r = d - back
            if NBACK <= r < NENG: e(ST[back][0], r, ST[back][1])
    s0 = 4*NENG
    FS = ((4, 10), (5, 2), (6, 24), (7, 10))
    items = []
    for ty_i, (ty, n) in enumerate(FS):
        for r in range(s0, 64): items.append((r + KEYS[ty_i], -ty_i, ty, r, n))
    for _, _, ty, r, n in sorted(items): e(ty, r, n)
    global NPA
    NPA = len(TA)
    return TA + T
POST_T = post_table()
NPOST = len(POST_T)

def gen_post(A, fetch, publish, log_end):
    A.label('P_phase')
    for reg, key, nb in ((SRD_WG, 'wg', 640*3072), (SRD_WU, 'wu', 640*3072), (SRD_WD, 'wd', 1536*1280), (SRD_X, 'x', 2048*1280), (SRD_OUT, 'out', 2048*1280)):
        A.i(f's_load_dwordx2 s[6:7], s[0:1], {KA[key]}'); A.i('s_waitcnt lgkmcnt(0)'); srd(A, reg, 6, nb)
    A.i(f's_load_dwordx2 s[6:7], s[0:1], {KA["dbg"]}'); A.i('s_waitcnt lgkmcnt(0)'); srd(A, 12, 6, 256)
    A.i('s_mov_b32 s54, 0'); A.i('s_mov_b32 s95, -1')
    A.label('P_refetch')
    fetch(); A.i('s_waitcnt vmcnt(0)'); publish()
    A.i('s_barrier')
    A.label('P_loop')
    A.i(f'v_mov_b32 v22, {LDS_BC}'); A.i('ds_read_b32 v23, v22'); A.i('s_waitcnt lgkmcnt(0)'); A.i('v_readfirstlane_b32 s60, v23'); A.i('s_nop 3')
    A.i('s_barrier')
    A.i('s_cmp_eq_u32 s58, 4'); A.i('s_cbranch_scc0 P_qb')
    A.i(f's_cmp_ge_u32 s60, {NPA}'); A.i('s_cbranch_scc0 P_go')
    A.i('s_mov_b32 s58, 5'); A.i('s_branch P_refetch')
    A.label('P_qb')
    A.i(f's_add_u32 s60, s60, {NPA}')
    A.i(f's_cmp_ge_u32 s60, {NPOST}'); A.i('s_cbranch_scc0 P_go')
    ts_stamp(A, 5)
    A.i('s_waitcnt vmcnt(0)'); A.i('s_endpgm')
    A.label('P_go')
    A.i('s_getpc_b64 s[92:93]')
    A.label('P_pc')
    A.i('s_add_u32 s92, s92, P_table-P_pc'); A.i('s_addc_u32 s93, s93, 0')
    A.i('s_lshl_b32 s23, s60, 2'); A.i('s_load_dword s57, s[92:93], s23'); A.i('s_waitcnt lgkmcnt(0)')
    A.i('s_lshr_b32 s56, s57, 16'); A.i('s_lshr_b32 s40, s57, 8'); A.i('s_and_b32 s40, s40, 255'); A.i('s_and_b32 s41, s57, 255')
    if KN['log']: A.i('s_memrealtime s[62:63]'); A.i('s_waitcnt lgkmcnt(0)')
    for ty, lab in ((8, 'P_wf'), (7, 'P_f2f'), (6, 'P_f1f'), (5, 'P_lnf'), (4, 'P_t2f'), (3, 'P_f2'), (2, 'P_f1'), (1, 'P_ln')):
        A.i(f's_cmp_eq_u32 s56, {ty}'); A.i(f's_cbranch_scc1 {lab}')
    A.i('s_mul_i32 s24, s41, 13108'); A.i('s_lshr_b32 s24, s24, 16')
    A.i('s_mul_i32 s25, s24, 5'); A.i('s_sub_u32 s41, s41, s25')
    A.i('s_mov_b32 s55, s40'); A.i('s_lshl_b32 s40, s40, 2'); A.i('s_add_u32 s40, s40, s24')
    def wait_seg(bo=12, regs=(48, 49)):
        r0, r1 = regs
        l5, l6 = A.new('ws'), A.new('ws')
        A.i('s_cmp_ge_u32 s40, 62'); A.i(f's_cbranch_scc1 {l5}')
        A.i(f's_add_u32 s{r0}, s40, 1'); A.i(f's_lshl_b32 s{r0}, s{r0}, 9'); A.i(f's_add_u32 s{r0}, s{r0}, {FL_PT}')
        wait_words(A, r0, 32, bo, grouped=True)
        A.i(f's_branch {l6}')
        A.label(l5)
        A.i(f's_mov_b32 s{r0}, {FL_PT + 63*512}'); A.i(f's_mov_b32 s{r1}, {FL_VM}')
        wait_words(A, r0, 32, 2, grouped=True); wait_words(A, r1, 80, 2)
        A.label(l6)
    wait_seg(KN.get('boA', 40))
    post.task_t2(A, sc=' sc1', xsrd=SRD_X, tail=fetch)
    A.i('s_lshl_b32 s48, s55, 7'); A.i(f's_add_u32 s48, s48, {FL_T2}')
    A.i('s_branch P_end')
    A.label('P_ln')
    A.i('s_mov_b32 s55, s40')
    A.i('s_lshl_b32 s48, s40, 7'); A.i(f's_add_u32 s48, s48, {FL_T2}')
    wait_dep(A, 48, 20)
    A.i('s_lshl_b32 s40, s40, 2'); A.i('s_add_u32 s40, s40, s41'); A.i('s_lshl_b32 s40, s40, 1')
    A.i(f's_mov_b32 s27, {WS_X1}')
    for it in range(2):
        small.role_ln(A, lambda: None, 's27', 3, 4, WS_H2, sc=' sc1', ssrd=8)
        if it == 0: A.i('s_add_u32 s40, s40, 1')
    fetch()
    A.i('s_waitcnt vmcnt(0)')
    A.i('s_lshl_b32 s48, s55, 7'); A.i(f's_add_u32 s48, s48, {FL_LN}')
    A.i('s_branch P_end')
    A.label('P_f1')
    A.i('s_lshl_b32 s48, s40, 7'); A.i(f's_add_u32 s48, s48, {FL_LN}')
    wait_dep(A, 48, 4)
    setup_lane(A)
    post.task_ffn1(A, sc=' sc1', srds=(SRD_WG, SRD_WU), tail=fetch)
    A.i('s_lshl_b32 s48, s40, 7'); A.i(f's_add_u32 s48, s48, {FL_F1}')
    A.i('s_branch P_end')
    A.label('P_f2')
    A.i('s_lshl_b32 s48, s40, 7'); A.i(f's_add_u32 s48, s48, {FL_F1}')
    wait_dep(A, 48, 8)
    setup_lane(A)
    post.task_ffn2(A, sc=' sc1', srds=(SRD_WD, SRD_OUT), tail=fetch)
    A.i('s_mov_b32 s48, -1')
    A.i('s_branch P_end')
    A.label('P_t2f')
    lab = A.new('vvok')
    A.i('s_lshr_b32 s55, s40, 2'); A.i('s_cmp_eq_u32 s55, s95'); A.i(f's_cbranch_scc1 {lab}')
    A.i('s_lshl_b32 s48, s55, 7'); A.i(f's_add_u32 s48, s48, {FL_VVO}'); wait_dep(A, 48, 32, 4); A.i('s_mov_b32 s95, s55')
    A.label(lab)
    fast.task_t2f(A, SRD_X, fetch, lambda: wait_seg(KN.get('boF', 8), (52, 53)))
    A.i('s_lshl_b32 s48, s40, 7'); A.i(f's_add_u32 s48, s48, {FL_T2S}')
    A.i('s_branch P_end')
    A.label('P_lnf')
    A.i('s_mov_b32 s55, s40')
    A.i('s_lshl_b32 s48, s40, 7'); A.i(f's_add_u32 s48, s48, {FL_T2S}')
    A.i('s_lshl_b32 s40, s40, 1'); A.i('s_add_u32 s40, s40, s41')
    A.i(f's_mov_b32 s27, {WS_X1}')
    small.role_ln(A, lambda: None, 's27', 3, 4, WS_H2, sc=' sc1', ssrd=8, dep=lambda: wait_dep(A, 48, 10, 2))
    fetch()
    A.i('s_waitcnt vmcnt(0)')
    A.i('s_lshl_b32 s48, s55, 7'); A.i(f's_add_u32 s48, s48, {FL_LNS - 48*128}')
    A.i('s_branch P_end')
    A.label('P_wf')
    A.i('s_mov_b32 s40, s41')
    small.role_wfrag(A, ' sc1')
    fetch(); A.i('s_waitcnt vmcnt(0)')
    A.i(f's_mov_b32 s48, {FL_WF}')
    A.i('s_branch P_end')
    def wf_ready():
        lab = A.new('wfok')
        A.i('s_cmp_eq_u32 s54, 1'); A.i(f's_cbranch_scc1 {lab}')
        A.i(f's_mov_b32 s48, {FL_WF}'); wait_dep(A, 48, 256, 8); A.i('s_mov_b32 s54, 1')
        A.label(lab)
    A.label('P_f1f')
    wf_ready()
    A.i('s_lshl_b32 s55, s40, 7'); A.i(f's_add_u32 s55, s55, {FL_LNS - 48*128}')
    fast.task_f1f(A, fetch, lambda: wait_dep(A, 55, 2, 2))
    A.i('s_lshl_b32 s48, s40, 7'); A.i(f's_add_u32 s48, s48, {FL_F1S - 48*128}')
    A.i('s_branch P_end')
    A.label('P_f2f')
    wf_ready()
    A.i('s_lshl_b32 s55, s40, 7'); A.i(f's_add_u32 s55, s55, {FL_F1S - 48*128}')
    fast.task_f2f(A, SRD_OUT, fetch, lambda: wait_dep(A, 55, 24, 2))
    A.i('s_mov_b32 s48, -1')
    A.label('P_end')
    publish()
    A.i('s_barrier')
    lab = A.new('P_nosig')
    A.i('s_cmp_eq_u32 s48, -1'); A.i(f's_cbranch_scc1 {lab}')
    signal_add(A, 48)
    A.label(lab)
    log_end(4*QLEN)
    A.i('s_branch P_loop')
    A.L.append('.p2align 2')
    A.L.append('.type P_table,@object')
    A.label('P_table')
    for i in range(0, NPOST, 16):
        A.L.append('.long ' + ','.join(str(x) for x in POST_T[i:i+16]))
    A.L.append(f'.size P_table, {4*NPOST}')

NSPLIT = 256
QLEN = NSPLIT + (16 - NSPLIT//16)*8
def gen_startup(A):
    get_xcc(A, 58); A.i('s_cmp_lt_u32 s58, 4'); A.i('s_cbranch_scc0 U_boot')
    b_tasks(A, None, 'W')
    A.label('U_more')
    ws_take(A, BT_SQ, 84)
    A.i('s_cmp_lt_u32 s84, 97'); A.i('s_cbranch_scc0 U_ln')
    A.i('s_mov_b32 s82, 0'); A.i('s_branch U_do')
    A.label('U_boot')
    boot_wait(A, 22)
    ws_take(A, BT_SQ, 84)
    A.i('s_mov_b32 s82, 1')
    A.label('U_do')
    A.i('s_cmp_lt_u32 s84, 60'); A.i('s_cbranch_scc0 U_a')
    A.i('s_mov_b32 s40, s84'); small.role_mod(A, True, inmain=True); A.i('s_branch U_more')
    A.label('U_a')
    A.i('s_cmp_lt_u32 s84, 64'); A.i('s_cbranch_scc0 U_b')
    A.i('s_sub_u32 s40, s84, 60'); small.role_zero(A); A.i('s_branch U_init')
    A.label('U_b')
    A.i('s_cmp_lt_u32 s84, 96'); A.i('s_cbranch_scc0 U_c')
    A.i('s_sub_u32 s40, s84, 64'); small.role_fill(A, 32); A.i('s_branch U_init')
    A.label('U_c')
    A.i('s_cmp_eq_u32 s84, 96'); A.i('s_cbranch_scc0 U_bt')
    small.role_mem0(A)
    A.label('U_init')
    A.i('s_barrier'); ws_add(A, BT_INIT, 22)
    A.label('U_bt')
    A.i('s_cmp_eq_u32 s82, 1'); A.i('s_cbranch_scc0 U_more')
    b_tasks(A, KN.get('wB', 1), 'X')
    A.i('s_branch U_more')
    A.label('U_ln')
    ws_take(A, BT_LQ, 84)
    A.i('s_cmp_lt_u32 s84, 128'); A.i('s_cbranch_scc0 U_done')
    A.i('s_mov_b32 s40, s84')
    def su():
        A.i(f's_load_dwordx2 s[6:7], s[0:1], {KA["x"]}'); A.i('s_waitcnt lgkmcnt(0)'); srd(A, 36, 6, 2048*1280)
    small.role_ln(A, su, '0', 0, 1, WS_H, sc=' sc1', ssrd=36, wait_mod='main')
    A.i('s_barrier')
    lab = A.new('U_sig')
    A.i('s_cmp_eq_u32 s16, 0'); A.i(f's_cbranch_scc0 {lab}')
    A.i('s_lshr_b32 s23, s40, 3'); A.i('s_lshl_b32 s23, s23, 7'); A.i(f's_add_u32 s23, s23, {BT_LN}')
    A.i('s_mov_b64 exec, 1'); A.i('v_mov_b32 v22, 1'); A.i('v_mov_b32 v23, s23')
    A.i('buffer_atomic_add v22, v23, s[8:11], 0 offen'); A.i('s_mov_b64 exec, -1')
    A.label(lab)
    A.i('s_branch U_ln')
    A.label('U_done')
    ts_stamp(A, 1, 22)
    ws_wait(A, BT_INIT, N_INIT, 22)
    ts_stamp(A, 3, 22)
    A.i('s_mov_b32 s96, -1')

def ln_ready(A):
    if not KN['unified']: return
    lab, l0, l1 = A.new('lnr'), A.new('lnr'), A.new('lnr')
    A.i('s_cmp_eq_u32 s40, s96'); A.i(f's_cbranch_scc1 {lab}')
    A.i('s_cmp_eq_u32 s16, 0'); A.i(f's_cbranch_scc0 {l1}')
    A.i('s_lshl_b32 s25, s40, 7'); A.i(f's_add_u32 s25, s25, {BT_LN}'); A.i('v_mov_b32 v22, s25'); A.i('s_mov_b32 s22, 0')
    A.label(l0)
    A.i('buffer_load_dword v23, v22, s[8:11], 0 offen sc1')
    A.i('s_add_u32 s22, s22, 1'); A.i(f's_cmp_gt_u32 s22, {SPIN_MAX//4}'); A.i(f's_cbranch_scc1 {l1}')
    A.i('s_waitcnt vmcnt(0)'); A.i('v_readfirstlane_b32 s23, v23'); A.i('s_nop 3')
    A.i('s_cmp_ge_u32 s23, 8'); A.i(f's_cbranch_scc1 {l1}'); A.i('s_sleep 3'); A.i(f's_branch {l0}')
    A.label(l1)
    A.i('s_barrier')
    A.i('s_mov_b32 s96, s40')
    A.label(lab)

def gen_worker(A):
    gemm.set_ring(W_NSLOT)
    A.label('W_role')
    if KN['unified']: gen_startup(A)
    if KN['post'] and KN.get('spareA', True):
        get_xcc(A, 58)
        if KN.get('farA'):
            A.i('s_cmp_ge_u32 s58, 4'); A.i('s_cbranch_scc0 W_pre'); A.i('s_cmp_lt_u32 s81, 4'); A.i('s_cbranch_scc0 W_pre')
        else:
            A.i('s_cmp_lt_u32 s58, 4'); A.i('s_cbranch_scc0 W_pre')
        A.label('W_serveA')
        lab = A.new('W_reg')
        A.i('s_barrier')
        A.i('s_cmp_eq_u32 s16, 0'); A.i(f's_cbranch_scc0 {lab}')
        A.i('s_mov_b64 exec, 1'); A.i('v_mov_b32 v22, 1'); A.i('v_mov_b32 v23, 104')
        A.i('buffer_atomic_add v22, v23, s[12:15], 0 offen sc0'); A.i('s_waitcnt vmcnt(0)')
        A.i(f'v_mov_b32 v23, {LDS_BC + 32}'); A.i('ds_write_b32 v23, v22'); A.i('s_waitcnt lgkmcnt(0)'); A.i('s_mov_b64 exec, -1')
        A.label(lab)
        A.i('s_barrier')
        A.i(f'v_mov_b32 v23, {LDS_BC + 32}'); A.i('ds_read_b32 v22, v23'); A.i('s_waitcnt lgkmcnt(0)'); A.i('v_readfirstlane_b32 s23, v22'); A.i('s_nop 3')
        A.i('s_cmp_lt_u32 s23, 16'); A.i('s_cbranch_scc0 W_notA')
        A.i('s_mov_b32 s58, 4')
        A.i('s_getpc_b64 s[92:93]')
        A.label('W_pc')
        A.i('s_add_u32 s92, s92, P_phase-W_pc'); A.i('s_addc_u32 s93, s93, 0'); A.i('s_setpc_b64 s[92:93]')
        A.label('W_notA')
        A.label('W_pre')
    if KN.get('nospare'):
        get_xcc(A, 58); A.i('s_cmp_lt_u32 s58, 4'); A.i('s_cbranch_scc0 W_go0')
        A.i('s_endpgm')
        A.label('W_go0')
    for reg, key, nb in ((SRD_WQ, 'wq', 640*12288), (SRD_WK, 'wk', 640*12288), (SRD_WV, 'wv', 640*12288), (SRD_WO, 'wo', 6144*1280)):
        A.i(f's_load_dwordx2 s[6:7], s[0:1], {KA[key]}'); A.i('s_waitcnt lgkmcnt(0)'); srd(A, reg, 6, nb)
    A.i(f's_load_dwordx2 s[6:7], s[0:1], {KA["dbg"]}'); A.i('s_waitcnt lgkmcnt(0)'); srd(A, 12, 6, 256)
    setup_lane(A); setup_dma192(A, 12288); setup_dma160(A, 1280)
    get_xcc(A, 58); A.i('s_and_b32 s58, s58, 3')
    A.i('s_mov_b32 s59, 0')
    def fetch():
        lab = A.new('W_f')
        A.i('s_cmp_eq_u32 s16, 0'); A.i(f's_cbranch_scc0 {lab}')
        A.i('s_lshl_b32 s23, s58, 2'); A.i(f's_add_u32 s23, s23, {Q_WORD}')
        A.i('s_mov_b64 exec, 1'); A.i(f'v_mov_b32 v{vNEXT}, 1'); A.i('v_mov_b32 v22, s23')
        A.i(f'buffer_atomic_add v{vNEXT}, v22, s[12:15], 0 offen sc0')
        A.i('s_mov_b64 exec, -1')
        A.label(lab)
    def publish():
        lab = A.new('W_p')
        A.i('s_cmp_eq_u32 s16, 0'); A.i(f's_cbranch_scc0 {lab}')
        A.i('s_mov_b64 exec, 1'); A.i(f'v_mov_b32 v22, {LDS_BC}'); A.i(f'ds_write_b32 v22, v{vNEXT}'); A.i('s_waitcnt lgkmcnt(0)')
        A.i('s_mov_b64 exec, -1')
        A.label(lab)
    A.label('W_refetch')
    fetch(); A.i('s_waitcnt vmcnt(0)'); publish()
    A.i('s_barrier')
    A.label('W_loop')
    A.i(f'v_mov_b32 v22, {LDS_BC}'); A.i('ds_read_b32 v23, v22'); A.i('s_waitcnt lgkmcnt(0)'); A.i('v_readfirstlane_b32 s60, v23'); A.i('s_nop 3')
    A.i('s_barrier')
    A.i(f's_cmp_ge_u32 s60, {QLEN}'); A.i('s_cbranch_scc0 W_have')
    A.i('s_add_u32 s59, s59, 1'); A.i('s_cmp_ge_u32 s59, 4'); A.i('s_cbranch_scc1 W_done')
    A.i('s_add_u32 s58, s58, 1'); A.i('s_and_b32 s58, s58, 3'); A.i('s_branch W_refetch')
    A.label('W_have')
    A.i('s_mov_b32 s61, s58')
    if KN['log']: A.i('s_memrealtime s[62:63]'); A.i('s_waitcnt lgkmcnt(0)')
    if NSPLIT < 256: A.i(f's_cmp_lt_u32 s60, {NSPLIT}'); A.i('s_cbranch_scc0 W_head')
    A.i('s_and_b32 s40, s60, 1'); A.i('s_lshr_b32 s23, s60, 5'); A.i('s_lshl_b32 s23, s23, 1'); A.i('s_add_u32 s40, s40, s23')
    A.i('s_lshr_b32 s41, s60, 2'); A.i('s_and_b32 s41, s41, 7'); A.i('s_lshl_b32 s23, s61, 3'); A.i('s_add_u32 s41, s41, s23')
    ln_ready(A)
    A.i('s_bitcmp1_b32 s60, 1'); A.i('s_cbranch_scc1 W_kq')
    task_vvo2(A, fetch)
    A.i('s_mov_b32 s49, -1')
    A.i('s_branch W_end')
    A.label('W_kq')
    task_kq2(A, fetch)
    A.i('s_mov_b32 s49, s48'); A.i('s_mov_b32 s48, -1')
    if NSPLIT < 256:
        A.i('s_branch W_end')
        A.label('W_head')
        A.i(f's_sub_u32 s23, s60, {NSPLIT}')
        A.i('s_lshr_b32 s40, s23, 5'); A.i('s_lshl_b32 s40, s40, 2'); A.i('s_and_b32 s24, s23, 3'); A.i('s_add_u32 s40, s40, s24'); A.i(f's_add_u32 s40, s40, {NSPLIT//16}')
        A.i('s_lshr_b32 s41, s23, 2'); A.i('s_and_b32 s41, s41, 7')
        A.i('s_lshl_b32 s23, s61, 3'); A.i('s_add_u32 s41, s41, s23')
        task_head(A, fetch)
    A.label('W_end')
    if TS['on']:
        lab = A.new('ts1'); A.i('s_cmp_lt_u32 s60, 32'); A.i(f's_cbranch_scc0 {lab}'); ts_stamp(A, 9, 22); A.label(lab)
    publish()
    A.i('s_barrier')
    for r in (48, 49):
        lab = A.new('W_nosig')
        A.i(f's_cmp_eq_u32 s{r}, -1'); A.i(f's_cbranch_scc1 {lab}')
        signal_add(A, r)
        A.label(lab)
    def log_end(base, mulq=False):
        if not KN['log']: return
        A.i('s_memrealtime s[64:65]'); A.i('s_waitcnt lgkmcnt(0)')
        A.i('s_getreg_b32 s66, hwreg(HW_REG_XCC_ID)')
        A.i('s_lshl_b32 s66, s66, 16'); A.i('s_lshl_b32 s23, s40, 8'); A.i('s_or_b32 s66, s66, s23'); A.i('s_or_b32 s66, s66, s41')
        A.i('v_mov_b32 v24, s62'); A.i('v_mov_b32 v25, s64'); A.i('v_mov_b32 v26, s66'); A.i('v_mov_b32 v27, s60'); A.i('v_mov_b32 v23, 0')
        if mulq: A.i(f's_mul_i32 s23, s61, {QLEN}'); A.i('s_add_u32 s23, s23, s60')
        else: A.i(f's_add_u32 s23, s60, {base}')
        A.i('s_lshl_b32 s23, s23, 4'); A.i(f's_add_u32 s23, s23, {WS_LOG + 0x30000}')
        A.i('s_mov_b64 exec, 1'); A.i('buffer_store_dwordx4 v[24:27], v23, s[8:11], s23 offen'); A.i('s_mov_b64 exec, -1')
    log_end(0, True)
    A.i('s_branch W_loop')
    A.label('W_done')
    if KN['post'] and KN.get('spareA', True):
        lab = A.new('W_cnt')
        A.i('s_cmp_eq_u32 s16, 0'); A.i(f's_cbranch_scc0 {lab}')
        A.i('v_mov_b32 v22, 104'); A.i('buffer_load_dword v23, v22, s[12:15], 0 offen sc1'); A.i('s_waitcnt vmcnt(0)')
        A.i(f'v_mov_b32 v22, {LDS_BC + 16}'); A.i('ds_write_b32 v22, v23'); A.i('s_waitcnt lgkmcnt(0)')
        A.label(lab)
        A.i('s_barrier')
        A.i(f'v_mov_b32 v22, {LDS_BC + 16}'); A.i('ds_read_b32 v23, v22'); A.i('s_waitcnt lgkmcnt(0)')
        A.i('v_readfirstlane_b32 s23, v23'); A.i('s_nop 3'); A.i('s_cmp_lt_u32 s23, 4'); A.i('s_cbranch_scc0 W_toB')
        A.i('s_getpc_b64 s[92:93]')
        A.label('W_pc2')
        A.i('s_sub_u32 s92, s92, W_pc2-W_serveA'); A.i('s_subb_u32 s93, s93, 0'); A.i('s_setpc_b64 s[92:93]')
        A.label('W_toB')
    A.i('s_mov_b32 s58, 5')
    if KN['post']: gen_post(A, fetch, publish, log_end)
    else: A.i('s_waitcnt vmcnt(0)'); A.i('s_endpgm')
    gemm.set_ring(4)
```

```python
import sys
from common import *
import rec, gemm, small, post, worker
from compact import compact, MACROS
def build(path):
    launches = ([] if rec.KN['unified'] else [('prep_kernel', small.PRE4_GRID, 81920, small.gen_pre4())]) + [
        ('main_kernel', 256, 163840, rec.gen_rec('main_kernel', workers=worker.gen_worker)),
    ]
    hdr = open('adaLN_cond__memory_aug_recurrent_mem_tr__glu_gated_bilinear__prompt.s.ref').read().split('\n')
    head = [l for l in hdr if l.startswith(';') and '@launch' not in l and 'Override launch' not in l and 'grid=ceil' not in l]
    head = head[:head.index([l for l in head if 'd_ws ' in l][0])+1]
    doc = '''
 One persistent launch, 256 workgroups (one per CU), hand-written through generator scripts (macros below only shorten the text).

 Algebra.  With B_h = Wv_h Wo_h and VO_t = (h Wv_h) Wo_h the memory recurrence becomes, per segment,
   scores:  q,k = mem Wq_h, mem Wk_h ; P_h = softmax(q [k ; K_t]^T / sqrt(192))          (32 "S" workgroups, one head each)
   update:  mem' = sum_h P_h [mem B_h ; VO_t,h]                                          (80 "C" workgroups, 8 columns each)
 Both roles keep their weights in registers/LDS for all 64 steps (v_smfmac with rows 0-7 / 8-15 taking the two halves of every
 group of four k).  All 64 steps are computed in sequence; per step there are two all-gathers (mem, P) through write-through
 stores into slots that were pre-filled with a NaN sentinel: a consumer re-reads until no sentinel word is left.
 The other 144 workgroups take tasks from queues: modulation vector, layer norms, B tiles, K/Q/V/VO projections, token-side
 attention output, gated FFN.  Dependencies are counters/flags in d_ws (cleared in this launch before use) or in d_debug.

 Placement is a speed matter only.  Roles are drawn by ticket, preferably on XCC 0..3 (one I/O die); leftover roles are claimed
 by whoever is free.  A short latency probe picks which 8 KB blocks of the hand-off pages are used (all readers use the one
 published choice).  The XCD-local "doorbells" and the s_sleep back-offs after them only decide WHEN a consumer first reads a
 hand-off slot: reading it before it is written makes the producer's write-through store slower; the waits are bounded and
 the sentinel check alone decides whether data is accepted.  The s_sleep in the flag polls is plain back-off.
'''
    out = head + [';' + l for l in doc.strip('\n').split('\n')]
    for n, g, lds, _ in launches: out.append(f'; @launch kernel={n} grid=({g},1,1) block=(256,1,1) lds={lds}')
    out.append('.amdgcn_target "amdgcn-amd-amdhsa--gfx950"')
    s = '\n'.join(out) + '\n' + MACROS
    for _, _, _, (t, d) in launches: s += compact(t)
    for _, _, _, (t, d) in launches: s += d
    open(path, 'w').write(s)
    return s
if __name__ == '__main__':
    p = sys.argv[1] if len(sys.argv) > 1 else 'adaLN_cond__memory_aug_recurrent_mem_tr__glu_gated_bilinear__prompt.s'
    s = build(p)
    print(len(s), 'bytes')
```

```python
from common import *
from rec import Em, LG
from gemm import *

def unpack(A, lo, hi, src):
    A.i(f'v_lshlrev_b32 v{lo}, 16, v{src}'); A.i(f'v_and_b32 v{hi}, 0xffff0000, v{src}')

def residual_addr(A, col0_sgpr, row_sgpr, mod_idx):
    A.i('v_and_b32 v22, 63, v0'); A.i('v_and_b32 v23, 31, v22'); A.i(f'v_add_u32 v23, s{row_sgpr}, v23'); A.i('v_mul_u32_u24 v23, 1280, v23')
    A.i('v_lshrrev_b32 v24, 5, v22'); A.i('v_lshlrev_b32 v25, 3, v24'); A.i('v_add_u32 v23, v23, v25')
    A.i(f's_lshl_b32 s23, s{col0_sgpr}, 1'); A.i('v_add_u32 v23, s23, v23')
    A.i('v_lshlrev_b32 v24, 4, v24'); A.i(f's_lshl_b32 s23, s{col0_sgpr}, 2'); A.i('v_add_u32 v24, s23, v24')
    A.i(f's_mov_b32 s24, {WS_MOD + mod_idx*2560}')

def residual_loads(A, vm, nt, res_srd, res_soff, T, res_sc):
    for ti in range(nt):
        for q in range(4):
            vm.issue(f'buffer_load_dwordx4 {vr(T+16*ti+4*q)}, v24, s[8:11], s24 offen offset:{ti*128 + q*32}', 'g')
            r = T + 16*nt + 8*ti + 2*q
            vm.issue(f'buffer_load_dwordx2 v[{r}:{r+1}], v23, s[{res_srd}:{res_srd+3}], {res_soff} offen offset:{ti*64 + q*16}{res_sc}', 'g')

def residual_epilogue(A, vm, tiles, col0_sgpr, mod_idx, res_srd, res_soff, dst_srd, dst_soff, row_sgpr, T=0, res_sc='', dst_sc='', preloaded=False):
    nt = len(tiles)
    if not preloaded:
        residual_addr(A, col0_sgpr, row_sgpr, mod_idx)
        residual_loads(A, vm, nt, res_srd, res_soff, T, res_sc)
    vm.wait('g')
    for ti, D in enumerate(tiles):
        G, R = T + 16*ti, T + 16*nt + 8*ti
        for q in range(4):
            d = D + 4*q
            for h2 in range(2):
                a, b = d + 2*h2, d + 2*h2 + 1
                A.i(f'v_cvt_pk_bf16_f32 v26, v{a}, v{b}'); unpack(A, a, b, 26)
                A.i(f'v_mul_f32 v{a}, v{a}, v{G+4*q+2*h2}'); A.i(f'v_mul_f32 v{b}, v{b}, v{G+4*q+2*h2+1}')
                A.i(f'v_cvt_pk_bf16_f32 v26, v{a}, v{b}'); unpack(A, a, b, 26)
                unpack(A, 27, 28, R+2*q+h2)
                A.i(f'v_add_f32 v{a}, v{a}, v27'); A.i(f'v_add_f32 v{b}, v{b}, v28')
                A.i(f'v_cvt_pk_bf16_f32 v{R+2*q+h2}, v{a}, v{b}')
            vm.issue(f'buffer_store_dwordx2 v[{R+2*q}:{R+2*q+1}], v23, s[{dst_srd}:{dst_srd+3}], {dst_soff} offen offset:{ti*64 + q*16}{dst_sc}')

def task_t2(A, sc='', xsrd=None, tail=None):
    ACC, AF, BF, NPF = 32, 64, 48, 12
    vm = VM(A)
    A.i('v_and_b32 v22, 63, v0'); A.i('v_lshlrev_b32 v1, 4, v22')
    A.i(f's_mul_i32 s42, s40, {32*2560}'); A.i('s_mul_i32 s23, s16, 20480'); A.i('s_add_u32 s42, s42, s23'); A.i(f's_add_u32 s42, s42, {WS_PTOK}')
    for j in range(5):
        A.i(f's_add_u32 m0, s23, {j*4096}'); A.i('s_nop 0')
        for q in range(4): vm.issue(f'buffer_load_dwordx4 v1, s[8:11], s42 offen offset:{q*1024}{sc} lds', 'p')
        A.i('s_add_u32 s42, s42, 4096')
    A.i('v_and_b32 v23, 31, v22'); A.i('v_lshrrev_b32 v24, 3, v23'); A.i('v_and_b32 v23, 7, v23'); A.i('v_lshlrev_b32 v23, 4, v23')
    A.i('v_lshrrev_b32 v25, 5, v22'); A.i('v_lshlrev_b32 v26, 8, v25'); A.i('v_add_u32 v23, v23, v26')
    A.i('v_lshlrev_b32 v26, 14, v24'); A.i('v_add_u32 v2, v23, v26')
    A.i('v_lshlrev_b32 v26, 12, v24'); A.i('v_add_u32 v3, v23, v26')
    A.i('s_lshl_b32 s43, s41, 4'); A.i('s_lshl_b32 s23, s16, 2'); A.i('s_add_u32 s43, s43, s23')
    A.i('s_mul_i32 s44, s40, 80'); A.i('s_add_u32 s44, s44, s43')
    A.i('s_lshl_b32 s45, s44, 12'); A.i(f's_add_u32 s45, s45, {WS_VOM}')
    A.i('s_lshl_b32 s44, s44, 14'); A.i(f's_add_u32 s44, s44, {WS_VOT}')
    import rec
    if rec.KN.get('t2fake'): A.i('s_lshl_b32 s44, s43, 14'); A.i(f's_add_u32 s44, s44, {WS_VOT}')
    A.i('v_mul_u32_u24 v26, 2560, v25'); A.i('v_and_b32 v27, 31, v22'); A.i('v_lshlrev_b32 v27, 4, v27'); A.i('v_add3_u32 v4, v26, v27, 0')
    A.i('v_add_u32 v4, 2048, v4')
    ks = []
    for h in range(32):
        for k in range(2): ks.append(('t', h, k))
    for v in range(16): ks.append(('m', v, 0))
    cur = {'p': 0}
    def a_issue(j):
        kind, x, k = ks[j]; r = AF + 4*(j % NPF)
        if kind == 't':
            p = x >> 1
            if p != cur['p'] and p % 4 == 0: A.i('s_add_u32 s44, s44, 4096')
            cur['p'] = p
            vm.issue(f'buffer_load_dwordx4 {vr(r)}, v2, s[8:11], s44 offen offset:{(p%4)*1024 + k*512 + (x&1)*128}{sc}', f'a{j}')
        else:
            vm.issue(f'buffer_load_dwordx4 {vr(r)}, v3, s[8:11], s45 offen offset:{(x>>2)*1024 + (x&1)*512 + ((x>>1)&1)*128}{sc}', f'a{j}')
    lg = LG(A)
    def b_issue(j):
        kind, x, k = ks[j]; r = BF + 4*(j % 4)
        if kind == 't': lg.issue(f'ds_read_b128 {vr(r)}, v1 offset:{x*2560 + k*1024}' if x*2560 + k*1024 < 65536 else f'ds_read_b128 {vr(r)}, v5 offset:{x*2560 + k*1024 - 40960}', f'b{j}')
        else: lg.issue(f'ds_read_b128 {vr(r)}, v4 offset:{2*x*2560}' if 2*x*2560 < 60000 else f'ds_read_b128 {vr(r)}, v6 offset:{2*x*2560 - 40960}', f'b{j}')
    A.i('v_add_u32 v5, 40960, v1'); A.i('v_add_u32 v6, 40960, v4')
    for j in range(NPF): a_issue(j)
    vm.wait('p'); A.i('s_barrier')
    for j in range(3): b_issue(j)
    for j in range(80):
        vm.wait(f'a{j}'); lg.wait(f'b{j}')
        c = '0' if j == 0 else vr(ACC, 16)
        A.i(f'{MF} {vr(ACC,16)}, {vr(AF+4*(j%NPF))}, {vr(BF+4*(j%4))}, {c}')
        if j + NPF < 80: a_issue(j + NPF)
        if j + 3 < 80: b_issue(j + 3)
        if j == 68:
            A.i('s_lshl_b32 s46, s43, 3')
            A.i('s_lshl_b32 s47, s40, 5')
            A.i(f's_mov_b32 s49, {WS_X1}')
            residual_addr(A, 46, 47, 2)
            residual_loads(A, vm, 1, xsrd, '0', 112, '')
    A.i('s_nop 7'); A.i('s_nop 7')
    if tail: tail()
    residual_epilogue(A, vm, [ACC], 46, 2, xsrd, '0', 8, 's49', 47, T=112, dst_sc=sc, preloaded=True)
    vm.wait_all()

def gen_t2(name='t2_kernel'):
    A = Em()
    kernel_prolog(A, name, 320)
    A.i('s_nop 3')
    A.i('s_mul_i32 s40, s2, 0x3334'); A.i('s_lshr_b32 s40, s40, 16'); A.i('s_mul_i32 s23, s40, 5'); A.i('s_sub_u32 s41, s2, s23')
    task_t2(A)
    A.label(f'{name}_exit')
    A.i('s_endpgm')
    return A.text(), kernel_desc(name, 128, 128)

def task_ffn1(A, sc='', srds=None, tail=None):
    ACT, FR, ACCG, ACCU = 0, 160, 32, 128
    if srds is None:
        A.i(f's_load_dwordx2 s[6:7], s[0:1], {KA["wg"]}'); A.i(f's_load_dwordx2 s[18:19], s[0:1], {KA["wu"]}')
        A.i('s_waitcnt lgkmcnt(0)')
        srd(A, 12, 6, 640*3072); srd(A, 28, 18, 640*3072); srds = (12, 28)
    setup_dma192(A, 3072)
    A.i('s_mul_i32 s42, s41, 384'); A.i('s_mov_b32 s46, s42')
    A.i('s_lshl_b32 s43, s40, 2'); A.i('s_add_u32 s43, s43, s16')
    A.i(f's_mul_i32 s44, s43, {40*1024}'); A.i(f's_add_u32 s44, s44, {WS_H2}')
    vm = VM(A)
    stages = [Stage(192, srds[0], 42, 64*3072) for _ in range(10)] + [Stage(192, srds[1], 46, 64*3072) for _ in range(10)]
    e = Engine(A, vm, stages, FR)
    e.prologue_parts = act_parts(A, vm, ACT, 40, 44, sc)
    steps = pass192_steps(0, ACCG, ACT, vm, True) + pass192_steps(10, ACCU, ACT, vm, False)
    e.run(steps)
    if tail: tail()
    A.i('s_nop 7'); A.i('s_nop 7')
    A.i(f's_mul_i32 s45, s43, {96*1024}'); A.i(f's_mul_i32 s23, s41, {12*1024}'); A.i('s_add_u32 s45, s45, s23'); A.i(f's_add_u32 s45, s45, {WS_HM}')
    for t in range(6):
        for a in range(2):
            o = 24 if a == 0 else 28
            for r in range(4):
                g = ACCG + 16*t + 8*a + 2*r; u = ACCU + 16*t + 8*a + 2*r
                A.i(f'v_cvt_pk_bf16_f32 v22, v{g}, v{g+1}'); unpack(A, g, g+1, 22)
                A.i(f'v_cvt_pk_bf16_f32 v22, v{u}, v{u+1}'); unpack(A, u, u+1, 22)
                A.i(f'v_mul_f32 v{g}, v{g}, v{u}'); A.i(f'v_mul_f32 v{g+1}, v{g+1}, v{u+1}')
                A.i(f'v_cvt_pk_bf16_f32 v{o+r}, v{g}, v{g+1}')
            ks = 2*t + a
            if ks and ks % 4 == 0: A.i('s_add_u32 s45, s45, 4096')
            vm.issue(f'buffer_store_dwordx4 {vr(o)}, v{vL16}, s[8:11], s45 offen offset:{(ks%4)*1024}{sc}')
    vm.wait_all()

def task_ffn2(A, sc='', srds=None, tail=None):
    FR, ACC, AF, NPF = 160, 32, 0, 32
    if srds is None:
        A.i(f's_load_dwordx2 s[18:19], s[0:1], {KA["wd"]}'); A.i(f's_load_dwordx2 s[6:7], s[0:1], {KA["out"]}')
        A.i('s_waitcnt lgkmcnt(0)')
        srd(A, 28, 18, 1536*1280); srd(A, 12, 6, 2048*1280); srds = (28, 12)
    setup_dma160(A, 1280)
    A.i('s_mul_i32 s46, s41, 320')
    A.i('s_lshl_b32 s43, s40, 2'); A.i('s_add_u32 s43, s43, s16')
    A.i(f's_mul_i32 s44, s43, {96*1024}'); A.i(f's_add_u32 s44, s44, {WS_HM}')
    vm = VM(A)
    stages = [Stage(160, srds[0], 46, 64*1280) for _ in range(24)]
    e = Engine(A, vm, stages, FR)
    def act_issue(ks):
        if ks >= 96: return
        if ks and ks % 4 == 0: A.i('s_add_u32 s44, s44, 4096')
        r = AF + 4*(ks % NPF)
        vm.issue(f'buffer_load_dwordx4 a[{r}:{r+3}], v{vL16}, s[8:11], s44 offen offset:{(ks%4)*1024}{sc}', f'act{ks}')
    e.prologue_hook = lambda: [act_issue(k) for k in range(NPF)]
    steps = []
    for ks in range(96):
        def mf(t, fr, ks=ks):
            c = '0' if ks == 0 else vr(ACC+16*t, 16)
            r = AF + 4*(ks % NPF)
            return f'{MF} {vr(ACC+16*t,16)}, {fr}, a[{r}:{r+3}], {c}'
        steps.append(dict(stage=ks//4, ksl=ks % 4, nt=5, mfma=mf, pre=(lambda ks=ks: vm.wait(f'act{ks}')), post=(lambda ks=ks: act_issue(ks+NPF))))
    def early():
        A.i('s_mul_i32 s46, s41, 160'); A.i('s_lshl_b32 s47, s43, 5'); A.i(f's_mov_b32 s49, {WS_X1}')
        residual_addr(A, 46, 47, 5)
        residual_loads(A, vm, 5, 8, 's49', 128, sc)
    steps[90]['post'] = early
    e.run(steps)
    if tail: tail()
    A.i('s_nop 7'); A.i('s_nop 7')
    residual_epilogue(A, vm, [ACC+16*t for t in range(5)], 46, 5, 8, 's49', srds[1], '0', 47, T=128, res_sc=sc, preloaded=True)
    vm.wait_all()

def gen_ffn1(name='ffn1_kernel'):
    A = Em()
    kernel_prolog(A, name, 128)
    setup_lane(A)
    A.i('s_and_b32 s41, s2, 7'); A.i('s_lshr_b32 s40, s2, 3')
    task_ffn1(A)
    A.label(f'{name}_exit')
    A.i('s_endpgm')
    return A.text(), kernel_desc(name, 512, 256)

def gen_ffn2(name='ffn2_kernel'):
    A = Em()
    kernel_prolog(A, name, 64)
    setup_lane(A)
    A.i('s_and_b32 s41, s2, 3'); A.i('s_lshr_b32 s40, s2, 2')
    task_ffn2(A)
    A.label(f'{name}_exit')
    A.i('s_endpgm')
    return A.text(), kernel_desc(name, 512, 256)
```

```python
from common import *
from rec import Em, LG, SPIN_MAX, KN, ws_wait, ws_add, ws_take, boot_wait, b_tasks
import gemm, post, small, fast
from gemm import *

SRD_WQ, SRD_WK, SRD_WV, SRD_WO = 68, 72, 76, 80
W_NSLOT = 6
LDS_BC = W_NSLOT*SLOT
vNEXT = 5
Q_WORD = 128

def signal_add(A, off_sgpr):
    lab = A.new('sig')
    A.i('s_cmp_eq_u32 s16, 0'); A.i(f's_cbranch_scc0 {lab}')
    A.i('s_mov_b64 exec, 1'); A.i('v_mov_b32 v22, 1'); A.i('v_mov_b32 v23, 0')
    A.i(f'buffer_atomic_add v22, v23, s[8:11], s{off_sgpr} offen')
    A.i('s_mov_b64 exec, -1')
    A.label(lab)

def kq_store_tile(vm, D, t, soff, o, addr=21):
    ga, gb = o, o+4
    L = [f'v_cvt_pk_bf16_f32 v{ga}, v{D}, v{D+1}', f'v_cvt_pk_bf16_f32 v{ga+1}, v{D+2}, v{D+3}',
         f'v_cvt_pk_bf16_f32 v{ga+2}, v{D+8}, v{D+9}', f'v_cvt_pk_bf16_f32 v{ga+3}, v{D+10}, v{D+11}',
         f'v_cvt_pk_bf16_f32 v{gb}, v{D+4}, v{D+5}', f'v_cvt_pk_bf16_f32 v{gb+1}, v{D+6}, v{D+7}',
         f'v_cvt_pk_bf16_f32 v{gb+2}, v{D+12}, v{D+13}', f'v_cvt_pk_bf16_f32 v{gb+3}, v{D+14}, v{D+15}']
    if t == 4: L.append(f's_add_u32 s{soff}, s{soff}, 4096')
    L.append(lambda: vm.issue(f'buffer_store_dwordx4 {vr(ga)}, v{addr}, s[8:11], s{soff} offen offset:{(t%4)*1024} sc1'))
    L.append(lambda: vm.issue(f'buffer_store_dwordx4 {vr(gb)}, v{addr}, s[8:11], s{soff} offen offset:{(t%4)*1024+512} sc1'))
    return L

def task_kq2(A, tail):
    ACT, FR, ACCK, ACCQ, TMP = 0, 160, 32, 128, 224
    A.i('s_mul_i32 s42, s41, 384'); A.i('s_mov_b32 s46, s42')
    A.i('s_lshl_b32 s43, s40, 2'); A.i('s_add_u32 s43, s43, s16')
    A.i(f's_mul_i32 s44, s43, {40*1024}'); A.i(f's_add_u32 s44, s44, {WS_H}')
    A.i('v_and_b32 v22, 63, v0'); A.i('v_lshrrev_b32 v23, 4, v22'); A.i('v_and_b32 v23, 1, v23'); A.i('v_mul_u32_u24 v23, 6144, v23')
    A.i('v_lshrrev_b32 v24, 5, v22'); A.i('v_lshlrev_b32 v24, 4, v24'); A.i('v_and_b32 v25, 15, v22'); A.i('v_add_u32 v24, v24, v25')
    A.i('v_lshlrev_b32 v24, 4, v24'); A.i('v_add_u32 v21, v23, v24')
    A.i('s_lshl_b32 s45, s43, 5'); A.i('s_add_u32 s45, s45, s41'); A.i('s_mul_i32 s45, s45, 12288')
    A.i(f's_add_u32 s47, s45, {WS_QT}'); A.i(f's_add_u32 s45, s45, {WS_KT}')
    vm = VM(A)
    stages = [Stage(192, SRD_WK, 42, 64*12288) for _ in range(10)] + [Stage(192, SRD_WQ, 46, 64*12288) for _ in range(10)]
    e = Engine(A, vm, stages, FR)
    e.prologue_parts = act_parts(A, vm, ACT, 40, 44, ' sc1' if KN['unified'] else '')
    steps = pass192_steps(0, ACCK, ACT, vm, True) + pass192_steps(10, ACCQ, ACT, vm, False)
    def qk():
        for t in range(6): e.side.extend(kq_store_tile(vm, ACCK+16*t, t, 45, TMP + 8*(t & 1)))
    steps[42]['pre'] = qk
    e.run(steps)
    tail()
    e.flush_side()
    A.i('s_nop 7')
    for t in range(6): e.side.extend(kq_store_tile(vm, ACCQ+16*t, t, 47, TMP + 8*(t & 1)))
    e.flush_side()
    vm.wait_all()
    A.i('s_lshl_b32 s48, s40, 5'); A.i('s_add_u32 s48, s48, s41'); A.i('s_lshl_b32 s48, s48, 7'); A.i(f's_add_u32 s48, s48, {FL_KQ}')

def task_vvo2(A, tail):
    ACT, FR = 0, 160
    VACC, VOP, ACC0, ACC1, TMP = 32, 128, 32, 176, 112
    A.i('s_mul_i32 s42, s41, 384')
    A.i(f's_mul_i32 s46, s41, {192*1280}')
    A.i('s_lshl_b32 s43, s40, 2'); A.i('s_add_u32 s43, s43, s16')
    A.i(f's_mul_i32 s44, s43, {40*1024}'); A.i(f's_add_u32 s44, s44, {WS_H}')
    vm = VM(A)
    stages = [Stage(192, SRD_WV, 42, 64*12288) for _ in range(10)] + wo_stages(SRD_WO, 46)
    e = Engine(A, vm, stages, FR)
    e.prologue_parts = act_parts(A, vm, ACT, 40, 44, ' sc1' if KN['unified'] else '')
    steps = pass192_steps(0, VACC, ACT, vm, True)
    def conv():
        A.i('s_nop 7'); A.i('s_nop 7')
        for t in range(6):
            for a in range(2):
                for r in range(4):
                    s = VACC + 16*t + 8*a + 2*r
                    A.i(f'v_cvt_pk_bf16_f32 v{VOP + 4*(2*t+a) + r}, v{s}, v{s+1}')
        A.i('s_nop 1')
    steps[-1]['post'] = conv
    A.i('v_and_b32 v22, 63, v0'); A.i('v_and_b32 v23, 31, v22'); A.i('v_lshrrev_b32 v24, 3, v23'); A.i('v_lshlrev_b32 v24, 14, v24')
    A.i('v_lshrrev_b32 v25, 5, v22'); A.i('v_lshlrev_b32 v25, 8, v25'); A.i('v_and_b32 v23, 7, v23'); A.i('v_lshlrev_b32 v23, 4, v23')
    A.i('v_add3_u32 v21, v23, v24, v25')
    A.i(f's_mul_i32 s47, s43, {80*16384}'); A.i('s_lshr_b32 s23, s41, 1'); A.i('s_lshl_b32 s23, s23, 10'); A.i('s_add_u32 s47, s47, s23')
    A.i('s_and_b32 s23, s41, 1'); A.i('s_lshl_b32 s23, s23, 7'); A.i('s_add_u32 s47, s47, s23'); A.i(f's_add_u32 s47, s47, {WS_VOT}')
    def store_tile(cc, t, D):
        o = TMP + 8*(t & 1)
        L = []
        for q in range(4):
            L.append(f'v_cvt_pk_bf16_f32 v{o+2*q}, v{D+4*q}, v{D+4*q+1}')
            L.append(f'v_cvt_pk_bf16_f32 v{o+2*q+1}, v{D+4*q+2}, v{D+4*q+3}')
        L.append(f's_add_u32 s48, s47, {(cc*20 + t*4)*16384}')
        L.append('s_nop 0')
        for b in (0, 4):
            L.append(f'v_permlane32_swap_b32 v{o+b}, v{o+b+2}')
            L.append(f'v_permlane32_swap_b32 v{o+b+1}, v{o+b+3}')
        L.append(lambda: vm.issue(f'buffer_store_dwordx4 {vr(o)}, v21, s[8:11], s48 offen sc1'))
        L.append(lambda: vm.issue(f'buffer_store_dwordx4 {vr(o+4)}, v21, s[8:11], s48 offen offset:512 sc1'))
        return L
    steps += vo_pass(A, e, vm, 10, VOP, (ACC0, ACC1), store_tile)
    e.run(steps)
    tail()
    A.i('s_nop 7'); A.i('s_nop 7')
    for t in range(5):
        e.side.extend(store_tile(3, t, ACC1 + 16*t))
    e.flush_side()
    vm.wait_all()
    A.i('s_lshl_b32 s48, s40, 7'); A.i(f's_add_u32 s48, s48, {FL_VVO}')

def task_head(A, tail):
    ACT, FR = 0, 160
    VACC, VOP, ACC0, ACC1, TMP = 32, 128, 32, 176, 112
    ACCK, ACCQ, TMPK = 32, 128, 224
    A.i('s_mul_i32 s42, s41, 384'); A.i('s_mov_b32 s49, s42'); A.i('s_mov_b32 s50, s42')
    A.i(f's_mul_i32 s46, s41, {192*1280}')
    A.i('s_lshl_b32 s43, s40, 2'); A.i('s_add_u32 s43, s43, s16')
    A.i(f's_mul_i32 s44, s43, {40*1024}'); A.i(f's_add_u32 s44, s44, {WS_H}')
    vm = VM(A)
    stages = ([Stage(192, SRD_WV, 42, 64*12288) for _ in range(10)] + wo_stages(SRD_WO, 46) +
              [Stage(192, SRD_WK, 49, 64*12288) for _ in range(10)] + [Stage(192, SRD_WQ, 50, 64*12288) for _ in range(10)])
    e = Engine(A, vm, stages, FR)
    e.prologue_parts = act_parts(A, vm, ACT, 40, 44, ' sc1' if KN['unified'] else '')
    steps = pass192_steps(0, VACC, ACT, vm, True)
    def conv():
        A.i('s_nop 7'); A.i('s_nop 7')
        for t in range(6):
            for a in range(2):
                for r in range(4):
                    s = VACC + 16*t + 8*a + 2*r
                    A.i(f'v_cvt_pk_bf16_f32 v{VOP + 4*(2*t+a) + r}, v{s}, v{s+1}')
        A.i('s_nop 1')
    steps[-1]['post'] = conv
    A.i('v_and_b32 v22, 63, v0'); A.i('v_and_b32 v23, 31, v22'); A.i('v_lshrrev_b32 v24, 3, v23'); A.i('v_lshlrev_b32 v24, 14, v24')
    A.i('v_lshrrev_b32 v25, 5, v22'); A.i('v_lshlrev_b32 v25, 8, v25'); A.i('v_and_b32 v23, 7, v23'); A.i('v_lshlrev_b32 v23, 4, v23')
    A.i('v_add3_u32 v21, v23, v24, v25')
    A.i('v_lshrrev_b32 v23, 4, v22'); A.i('v_and_b32 v23, 1, v23'); A.i('v_mul_u32_u24 v23, 6144, v23')
    A.i('v_lshrrev_b32 v24, 5, v22'); A.i('v_lshlrev_b32 v24, 4, v24'); A.i('v_and_b32 v25, 15, v22'); A.i('v_add_u32 v24, v24, v25')
    A.i('v_lshlrev_b32 v24, 4, v24'); A.i('v_add_u32 v30, v23, v24')
    A.i(f's_mul_i32 s47, s43, {80*16384}'); A.i('s_lshr_b32 s23, s41, 1'); A.i('s_lshl_b32 s23, s23, 10'); A.i('s_add_u32 s47, s47, s23')
    A.i('s_and_b32 s23, s41, 1'); A.i('s_lshl_b32 s23, s23, 7'); A.i('s_add_u32 s47, s47, s23'); A.i(f's_add_u32 s47, s47, {WS_VOT}')
    A.i('s_lshl_b32 s45, s43, 5'); A.i('s_add_u32 s45, s45, s41'); A.i('s_mul_i32 s45, s45, 12288')
    A.i(f's_add_u32 s51, s45, {WS_QT}'); A.i(f's_add_u32 s45, s45, {WS_KT}')
    def store_tile(cc, t, D, tmp=TMP):
        o = tmp + 8*(t & 1)
        L = []
        for q in range(4):
            L.append(f'v_cvt_pk_bf16_f32 v{o+2*q}, v{D+4*q}, v{D+4*q+1}')
            L.append(f'v_cvt_pk_bf16_f32 v{o+2*q+1}, v{D+4*q+2}, v{D+4*q+3}')
        L.append(f's_add_u32 s48, s47, {(cc*20 + t*4)*16384}')
        L.append('s_nop 0')
        for b in (0, 4):
            L.append(f'v_permlane32_swap_b32 v{o+b}, v{o+b+2}')
            L.append(f'v_permlane32_swap_b32 v{o+b+1}, v{o+b+3}')
        L.append(lambda: vm.issue(f'buffer_store_dwordx4 {vr(o)}, v21, s[8:11], s48 offen sc1'))
        L.append(lambda: vm.issue(f'buffer_store_dwordx4 {vr(o+4)}, v21, s[8:11], s48 offen offset:512 sc1'))
        return L
    steps += vo_pass(A, e, vm, 10, VOP, (ACC0, ACC1), store_tile)
    ks_ = pass192_steps(22, ACCK, ACT, vm, False)
    def last_vo():
        for t in range(5): e.side.extend(store_tile(3, t, ACC1 + 16*t, VOP))
    ks_[1]['pre'] = last_vo
    qs_ = pass192_steps(32, ACCQ, ACT, vm, False)
    def kq_tiles(acc, soff):
        for t in range(6):
            L = kq_store_tile(vm, acc+16*t, t, soff, TMPK + 8*(t & 1), addr=30)
            e.side.extend(L)
    qs_[0]['pre'] = lambda: e.flush_side()
    qs_[2]['pre'] = lambda: kq_tiles(ACCK, 45)
    steps += ks_ + qs_
    e.run(steps)
    tail()
    e.flush_side()
    A.i('s_nop 7')
    kq_tiles(ACCQ, 51)
    e.flush_side()
    vm.wait_all()
    A.i('s_lshl_b32 s48, s40, 7'); A.i(f's_add_u32 s48, s48, {FL_VVO}')
    A.i('s_lshl_b32 s49, s40, 5'); A.i('s_add_u32 s49, s49, s41'); A.i('s_lshl_b32 s49, s49, 7'); A.i(f's_add_u32 s49, s49, {FL_KQ}')

def wait_dep(A, off_sgpr, target, backoff=12):
    l0, l1 = A.new('dep'), A.new('dep')
    A.i('s_cmp_eq_u32 s16, 0'); A.i(f's_cbranch_scc0 {l1}')
    A.i('s_mov_b32 s22, 0'); A.i('v_mov_b32 v22, 0')
    A.label(l0)
    A.i(f'buffer_load_dword v23, v22, s[8:11], s{off_sgpr} offen sc1')
    A.i('s_add_u32 s22, s22, 1'); A.i(f's_cmp_gt_u32 s22, {SPIN_MAX//8}'); A.i(f's_cbranch_scc1 {l1}')
    A.i('s_waitcnt vmcnt(0)'); A.i('v_readfirstlane_b32 s23, v23'); A.i('s_nop 3')
    A.i(f's_cmp_ge_u32 s23, {target}'); A.i(f's_cbranch_scc1 {l1}')
    A.i(f's_sleep {backoff}'); A.i(f's_branch {l0}')
    A.label(l1)
    A.i('s_barrier')

def wait_words(A, off_sgpr, n, backoff=12, grouped=False):
    l0, l1 = A.new('dw'), A.new('dw')
    A.i('s_cmp_eq_u32 s16, 0'); A.i(f's_cbranch_scc0 {l1}')
    A.i('s_mov_b32 s22, 0')
    A.i('v_and_b32 v22, 63, v0'); A.i('v_min_u32 v24, %d, v22' % (min(n, 64)-1))
    if grouped:
        A.i('v_lshrrev_b32 v25, 3, v24'); A.i('v_lshlrev_b32 v25, 7, v25'); A.i('v_and_b32 v24, 7, v24'); A.i('v_lshlrev_b32 v24, 2, v24'); A.i('v_add_u32 v24, v24, v25')
    else: A.i('v_lshlrev_b32 v24, 2, v24')
    if n > 64:
        A.i('v_add_u32 v25, 64, v22'); A.i(f'v_min_u32 v25, {n-1}, v25'); A.i('v_lshlrev_b32 v25, 2, v25')
    A.label(l0)
    A.i(f'buffer_load_dword v23, v24, s[8:11], s{off_sgpr} offen sc1')
    if n > 64: A.i(f'buffer_load_dword v26, v25, s[8:11], s{off_sgpr} offen sc1')
    A.i('s_add_u32 s22, s22, 1'); A.i(f's_cmp_gt_u32 s22, {SPIN_MAX//8}'); A.i(f's_cbranch_scc1 {l1}')
    A.i('s_waitcnt vmcnt(0)')
    if n > 64: A.i('v_min_u32 v23, v23, v26')
    A.i('v_cmp_eq_u32 vcc, 0, v23'); A.i(f's_cbranch_vccz {l1}')
    A.i(f's_sleep {backoff}'); A.i(f's_branch {l0}')
    A.label(l1)
    A.i('s_barrier')

SRD_WG, SRD_WU, SRD_WD, SRD_X, SRD_OUT = 68, 72, 76, 80, 84
NENG = 14
EKEYS = (7.5, 10, 17)
KEYS = (1, 3.5, 5, 7)
NWFA = 32
NF2F = 3
NBACK = 10
def post_table():
    TA, T = [], []
    for i in range(NWFA): TA.append((8 << 16) | i)
    for r in range(NENG):
        for i in range(20): TA.append((0 << 16) | (r << 8) | i)
    def e(ty, a, n):
        if ty == 3 and a >= NENG - NF2F:
            for sg in range(4*a, 4*a+4):
                for i in range(10): T.append((9 << 16) | (sg << 8) | i)
            return
        for i in range(n): T.append((ty << 16) | (a << 8) | i)
    for i in range(NWFA, 256): T.append((8 << 16) | i)
    ST = ((1, 4), (2, 8), (3, 4))
    for ty, n in ST:
        for r in range(NBACK): e(ty, r, n)
    items = []
    for r in range(NBACK, NENG):
        for st, off in zip(ST, EKEYS): items.append((4*r + off, 0, st[0], r, st[1]))
    s0 = 4*NENG
    FS = ((4, 10), (5, 2), (6, 24), (7, 10))
    for ty_i, (ty, n) in enumerate(FS):
        for r in range(s0, 64): items.append((r + KEYS[ty_i], 1 - ty_i*0.01, ty, r, n))
    for _, _, ty, r, n in sorted(items): e(ty, r, n)
    global NPA
    NPA = len(TA)
    return TA + T
POST_T = post_table()
NPOST = len(POST_T)

def gen_post(A, fetch, publish, log_end):
    A.label('P_phase')
    for reg, key, nb in ((SRD_WG, 'wg', 640*3072), (SRD_WU, 'wu', 640*3072), (SRD_WD, 'wd', 1536*1280), (SRD_X, 'x', 2048*1280), (SRD_OUT, 'out', 2048*1280)):
        A.i(f's_load_dwordx2 s[6:7], s[0:1], {KA[key]}'); A.i('s_waitcnt lgkmcnt(0)'); srd(A, reg, 6, nb)
    A.i(f's_load_dwordx2 s[6:7], s[0:1], {KA["dbg"]}'); A.i('s_waitcnt lgkmcnt(0)'); srd(A, 12, 6, 256)
    A.i('s_mov_b32 s54, 0'); A.i('s_mov_b32 s95, -1')
    A.label('P_refetch')
    fetch(); A.i('s_waitcnt vmcnt(0)'); publish()
    A.i('s_barrier')
    A.label('P_loop')
    A.i(f'v_mov_b32 v22, {LDS_BC}'); A.i('ds_read_b32 v23, v22'); A.i('s_waitcnt lgkmcnt(0)'); A.i('v_readfirstlane_b32 s60, v23'); A.i('s_nop 3')
    A.i('s_barrier')
    A.i('s_cmp_eq_u32 s58, 4'); A.i('s_cbranch_scc0 P_qb')
    A.i(f's_cmp_ge_u32 s60, {NPA}'); A.i('s_cbranch_scc0 P_go')
    A.i('s_mov_b32 s58, 5'); A.i('s_branch P_refetch')
    A.label('P_qb')
    A.i(f's_add_u32 s60, s60, {NPA}')
    A.i(f's_cmp_ge_u32 s60, {NPOST}'); A.i('s_cbranch_scc0 P_go')
    ts_stamp(A, 5)
    A.i('s_waitcnt vmcnt(0)'); A.i('s_endpgm')
    A.label('P_go')
    A.i('s_getpc_b64 s[92:93]')
    A.label('P_pc')
    A.i('s_add_u32 s92, s92, P_table-P_pc'); A.i('s_addc_u32 s93, s93, 0')
    A.i('s_lshl_b32 s23, s60, 2'); A.i('s_load_dword s57, s[92:93], s23'); A.i('s_waitcnt lgkmcnt(0)')
    A.i('s_lshr_b32 s56, s57, 16'); A.i('s_lshr_b32 s40, s57, 8'); A.i('s_and_b32 s40, s40, 255'); A.i('s_and_b32 s41, s57, 255')
    if KN['log']: A.i('s_memrealtime s[62:63]'); A.i('s_waitcnt lgkmcnt(0)')
    for ty, lab in ((9, 'P_f2g'), (8, 'P_wf'), (7, 'P_f2f'), (6, 'P_f1f'), (5, 'P_lnf'), (4, 'P_t2f'), (3, 'P_f2'), (2, 'P_f1'), (1, 'P_ln')):
        A.i(f's_cmp_eq_u32 s56, {ty}'); A.i(f's_cbranch_scc1 {lab}')
    A.i('s_mul_i32 s24, s41, 13108'); A.i('s_lshr_b32 s24, s24, 16')
    A.i('s_mul_i32 s25, s24, 5'); A.i('s_sub_u32 s41, s41, s25')
    A.i('s_mov_b32 s55, s40'); A.i('s_lshl_b32 s40, s40, 2'); A.i('s_add_u32 s40, s40, s24')
    def wait_seg(bo=12, regs=(48, 49)):
        r0, r1 = regs
        l5, l6 = A.new('ws'), A.new('ws')
        A.i('s_cmp_ge_u32 s40, 62'); A.i(f's_cbranch_scc1 {l5}')
        A.i(f's_add_u32 s{r0}, s40, 1'); A.i(f's_lshl_b32 s{r0}, s{r0}, 9'); A.i(f's_add_u32 s{r0}, s{r0}, {FL_PT}')
        wait_words(A, r0, 32, bo, grouped=True)
        A.i(f's_branch {l6}')
        A.label(l5)
        A.i(f's_mov_b32 s{r0}, {FL_PT + 63*512}'); A.i(f's_mov_b32 s{r1}, {FL_VM}')
        wait_words(A, r0, 32, 2, grouped=True); wait_words(A, r1, 80, 2)
        A.label(l6)
    wait_seg(KN.get('boA', 40))
    post.task_t2(A, sc=' sc1', xsrd=SRD_X, tail=fetch)
    A.i('s_lshl_b32 s48, s55, 7'); A.i(f's_add_u32 s48, s48, {FL_T2}')
    A.i('s_branch P_end')
    A.label('P_ln')
    A.i('s_mov_b32 s55, s40')
    A.i('s_lshl_b32 s48, s40, 7'); A.i(f's_add_u32 s48, s48, {FL_T2}')
    wait_dep(A, 48, 20)
    A.i('s_lshl_b32 s40, s40, 2'); A.i('s_add_u32 s40, s40, s41'); A.i('s_lshl_b32 s40, s40, 1')
    A.i(f's_mov_b32 s27, {WS_X1}')
    for it in range(2):
        small.role_ln(A, lambda: None, 's27', 3, 4, WS_H2, sc=' sc1', ssrd=8)
        if it == 0: A.i('s_add_u32 s40, s40, 1')
    fetch()
    A.i('s_waitcnt vmcnt(0)')
    A.i('s_lshl_b32 s48, s55, 7'); A.i(f's_add_u32 s48, s48, {FL_LN}')
    A.i('s_branch P_end')
    A.label('P_f1')
    A.i('s_lshl_b32 s48, s40, 7'); A.i(f's_add_u32 s48, s48, {FL_LN}')
    wait_dep(A, 48, 4)
    setup_lane(A)
    post.task_ffn1(A, sc=' sc1', srds=(SRD_WG, SRD_WU), tail=fetch)
    A.i('s_lshl_b32 s48, s40, 7'); A.i(f's_add_u32 s48, s48, {FL_F1}')
    A.i('s_branch P_end')
    A.label('P_f2')
    A.i('s_lshl_b32 s48, s40, 7'); A.i(f's_add_u32 s48, s48, {FL_F1}')
    wait_dep(A, 48, 8)
    setup_lane(A)
    post.task_ffn2(A, sc=' sc1', srds=(SRD_WD, SRD_OUT), tail=fetch)
    A.i('s_mov_b32 s48, -1')
    A.i('s_branch P_end')
    A.label('P_t2f')
    lab = A.new('vvok')
    A.i('s_lshr_b32 s55, s40, 2'); A.i('s_cmp_eq_u32 s55, s95'); A.i(f's_cbranch_scc1 {lab}')
    A.i('s_lshl_b32 s48, s55, 7'); A.i(f's_add_u32 s48, s48, {FL_VVO}'); wait_dep(A, 48, 32, 4); A.i('s_mov_b32 s95, s55')
    A.label(lab)
    fast.task_t2f(A, SRD_X, fetch, lambda: wait_seg(KN.get('boF', 8), (52, 53)))
    A.i('s_lshl_b32 s48, s40, 7'); A.i(f's_add_u32 s48, s48, {FL_T2S}')
    A.i('s_branch P_end')
    A.label('P_lnf')
    A.i('s_mov_b32 s55, s40')
    A.i('s_lshl_b32 s48, s40, 7'); A.i(f's_add_u32 s48, s48, {FL_T2S}')
    A.i('s_lshl_b32 s40, s40, 1'); A.i('s_add_u32 s40, s40, s41')
    A.i(f's_mov_b32 s27, {WS_X1}')
    small.role_ln(A, lambda: None, 's27', 3, 4, WS_H2, sc=' sc1', ssrd=8, dep=lambda: wait_dep(A, 48, 10, 2))
    fetch()
    A.i('s_waitcnt vmcnt(0)')
    A.i('s_lshl_b32 s48, s55, 7'); A.i(f's_add_u32 s48, s48, {FL_LNS - 48*128}')
    A.i('s_branch P_end')
    A.label('P_wf')
    A.i('s_mov_b32 s40, s41')
    small.role_wfrag(A, ' sc1')
    fetch(); A.i('s_waitcnt vmcnt(0)')
    A.i(f's_mov_b32 s48, {FL_WF}')
    A.i('s_branch P_end')
    def wf_ready():
        lab = A.new('wfok')
        A.i('s_cmp_eq_u32 s54, 1'); A.i(f's_cbranch_scc1 {lab}')
        A.i(f's_mov_b32 s48, {FL_WF}'); wait_dep(A, 48, 256, 8); A.i('s_mov_b32 s54, 1')
        A.label(lab)
    A.label('P_f1f')
    wf_ready()
    A.i('s_lshl_b32 s55, s40, 7'); A.i(f's_add_u32 s55, s55, {FL_LNS - 48*128}')
    fast.task_f1f(A, fetch, lambda: wait_dep(A, 55, 2, 2))
    A.i('s_lshl_b32 s48, s40, 7'); A.i(f's_add_u32 s48, s48, {FL_F1S - 48*128}')
    A.i('s_branch P_end')
    A.label('P_f2g')
    A.i('s_lshr_b32 s55, s40, 2'); A.i('s_lshl_b32 s55, s55, 7'); A.i(f's_add_u32 s55, s55, {FL_F1}'); A.i('s_mov_b32 s53, 8')
    A.i('s_branch P_f2c')
    A.label('P_f2f')
    A.i('s_lshl_b32 s55, s40, 7'); A.i(f's_add_u32 s55, s55, {FL_F1S - 48*128}'); A.i('s_mov_b32 s53, 24')
    A.label('P_f2c')
    wf_ready()
    fast.task_f2f(A, SRD_OUT, fetch, lambda: wait_dep(A, 55, 's53', 2))
    A.i('s_mov_b32 s48, -1')
    A.label('P_end')
    publish()
    A.i('s_barrier')
    lab = A.new('P_nosig')
    A.i('s_cmp_eq_u32 s48, -1'); A.i(f's_cbranch_scc1 {lab}')
    signal_add(A, 48)
    A.label(lab)
    log_end(4*QLEN)
    A.i('s_branch P_loop')
    A.L.append('.p2align 2')
    A.L.append('.type P_table,@object')
    A.label('P_table')
    for i in range(0, NPOST, 16):
        A.L.append('.long ' + ','.join(str(x) for x in POST_T[i:i+16]))
    A.L.append(f'.size P_table, {4*NPOST}')

NSPLIT = 256
QLEN = NSPLIT + (16 - NSPLIT//16)*8
def gen_startup(A):
    get_xcc(A, 58); A.i('s_cmp_lt_u32 s58, 4'); A.i('s_cbranch_scc0 U_boot')
    b_tasks(A, None, 'W')
    A.label('U_more')
    ws_take(A, BT_SQ, 84)
    A.i('s_cmp_lt_u32 s84, 97'); A.i('s_cbranch_scc0 U_ln')
    A.i('s_mov_b32 s82, 0'); A.i('s_branch U_do')
    A.label('U_boot')
    boot_wait(A, 22)
    ws_take(A, BT_SQ, 84)
    A.i('s_mov_b32 s82, 1')
    A.label('U_do')
    A.i('s_cmp_lt_u32 s84, 60'); A.i('s_cbranch_scc0 U_a')
    A.i('s_mov_b32 s40, s84'); small.role_mod(A, True, inmain=True); A.i('s_branch U_more')
    A.label('U_a')
    A.i('s_cmp_lt_u32 s84, 64'); A.i('s_cbranch_scc0 U_b')
    A.i('s_sub_u32 s40, s84, 60'); small.role_zero(A); A.i('s_branch U_init')
    A.label('U_b')
    A.i('s_cmp_lt_u32 s84, 96'); A.i('s_cbranch_scc0 U_c')
    A.i('s_sub_u32 s40, s84, 64'); small.role_fill(A, 32); A.i('s_branch U_init')
    A.label('U_c')
    A.i('s_cmp_eq_u32 s84, 96'); A.i('s_cbranch_scc0 U_bt')
    small.role_mem0(A)
    A.label('U_init')
    A.i('s_barrier'); ws_add(A, BT_INIT, 22)
    A.label('U_bt')
    A.i('s_cmp_eq_u32 s82, 1'); A.i('s_cbranch_scc0 U_more')
    b_tasks(A, KN.get('wB', 1), 'X')
    A.i('s_branch U_more')
    A.label('U_ln')
    ws_take(A, BT_LQ, 84)
    A.i('s_cmp_lt_u32 s84, 128'); A.i('s_cbranch_scc0 U_done')
    A.i('s_mov_b32 s40, s84')
    def su():
        A.i(f's_load_dwordx2 s[6:7], s[0:1], {KA["x"]}'); A.i('s_waitcnt lgkmcnt(0)'); srd(A, 36, 6, 2048*1280)
    small.role_ln(A, su, '0', 0, 1, WS_H, sc=' sc1', ssrd=36, wait_mod='main')
    A.i('s_barrier')
    lab = A.new('U_sig')
    A.i('s_cmp_eq_u32 s16, 0'); A.i(f's_cbranch_scc0 {lab}')
    A.i('s_lshr_b32 s23, s40, 3'); A.i('s_lshl_b32 s23, s23, 7'); A.i(f's_add_u32 s23, s23, {BT_LN}')
    A.i('s_mov_b64 exec, 1'); A.i('v_mov_b32 v22, 1'); A.i('v_mov_b32 v23, s23')
    A.i('buffer_atomic_add v22, v23, s[8:11], 0 offen'); A.i('s_mov_b64 exec, -1')
    A.label(lab)
    A.i('s_branch U_ln')
    A.label('U_done')
    ts_stamp(A, 1, 22)
    ws_wait(A, BT_INIT, N_INIT, 22)
    ts_stamp(A, 3, 22)
    A.i('s_mov_b32 s96, -1')

def ln_ready(A):
    if not KN['unified']: return
    lab, l0, l1 = A.new('lnr'), A.new('lnr'), A.new('lnr')
    A.i('s_cmp_eq_u32 s40, s96'); A.i(f's_cbranch_scc1 {lab}')
    A.i('s_cmp_eq_u32 s16, 0'); A.i(f's_cbranch_scc0 {l1}')
    A.i('s_lshl_b32 s25, s40, 7'); A.i(f's_add_u32 s25, s25, {BT_LN}'); A.i('v_mov_b32 v22, s25'); A.i('s_mov_b32 s22, 0')
    A.label(l0)
    A.i('buffer_load_dword v23, v22, s[8:11], 0 offen sc1')
    A.i('s_add_u32 s22, s22, 1'); A.i(f's_cmp_gt_u32 s22, {SPIN_MAX//4}'); A.i(f's_cbranch_scc1 {l1}')
    A.i('s_waitcnt vmcnt(0)'); A.i('v_readfirstlane_b32 s23, v23'); A.i('s_nop 3')
    A.i('s_cmp_ge_u32 s23, 8'); A.i(f's_cbranch_scc1 {l1}'); A.i('s_sleep 3'); A.i(f's_branch {l0}')
    A.label(l1)
    A.i('s_barrier')
    A.i('s_mov_b32 s96, s40')
    A.label(lab)

def gen_worker(A):
    gemm.set_ring(W_NSLOT)
    A.label('W_role')
    if KN['unified']: gen_startup(A)
    if KN['post'] and KN.get('spareA', True):
        get_xcc(A, 58)
        if KN.get('farA'):
            A.i('s_cmp_ge_u32 s58, 4'); A.i('s_cbranch_scc0 W_pre'); A.i('s_cmp_lt_u32 s81, 4'); A.i('s_cbranch_scc0 W_pre')
        else:
            A.i('s_cmp_lt_u32 s58, 4'); A.i('s_cbranch_scc0 W_pre')
        A.label('W_serveA')
        lab = A.new('W_reg')
        A.i('s_barrier')
        A.i('s_cmp_eq_u32 s16, 0'); A.i(f's_cbranch_scc0 {lab}')
        A.i('s_mov_b64 exec, 1'); A.i('v_mov_b32 v22, 1'); A.i('v_mov_b32 v23, 104')
        A.i('buffer_atomic_add v22, v23, s[12:15], 0 offen sc0'); A.i('s_waitcnt vmcnt(0)')
        A.i(f'v_mov_b32 v23, {LDS_BC + 32}'); A.i('ds_write_b32 v23, v22'); A.i('s_waitcnt lgkmcnt(0)'); A.i('s_mov_b64 exec, -1')
        A.label(lab)
        A.i('s_barrier')
        A.i(f'v_mov_b32 v23, {LDS_BC + 32}'); A.i('ds_read_b32 v22, v23'); A.i('s_waitcnt lgkmcnt(0)'); A.i('v_readfirstlane_b32 s23, v22'); A.i('s_nop 3')
        A.i('s_cmp_lt_u32 s23, 16'); A.i('s_cbranch_scc0 W_notA')
        A.i('s_mov_b32 s58, 4')
        A.i('s_getpc_b64 s[92:93]')
        A.label('W_pc')
        A.i('s_add_u32 s92, s92, P_phase-W_pc'); A.i('s_addc_u32 s93, s93, 0'); A.i('s_setpc_b64 s[92:93]')
        A.label('W_notA')
        A.label('W_pre')
    if KN.get('nospare'):
        get_xcc(A, 58); A.i('s_cmp_lt_u32 s58, 4'); A.i('s_cbranch_scc0 W_go0')
        A.i('s_endpgm')
        A.label('W_go0')
    for reg, key, nb in ((SRD_WQ, 'wq', 640*12288), (SRD_WK, 'wk', 640*12288), (SRD_WV, 'wv', 640*12288), (SRD_WO, 'wo', 6144*1280)):
        A.i(f's_load_dwordx2 s[6:7], s[0:1], {KA[key]}'); A.i('s_waitcnt lgkmcnt(0)'); srd(A, reg, 6, nb)
    A.i(f's_load_dwordx2 s[6:7], s[0:1], {KA["dbg"]}'); A.i('s_waitcnt lgkmcnt(0)'); srd(A, 12, 6, 256)
    setup_lane(A); setup_dma192(A, 12288); setup_dma160(A, 1280)
    get_xcc(A, 58); A.i('s_and_b32 s58, s58, 3')
    A.i('s_mov_b32 s59, 0')
    def fetch():
        lab = A.new('W_f')
        A.i('s_cmp_eq_u32 s16, 0'); A.i(f's_cbranch_scc0 {lab}')
        A.i('s_lshl_b32 s23, s58, 2'); A.i(f's_add_u32 s23, s23, {Q_WORD}')
        A.i('s_mov_b64 exec, 1'); A.i(f'v_mov_b32 v{vNEXT}, 1'); A.i('v_mov_b32 v22, s23')
        A.i(f'buffer_atomic_add v{vNEXT}, v22, s[12:15], 0 offen sc0')
        A.i('s_mov_b64 exec, -1')
        A.label(lab)
    def publish():
        lab = A.new('W_p')
        A.i('s_cmp_eq_u32 s16, 0'); A.i(f's_cbranch_scc0 {lab}')
        A.i('s_mov_b64 exec, 1'); A.i(f'v_mov_b32 v22, {LDS_BC}'); A.i(f'ds_write_b32 v22, v{vNEXT}'); A.i('s_waitcnt lgkmcnt(0)')
        A.i('s_mov_b64 exec, -1')
        A.label(lab)
    A.label('W_refetch')
    fetch(); A.i('s_waitcnt vmcnt(0)'); publish()
    A.i('s_barrier')
    A.label('W_loop')
    A.i(f'v_mov_b32 v22, {LDS_BC}'); A.i('ds_read_b32 v23, v22'); A.i('s_waitcnt lgkmcnt(0)'); A.i('v_readfirstlane_b32 s60, v23'); A.i('s_nop 3')
    A.i('s_barrier')
    A.i(f's_cmp_ge_u32 s60, {QLEN}'); A.i('s_cbranch_scc0 W_have')
    A.i('s_add_u32 s59, s59, 1'); A.i('s_cmp_ge_u32 s59, 4'); A.i('s_cbranch_scc1 W_done')
    A.i('s_add_u32 s58, s58, 1'); A.i('s_and_b32 s58, s58, 3'); A.i('s_branch W_refetch')
    A.label('W_have')
    A.i('s_mov_b32 s61, s58')
    if KN['log']: A.i('s_memrealtime s[62:63]'); A.i('s_waitcnt lgkmcnt(0)')
    if NSPLIT < 256: A.i(f's_cmp_lt_u32 s60, {NSPLIT}'); A.i('s_cbranch_scc0 W_head')
    A.i('s_and_b32 s40, s60, 1'); A.i('s_lshr_b32 s23, s60, 5'); A.i('s_lshl_b32 s23, s23, 1'); A.i('s_add_u32 s40, s40, s23')
    A.i('s_lshr_b32 s41, s60, 2'); A.i('s_and_b32 s41, s41, 7'); A.i('s_lshl_b32 s23, s61, 3'); A.i('s_add_u32 s41, s41, s23')
    ln_ready(A)
    A.i('s_bitcmp1_b32 s60, 1'); A.i('s_cbranch_scc1 W_kq')
    task_vvo2(A, fetch)
    A.i('s_mov_b32 s49, -1')
    A.i('s_branch W_end')
    A.label('W_kq')
    task_kq2(A, fetch)
    A.i('s_mov_b32 s49, s48'); A.i('s_mov_b32 s48, -1')
    if NSPLIT < 256:
        A.i('s_branch W_end')
        A.label('W_head')
        A.i(f's_sub_u32 s23, s60, {NSPLIT}')
        A.i('s_lshr_b32 s40, s23, 5'); A.i('s_lshl_b32 s40, s40, 2'); A.i('s_and_b32 s24, s23, 3'); A.i('s_add_u32 s40, s40, s24'); A.i(f's_add_u32 s40, s40, {NSPLIT//16}')
        A.i('s_lshr_b32 s41, s23, 2'); A.i('s_and_b32 s41, s41, 7')
        A.i('s_lshl_b32 s23, s61, 3'); A.i('s_add_u32 s41, s41, s23')
        task_head(A, fetch)
    A.label('W_end')
    if TS['on']:
        lab = A.new('ts1'); A.i('s_cmp_lt_u32 s60, 32'); A.i(f's_cbranch_scc0 {lab}'); ts_stamp(A, 9, 22); A.label(lab)
    publish()
    A.i('s_barrier')
    for r in (48, 49):
        lab = A.new('W_nosig')
        A.i(f's_cmp_eq_u32 s{r}, -1'); A.i(f's_cbranch_scc1 {lab}')
        signal_add(A, r)
        A.label(lab)
    def log_end(base, mulq=False):
        if not KN['log']: return
        A.i('s_memrealtime s[64:65]'); A.i('s_waitcnt lgkmcnt(0)')
        A.i('s_getreg_b32 s66, hwreg(HW_REG_XCC_ID)')
        A.i('s_lshl_b32 s66, s66, 16'); A.i('s_lshl_b32 s23, s40, 8'); A.i('s_or_b32 s66, s66, s23'); A.i('s_or_b32 s66, s66, s41')
        A.i('v_mov_b32 v24, s62'); A.i('v_mov_b32 v25, s64'); A.i('v_mov_b32 v26, s66'); A.i('v_mov_b32 v27, s60'); A.i('v_mov_b32 v23, 0')
        if mulq: A.i(f's_mul_i32 s23, s61, {QLEN}'); A.i('s_add_u32 s23, s23, s60')
        else: A.i(f's_add_u32 s23, s60, {base}')
        A.i('s_lshl_b32 s23, s23, 4'); A.i(f's_add_u32 s23, s23, {WS_LOG + 0x30000}')
        A.i('s_mov_b64 exec, 1'); A.i('buffer_store_dwordx4 v[24:27], v23, s[8:11], s23 offen'); A.i('s_mov_b64 exec, -1')
    log_end(0, True)
    A.i('s_branch W_loop')
    A.label('W_done')
    if KN['post'] and KN.get('spareA', True):
        lab = A.new('W_cnt')
        A.i('s_cmp_eq_u32 s16, 0'); A.i(f's_cbranch_scc0 {lab}')
        A.i('v_mov_b32 v22, 104'); A.i('buffer_load_dword v23, v22, s[12:15], 0 offen sc1'); A.i('s_waitcnt vmcnt(0)')
        A.i(f'v_mov_b32 v22, {LDS_BC + 16}'); A.i('ds_write_b32 v22, v23'); A.i('s_waitcnt lgkmcnt(0)')
        A.label(lab)
        A.i('s_barrier')
        A.i(f'v_mov_b32 v22, {LDS_BC + 16}'); A.i('ds_read_b32 v23, v22'); A.i('s_waitcnt lgkmcnt(0)')
        A.i('v_readfirstlane_b32 s23, v23'); A.i('s_nop 3'); A.i('s_cmp_lt_u32 s23, 4'); A.i('s_cbranch_scc0 W_toB')
        A.i('s_getpc_b64 s[92:93]')
        A.label('W_pc2')
        A.i('s_sub_u32 s92, s92, W_pc2-W_serveA'); A.i('s_subb_u32 s93, s93, 0'); A.i('s_setpc_b64 s[92:93]')
        A.label('W_toB')
    A.i('s_mov_b32 s58, 5')
    if KN['post']: gen_post(A, fetch, publish, log_end)
    else: A.i('s_waitcnt vmcnt(0)'); A.i('s_endpgm')
    gemm.set_ring(4)
```

```python
from common import *
from rec import Em, LG, SPIN_MAX, KN, ws_wait, ws_add, ws_take, boot_wait, b_tasks
import gemm, post, small, fast
from gemm import *

SRD_WQ, SRD_WK, SRD_WV, SRD_WO = 68, 72, 76, 80
W_NSLOT = 6
LDS_BC = W_NSLOT*SLOT
vNEXT = 5
Q_WORD = 128

def signal_add(A, off_sgpr):
    lab = A.new('sig')
    A.i('s_cmp_eq_u32 s16, 0'); A.i(f's_cbranch_scc0 {lab}')
    A.i('s_mov_b64 exec, 1'); A.i('v_mov_b32 v22, 1'); A.i('v_mov_b32 v23, 0')
    A.i(f'buffer_atomic_add v22, v23, s[8:11], s{off_sgpr} offen')
    A.i('s_mov_b64 exec, -1')
    A.label(lab)

def pending_signal(A):
    lab = A.new('pend')
    A.i('s_cmp_eq_u32 s52, -1'); A.i(f's_cbranch_scc1 {lab}')
    signal_add(A, 52)
    A.i('s_mov_b32 s52, -1')
    A.label(lab)

def task_end(A, vm, mark):
    if not KN.get('defer', False):
        vm.wait_all(); return
    n = len(vm.q) - mark[0]
    l1, l2 = A.new('te'), A.new('te')
    A.i('s_cmp_lt_u32 s60, 32'); A.i(f's_cbranch_scc1 {l1}')
    A.i(f's_waitcnt vmcnt({min(max(n, 0), 63)})'); A.i(f's_branch {l2}')
    A.label(l1)
    A.i('s_waitcnt vmcnt(0)')
    A.label(l2)

def kq_store_tile(vm, D, t, soff, o, addr=21):
    ga, gb = o, o+4
    L = [f'v_cvt_pk_bf16_f32 v{ga}, v{D}, v{D+1}', f'v_cvt_pk_bf16_f32 v{ga+1}, v{D+2}, v{D+3}',
         f'v_cvt_pk_bf16_f32 v{ga+2}, v{D+8}, v{D+9}', f'v_cvt_pk_bf16_f32 v{ga+3}, v{D+10}, v{D+11}',
         f'v_cvt_pk_bf16_f32 v{gb}, v{D+4}, v{D+5}', f'v_cvt_pk_bf16_f32 v{gb+1}, v{D+6}, v{D+7}',
         f'v_cvt_pk_bf16_f32 v{gb+2}, v{D+12}, v{D+13}', f'v_cvt_pk_bf16_f32 v{gb+3}, v{D+14}, v{D+15}']
    if t == 4: L.append(f's_add_u32 s{soff}, s{soff}, 4096')
    L.append(lambda: vm.issue(f'buffer_store_dwordx4 {vr(ga)}, v{addr}, s[8:11], s{soff} offen offset:{(t%4)*1024} sc1'))
    L.append(lambda: vm.issue(f'buffer_store_dwordx4 {vr(gb)}, v{addr}, s[8:11], s{soff} offen offset:{(t%4)*1024+512} sc1'))
    return L

def task_kq2(A, tail):
    ACT, FR, ACCK, ACCQ, TMP = 0, 160, 32, 128, 224
    A.i('s_mul_i32 s42, s41, 384'); A.i('s_mov_b32 s46, s42')
    A.i('s_lshl_b32 s43, s40, 2'); A.i('s_add_u32 s43, s43, s16')
    A.i(f's_mul_i32 s44, s43, {40*1024}'); A.i(f's_add_u32 s44, s44, {WS_H}')
    A.i('v_and_b32 v22, 63, v0'); A.i('v_lshrrev_b32 v23, 4, v22'); A.i('v_and_b32 v23, 1, v23'); A.i('v_mul_u32_u24 v23, 6144, v23')
    A.i('v_lshrrev_b32 v24, 5, v22'); A.i('v_lshlrev_b32 v24, 4, v24'); A.i('v_and_b32 v25, 15, v22'); A.i('v_add_u32 v24, v24, v25')
    A.i('v_lshlrev_b32 v24, 4, v24'); A.i('v_add_u32 v21, v23, v24')
    A.i('s_lshl_b32 s45, s43, 5'); A.i('s_add_u32 s45, s45, s41'); A.i('s_mul_i32 s45, s45, 12288')
    A.i(f's_add_u32 s47, s45, {WS_QT}'); A.i(f's_add_u32 s45, s45, {WS_KT}')
    vm = VM(A)
    stages = [Stage(192, SRD_WK, 42, 64*12288) for _ in range(10)] + [Stage(192, SRD_WQ, 46, 64*12288) for _ in range(10)]
    e = Engine(A, vm, stages, FR)
    if KN.get('defer', False): e.after_first_barrier = lambda: pending_signal(A)
    e.prologue_parts = act_parts(A, vm, ACT, 40, 44, ' sc1' if KN['unified'] else '')
    steps = pass192_steps(0, ACCK, ACT, vm, True) + pass192_steps(10, ACCQ, ACT, vm, False)
    def qk():
        for t in range(6): e.side.extend(kq_store_tile(vm, ACCK+16*t, t, 45, TMP + 8*(t & 1)))
    steps[42]['pre'] = qk
    e.run(steps)
    tail()
    mark = [len(vm.q)]
    e.flush_side()
    A.i('s_nop 7')
    for t in range(6): e.side.extend(kq_store_tile(vm, ACCQ+16*t, t, 47, TMP + 8*(t & 1)))
    e.flush_side()
    task_end(A, vm, mark)
    A.i('s_lshl_b32 s48, s40, 5'); A.i('s_add_u32 s48, s48, s41'); A.i('s_lshl_b32 s48, s48, 7'); A.i(f's_add_u32 s48, s48, {FL_KQ}')

def task_vvo2(A, tail):
    ACT, FR = 0, 160
    VACC, VOP, ACC0, ACC1, TMP = 32, 128, 32, 176, 112
    A.i('s_mul_i32 s42, s41, 384')
    A.i(f's_mul_i32 s46, s41, {192*1280}')
    A.i('s_lshl_b32 s43, s40, 2'); A.i('s_add_u32 s43, s43, s16')
    A.i(f's_mul_i32 s44, s43, {40*1024}'); A.i(f's_add_u32 s44, s44, {WS_H}')
    vm = VM(A)
    stages = [Stage(192, SRD_WV, 42, 64*12288) for _ in range(10)] + wo_stages(SRD_WO, 46)
    e = Engine(A, vm, stages, FR)
    if KN.get('defer', False): e.after_first_barrier = lambda: pending_signal(A)
    e.prologue_parts = act_parts(A, vm, ACT, 40, 44, ' sc1' if KN['unified'] else '')
    steps = pass192_steps(0, VACC, ACT, vm, True)
    def conv():
        A.i('s_nop 7'); A.i('s_nop 7')
        for t in range(6):
            for a in range(2):
                for r in range(4):
                    s = VACC + 16*t + 8*a + 2*r
                    A.i(f'v_cvt_pk_bf16_f32 v{VOP + 4*(2*t+a) + r}, v{s}, v{s+1}')
        A.i('s_nop 1')
    steps[-1]['post'] = conv
    A.i('v_and_b32 v22, 63, v0'); A.i('v_and_b32 v23, 31, v22'); A.i('v_lshrrev_b32 v24, 3, v23'); A.i('v_lshlrev_b32 v24, 14, v24')
    A.i('v_lshrrev_b32 v25, 5, v22'); A.i('v_lshlrev_b32 v25, 8, v25'); A.i('v_and_b32 v23, 7, v23'); A.i('v_lshlrev_b32 v23, 4, v23')
    A.i('v_add3_u32 v21, v23, v24, v25')
    A.i(f's_mul_i32 s47, s43, {80*16384}'); A.i('s_lshr_b32 s23, s41, 1'); A.i('s_lshl_b32 s23, s23, 10'); A.i('s_add_u32 s47, s47, s23')
    A.i('s_and_b32 s23, s41, 1'); A.i('s_lshl_b32 s23, s23, 7'); A.i('s_add_u32 s47, s47, s23'); A.i(f's_add_u32 s47, s47, {WS_VOT}')
    def store_tile(cc, t, D):
        o = TMP + 8*(t & 1)
        L = []
        for q in range(4):
            L.append(f'v_cvt_pk_bf16_f32 v{o+2*q}, v{D+4*q}, v{D+4*q+1}')
            L.append(f'v_cvt_pk_bf16_f32 v{o+2*q+1}, v{D+4*q+2}, v{D+4*q+3}')
        L.append(f's_add_u32 s48, s47, {(cc*20 + t*4)*16384}')
        L.append('s_nop 0')
        for b in (0, 4):
            L.append(f'v_permlane32_swap_b32 v{o+b}, v{o+b+2}')
            L.append(f'v_permlane32_swap_b32 v{o+b+1}, v{o+b+3}')
        L.append(lambda: vm.issue(f'buffer_store_dwordx4 {vr(o)}, v21, s[8:11], s48 offen sc1'))
        L.append(lambda: vm.issue(f'buffer_store_dwordx4 {vr(o+4)}, v21, s[8:11], s48 offen offset:512 sc1'))
        return L
    steps += vo_pass(A, e, vm, 10, VOP, (ACC0, ACC1), store_tile)
    e.run(steps)
    tail()
    mark = [len(vm.q)]
    A.i('s_nop 7'); A.i('s_nop 7')
    for t in range(5):
        e.side.extend(store_tile(3, t, ACC1 + 16*t))
    e.flush_side()
    task_end(A, vm, mark)
    A.i('s_lshl_b32 s48, s40, 7'); A.i(f's_add_u32 s48, s48, {FL_VVO}')

def task_head(A, tail):
    ACT, FR = 0, 160
    VACC, VOP, ACC0, ACC1, TMP = 32, 128, 32, 176, 112
    ACCK, ACCQ, TMPK = 32, 128, 224
    A.i('s_mul_i32 s42, s41, 384'); A.i('s_mov_b32 s49, s42'); A.i('s_mov_b32 s50, s42')
    A.i(f's_mul_i32 s46, s41, {192*1280}')
    A.i('s_lshl_b32 s43, s40, 2'); A.i('s_add_u32 s43, s43, s16')
    A.i(f's_mul_i32 s44, s43, {40*1024}'); A.i(f's_add_u32 s44, s44, {WS_H}')
    vm = VM(A)
    stages = ([Stage(192, SRD_WV, 42, 64*12288) for _ in range(10)] + wo_stages(SRD_WO, 46) +
              [Stage(192, SRD_WK, 49, 64*12288) for _ in range(10)] + [Stage(192, SRD_WQ, 50, 64*12288) for _ in range(10)])
    e = Engine(A, vm, stages, FR)
    e.prologue_parts = act_parts(A, vm, ACT, 40, 44, ' sc1' if KN['unified'] else '')
    steps = pass192_steps(0, VACC, ACT, vm, True)
    def conv():
        A.i('s_nop 7'); A.i('s_nop 7')
        for t in range(6):
            for a in range(2):
                for r in range(4):
                    s = VACC + 16*t + 8*a + 2*r
                    A.i(f'v_cvt_pk_bf16_f32 v{VOP + 4*(2*t+a) + r}, v{s}, v{s+1}')
        A.i('s_nop 1')
    steps[-1]['post'] = conv
    A.i('v_and_b32 v22, 63, v0'); A.i('v_and_b32 v23, 31, v22'); A.i('v_lshrrev_b32 v24, 3, v23'); A.i('v_lshlrev_b32 v24, 14, v24')
    A.i('v_lshrrev_b32 v25, 5, v22'); A.i('v_lshlrev_b32 v25, 8, v25'); A.i('v_and_b32 v23, 7, v23'); A.i('v_lshlrev_b32 v23, 4, v23')
    A.i('v_add3_u32 v21, v23, v24, v25')
    A.i('v_lshrrev_b32 v23, 4, v22'); A.i('v_and_b32 v23, 1, v23'); A.i('v_mul_u32_u24 v23, 6144, v23')
    A.i('v_lshrrev_b32 v24, 5, v22'); A.i('v_lshlrev_b32 v24, 4, v24'); A.i('v_and_b32 v25, 15, v22'); A.i('v_add_u32 v24, v24, v25')
    A.i('v_lshlrev_b32 v24, 4, v24'); A.i('v_add_u32 v30, v23, v24')
    A.i(f's_mul_i32 s47, s43, {80*16384}'); A.i('s_lshr_b32 s23, s41, 1'); A.i('s_lshl_b32 s23, s23, 10'); A.i('s_add_u32 s47, s47, s23')
    A.i('s_and_b32 s23, s41, 1'); A.i('s_lshl_b32 s23, s23, 7'); A.i('s_add_u32 s47, s47, s23'); A.i(f's_add_u32 s47, s47, {WS_VOT}')
    A.i('s_lshl_b32 s45, s43, 5'); A.i('s_add_u32 s45, s45, s41'); A.i('s_mul_i32 s45, s45, 12288')
    A.i(f's_add_u32 s51, s45, {WS_QT}'); A.i(f's_add_u32 s45, s45, {WS_KT}')
    def store_tile(cc, t, D, tmp=TMP):
        o = tmp + 8*(t & 1)
        L = []
        for q in range(4):
            L.append(f'v_cvt_pk_bf16_f32 v{o+2*q}, v{D+4*q}, v{D+4*q+1}')
            L.append(f'v_cvt_pk_bf16_f32 v{o+2*q+1}, v{D+4*q+2}, v{D+4*q+3}')
        L.append(f's_add_u32 s48, s47, {(cc*20 + t*4)*16384}')
        L.append('s_nop 0')
        for b in (0, 4):
            L.append(f'v_permlane32_swap_b32 v{o+b}, v{o+b+2}')
            L.append(f'v_permlane32_swap_b32 v{o+b+1}, v{o+b+3}')
        L.append(lambda: vm.issue(f'buffer_store_dwordx4 {vr(o)}, v21, s[8:11], s48 offen sc1'))
        L.append(lambda: vm.issue(f'buffer_store_dwordx4 {vr(o+4)}, v21, s[8:11], s48 offen offset:512 sc1'))
        return L
    steps += vo_pass(A, e, vm, 10, VOP, (ACC0, ACC1), store_tile)
    ks_ = pass192_steps(22, ACCK, ACT, vm, False)
    def last_vo():
        for t in range(5): e.side.extend(store_tile(3, t, ACC1 + 16*t, VOP))
    ks_[1]['pre'] = last_vo
    qs_ = pass192_steps(32, ACCQ, ACT, vm, False)
    def kq_tiles(acc, soff):
        for t in range(6):
            L = kq_store_tile(vm, acc+16*t, t, soff, TMPK + 8*(t & 1), addr=30)
            e.side.extend(L)
    qs_[0]['pre'] = lambda: e.flush_side()
    qs_[2]['pre'] = lambda: kq_tiles(ACCK, 45)
    steps += ks_ + qs_
    e.run(steps)
    tail()
    e.flush_side()
    A.i('s_nop 7')
    kq_tiles(ACCQ, 51)
    e.flush_side()
    vm.wait_all()
    A.i('s_lshl_b32 s48, s40, 7'); A.i(f's_add_u32 s48, s48, {FL_VVO}')
    A.i('s_lshl_b32 s49, s40, 5'); A.i('s_add_u32 s49, s49, s41'); A.i('s_lshl_b32 s49, s49, 7'); A.i(f's_add_u32 s49, s49, {FL_KQ}')

def wait_dep(A, off_sgpr, target, backoff=12):
    l0, l1 = A.new('dep'), A.new('dep')
    A.i('s_cmp_eq_u32 s16, 0'); A.i(f's_cbranch_scc0 {l1}')
    A.i('s_mov_b32 s22, 0'); A.i('v_mov_b32 v22, 0')
    A.label(l0)
    A.i(f'buffer_load_dword v23, v22, s[8:11], s{off_sgpr} offen sc1')
    A.i('s_add_u32 s22, s22, 1'); A.i(f's_cmp_gt_u32 s22, {SPIN_MAX//8}'); A.i(f's_cbranch_scc1 {l1}')
    A.i('s_waitcnt vmcnt(0)'); A.i('v_readfirstlane_b32 s23, v23'); A.i('s_nop 3')
    A.i(f's_cmp_ge_u32 s23, {target}'); A.i(f's_cbranch_scc1 {l1}')
    A.i(f's_sleep {backoff}'); A.i(f's_branch {l0}')
    A.label(l1)
    A.i('s_barrier')

def wait_words(A, off_sgpr, n, backoff=12, grouped=False):
    l0, l1 = A.new('dw'), A.new('dw')
    A.i('s_cmp_eq_u32 s16, 0'); A.i(f's_cbranch_scc0 {l1}')
    A.i('s_mov_b32 s22, 0')
    A.i('v_and_b32 v22, 63, v0'); A.i('v_min_u32 v24, %d, v22' % (min(n, 64)-1))
    if grouped:
        A.i('v_lshrrev_b32 v25, 3, v24'); A.i('v_lshlrev_b32 v25, 7, v25'); A.i('v_and_b32 v24, 7, v24'); A.i('v_lshlrev_b32 v24, 2, v24'); A.i('v_add_u32 v24, v24, v25')
    else: A.i('v_lshlrev_b32 v24, 2, v24')
    if n > 64:
        A.i('v_add_u32 v25, 64, v22'); A.i(f'v_min_u32 v25, {n-1}, v25'); A.i('v_lshlrev_b32 v25, 2, v25')
    A.label(l0)
    A.i(f'buffer_load_dword v23, v24, s[8:11], s{off_sgpr} offen sc1')
    if n > 64: A.i(f'buffer_load_dword v26, v25, s[8:11], s{off_sgpr} offen sc1')
    A.i('s_add_u32 s22, s22, 1'); A.i(f's_cmp_gt_u32 s22, {SPIN_MAX//8}'); A.i(f's_cbranch_scc1 {l1}')
    A.i('s_waitcnt vmcnt(0)')
    if n > 64: A.i('v_min_u32 v23, v23, v26')
    A.i('v_cmp_eq_u32 vcc, 0, v23'); A.i(f's_cbranch_vccz {l1}')
    A.i(f's_sleep {backoff}'); A.i(f's_branch {l0}')
    A.label(l1)
    A.i('s_barrier')

SRD_WG, SRD_WU, SRD_WD, SRD_X, SRD_OUT = 68, 72, 76, 80, 84
NENG = 14
EKEYS = (7.5, 10, 17)
KEYS = (1, 3.5, 5, 7)
NWFA = 32
NF2F = 3
NBACK = 10
def post_table():
    TA, T = [], []
    for i in range(NWFA): TA.append((8 << 16) | i)
    for r in range(NENG):
        for i in range(20): TA.append((0 << 16) | (r << 8) | i)
    def e(ty, a, n):
        if ty == 3 and a >= NENG - NF2F:
            for sg in range(4*a, 4*a+4):
                for i in range(10): T.append((9 << 16) | (sg << 8) | i)
            return
        for i in range(n): T.append((ty << 16) | (a << 8) | i)
    for i in range(NWFA, 256): T.append((8 << 16) | i)
    ST = ((1, 4), (2, 8), (3, 4))
    for ty, n in ST:
        for r in range(NBACK): e(ty, r, n)
    items = []
    for r in range(NBACK, NENG):
        for st, off in zip(ST, EKEYS): items.append((4*r + off, 0, st[0], r, st[1]))
    s0 = 4*NENG
    FS = ((4, 10), (5, 2), (6, 24), (7, 10))
    for ty_i, (ty, n) in enumerate(FS):
        for r in range(s0, 64): items.append((r + KEYS[ty_i], 1 - ty_i*0.01, ty, r, n))
    for _, _, ty, r, n in sorted(items): e(ty, r, n)
    global NPA
    NPA = len(TA)
    return TA + T
POST_T = post_table()
NPOST = len(POST_T)

def gen_post(A, fetch, publish, log_end):
    A.label('P_phase')
    for reg, key, nb in ((SRD_WG, 'wg', 640*3072), (SRD_WU, 'wu', 640*3072), (SRD_WD, 'wd', 1536*1280), (SRD_X, 'x', 2048*1280), (SRD_OUT, 'out', 2048*1280)):
        A.i(f's_load_dwordx2 s[6:7], s[0:1], {KA[key]}'); A.i('s_waitcnt lgkmcnt(0)'); srd(A, reg, 6, nb)
    A.i(f's_load_dwordx2 s[6:7], s[0:1], {KA["dbg"]}'); A.i('s_waitcnt lgkmcnt(0)'); srd(A, 12, 6, 256)
    A.i('s_mov_b32 s54, 0'); A.i('s_mov_b32 s95, -1')
    A.label('P_refetch')
    fetch(); A.i('s_waitcnt vmcnt(0)'); publish()
    A.i('s_barrier')
    A.label('P_loop')
    A.i(f'v_mov_b32 v22, {LDS_BC}'); A.i('ds_read_b32 v23, v22'); A.i('s_waitcnt lgkmcnt(0)'); A.i('v_readfirstlane_b32 s60, v23'); A.i('s_nop 3')
    A.i('s_barrier')
    A.i('s_cmp_eq_u32 s58, 4'); A.i('s_cbranch_scc0 P_qb')
    A.i(f's_cmp_ge_u32 s60, {NPA}'); A.i('s_cbranch_scc0 P_go')
    A.i('s_mov_b32 s58, 5'); A.i('s_branch P_refetch')
    A.label('P_qb')
    A.i(f's_add_u32 s60, s60, {NPA}')
    A.i(f's_cmp_ge_u32 s60, {NPOST}'); A.i('s_cbranch_scc0 P_go')
    ts_stamp(A, 5)
    A.i('s_waitcnt vmcnt(0)'); A.i('s_endpgm')
    A.label('P_go')
    A.i('s_getpc_b64 s[92:93]')
    A.label('P_pc')
    A.i('s_add_u32 s92, s92, P_table-P_pc'); A.i('s_addc_u32 s93, s93, 0')
    A.i('s_lshl_b32 s23, s60, 2'); A.i('s_load_dword s57, s[92:93], s23'); A.i('s_waitcnt lgkmcnt(0)')
    A.i('s_lshr_b32 s56, s57, 16'); A.i('s_lshr_b32 s40, s57, 8'); A.i('s_and_b32 s40, s40, 255'); A.i('s_and_b32 s41, s57, 255')
    if KN['log']: A.i('s_memrealtime s[62:63]'); A.i('s_waitcnt lgkmcnt(0)')
    for ty, lab in ((9, 'P_f2g'), (8, 'P_wf'), (7, 'P_f2f'), (6, 'P_f1f'), (5, 'P_lnf'), (4, 'P_t2f'), (3, 'P_f2'), (2, 'P_f1'), (1, 'P_ln')):
        A.i(f's_cmp_eq_u32 s56, {ty}'); A.i(f's_cbranch_scc1 {lab}')
    A.i('s_mul_i32 s24, s41, 13108'); A.i('s_lshr_b32 s24, s24, 16')
    A.i('s_mul_i32 s25, s24, 5'); A.i('s_sub_u32 s41, s41, s25')
    A.i('s_mov_b32 s55, s40'); A.i('s_lshl_b32 s40, s40, 2'); A.i('s_add_u32 s40, s40, s24')
    def wait_seg(bo=12, regs=(48, 49)):
        r0, r1 = regs
        l5, l6 = A.new('ws'), A.new('ws')
        A.i('s_cmp_ge_u32 s40, 62'); A.i(f's_cbranch_scc1 {l5}')
        A.i(f's_add_u32 s{r0}, s40, 1'); A.i(f's_lshl_b32 s{r0}, s{r0}, 9'); A.i(f's_add_u32 s{r0}, s{r0}, {FL_PT}')
        wait_words(A, r0, 32, bo, grouped=True)
        A.i(f's_branch {l6}')
        A.label(l5)
        A.i(f's_mov_b32 s{r0}, {FL_PT + 63*512}'); A.i(f's_mov_b32 s{r1}, {FL_VM}')
        wait_words(A, r0, 32, 2, grouped=True); wait_words(A, r1, 80, 2)
        A.label(l6)
    wait_seg(KN.get('boA', 40))
    post.task_t2(A, sc=' sc1', xsrd=SRD_X, tail=fetch)
    A.i('s_lshl_b32 s48, s55, 7'); A.i(f's_add_u32 s48, s48, {FL_T2}')
    A.i('s_branch P_end')
    A.label('P_ln')
    A.i('s_mov_b32 s55, s40')
    A.i('s_lshl_b32 s48, s40, 7'); A.i(f's_add_u32 s48, s48, {FL_T2}')
    wait_dep(A, 48, 20)
    A.i('s_lshl_b32 s40, s40, 2'); A.i('s_add_u32 s40, s40, s41'); A.i('s_lshl_b32 s40, s40, 1')
    A.i(f's_mov_b32 s27, {WS_X1}')
    for it in range(2):
        small.role_ln(A, lambda: None, 's27', 3, 4, WS_H2, sc=' sc1', ssrd=8)
        if it == 0: A.i('s_add_u32 s40, s40, 1')
    fetch()
    A.i('s_waitcnt vmcnt(0)')
    A.i('s_lshl_b32 s48, s55, 7'); A.i(f's_add_u32 s48, s48, {FL_LN}')
    A.i('s_branch P_end')
    A.label('P_f1')
    A.i('s_lshl_b32 s48, s40, 7'); A.i(f's_add_u32 s48, s48, {FL_LN}')
    wait_dep(A, 48, 4)
    setup_lane(A)
    post.task_ffn1(A, sc=' sc1', srds=(SRD_WG, SRD_WU), tail=fetch)
    A.i('s_lshl_b32 s48, s40, 7'); A.i(f's_add_u32 s48, s48, {FL_F1}')
    A.i('s_branch P_end')
    A.label('P_f2')
    A.i('s_lshl_b32 s48, s40, 7'); A.i(f's_add_u32 s48, s48, {FL_F1}')
    wait_dep(A, 48, 8)
    setup_lane(A)
    post.task_ffn2(A, sc=' sc1', srds=(SRD_WD, SRD_OUT), tail=fetch)
    A.i('s_mov_b32 s48, -1')
    A.i('s_branch P_end')
    A.label('P_t2f')
    lab = A.new('vvok')
    A.i('s_lshr_b32 s55, s40, 2'); A.i('s_cmp_eq_u32 s55, s95'); A.i(f's_cbranch_scc1 {lab}')
    A.i('s_lshl_b32 s48, s55, 7'); A.i(f's_add_u32 s48, s48, {FL_VVO}'); wait_dep(A, 48, 32, 4); A.i('s_mov_b32 s95, s55')
    A.label(lab)
    fast.task_t2f(A, SRD_X, fetch, lambda: wait_seg(KN.get('boF', 8), (52, 53)))
    A.i('s_lshl_b32 s48, s40, 7'); A.i(f's_add_u32 s48, s48, {FL_T2S}')
    A.i('s_branch P_end')
    A.label('P_lnf')
    A.i('s_mov_b32 s55, s40')
    A.i('s_lshl_b32 s48, s40, 7'); A.i(f's_add_u32 s48, s48, {FL_T2S}')
    A.i('s_lshl_b32 s40, s40, 1'); A.i('s_add_u32 s40, s40, s41')
    A.i(f's_mov_b32 s27, {WS_X1}')
    small.role_ln(A, lambda: None, 's27', 3, 4, WS_H2, sc=' sc1', ssrd=8, dep=lambda: wait_dep(A, 48, 10, 2))
    fetch()
    A.i('s_waitcnt vmcnt(0)')
    A.i('s_lshl_b32 s48, s55, 7'); A.i(f's_add_u32 s48, s48, {FL_LNS - 48*128}')
    A.i('s_branch P_end')
    A.label('P_wf')
    A.i('s_mov_b32 s40, s41')
    small.role_wfrag(A, ' sc1')
    fetch(); A.i('s_waitcnt vmcnt(0)')
    A.i(f's_mov_b32 s48, {FL_WF}')
    A.i('s_branch P_end')
    def wf_ready():
        lab = A.new('wfok')
        A.i('s_cmp_eq_u32 s54, 1'); A.i(f's_cbranch_scc1 {lab}')
        A.i(f's_mov_b32 s48, {FL_WF}'); wait_dep(A, 48, 256, 8); A.i('s_mov_b32 s54, 1')
        A.label(lab)
    A.label('P_f1f')
    wf_ready()
    A.i('s_lshl_b32 s55, s40, 7'); A.i(f's_add_u32 s55, s55, {FL_LNS - 48*128}')
    fast.task_f1f(A, fetch, lambda: wait_dep(A, 55, 2, 2))
    A.i('s_lshl_b32 s48, s40, 7'); A.i(f's_add_u32 s48, s48, {FL_F1S - 48*128}')
    A.i('s_branch P_end')
    A.label('P_f2g')
    A.i('s_lshr_b32 s55, s40, 2'); A.i('s_lshl_b32 s55, s55, 7'); A.i(f's_add_u32 s55, s55, {FL_F1}'); A.i('s_mov_b32 s53, 8')
    A.i('s_branch P_f2c')
    A.label('P_f2f')
    A.i('s_lshl_b32 s55, s40, 7'); A.i(f's_add_u32 s55, s55, {FL_F1S - 48*128}'); A.i('s_mov_b32 s53, 24')
    A.label('P_f2c')
    wf_ready()
    fast.task_f2f(A, SRD_OUT, fetch, lambda: wait_dep(A, 55, 's53', 2))
    A.i('s_mov_b32 s48, -1')
    A.label('P_end')
    publish()
    A.i('s_barrier')
    lab = A.new('P_nosig')
    A.i('s_cmp_eq_u32 s48, -1'); A.i(f's_cbranch_scc1 {lab}')
    signal_add(A, 48)
    A.label(lab)
    log_end(4*QLEN)
    A.i('s_branch P_loop')
    A.L.append('.p2align 2')
    A.L.append('.type P_table,@object')
    A.label('P_table')
    for i in range(0, NPOST, 16):
        A.L.append('.long ' + ','.join(str(x) for x in POST_T[i:i+16]))
    A.L.append(f'.size P_table, {4*NPOST}')

NSPLIT = 256
QLEN = NSPLIT + (16 - NSPLIT//16)*8
def gen_startup(A):
    get_xcc(A, 58); A.i('s_cmp_lt_u32 s58, 4'); A.i('s_cbranch_scc0 U_boot')
    b_tasks(A, None, 'W')
    A.label('U_more')
    ws_take(A, BT_SQ, 84)
    A.i('s_cmp_lt_u32 s84, 97'); A.i('s_cbranch_scc0 U_ln')
    A.i('s_mov_b32 s82, 0'); A.i('s_branch U_do')
    A.label('U_boot')
    boot_wait(A, 22)
    ws_take(A, BT_SQ, 84)
    A.i('s_mov_b32 s82, 1')
    A.label('U_do')
    A.i('s_cmp_lt_u32 s84, 60'); A.i('s_cbranch_scc0 U_a')
    A.i('s_mov_b32 s40, s84'); small.role_mod(A, True, inmain=True); A.i('s_branch U_more')
    A.label('U_a')
    A.i('s_cmp_lt_u32 s84, 64'); A.i('s_cbranch_scc0 U_b')
    A.i('s_sub_u32 s40, s84, 60'); small.role_zero(A); A.i('s_branch U_init')
    A.label('U_b')
    A.i('s_cmp_lt_u32 s84, 96'); A.i('s_cbranch_scc0 U_c')
    A.i('s_sub_u32 s40, s84, 64'); small.role_fill(A, 32); A.i('s_branch U_init')
    A.label('U_c')
    A.i('s_cmp_eq_u32 s84, 96'); A.i('s_cbranch_scc0 U_bt')
    small.role_mem0(A)
    A.label('U_init')
    A.i('s_barrier'); ws_add(A, BT_INIT, 22)
    A.label('U_bt')
    A.i('s_cmp_eq_u32 s82, 1'); A.i('s_cbranch_scc0 U_more')
    b_tasks(A, KN.get('wB', 1), 'X')
    A.i('s_branch U_more')
    A.label('U_ln')
    ws_take(A, BT_LQ, 84)
    A.i('s_cmp_lt_u32 s84, 128'); A.i('s_cbranch_scc0 U_done')
    A.i('s_mov_b32 s40, s84')
    def su():
        A.i(f's_load_dwordx2 s[6:7], s[0:1], {KA["x"]}'); A.i('s_waitcnt lgkmcnt(0)'); srd(A, 36, 6, 2048*1280)
    small.role_ln(A, su, '0', 0, 1, WS_H, sc=' sc1', ssrd=36, wait_mod='main')
    A.i('s_barrier')
    lab = A.new('U_sig')
    A.i('s_cmp_eq_u32 s16, 0'); A.i(f's_cbranch_scc0 {lab}')
    A.i('s_lshr_b32 s23, s40, 3'); A.i('s_lshl_b32 s23, s23, 7'); A.i(f's_add_u32 s23, s23, {BT_LN}')
    A.i('s_mov_b64 exec, 1'); A.i('v_mov_b32 v22, 1'); A.i('v_mov_b32 v23, s23')
    A.i('buffer_atomic_add v22, v23, s[8:11], 0 offen'); A.i('s_mov_b64 exec, -1')
    A.label(lab)
    A.i('s_branch U_ln')
    A.label('U_done')
    ts_stamp(A, 1, 22)
    ws_wait(A, BT_INIT, N_INIT, 22)
    ts_stamp(A, 3, 22)
    A.i('s_mov_b32 s96, -1')

def ln_ready(A):
    if not KN['unified']: return
    lab, l0, l1 = A.new('lnr'), A.new('lnr'), A.new('lnr')
    A.i('s_cmp_eq_u32 s40, s96'); A.i(f's_cbranch_scc1 {lab}')
    A.i('s_cmp_eq_u32 s16, 0'); A.i(f's_cbranch_scc0 {l1}')
    A.i('s_lshl_b32 s25, s40, 7'); A.i(f's_add_u32 s25, s25, {BT_LN}'); A.i('v_mov_b32 v22, s25'); A.i('s_mov_b32 s22, 0')
    A.label(l0)
    A.i('buffer_load_dword v23, v22, s[8:11], 0 offen sc1')
    A.i('s_add_u32 s22, s22, 1'); A.i(f's_cmp_gt_u32 s22, {SPIN_MAX//4}'); A.i(f's_cbranch_scc1 {l1}')
    A.i('s_waitcnt vmcnt(0)'); A.i('v_readfirstlane_b32 s23, v23'); A.i('s_nop 3')
    A.i('s_cmp_ge_u32 s23, 8'); A.i(f's_cbranch_scc1 {l1}'); A.i('s_sleep 3'); A.i(f's_branch {l0}')
    A.label(l1)
    A.i('s_barrier')
    A.i('s_mov_b32 s96, s40')
    A.label(lab)

def gen_worker(A):
    gemm.set_ring(W_NSLOT)
    A.label('W_role')
    if KN['unified']: gen_startup(A)
    if KN['post'] and KN.get('spareA', True):
        get_xcc(A, 58)
        if KN.get('farA'):
            A.i('s_cmp_ge_u32 s58, 4'); A.i('s_cbranch_scc0 W_pre'); A.i('s_cmp_lt_u32 s81, 4'); A.i('s_cbranch_scc0 W_pre')
        else:
            A.i('s_cmp_lt_u32 s58, 4'); A.i('s_cbranch_scc0 W_pre')
        A.label('W_serveA')
        lab = A.new('W_reg')
        A.i('s_barrier')
        A.i('s_cmp_eq_u32 s16, 0'); A.i(f's_cbranch_scc0 {lab}')
        A.i('s_mov_b64 exec, 1'); A.i('v_mov_b32 v22, 1'); A.i('v_mov_b32 v23, 104')
        A.i('buffer_atomic_add v22, v23, s[12:15], 0 offen sc0'); A.i('s_waitcnt vmcnt(0)')
        A.i(f'v_mov_b32 v23, {LDS_BC + 32}'); A.i('ds_write_b32 v23, v22'); A.i('s_waitcnt lgkmcnt(0)'); A.i('s_mov_b64 exec, -1')
        A.label(lab)
        A.i('s_barrier')
        A.i(f'v_mov_b32 v23, {LDS_BC + 32}'); A.i('ds_read_b32 v22, v23'); A.i('s_waitcnt lgkmcnt(0)'); A.i('v_readfirstlane_b32 s23, v22'); A.i('s_nop 3')
        A.i('s_cmp_lt_u32 s23, 16'); A.i('s_cbranch_scc0 W_notA')
        A.i('s_mov_b32 s58, 4')
        A.i('s_getpc_b64 s[92:93]')
        A.label('W_pc')
        A.i('s_add_u32 s92, s92, P_phase-W_pc'); A.i('s_addc_u32 s93, s93, 0'); A.i('s_setpc_b64 s[92:93]')
        A.label('W_notA')
        A.label('W_pre')
    if KN.get('nospare'):
        get_xcc(A, 58); A.i('s_cmp_lt_u32 s58, 4'); A.i('s_cbranch_scc0 W_go0')
        A.i('s_endpgm')
        A.label('W_go0')
    for reg, key, nb in ((SRD_WQ, 'wq', 640*12288), (SRD_WK, 'wk', 640*12288), (SRD_WV, 'wv', 640*12288), (SRD_WO, 'wo', 6144*1280)):
        A.i(f's_load_dwordx2 s[6:7], s[0:1], {KA[key]}'); A.i('s_waitcnt lgkmcnt(0)'); srd(A, reg, 6, nb)
    A.i(f's_load_dwordx2 s[6:7], s[0:1], {KA["dbg"]}'); A.i('s_waitcnt lgkmcnt(0)'); srd(A, 12, 6, 256)
    setup_lane(A); setup_dma192(A, 12288); setup_dma160(A, 1280)
    get_xcc(A, 58); A.i('s_and_b32 s58, s58, 3')
    A.i('s_mov_b32 s59, 0')
    A.i('s_mov_b32 s52, -1')
    def fetch():
        lab = A.new('W_f')
        A.i('s_cmp_eq_u32 s16, 0'); A.i(f's_cbranch_scc0 {lab}')
        A.i('s_lshl_b32 s23, s58, 2'); A.i(f's_add_u32 s23, s23, {Q_WORD}')
        A.i('s_mov_b64 exec, 1'); A.i(f'v_mov_b32 v{vNEXT}, 1'); A.i('v_mov_b32 v22, s23')
        A.i(f'buffer_atomic_add v{vNEXT}, v22, s[12:15], 0 offen sc0')
        A.i('s_mov_b64 exec, -1')
        A.label(lab)
    def publish():
        lab = A.new('W_p')
        A.i('s_cmp_eq_u32 s16, 0'); A.i(f's_cbranch_scc0 {lab}')
        A.i('s_mov_b64 exec, 1'); A.i(f'v_mov_b32 v22, {LDS_BC}'); A.i(f'ds_write_b32 v22, v{vNEXT}'); A.i('s_waitcnt lgkmcnt(0)')
        A.i('s_mov_b64 exec, -1')
        A.label(lab)
    A.label('W_refetch')
    fetch(); A.i('s_waitcnt vmcnt(0)'); publish()
    A.i('s_barrier')
    A.label('W_loop')
    A.i(f'v_mov_b32 v22, {LDS_BC}'); A.i('ds_read_b32 v23, v22'); A.i('s_waitcnt lgkmcnt(0)'); A.i('v_readfirstlane_b32 s60, v23'); A.i('s_nop 3')
    A.i('s_barrier')
    A.i(f's_cmp_ge_u32 s60, {QLEN}'); A.i('s_cbranch_scc0 W_have')
    if KN.get('defer', False):
        A.i('s_waitcnt vmcnt(0)'); A.i('s_barrier'); pending_signal(A)
    A.i('s_add_u32 s59, s59, 1'); A.i('s_cmp_ge_u32 s59, 4'); A.i('s_cbranch_scc1 W_done')
    A.i('s_add_u32 s58, s58, 1'); A.i('s_and_b32 s58, s58, 3'); A.i('s_branch W_refetch')
    A.label('W_have')
    A.i('s_mov_b32 s61, s58')
    if KN['log']: A.i('s_memrealtime s[62:63]'); A.i('s_waitcnt lgkmcnt(0)')
    if NSPLIT < 256: A.i(f's_cmp_lt_u32 s60, {NSPLIT}'); A.i('s_cbranch_scc0 W_head')
    A.i('s_and_b32 s40, s60, 1'); A.i('s_lshr_b32 s23, s60, 5'); A.i('s_lshl_b32 s23, s23, 1'); A.i('s_add_u32 s40, s40, s23')
    A.i('s_lshr_b32 s41, s60, 2'); A.i('s_and_b32 s41, s41, 7'); A.i('s_lshl_b32 s23, s61, 3'); A.i('s_add_u32 s41, s41, s23')
    ln_ready(A)
    A.i('s_bitcmp1_b32 s60, 1'); A.i('s_cbranch_scc1 W_kq')
    task_vvo2(A, fetch)
    A.i('s_mov_b32 s49, -1')
    A.i('s_branch W_end')
    A.label('W_kq')
    task_kq2(A, fetch)
    A.i('s_mov_b32 s49, s48'); A.i('s_mov_b32 s48, -1')
    if NSPLIT < 256:
        A.i('s_branch W_end')
        A.label('W_head')
        A.i(f's_sub_u32 s23, s60, {NSPLIT}')
        A.i('s_lshr_b32 s40, s23, 5'); A.i('s_lshl_b32 s40, s40, 2'); A.i('s_and_b32 s24, s23, 3'); A.i('s_add_u32 s40, s40, s24'); A.i(f's_add_u32 s40, s40, {NSPLIT//16}')
        A.i('s_lshr_b32 s41, s23, 2'); A.i('s_and_b32 s41, s41, 7')
        A.i('s_lshl_b32 s23, s61, 3'); A.i('s_add_u32 s41, s41, s23')
        task_head(A, fetch)
    A.label('W_end')
    if TS['on']:
        lab = A.new('ts1'); A.i('s_cmp_lt_u32 s60, 32'); A.i(f's_cbranch_scc0 {lab}'); ts_stamp(A, 9, 22); A.label(lab)
    publish()
    A.i('s_barrier')
    if KN.get('defer', False) and NSPLIT == 256:
        A.i('s_cmp_eq_u32 s48, -1'); A.i('s_cselect_b32 s52, s49, s48')
        lab = A.new('W_later')
        A.i('s_cmp_lt_u32 s60, 32'); A.i(f's_cbranch_scc0 {lab}')
        pending_signal(A)
        A.label(lab)
    else:
      for r in (48, 49):
        lab = A.new('W_nosig')
        A.i(f's_cmp_eq_u32 s{r}, -1'); A.i(f's_cbranch_scc1 {lab}')
        signal_add(A, r)
        A.label(lab)
    def log_end(base, mulq=False):
        if not KN['log']: return
        A.i('s_memrealtime s[64:65]'); A.i('s_waitcnt lgkmcnt(0)')
        A.i('s_getreg_b32 s66, hwreg(HW_REG_XCC_ID)')
        A.i('s_lshl_b32 s66, s66, 16'); A.i('s_lshl_b32 s23, s40, 8'); A.i('s_or_b32 s66, s66, s23'); A.i('s_or_b32 s66, s66, s41')
        A.i('v_mov_b32 v24, s62'); A.i('v_mov_b32 v25, s64'); A.i('v_mov_b32 v26, s66'); A.i('v_mov_b32 v27, s60'); A.i('v_mov_b32 v23, 0')
        if mulq: A.i(f's_mul_i32 s23, s61, {QLEN}'); A.i('s_add_u32 s23, s23, s60')
        else: A.i(f's_add_u32 s23, s60, {base}')
        A.i('s_lshl_b32 s23, s23, 4'); A.i(f's_add_u32 s23, s23, {WS_LOG + 0x30000}')
        A.i('s_mov_b64 exec, 1'); A.i('buffer_store_dwordx4 v[24:27], v23, s[8:11], s23 offen'); A.i('s_mov_b64 exec, -1')
    log_end(0, True)
    A.i('s_branch W_loop')
    A.label('W_done')
    if KN['post'] and KN.get('spareA', True):
        lab = A.new('W_cnt')
        A.i('s_cmp_eq_u32 s16, 0'); A.i(f's_cbranch_scc0 {lab}')
        A.i('v_mov_b32 v22, 104'); A.i('buffer_load_dword v23, v22, s[12:15], 0 offen sc1'); A.i('s_waitcnt vmcnt(0)')
        A.i(f'v_mov_b32 v22, {LDS_BC + 16}'); A.i('ds_write_b32 v22, v23'); A.i('s_waitcnt lgkmcnt(0)')
        A.label(lab)
        A.i('s_barrier')
        A.i(f'v_mov_b32 v22, {LDS_BC + 16}'); A.i('ds_read_b32 v23, v22'); A.i('s_waitcnt lgkmcnt(0)')
        A.i('v_readfirstlane_b32 s23, v23'); A.i('s_nop 3'); A.i('s_cmp_lt_u32 s23, 4'); A.i('s_cbranch_scc0 W_toB')
        A.i('s_getpc_b64 s[92:93]')
        A.label('W_pc2')
        A.i('s_sub_u32 s92, s92, W_pc2-W_serveA'); A.i('s_subb_u32 s93, s93, 0'); A.i('s_setpc_b64 s[92:93]')
        A.label('W_toB')
    A.i('s_mov_b32 s58, 5')
    if KN['post']: gen_post(A, fetch, publish, log_end)
    else: A.i('s_waitcnt vmcnt(0)'); A.i('s_endpgm')
    gemm.set_ring(4)
```
